```python
import torch

def _softmax(x, axis=-1):
    return torch.softmax(x, dim=axis)

def _gelu(x):
    return torch.nn.functional.gelu(x, approximate='tanh')

def _silu(x):
    return torch.nn.functional.silu(x)

def _sigmoid(x):
    return torch.sigmoid(x)

def _layernorm(x, axis=-1, eps=1e-05):
    m = x.mean(dim=axis, keepdim=True)
    v = x.var(dim=axis, keepdim=True, unbiased=False)
    return (x - m) / torch.sqrt(v + eps)

def _scatter_add(tgt, idx, src, axis=0):
    return tgt.clone().index_add_(axis, idx, src)

def _segment_sum(src, seg, n):
    out = torch.zeros((n,) + src.shape[1:], dtype=src.dtype)
    return out.index_add_(0, seg, src)

def _pad(x, pw):
    flat = tuple((v for pair in reversed(pw) for v in pair))
    return torch.nn.functional.pad(x, flat)
kernel_name = 'parallel_sum__memory_aug_recurrent_mem_tr__mixer_token_mlp__prompt'

def setup_inputs():

    _w = lambda a: (lambda t: t.to(torch.bfloat16) if t.is_floating_point() else t)(torch.as_tensor(a))

    def _A_setup():
        B, S, Dm = (1, 2048, 576)
        H, Dh = (32, 128)
        M, seg = (8, 32)
        seg = min(seg, S)
        S = S // seg * seg
        return {'x': _w((lambda *s: torch.randn(*s, dtype=torch.bfloat16) * 0.05)(B, S, Dm)), 'mem0': _w((lambda *s: torch.randn(*s, dtype=torch.bfloat16) * 0.2)(B, M, Dm)), 'Wq': _w((lambda *s: torch.randn(*s, dtype=torch.bfloat16) * 1.6)(Dm, H, Dh) * Dm ** (-0.5)), 'Wk': _w((lambda *s: torch.randn(*s, dtype=torch.bfloat16) * 1.6)(Dm, H, Dh) * Dm ** (-0.5)), 'Wv': _w((lambda *s: torch.randn(*s, dtype=torch.bfloat16) * 0.2)(Dm, H, Dh) * Dm ** (-0.5)), 'Wo': _w((lambda *s: torch.randn(*s, dtype=torch.bfloat16) * 0.2)(H, Dh, Dm) * (H * Dh) ** (-0.5)), 'seg_len': seg}
    _A_in = _A_setup()

    def _B_setup():
        B, S, D, F = (1, 2048, 576, 4608)
        return {'x': _w((lambda *s: torch.randn(*s, dtype=torch.bfloat16) * 0.05)(B, S, D)), 'w1': _w((lambda *s: torch.randn(*s, dtype=torch.bfloat16) * 0.4)(S, F) * S ** (-0.5)), 'b1': _w((lambda *s: torch.randn(*s, dtype=torch.bfloat16) * 3.2)(F) * 0.02), 'w2': _w((lambda *s: torch.randn(*s, dtype=torch.bfloat16) * 0.2)(F, S) * F ** (-0.5)), 'b2': _w((lambda *s: torch.randn(*s, dtype=torch.bfloat16) * 0.4)(S) * 0.02)}
    _B_in = _B_setup()
    return {'A_x': _A_in['x'], 'A_mem0': _A_in['mem0'], 'A_Wq': _A_in['Wq'], 'A_Wk': _A_in['Wk'], 'A_Wv': _A_in['Wv'], 'A_Wo': _A_in['Wo'], 'A_seg_len': _A_in['seg_len'], 'B_x': _B_in['x'], 'B_w1': _B_in['w1'], 'B_b1': _B_in['b1'], 'B_w2': _B_in['w2'], 'B_b2': _B_in['b2']}

def reference(A_x, A_mem0, A_Wq, A_Wk, A_Wv, A_Wo, A_seg_len, B_x, B_w1, B_b1, B_w2, B_b2):

    def _A_ref(x, mem0, Wq, Wk, Wv, Wo, seg_len):
        B, S, Dm = x.shape
        H, Dh = (Wq.shape[1], Wq.shape[2])
        M = mem0.shape[1]
        scale = Dh ** (-0.5)
        n_seg = S // seg_len
        L = M + seg_len
        idx = torch.arange(L)
        mask = (idx[:, None] < M) | (idx[:, None] >= idx[None, :])
        mem = mem0
        outs = []
        for s in range(n_seg):
            xs = x[:, s * seg_len:(s + 1) * seg_len, :].clone()
            h = torch.concatenate([mem, xs], axis=1)
            q = torch.einsum('btd,dhe->bhte', h, Wq)
            k = torch.einsum('btd,dhe->bhte', h, Wk)
            v = torch.einsum('btd,dhe->bhte', h, Wv)
            scores = torch.einsum('bhqe,bhke->bhqk', q, k) * scale
            scores = torch.where(mask[None, None], scores, -1000000000.0)
            p = _softmax(scores, axis=-1)
            o = torch.einsum('bhqk,bhke->bhqe', p, v)
            o = torch.einsum('bhte,hed->btd', o, Wo)
            mem = o[:, :M, :].clone()
            outs.append(o[:, M:, :])
        return torch.concatenate(outs, axis=1)

    def _B_ref(x, w1, b1, w2, b2):
        B, S, D = x.shape
        h = _layernorm(x, axis=-1)
        u = torch.einsum('bsd,sf->bdf', h, w1) + b1
        u = _gelu(u)
        y = torch.einsum('bdf,fs->bds', u, w2) + b2
        return (lambda x, *d: x.permute(*d))(y, 0, 2, 1)
    x = A_x
    xn = _layernorm(x, axis=-1)
    return x + _A_ref(xn, A_mem0, A_Wq, A_Wk, A_Wv, A_Wo, A_seg_len) + _B_ref(xn, B_w1, B_b1, B_w2, B_b2)
```

```python
import re

class Asm:
    def __init__(self):
        self.lines = []
        self._uid = 0
    def __call__(self, s):
        for l in s.split("\n"):
            l = l.strip()
            if l: self.lines.append(l)
        return self
    def extend(self, lst):
        for x in lst: self(x)
    def uid(self, p="L"):
        self._uid += 1
        return f"{p}_{self._uid}"
    def text(self): return "\n".join(self.lines) + "\n"

_reg_re = re.compile(r"^(-|\|)?(abs\()?([vas])(?:(\d+)|\[(\d+):(\d+)\])\)?\|?$")
def regs_of(op):
    op = op.strip()
    if op in ("vcc",): return [("s",106),("s",107)]
    if op == "vcc_lo": return [("s",106)]
    if op == "vcc_hi": return [("s",107)]
    if op == "exec": return [("s",126),("s",127)]
    if op == "exec_lo": return [("s",126)]
    if op == "exec_hi": return [("s",127)]
    if op == "m0": return [("s",124)]
    m = _reg_re.match(op)
    if not m: return []
    k = m.group(3)
    if m.group(4) is not None: return [(k,int(m.group(4)))]
    return [(k,i) for i in range(int(m.group(5)), int(m.group(6))+1)]

def split_ops(rest):
    out=[];d=0;cur=""
    for ch in rest:
        if ch in "[(": d+=1
        if ch in "])": d-=1
        if ch=="," and d==0: out.append(cur.strip());cur=""
        else: cur+=ch
    if cur.strip(): out.append(cur.strip())
    return out

TRANS = ("v_exp_f32","v_log_f32","v_rcp_f32","v_rsq_f32","v_sqrt_f32","v_sin_f32","v_cos_f32","v_rcp_iflag_f32")
def mfma_passes(mn):
    if "32x32x16" in mn or "32x32x8" in mn or "smfmac_f32_32x32x32" in mn: return 8
    if "16x16x32" in mn or "16x16x16" in mn or "16x16x64" in mn: return 4
    raise ValueError("unknown mfma "+mn)

class Ins:
    __slots__=("text","mn","cls","dst","src","srcC","idx","passes","dpp","states","storedata","sgpr_const","is_label","is_branch")
def parse(line):
    I=Ins(); I.text=line; I.dst=[]; I.src=[]; I.srcC=[]; I.passes=0; I.dpp=False; I.states=1; I.storedata=[]; I.cls="other"; I.is_label=False; I.is_branch=False; I.mn=""
    l=line.split(";")[0].strip()
    if not l: I.states=0; I.cls="none"; return I
    if l.endswith(":"): I.is_label=True; I.states=0; I.cls="label"; return I
    if l.startswith("."): I.states=0; I.cls="none"; return I
    parts=l.split(None,1); mn=parts[0]; I.mn=mn
    rest=parts[1] if len(parts)>1 else ""
    ops=split_ops(rest)
    if ops:
        last=ops[-1].split()
        mods=last[1:]; ops[-1]=last[0]
    else: mods=[]
    modstr=" ".join(mods)
    R=[regs_of(o) for o in ops]
    if mn=="s_nop": I.states=int(ops[0],0)+1; I.cls="nop"; return I
    if mn.startswith("s_cbranch") or mn=="s_branch" or mn in("s_endpgm","s_setpc_b64","s_swappc_b64"): I.is_branch=True; I.cls="salu"; return I
    if mn.startswith("v_mfma"):
        I.cls="mfma"; I.passes=mfma_passes(mn); I.dst=R[0]; I.src=R[1]+R[2]; I.srcC=R[3]; return I
    if mn.startswith("v_smfmac"):
        I.cls="mfma"; I.passes=mfma_passes(mn); I.dst=R[0]; I.src=R[1]+R[2]+R[3]; I.srcC=R[0]; return I
    if mn.startswith("v_"):
        I.cls="valu"
        if any(m.startswith(("row_","quad_perm","wave_")) for m in mods) or mn.endswith("_dpp"): I.dpp=True
        base=mn.replace("_e32","").replace("_e64","").replace("_dpp","")
        if base.startswith("v_cmp"):
            I.dst=R[0]; I.src=sum(R[1:],[])
            if base.startswith("v_cmpx"): I.dst=I.dst+[("s",126),("s",127)]
        elif base in("v_readfirstlane_b32","v_readlane_b32"):
            I.dst=R[0]; I.src=sum(R[1:],[]); I.cls="valu_rl"
        elif base.startswith("v_permlane") and "swap" in base:
            I.dst=R[0]+R[1]; I.src=R[0]+R[1]; I.cls="valu_perm"
        elif base in("v_add_co_u32","v_sub_co_u32","v_subrev_co_u32"):
            I.dst=R[0]+R[1]; I.src=sum(R[2:],[])
        elif base in("v_addc_co_u32","v_subb_co_u32"):
            I.dst=R[0]+R[1]; I.src=sum(R[2:],[])
        elif base in ("v_fmac_f32","v_dot2c_f32_bf16","v_pk_fmac_f16","v_writelane_b32"):
            I.dst=R[0]; I.src=sum(R,[])
        elif base=="v_cndmask_b32" and len(ops)==3:
            I.dst=R[0]; I.src=R[1]+R[2]+[("s",106),("s",107)]
        elif base=="v_accvgpr_write_b32" or base=="v_accvgpr_read_b32" or base=="v_accvgpr_mov_b32":
            I.dst=R[0]; I.src=R[1]
        else:
            I.dst=R[0]; I.src=sum(R[1:],[])
            if I.dpp: I.src=I.src+R[0]
        if base in TRANS: I.cls="trans" if I.cls=="valu" else I.cls
        return I
    if mn.startswith("ds_"):
        I.cls="ds"
        if mn.startswith(("ds_read","ds_bpermute","ds_permute","ds_swizzle")):
            I.dst=R[0]; I.src=sum(R[1:],[])
        else:
            I.src=sum(R,[])
        return I
    if mn.startswith("buffer_") :
        I.cls="vmem"
        if mn in("buffer_wbl2","buffer_inv"): return I
        lds = "lds" in mods
        if mn.startswith("buffer_load"):
            if lds: I.src=sum(R,[])+[("s",124)]; I.cls="vmem_lds"
            else: I.dst=R[0]; I.src=sum(R[1:],[])
        elif mn.startswith("buffer_store"):
            I.src=sum(R,[])
            if "x3" in mn or "x4" in mn: I.storedata=R[0]
        elif mn.startswith("buffer_atomic"):
            I.src=sum(R,[])
            if "sc0" in mods: I.dst=R[0]
        return I
    if mn.startswith("global_"):
        I.cls="vmem"
        if mn.startswith("global_load_lds"):
            I.src=sum(R,[])+[("s",124)]; I.cls="vmem_lds"
        elif mn.startswith("global_load"):
            I.dst=R[0]; I.src=sum(R[1:],[])
        elif mn.startswith("global_store"):
            I.src=sum(R,[])
            if "x3" in mn or "x4" in mn: I.storedata=R[1]
        elif mn.startswith("global_atomic"):
            if "sc0" in mods: I.dst=R[0]; I.src=sum(R[1:],[])
            else: I.src=sum(R,[])
        return I
    if mn.startswith("s_"):
        I.cls="salu"
        if mn.startswith(("s_cmp","s_bitcmp","s_waitcnt","s_barrier","s_sleep","s_setprio","s_setreg","s_sendmsg","s_endpgm")):
            I.src=sum(R,[])
        elif mn.startswith(("s_load","s_buffer_load","s_memtime","s_memrealtime","s_getreg")):
            I.cls="smem"; I.dst=R[0]; I.src=sum(R[1:],[])
        else:
            I.dst=R[0] if R else []; I.src=sum(R[1:],[])
            if "saveexec" in mn: I.dst=I.dst+[("s",126),("s",127)]
        return I
    raise ValueError("cannot parse: "+line)

NEED_D_VALU={2:5,4:8,8:12,16:20}
NEED_D_AB={2:5,4:8,8:12,16:20}
NEED_D_COVER={2:4,4:6,8:10,16:18}
NEED_C_WAR={2:1,4:3,8:7,16:15}

def lint_offsets(lines):
    for line in lines:
        l=line.split(";")[0]
        m=re.search(r"offset:(-?\d+)",l)
        if not m: continue
        o=int(m.group(1)); mn=l.split()[0]
        if mn.startswith("buffer_"): assert 0<=o<=4095, line
        elif mn.startswith("ds_"): assert 0<=o<=65535, line
        elif mn.startswith("global_"): assert -4096<=o<=4095, line

def fix_hazards(lines, verbose=False):
    lint_offsets(lines)
    out=[]
    pos=0
    lastw={}
    lastC={}
    laststore={}
    snaps={}
    seen=set()
    ninserted=0
    KEEP=24
    def snapshot():
        w={r:[(pos-p,c,pp,rg) for (p,c,pp,rg) in v if pos-p<=KEEP] for r,v in lastw.items()}
        w={r:v for r,v in w.items() if v}
        c={r:[(pos-p,pp) for (p,pp) in v if pos-p<=KEEP] for r,v in lastC.items()}
        c={r:v for r,v in c.items() if v}
        st={r:pos-p for r,p in laststore.items() if pos-p<=KEEP}
        return (w,c,st)
    dead=False
    for line in lines:
        I=parse(line)
        if I.is_label:
            name=line.split(";")[0].strip()[:-1]
            seen.add(name)
            if dead:
                lastw={}; lastC={}; laststore={}; dead=False
            for (w,c,st) in snaps.get(name,[]):
                for r,v in w.items():
                    lastw.setdefault(r,[]).extend([(pos-a,cl,pp,rg) for (a,cl,pp,rg) in v])
                for r,v in c.items():
                    lastC.setdefault(r,[]).extend([(pos-a,pp) for (a,pp) in v])
                for r,a in st.items():
                    laststore[r]=max(laststore.get(r,-10**9),pos-a)
            out.append(line); continue
        if I.states==0:
            out.append(line); continue
        need=0
        def req(ppos, n):
            nonlocal need
            d=pos-ppos-1
            if d<n: need=max(need,n-d)
        isvalu = I.cls in("valu","trans","valu_rl","valu_perm")
        for r in I.src+I.srcC:
          for (ppos,pcls,pp,prange) in lastw.get(r,[]):
            pvalu = pcls in("valu","trans","valu_rl","valu_perm")
            if r[0] in "va":
                if I.cls=="mfma":
                    if pvalu: req(ppos,2)
                    elif pcls=="mfma":
                        if r in I.srcC and r not in I.src:
                            if tuple(prange)==tuple(I.srcC) and pp==I.passes: pass
                            else: req(ppos,NEED_D_COVER[pp])
                        else: req(ppos,NEED_D_AB[pp])
                else:
                    if pcls=="mfma": req(ppos,NEED_D_VALU[pp])
                    if pvalu:
                        if I.dpp or I.cls=="valu_perm": req(ppos,2)
                        if I.cls=="valu_rl": req(ppos,1)
                        if pcls=="trans" and isvalu and I.cls!="trans": req(ppos,1)
                        if pcls=="trans" and not isvalu: req(ppos,1)
            else:
                if pvalu:
                    if isvalu: req(ppos, 4 if (I.cls=="valu_rl" and I.mn.startswith("v_readlane")) else 2)
                    if I.cls in("vmem","vmem_lds"): req(ppos,5)
                    if I.cls in ("salu","smem"): req(ppos,1)
                elif pcls=="salu":
                    if r==("s",124) and I.cls in("vmem_lds",): req(ppos,1)
        for r in I.dst:
            for (ppos,pcls,pp,prange) in lastw.get(r,[]):
                if pcls=="mfma" and r[0] in "va":
                    if I.cls=="mfma":
                        if not (tuple(prange)==tuple(I.dst) and pp==I.passes): req(ppos,NEED_D_COVER[pp])
                    else: req(ppos,NEED_D_VALU[pp])
            for (cp,cpp) in lastC.get(r,[]):
                if isvalu: req(cp,NEED_C_WAR[cpp])
            s=laststore.get(r)
            if s is not None and I.cls!="salu": req(s,2)
        if need>0:
            n=need
            while n>0:
                k=min(n,16); out.append(f"s_nop {k-1}"); n-=k
            pos+=need; ninserted+=need
        out.append(line)
        for r in I.dst: lastw[r]=[(pos,I.cls,I.passes,I.dst)]
        if I.cls=="mfma":
            for r in I.srcC: lastC[r]=[(pos,I.passes)]
        for r in I.storedata: laststore[r]=pos
        pos+=I.states
        if I.is_branch and I.mn!="s_endpgm":
            tgt=line.split(";")[0].split()[1].strip()
            if tgt not in seen:
                snaps.setdefault(tgt,[]).append(snapshot())
            if I.mn=="s_branch": dead=True
        if I.mn=="s_endpgm": dead=True
    if verbose: print("hazard padding inserted states:",ninserted)
    return out

def kernel_text(name, body_lines, launch_lines, header_comment="", vgpr=512, sgpr=102, accum=256):
    t = header_comment
    for l in launch_lines: t += l + "\n"
    t += '.amdgcn_target "amdgcn-amd-amdhsa--gfx950"\n.text\n'
    return t
```

```python
from asmlib import *
from layout import *

vLane=0; vL16M=1; vTR=2; vIdx=3; vWoA=4; vWoB=5; vH1st=6; vRed=7; vPub=8; vKx=9; vVx=10; vKm=11; vVm=12; vQw=13; vTag=14
vSel=16
vK=20
vV=36
aQ=44; aK=48; aV=52
vA=56
vT=72
def Wq(s): return f"a[{8*s}:{8*s+7}]"
def Wk(s):
    if s<14: return f"a[{144+8*s}:{144+8*s+7}]"
    return f"v[{80+8*(s-14)}:{80+8*(s-14)+7}]"
def Wv(s): return f"v[{112+8*s}:{112+8*s+7}]"
def Wreg(mat,s,q):
    if mat==0: return f"a[{8*s+2*q}:{8*s+2*q+1}]"
    if mat==1:
        if s<14: return f"a[{144+8*s+2*q}:{144+8*s+2*q+1}]"
        return f"v[{80+8*(s-14)+2*q}:{80+8*(s-14)+2*q+1}]"
    return f"v[{112+8*s+2*q}:{112+8*s+2*q+1}]"
def vr(a,n): return f"v[{a}:{a+n-1}]"

sH=10
sW=11
sWS=12
sWT=16
sStep=20
sKXo=21; sVTo=22; sKMo=23; sVMo=24; sH2pub=25; sH2gat=26; sH2rst=27; sH1=28; sH2=29
sTask=30; sHasTask=31; sTagT=32
sTmp=33
sDbg=40
sKarg=42
sRetry=44; sRetry2=45
sM0=46
sMaskLo=48
sMaskPub=50
sMaskG=52
sT0=56
NSTAMP=12

def emit_chain(A, nsteps=64, stamps=False, standalone=True, stamp_step=20):
    A(f"""
s_mov_b32 s{sKarg}, s0
s_mov_b32 s{sKarg+1}, s1
s_load_dwordx2 s[{sDbg}:{sDbg+1}], s[0:1], {KA_DBG}
s_load_dwordx2 s[{sWS}:{sWS+1}], s[0:1], {KA_WS}
v_lshrrev_b32 v{vT}, 6, v0
v_and_b32 v{vLane}, 63, v0
v_readfirstlane_b32 s{sW}, v{vT}
s_mov_b32 s{sWS+2}, {WS_SIZE}
s_mov_b32 s{sWS+3}, 0x20000
s_mov_b32 s{sWT+3}, 0x20000
s_mov_b32 s{sH1}, {WS_H1}
s_mov_b32 s{sH2}, {WS_H2}
s_mov_b32 s{sMaskLo}, 0x00ff00ff
s_mov_b32 s{sMaskLo+1}, 0x00ff00ff
s_mov_b32 s{sMaskPub}, 0x00ff00ff
s_mov_b32 s{sMaskPub+1}, 0
s_mov_b32 s{sMaskG}, -1
s_mov_b32 s{sMaskG+1}, 0
s_mov_b32 s{sRetry}, 0
s_mov_b32 s{sRetry2}, 0
""")
    t0,t1,t2,t3=vT,vT+1,vT+2,vT+3
    A(f"""
v_lshlrev_b32 v{vL16M}, 4, v{vLane}
v_add_u32 v{vL16M}, {L_MEMT}, v{vL16M}
v_lshrrev_b32 v{t0}, 4, v{vLane}
v_lshlrev_b32 v{t0}, 7, v{t0}
v_bfe_u32 v{t1}, v{vLane}, 2, 2
v_lshl_add_u32 v{t0}, v{t1}, 4, v{t0}
v_and_b32 v{t1}, 1, v{vLane}
v_lshl_add_u32 v{t0}, v{t1}, 3, v{t0}
v_add_u32 v{vTR}, {L_MEMT}, v{t0}
; vIdx
v_and_b32 v{t0}, 8, v{vLane}
v_cmp_ne_u32 vcc, 0, v{t0}
v_mov_b32 v{t0}, 0x4444
v_mov_b32 v{t1}, 0xeeee
v_cndmask_b32 v{vIdx}, v{t0}, v{t1}, vcc
""")
    A(f"""
v_bfe_u32 v{t0}, v{vLane}, 4, 1      ; g&1
v_bfe_u32 v{t1}, v{vLane}, 5, 1      ; g>>1
v_lshlrev_b32 v{t2}, 4, v{t0}
v_lshl_add_u32 v{t2}, v{t1}, 2, v{t2}
v_bfe_u32 v{t3}, v{vLane}, 2, 1      ; r&1
v_add_u32 v{t2}, v{t2}, v{t3}
v_mul_u32_u24 v{t2}, 1152, v{t2}
v_xor_b32 v{t0}, s{sW}, v{t0}        ; w ^ godd
v_lshl_add_u32 v{t2}, v{t0}, 6, v{t2}
v_bfe_u32 v{t3}, v{vLane}, 3, 1      ; r>>1
v_lshl_add_u32 v{t2}, v{t3}, 5, v{t2}
v_and_b32 v{t3}, 3, v{vLane}         ; c : (c>>1)*16 + (c&1)*8 = c*8
v_lshl_add_u32 v{vWoA}, v{t3}, 3, v{t2}
v_add_u32 v{vWoB}, 73728, v{vWoA}
""")
    A(f"""
v_bfe_u32 v{t0}, v{vLane}, 5, 1
v_lshlrev_b32 v{t0}, 1, v{t0}
v_bfe_u32 v{t1}, v{vLane}, 3, 1
v_add_u32 v{t0}, v{t0}, v{t1}
v_lshlrev_b32 v{t0}, 12, v{t0}
v_and_b32 v{t1}, 7, v{vLane}
v_lshl_add_u32 v{t0}, v{t1}, 4, v{t0}
v_bfe_u32 v{t1}, v{vLane}, 4, 1
v_lshl_add_u32 v{t0}, v{t1}, 3, v{t0}
s_lshl_b32 s{sTmp}, s{sW}, 14
s_lshl_b32 s{sTmp+1}, s{sH}, 7
s_add_u32 s{sTmp}, s{sTmp}, s{sTmp+1}
v_add_u32 v{vH1st}, s{sTmp}, v{t0}
""")
    A(f"""
s_and_b32 s{sTmp}, s{sH}, 1
s_lshl_b32 s{sTmp+1}, s{sW}, 1
s_add_u32 s{sTmp}, s{sTmp}, s{sTmp+1}
s_lshl_b32 s{sTmp}, s{sTmp}, 4
s_lshr_b32 s{sTmp+1}, s{sH}, 1
s_add_u32 s{sTask}, s{sTmp}, s{sTmp+1}
s_mov_b32 s{sHasTask}, 1
s_cmp_lt_u32 s{sW}, 2
s_cbranch_scc1 L_task_done
s_lshr_b32 s{sTask}, s{sH}, 2
s_add_u32 s{sTask}, s{sTask}, 64
s_and_b32 s{sTmp}, s{sH}, 3
s_cmp_eq_u32 s{sTmp}, 0
s_cselect_b32 s{sHasTask}, 1, 0
s_cmp_eq_u32 s{sW}, 2
s_cselect_b32 s{sHasTask}, s{sHasTask}, 0
s_cmp_eq_u32 s{sHasTask}, 1
s_cselect_b32 s{sTask}, s{sTask}, 0
L_task_done:
s_lshl_b32 s{sTmp}, s{sTask}, 12
v_lshlrev_b32 v{t0}, 4, v{vLane}
v_add_u32 v{vRed}, s{sTmp}, v{t0}
s_lshl_b32 s{sTmp}, s{sTask}, 7
v_and_b32 v{t0}, 7, v{vLane}
v_lshlrev_b32 v{t0}, 4, v{t0}
v_lshrrev_b32 v{t1}, 4, v{vLane}
v_lshl_add_u32 v{t0}, v{t1}, 3, v{t0}
v_add_u32 v{vPub}, s{sTmp}, v{t0}
v_and_b32 v{t0}, 15, v{vLane}
s_add_u32 s{sTmp}, s{sW}, 3
s_and_b32 s{sTmp}, s{sTmp}, 1          ; (w-1)&1
s_lshl_b32 s{sTmp}, s{sTmp}, 4
v_add_u32 v{t0}, s{sTmp}, v{t0}
v_lshlrev_b32 v{t0}, 4, v{t0}
v_lshrrev_b32 v{t1}, 4, v{vLane}
v_lshl_add_u32 v{t0}, v{t1}, 9, v{t0}
s_lshl_b32 s{sTmp}, s{sH}, 13
v_add_u32 v{vKx}, s{sTmp}, v{t0}
v_and_b32 v{t0}, 15, v{vLane}
v_lshlrev_b32 v{t0}, 4, v{t0}
v_lshl_add_u32 v{t0}, v{t1}, 11, v{t0}
s_lshl_b32 s{sTmp}, s{sH}, 13
s_lshl_b32 s{sTmp+1}, s{sW}, 9
s_add_u32 s{sTmp}, s{sTmp}, s{sTmp+1}
v_add_u32 v{vVx}, s{sTmp}, v{t0}
; vKm = (j&7)*256 + g*16
v_and_b32 v{t0}, 7, v{vLane}
v_lshlrev_b32 v{t0}, 8, v{t0}
v_lshl_add_u32 v{vKm}, v{t1}, 4, v{t0}
v_and_b32 v{t0}, 15, v{vLane}
v_bfe_u32 v{t1}, v{vLane}, 5, 1
v_lshl_add_u32 v{t0}, v{t1}, 4, v{t0}
s_lshl_b32 s{sTmp}, s{sW}, 5
v_add_u32 v{t0}, s{sTmp}, v{t0}
v_lshlrev_b32 v{t0}, 4, v{t0}
v_bfe_u32 v{t1}, v{vLane}, 4, 1
v_lshl_add_u32 v{vVm}, v{t1}, 3, v{t0}
v_add_u32 v{vQw}, {L_QT}, v{vVm}
""")
    A(f"v_and_b32 v{t0}, 7, v{vLane}")
    for j in range(4):
        A(f"""
v_mov_b32 v{vSel+j}, 0
v_cmp_eq_u32 vcc, {2*j}, v{t0}
v_mov_b32 v{t1}, 0x3f80
v_cndmask_b32 v{vSel+j}, v{vSel+j}, v{t1}, vcc
v_cmp_eq_u32 vcc, {2*j+1}, v{t0}
v_mov_b32 v{t1}, 0x3f800000
v_cndmask_b32 v{vSel+j}, v{vSel+j}, v{t1}, vcc
""")
    A("s_waitcnt lgkmcnt(0)")
    A(f"v_mov_b32 v{vT}, 0\nv_mov_b32 v{vT+1}, 0")
    for r in range(5):
        A(f"s_add_u32 s{sTmp}, s{sH1}, {r*65536}")
        if r==4:
            A(f"s_cmp_lt_u32 s{sW}, 2\ns_cbranch_scc0 L_clr1_skip")
        A(f"buffer_store_dwordx2 {vr(vT,2)}, v{vH1st}, s[{sWS}:{sWS+3}], s{sTmp} offen")
    A("L_clr1_skip:")
    A(f"v_mov_b32 v{vT+2}, -1\nv_mov_b32 v{vT+3}, -1")
    A(f"s_cmp_eq_u32 s{sHasTask}, 1\ns_cbranch_scc0 L_clr2_skip")
    A(f"s_mov_b64 exec, s[{sMaskPub}:{sMaskPub+1}]")
    for sl in range(4):
        A(f"s_add_u32 s{sTmp}, s{sH2}, {sl*16384}")
        A(f"buffer_store_dwordx2 {vr(vT+2,2)}, v{vPub}, s[{sWS}:{sWS+3}], s{sTmp} offen")
    A("s_mov_b64 exec, -1\nL_clr2_skip:")
    A(f"""
s_load_dwordx2 s[{sWT}:{sWT+1}], s[{sKarg}:{sKarg+1}], {KA_MEM0}
s_mov_b32 s{sWT+2}, 9216
s_lshl_b32 s{sTmp}, s{sW}, 6
v_add_u32 v{vA}, s{sTmp}, v{vLane}      ; tid
v_lshlrev_b32 v{vA+1}, 1, v{vA}          ; c*2
v_lshlrev_b32 v{vA+2}, 4, v{vA}          ; c*16
v_add_u32 v{vA+2}, {L_MEMT}, v{vA+2}
s_waitcnt lgkmcnt(0)
""")
    for i in range(8):
        A(f"s_mov_b32 s{sTmp}, {i*1152}")
        A(f"buffer_load_ushort v{vK+i}, v{vA+1}, s[{sWT}:{sWT+3}], s{sTmp} offen")
        A(f"buffer_load_ushort v{vK+8+i}, v{vA+1}, s[{sWT}:{sWT+3}], s{sTmp} offen offset:512")
    A("s_waitcnt vmcnt(0)")
    for i in range(8):
        A(f"ds_write_b16 v{vA+2}, v{vK+i} offset:{i*2}")
        A(f"ds_write_b16 v{vA+2}, v{vK+8+i} offset:{4096+i*2}")
    A(f"s_cmp_eq_u32 s{sW}, 0\ns_cbranch_scc0 L_m0_skip")
    for i in range(8):
        A(f"s_mov_b32 s{sTmp}, {i*1152}")
        A(f"buffer_load_ushort v{vK+i}, v{vA+1}, s[{sWT}:{sWT+3}], s{sTmp} offen offset:1024")
    A("s_waitcnt vmcnt(0)")
    for i in range(8):
        A(f"ds_write_b16 v{vA+2}, v{vK+i} offset:{8192+i*2}")
    A("L_m0_skip:")
    vW0,vW1,vWo=vA+4,vA+5,vA+6
    A(f"""
v_lshrrev_b32 v{t0}, 4, v{vLane}        ; l>>4 (row&3)
v_and_b32 v{t1}, 1, v{t0}                ; row&1
v_lshlrev_b32 v{t1}, 2, v{t1}            ; 4*(row&1)
v_and_b32 v{t2}, 15, v{vLane}
v_xor_b32 v{t2}, v{t2}, v{t1}
v_lshlrev_b32 v{t0}, 13, v{t0}           ; (row&3)*8192
s_lshl_b32 s{sTmp}, s{sH}, 8
s_lshl_b32 s{sTmp+1}, s{sW}, 17
s_add_u32 s{sTmp}, s{sTmp}, s{sTmp+1}
v_add_u32 v{t0}, s{sTmp}, v{t0}
v_lshl_add_u32 v{vW0}, v{t2}, 4, v{t0}
v_xor_b32 v{t2}, 8, v{t2}
v_lshl_add_u32 v{vW1}, v{t2}, 4, v{t0}
""")
    def dma_chunk(c):
        slot=c%9
        if c<27:
            mat=c//9; r0=64*(c%9)
            for j in range(4):
                A(f"s_lshl_b32 s{sTmp}, s{sW}, 12\ns_add_u32 m0, s{sTmp}, {slot*16384+j*1024}")
                A(f"s_mov_b32 s{sTmp+1}, {(r0+4*j)*8192}")
                A(f"buffer_load_dwordx4 v{vW0 if j%2==0 else vW1}, s[{sWT}:{sWT+3}], s{sTmp+1} offen lds")
        else:
            cc=c-27
            for j in range(4):
                A(f"s_lshl_b32 s{sTmp}, s{sW}, 2\ns_add_u32 s{sTmp}, s{sTmp}, {16*cc+j}\ns_lshl_b32 s{sTmp}, s{sTmp}, 6")
                A(f"v_add_u32 v{t0}, s{sTmp}, v{vLane}")
                A(f"s_mov_b32 s{sTmp+1}, 58255\nv_mul_hi_u32 v{t1}, v{t0}, s{sTmp+2}") if False else None
                A(f"v_mul_u32_u24 v{t1}, 58255, v{t0}\nv_lshrrev_b32 v{t1}, 26, v{t1}\nv_and_b32 v{t1}, 1, v{t1}\nv_lshlrev_b32 v{t1}, 2, v{t1}\nv_xor_b32 v{t0}, v{t0}, v{t1}\nv_lshlrev_b32 v{vWo}, 4, v{t0}")
                A(f"s_lshl_b32 s{sTmp}, s{sW}, 12\ns_add_u32 m0, s{sTmp}, {slot*16384+j*1024}")
                A(f"buffer_load_dwordx4 v{vWo}, s[{sWT}:{sWT+3}], 0 offen lds")
    for U in range(9216): assert (U*58255)>>26 == U//1152, U
    assert 9215*58255 < 2**32
    def set_wsrd(c):
        if c in (0,9,18):
            A(f"s_load_dwordx2 s[{sWT}:{sWT+1}], s[{sKarg}:{sKarg+1}], {[KA_WQ,KA_WK,KA_WV][c//9]}\ns_mov_b32 s{sWT+2}, {576*8192}\ns_waitcnt lgkmcnt(0)")
        if c==27:
            A(f"s_load_dwordx2 s[{sWT}:{sWT+1}], s[{sKarg}:{sKarg+1}], {KA_WO}\ns_waitcnt lgkmcnt(0)")
            A(f"s_mul_i32 s{sTmp}, s{sH}, 147456\ns_add_u32 s{sWT}, s{sWT}, s{sTmp}\ns_addc_u32 s{sWT+1}, s{sWT+1}, 0\ns_mov_b32 s{sWT+2}, 147456")
    vWr=vA+7
    A(f"""
v_lshrrev_b32 v{t0}, 4, v{vLane}         ; g
v_bfe_u32 v{t1}, v{vLane}, 2, 1          ; r&1
v_lshl_add_u32 v{t2}, v{t0}, 2, v{t1}    ; 4g + (r&1)
v_lshlrev_b32 v{t2}, 8, v{t2}            ; *256
v_and_b32 v{t0}, 1, v{t0}                ; g&1
v_lshl_add_u32 v{t0}, v{t0}, 1, v{t1}    ; psi
v_lshlrev_b32 v{t0}, 2, v{t0}            ; 4psi
v_bfe_u32 v{t1}, v{vLane}, 3, 1          ; r>>1
v_lshlrev_b32 v{t1}, 1, v{t1}
v_bfe_u32 v{t3}, v{vLane}, 1, 1          ; c>>1
v_add_u32 v{t1}, v{t1}, v{t3}
s_lshl_b32 s{sTmp}, s{sW}, 2
v_add_u32 v{t1}, s{sTmp}, v{t1}          ; unit
v_xor_b32 v{t1}, v{t1}, v{t0}
v_lshl_add_u32 v{t2}, v{t1}, 4, v{t2}
v_and_b32 v{t3}, 1, v{vLane}
v_lshl_add_u32 v{vWr}, v{t3}, 3, v{t2}
v_add_u32 v{vWr+1}, 65536, v{vWr}
v_add_u32 v{vWr+2}, 131072, v{vWr}
""")
    DEPTH=8
    set_wsrd(0)
    for c in range(DEPTH):
        dma_chunk(c)
    for c in range(27):
        nxt=c+DEPTH
        A(f"s_waitcnt vmcnt({(DEPTH-1)*4})")
        A("s_barrier")
        if nxt<36:
            set_wsrd(nxt); dma_chunk(nxt)
        mat=c//9; slot=c%9
        for ks in range(2):
            s=2*(c%9)+ks
            for q in range(4):
                off=slot*16384+ks*8192+(2*(q&1)+16*(q>>1))*256
                base=vWr+off//65536; off%=65536
                A(f"ds_read_b64_tr_b16 {Wreg(mat,s,q)}, v{base} offset:{off}")
        A("s_waitcnt lgkmcnt(0)")
        A("s_barrier")
    dma_chunk(35)
    A("s_waitcnt vmcnt(0)")
    A(f"""
s_barrier
s_cmp_eq_u32 s{sW}, 0
s_cbranch_scc0 L_cb_wait
v_mov_b32 v{vT}, 64
v_mov_b32 v{vT+1}, 1
s_mov_b64 exec, 1
global_atomic_add v{vT}, v{vT+1}, s[{sDbg}:{sDbg+1}]
s_mov_b64 exec, -1
s_mov_b32 s{sTmp}, 0
L_cb_poll:
global_load_dword v{vT+2}, v{vT}, s[{sDbg}:{sDbg+1}] sc1
s_waitcnt vmcnt(0)
v_readfirstlane_b32 s{sTmp+1}, v{vT+2}
s_add_u32 s{sTmp}, s{sTmp}, 1
s_cmp_gt_u32 s{sTmp}, 2000000
s_cbranch_scc1 L_abort
s_cmp_ge_u32 s{sTmp+1}, 32
s_cbranch_scc0 L_cb_poll
L_cb_wait:
s_barrier
""")
    A(f"s_mov_b32 s{sStep}, 0")
    A(f"s_mov_b32 s{sKXo}, {WS_KX}\ns_mov_b32 s{sVTo}, {WS_VT}")
    A(f"s_lshl_b32 s{sTmp}, s{sH}, 11\ns_add_u32 s{sKMo}, s{sTmp}, {WS_KM}\ns_add_u32 s{sVMo}, s{sTmp}, {WS_VM}")
    def kv_loads():
        lab=A.uid("L_kx")
        A(f"s_add_u32 s{sTmp}, s{sW}, -1\ns_cmp_lt_u32 s{sTmp}, 2\ns_cbranch_scc0 {lab}")
        for s in range(4):
            if s==2: A(f"s_add_u32 s{sTmp}, s{sKXo}, 4096")
            A(f"buffer_load_dwordx4 {vr(vK+4*s,4)}, v{vKx}, s[{sWS}:{sWS+3}], s{sKXo if s<2 else sTmp} offen offset:{(s%2)*2048} sc1")
        A(f"{lab}:")
        for t in range(2):
            A(f"buffer_load_dwordx4 {vr(vV+4*t,4)}, v{vVx}, s[{sWS}:{sWS+3}], s{sVTo} offen offset:{t*256} sc1")
    nst=[0]
    def stamp():
        if stamps:
            lab=A.uid("L_st")
            A(f"s_cmp_eq_u32 s{sStep}, {stamp_step}\ns_cbranch_scc0 {lab}\ns_memtime s[{sT0+2*nst[0]}:{sT0+2*nst[0]+1}]\n{lab}:"); nst[0]+=1
    if stamps:
        A(f"s_memtime s[90:91]\ns_waitcnt lgkmcnt(0)")
    A("L_step:")
    stamp()
    kv_loads()
    for r in range(4): A(f"v_mov_b32 v{aQ+r}, 0\nv_mov_b32 v{aK+r}, 0\nv_mov_b32 v{aV+r}, 0")
    def a_read(s,buf):
        A(f"ds_read_b64_tr_b16 {vr(vA+4*buf,2)}, v{vTR} offset:{s*512}")
        A(f"ds_read_b64_tr_b16 {vr(vA+4*buf+2,2)}, v{vTR} offset:{s*512+64}")
    for s in range(3): a_read(s,s)
    for s in range(18):
        if s+3<18: a_read(s+3,(s+3)%4)
        pend=min(17,s+3)-s
        A(f"s_waitcnt lgkmcnt({2*pend})")
        b=vr(vA+4*(s%4),4)
        A(f"v_smfmac_f32_16x16x64_bf16 {vr(aQ,4)}, {b}, {Wq(s)}, v{vIdx}")
        A(f"v_smfmac_f32_16x16x64_bf16 {vr(aK,4)}, {b}, {Wk(s)}, v{vIdx}")
        A(f"v_smfmac_f32_16x16x64_bf16 {vr(aV,4)}, {b}, {Wv(s)}, v{vIdx}")
    stamp()
    A(f"""
v_cvt_pk_bf16_f32 v{vT}, v{aQ}, v{aQ+1}
v_cvt_pk_bf16_f32 v{vT+1}, v{aQ+2}, v{aQ+3}
v_cvt_pk_bf16_f32 v{vT+2}, v{aK}, v{aK+1}
v_cvt_pk_bf16_f32 v{vT+3}, v{aK+2}, v{aK+3}
ds_write_b64 v{vQw}, {vr(vT,2)}
ds_write_b64 v{vQw}, {vr(vT+2,2)} offset:2048
v_cvt_pk_bf16_f32 v{aV}, v{aV}, v{aV+1}
v_cvt_pk_bf16_f32 v{aV+1}, v{aV+2}, v{aV+3}
buffer_store_dwordx2 {vr(aV,2)}, v{vVm}, s[{sWS}:{sWS+3}], s{sVMo} offen sc1
s_waitcnt lgkmcnt(0)
s_barrier
""")
    QOFF=L_QT-L_MEMT; KOFF=L_KT-L_MEMT; SOFF=L_ST-L_MEMT
    A(f"s_cmp_eq_u32 s{sW}, 3\ns_cbranch_scc1 L_s_done")
    for s in range(4):
        A(f"ds_read_b64_tr_b16 {vr(vA+4*s,2)}, v{vTR} offset:{QOFF+s*512}")
        A(f"ds_read_b64_tr_b16 {vr(vA+4*s+2,2)}, v{vTR} offset:{QOFF+s*512+64}")
    A(f"s_cmp_eq_u32 s{sW}, 0\ns_cbranch_scc0 L_s_x")
    for s in range(4):
        A(f"ds_read_b64_tr_b16 {vr(vK+4*s,2)}, v{vTR} offset:{KOFF+s*512}")
        A(f"ds_read_b64_tr_b16 {vr(vK+4*s+2,2)}, v{vTR} offset:{KOFF+s*512+64}")
    A("s_waitcnt lgkmcnt(0)")
    A(f"s_mov_b64 exec, s[{sMaskLo}:{sMaskLo+1}]")
    for s in range(4):
        A(f"buffer_store_dwordx4 {vr(vK+4*s,4)}, v{vKm}, s[{sWS}:{sWS+3}], s{sKMo} offen offset:{s*64} sc1")
    A("s_mov_b64 exec, -1")
    A("L_s_x:")
    A(f"s_cmp_eq_u32 s{sStep}, {nsteps-1}\ns_cbranch_scc1 L_finish")
    A("s_waitcnt vmcnt(0) lgkmcnt(0)")
    for s in range(4):
        A(f"v_mfma_f32_16x16x32_bf16 {vr(vT,4)}, {vr(vK+4*s,4)}, {vr(vA+4*s,4)}, {'0' if s==0 else vr(vT,4)}")
    A(f"s_lshl_b32 s{sTmp}, s{sW}, 10\nv_add_u32 v{vT+4}, s{sTmp}, v{vL16M}")
    A(f"ds_write_b128 v{vT+4}, {vr(vT,4)} offset:{SOFF}")
    A("s_waitcnt lgkmcnt(0)")
    A("L_s_done:")
    A(f"s_cmp_eq_u32 s{sStep}, {nsteps-1}\ns_cbranch_scc1 L_finish")
    A("s_barrier")
    stamp()
    S=vA
    for t in range(3):
        A(f"ds_read_b128 {vr(S+4*t,4)}, v{vL16M} offset:{SOFF+t*1024}")
    A("s_waitcnt vmcnt(0) lgkmcnt(0)")
    m,mt=vT,vT+1
    A(f"""
v_max3_f32 v{m}, v{S}, v{S+1}, v{S+2}
v_max3_f32 v{mt}, v{S+3}, v{S+4}, v{S+5}
v_max3_f32 v{m}, v{m}, v{S+6}, v{S+7}
v_max3_f32 v{mt}, v{mt}, v{S+8}, v{S+9}
v_max3_f32 v{m}, v{m}, v{S+10}, v{S+11}
v_max_f32 v{m}, v{m}, v{mt}
v_mov_b32 v{mt}, v{m}
v_permlane32_swap_b32 v{m}, v{mt}
v_max_f32 v{m}, v{m}, v{mt}
v_mov_b32 v{mt}, v{m}
v_permlane16_swap_b32 v{m}, v{mt}
v_max_f32 v{m}, v{m}, v{mt}
s_mov_b32 s{sTmp}, 0x3e0293ee
v_mul_f32 v{mt}, s{sTmp}, v{m}
""")
    import struct, math
    cval=128**-0.5*math.log2(math.e)
    cbits=struct.unpack("<I",struct.pack("<f",cval))[0]
    A.lines=[l.replace("0x3e0293ee",hex(cbits)) for l in A.lines]
    for i in range(12):
        A(f"v_fma_f32 v{S+i}, v{S+i}, s{sTmp}, -v{mt}")
    for i in range(12):
        A(f"v_exp_f32 v{S+i}, v{S+i}")
    l,lt=vT+2,vT+3
    A(f"""
v_add_f32 v{l}, v{S}, v{S+1}
v_add_f32 v{lt}, v{S+2}, v{S+3}
v_add_f32 v{l}, v{l}, v{lt}
v_mul_f32 v{l}, 0.5, v{l}
""")
    for i in range(4,12): A(f"v_add_f32 v{l}, v{l}, v{S+i}")
    A(f"""
v_mov_b32 v{lt}, v{l}
v_permlane32_swap_b32 v{l}, v{lt}
v_add_f32 v{l}, v{l}, v{lt}
v_mov_b32 v{lt}, v{l}
v_permlane16_swap_b32 v{l}, v{lt}
v_add_f32 v{l}, v{l}, v{lt}
v_rcp_f32 v{l}, v{l}
""")
    P=vK
    A(f"""
v_cvt_pk_bf16_f32 v{P}, v{S+4}, v{S+5}
v_cvt_pk_bf16_f32 v{P+1}, v{S+6}, v{S+7}
v_cvt_pk_bf16_f32 v{P+2}, v{S+8}, v{S+9}
v_cvt_pk_bf16_f32 v{P+3}, v{S+10}, v{S+11}
v_cvt_pk_bf16_f32 v{P+4}, v{S}, v{S+1}
v_cvt_pk_bf16_f32 v{P+5}, v{S+2}, v{S+3}
v_cndmask_b32 v{P+6}, 0, v{P+4}, s[{sMaskG}:{sMaskG+1}]
v_cndmask_b32 v{P+7}, 0, v{P+5}, s[{sMaskG}:{sMaskG+1}]
v_cndmask_b32 v{P+8}, v{P+4}, 0, s[{sMaskG}:{sMaskG+1}]
v_cndmask_b32 v{P+9}, v{P+5}, 0, s[{sMaskG}:{sMaskG+1}]
""")
    A(f"""
v_mfma_f32_16x16x32_bf16 {vr(aQ,4)}, {vr(vV,4)}, {vr(P,4)}, 0
v_mfma_f32_16x16x32_bf16 {vr(aK,4)}, {vr(vV+4,4)}, {vr(P,4)}, 0
v_mfma_f32_16x16x16_bf16 {vr(aQ,4)}, {vr(aV,2)}, {vr(P+6,2)}, {vr(aQ,4)}
v_mfma_f32_16x16x16_bf16 {vr(aK,4)}, {vr(aV,2)}, {vr(P+8,2)}, {vr(aK,4)}
""")
    for r in range(4): A(f"v_mul_f32 v{aQ+r}, v{aQ+r}, v{l}\nv_mul_f32 v{aK+r}, v{aK+r}, v{l}")
    A(f"""
v_cvt_pk_bf16_f32 v{vT+4}, v{aQ}, v{aQ+1}
v_cvt_pk_bf16_f32 v{vT+5}, v{aQ+2}, v{aQ+3}
v_cvt_pk_bf16_f32 v{vT+6}, v{aK}, v{aK+1}
v_cvt_pk_bf16_f32 v{vT+7}, v{aK+2}, v{aK+3}
s_lshl_b32 s{sTmp}, s{sW}, 10
v_add_u32 v{vT}, s{sTmp}, v{vL16M}
ds_write_b128 v{vT}, {vr(vT+4,4)} offset:{QOFF}
s_waitcnt lgkmcnt(0)
s_barrier
""")
    stamp()
    for s in range(4):
        A(f"ds_read_b128 {vr(vA+4*s,4)}, v{vL16M} offset:{QOFF+s*1024}")
    A(f"""
s_add_u32 s{sTagT}, s{sStep}, 1
s_and_b32 s{sTmp}, s{sTagT}, 1
s_bfe_u32 s{sTmp+1}, s{sTagT}, 0x10001
s_lshl_b32 s{sTmp+1}, s{sTmp+1}, 16
s_or_b32 s{sTmp}, s{sTmp}, s{sTmp+1}
v_mov_b32 v{vTag}, s{sTmp}
s_mov_b32 s{sTmp+2}, 0xfffefffe
""")
    Bst=[vK,vK+8,vK+16]
    def wo_read(r,s,buf):
        base=vWoA if s<2 else vWoB
        for q in range(4):
            off=(s%2)*36864+(2*(q&1)+8*(q>>1))*1152+r*256
            A(f"ds_read_b64_tr_b16 {vr(Bst[buf]+2*q,2)}, v{base} offset:{off}")
    def outproj_rounds(rounds):
        seq=[(r,s) for r in rounds for s in range(4)]
        n=len(seq)
        for i in range(min(2,n)): wo_read(*seq[i],i%3)
        for i,(r,s) in enumerate(seq):
            if i+2<n: wo_read(*seq[i+2],(i+2)%3)
            pend=min(n-1,i+2)-i
            acc=aQ if r%2==0 else aK
            if s==0:
                for k in range(4): A(f"v_mov_b32 v{acc+k}, 0")
            A(f"s_waitcnt lgkmcnt({4*pend})")
            A(f"v_smfmac_f32_16x16x64_bf16 {vr(acc,4)}, {vr(vA+4*s,4)}, {vr(Bst[i%3],8)}, v{vIdx}")
            if s==3:
                e=vT+2*(r%2)
                A(f"""
v_cvt_pk_bf16_f32 v{e}, v{acc}, v{acc+1}
v_cvt_pk_bf16_f32 v{e+1}, v{acc+2}, v{acc+3}
v_and_or_b32 v{e}, v{e}, s{sTmp+2}, v{vTag}
s_add_u32 s{sTmp+3}, s{sH1}, {r*65536}
buffer_store_dwordx2 {vr(e,2)}, v{vH1st}, s[{sWS}:{sWS+3}], s{sTmp+3} offen
""")
    outproj_rounds([0,1,2,3])
    A(f"s_cmp_lt_u32 s{sW}, 2\ns_cbranch_scc0 L_op_done")
    outproj_rounds([4])
    A("L_op_done:")
    stamp()
    A(f"s_cmp_eq_u32 s{sHasTask}, 1\ns_cbranch_scc0 L_red_done")
    A("L_red_poll:")
    for k in range(4):
        A(f"buffer_load_dwordx4 {vr(vK+4*k,4)}, v{vRed}, s[{sWS}:{sWS+3}], s{sH1} offen offset:{k*1024} sc1")
    A("s_waitcnt vmcnt(0)")
    A(f"""
v_xor_b32 v{vT}, v{vK}, v{vTag}
v_bitop3_b32 v{vT}, v{vT}, v{vK+4}, v{vTag} bitop3:0xf6
v_bitop3_b32 v{vT}, v{vT}, v{vK+8}, v{vTag} bitop3:0xf6
v_bitop3_b32 v{vT}, v{vT}, v{vK+12}, v{vTag} bitop3:0xf6
v_and_b32 v{vT}, 0x10001, v{vT}
v_cmp_ne_u32 vcc, 0, v{vT}
s_cbranch_vccz L_red_ok
s_add_u32 s{sRetry}, s{sRetry}, 1
s_cmp_lt_u32 s{sRetry}, 1000000
s_cbranch_scc1 L_red_poll
s_branch L_abort
L_red_ok:
""")
    for k in range(4):
        A(f"v_mfma_f32_16x16x32_bf16 {vr(aQ,4)}, {vr(vSel,4)}, {vr(vK+4*k,4)}, {'0' if k==0 else vr(aQ,4)}")
    for r in range(4):
        A(f"v_add_f32_dpp v{aQ+r}, v{aQ+r}, v{aQ+r} row_ror:8 row_mask:0xf bank_mask:0xf")
    A(f"""
v_cvt_pk_bf16_f32 v{vT}, v{aQ}, v{aQ+1}
v_cvt_pk_bf16_f32 v{vT+1}, v{aQ+2}, v{aQ+3}
v_min_u32 v{vT}, -2, v{vT}
s_add_u32 s{sTmp}, s{sStep}, 1
s_and_b32 s{sTmp}, s{sTmp}, 3
s_lshl_b32 s{sTmp}, s{sTmp}, 14
s_add_u32 s{sTmp}, s{sTmp}, s{sH2}
s_add_u32 s{sTmp+1}, s{sStep}, 3
s_and_b32 s{sTmp+1}, s{sTmp+1}, 3
s_lshl_b32 s{sTmp+1}, s{sTmp+1}, 14
s_add_u32 s{sTmp+1}, s{sTmp+1}, s{sH2}
v_mov_b32 v{vT+2}, -1
v_mov_b32 v{vT+3}, -1
s_mov_b64 exec, s[{sMaskPub}:{sMaskPub+1}]
buffer_store_dwordx2 {vr(vT,2)}, v{vPub}, s[{sWS}:{sWS+3}], s{sTmp} offen
buffer_store_dwordx2 {vr(vT+2,2)}, v{vPub}, s[{sWS}:{sWS+3}], s{sTmp+1} offen
s_mov_b64 exec, -1
L_red_done:
""")
    stamp()
    A(f"""
s_add_u32 s{sTmp}, s{sStep}, 1
s_and_b32 s{sTmp}, s{sTmp}, 3
s_lshl_b32 s{sTmp}, s{sTmp}, 14
s_add_u32 s{sH2gat}, s{sTmp}, s{sH2}
s_lshl_b32 s{sTmp}, s{sW}, 10
s_add_u32 s{sH2gat}, s{sH2gat}, s{sTmp}
v_lshlrev_b32 v{vT+4}, 4, v{vLane}
v_add_u32 v{vT+5}, s{sTmp}, v{vL16M}
L_gat_poll:
buffer_load_dwordx4 {vr(vK,4)}, v{vT+4}, s[{sWS}:{sWS+3}], s{sH2gat} offen sc1
s_add_u32 s{sTmp}, s{sH2gat}, 4096
buffer_load_dwordx4 {vr(vK+4,4)}, v{vT+4}, s[{sWS}:{sWS+3}], s{sTmp} offen sc1
s_cmp_eq_u32 s{sW}, 0
s_cbranch_scc0 L_gat_nou8
s_add_u32 s{sTmp}, s{sH2gat}, 8192
buffer_load_dwordx4 {vr(vK+8,4)}, v{vT+4}, s[{sWS}:{sWS+3}], s{sTmp} offen sc1
s_waitcnt vmcnt(0)
s_branch L_gat_chk
L_gat_nou8:
s_waitcnt vmcnt(0)
v_mov_b32 v{vK+8}, 0
v_mov_b32 v{vK+10}, 0
L_gat_chk:
v_max_u32 v{vT}, v{vK}, v{vK+2}
v_max3_u32 v{vT}, v{vT}, v{vK+4}, v{vK+6}
v_max3_u32 v{vT}, v{vT}, v{vK+8}, v{vK+10}
v_cmp_eq_u32 vcc, -1, v{vT}
s_cbranch_vccz L_gat_ok
s_add_u32 s{sRetry2}, s{sRetry2}, 1
s_cmp_lt_u32 s{sRetry2}, 1000000
s_cbranch_scc1 L_gat_poll
s_branch L_abort
L_gat_ok:
ds_write_b128 v{vT+5}, {vr(vK,4)}
ds_write_b128 v{vT+5}, {vr(vK+4,4)} offset:4096
s_cmp_eq_u32 s{sW}, 0
s_cbranch_scc0 L_gat_w
ds_write_b128 v{vT+5}, {vr(vK+8,4)} offset:8192
L_gat_w:
s_waitcnt lgkmcnt(0)
s_barrier
""")
    stamp()
    A(f"""
s_add_u32 s{sStep}, s{sStep}, 1
s_add_u32 s{sKXo}, s{sKXo}, 262144
s_add_u32 s{sVTo}, s{sVTo}, 262144
s_add_u32 s{sKMo}, s{sKMo}, 65536
s_add_u32 s{sVMo}, s{sVMo}, 65536
s_nop 7
s_branch L_step
L_finish:
""")
    if stamps:
        A(f"s_memtime s[92:93]\ns_waitcnt vmcnt(0) lgkmcnt(0)\ns_sub_u32 s92, s92, s90")
        A(f"s_lshl_b32 s{sTmp}, s{sH}, 2\ns_add_u32 s{sTmp}, s{sTmp}, s{sW}\ns_lshl_b32 s{sTmp}, s{sTmp}, 6\ns_add_u32 s{sTmp}, s{sTmp}, {WS_STAMP}")
        A(f"v_mov_b32 v{vK}, s92\nv_mov_b32 v{vK+1}, s{sRetry}\nv_mov_b32 v{vK+2}, s{sRetry2}")
        for i in range(1,nst[0]):
            A(f"s_sub_u32 s{sT0+2*i}, s{sT0+2*i}, s{sT0}\nv_mov_b32 v{vK+2+i}, s{sT0+2*i}")
        A(f"v_mov_b32 v{vT}, 0\ns_mov_b64 exec, 1")
        for j in range(3):
            A(f"buffer_store_dwordx4 {vr(vK+4*j,4)}, v{vT}, s[{sWS}:{sWS+3}], s{sTmp} offen offset:{16*j}")
        A("s_mov_b64 exec, -1")
    A("L_abort:\ns_waitcnt vmcnt(0)")
```

```python
WS_XN=0x0000000; WS_HH=0x0300000
WS_KX=0x1000000; WS_VT=0x2000000; WS_QX=0x3000000
WS_KM=0x4000000; WS_VM=0x4400000
WS_H1=0x4800000; WS_H2=0x4880000
WS_STAMP=0x4900000
WS_CNT=0x4A00000
WS_U=0x5000000
WS_P=0x6000000
P_SLAB=128*36*1024
NSLAB=12
WS_SIZE=0x10000000
assert WS_P+NSLAB*P_SLAB<=WS_SIZE
KA_X=0; KA_MEM0=8; KA_WQ=16; KA_WK=24; KA_WV=32; KA_WO=40; KA_SEG=48; KA_BX=56; KA_W1=64; KA_B1=72; KA_W2=80; KA_B2=88; KA_OUT=96; KA_DBG=104; KA_WS=112
L_WO=0; L_MEMT=147456; L_QT=L_MEMT+9216; L_KT=L_QT+2048; L_ST=L_KT+2048; L_END=L_ST+3072
assert L_END==163840
```

```python
from asmlib import *
from layout import *
from workers import *
import math
pQ=32
pK=64
pKM=96
pV=112
pVM=144
pS=160
pO=184
pT=8
vLq=2; vLkm=3; vLv=4; vLvm=5; vL16=6; vPst=7
OX0=0
def wo_tiles(w):
    return [[0,1,8],[2,3,8],[4,5],[6,7]][w]
def tiles(w):
    if w==0: return [(0,0),(0,1),(1,0),(1,1),(8,0)]
    if w==1: return [(2,0),(2,1),(3,0),(3,1),(8,1)]
    if w==2: return [(4,0),(4,1),(5,0),(5,1)]
    return [(6,0),(6,1),(7,0),(7,1)]
def woreg(w,dt,k):
    i=wo_tiles(w).index(dt)
    b=64*i+4*k
    return b

def emit_p4_setup(A):
    t=pT
    srd_from_karg(A,sWSRC,KA_WO,4096*1152)
    A("s_barrier")
    A(f"""
s_mul_i32 s{sT}, s{sA}, {512*1152}
s_mul_i32 s{sT+1}, s{sB}, 288
s_add_u32 s{sWo}, s{sT}, s{sT+1}
s_mul_i32 s{sT+4}, s{sW}, {36*64}
""")
    for U in range(9216): assert (U*58255)>>20==U//18, U
    for j in range(36):
        A(f"""
s_add_u32 s{sT+2}, s{sT+4}, {j*64}
v_add_u32 v{t}, s{sT+2}, v0
v_mul_u32_u24 v{t+1}, 58255, v{t}
v_lshrrev_b32 v{t+1}, 20, v{t+1}
v_mul_u32_u24 v{t+2}, 18, v{t+1}
v_sub_u32 v{t+2}, v{t}, v{t+2}
v_mul_u32_u24 v{t+1}, 1152, v{t+1}
v_lshl_add_u32 v{t+3}, v{t+2}, 4, v{t+1}
s_lshl_b32 m0, s{sT+2}, 4
buffer_load_dwordx4 v{t+3}, s[{sWSRC}:{sWSRC+3}], s{sWo} offen lds
""")
    A("s_waitcnt vmcnt(0)\ns_barrier")
    A(f"""
v_lshrrev_b32 v{t}, 4, v0
v_lshlrev_b32 v{t}, 2, v{t}
v_bfe_u32 v{t+1}, v0, 2, 2
v_add_u32 v{t}, v{t}, v{t+1}
v_mul_u32_u24 v{t}, 288, v{t}
v_and_b32 v{t+1}, 3, v0
v_lshl_add_u32 v{t}, v{t+1}, 3, v{t}
v_add_u32 v{t+1}, 65536, v{t}
v_add_u32 v{t+2}, 131072, v{t}
""")
    labs=[A.uid("L_wo") for _ in range(4)]; end=A.uid("L_woe")
    for w in range(4):
        if w<3: A(f"s_cmp_lg_u32 s{sW}, {w}\ns_cbranch_scc1 {labs[w]}")
        n=0
        for dt in wo_tiles(w):
            for k in range(16):
                for h in range(2):
                    off=(32*k+16*h)*288+dt*32
                    b=woreg(w,dt,k)+2*h
                    A(f"ds_read_b64_tr_b16 a[{b}:{b+1}], v{t+off//65536} offset:{off%65536}")
                    n+=1
                    if n%12==0: A("s_waitcnt lgkmcnt(0)")
        A("s_waitcnt lgkmcnt(0)")
        if w<3: A(f"s_branch {end}\n{labs[w]}:")
    A(f"{end}:\ns_barrier")
    A(f"""
v_and_b32 v{t}, 15, v0
v_lshrrev_b32 v{t+1}, 4, v0
v_lshlrev_b32 v{vLq}, 4, v{t}
v_lshl_add_u32 v{vLq}, v{t+1}, 9, v{vLq}
v_and_b32 v{t+2}, 7, v0
v_lshlrev_b32 v{vLkm}, 8, v{t+2}
v_lshl_add_u32 v{vLkm}, v{t+1}, 4, v{vLkm}
v_lshlrev_b32 v{vLv}, 4, v{t}
v_lshl_add_u32 v{vLv}, v{t+1}, 11, v{vLv}
v_lshlrev_b32 v{vLvm}, 4, v{t}
v_and_b32 v{t+2}, 1, v{t+1}
v_lshl_add_u32 v{vLvm}, v{t+2}, 3, v{vLvm}
v_lshlrev_b32 v{vL16}, 4, v0
""")
    A(f"v_lshlrev_b32 v{t+2}, 2, v{t+1}")
    for r in range(4):
        A(f"v_add_u32 v{t+3}, {r}, v{t+2}\nv_cmp_le_u32 s[{50+2*r}:{51+2*r}], v{t+3}, v{t}")
    A("s_mov_b32 s58, -1\ns_mov_b32 s59, 0")

def emit_p4_segment(A, ox):
    t=pT
    A(f"""
s_lshl_b32 s{sT}, s{sA}, 2
s_add_u32 s{sT}, s{sT}, s{sW}
s_lshl_b32 s{sT+1}, s{sC}, 5
s_add_u32 s{sT}, s{sT}, s{sT+1}
s_lshl_b32 s{sT+1}, s{sT}, 13
s_add_u32 s{sT+2}, s{sT+1}, {WS_QX}
s_add_u32 s{sT+3}, s{sT+1}, {WS_KX}
s_add_u32 s{sT+4}, s{sT+1}, {WS_VT}
s_lshl_b32 s{sT+1}, s{sT}, 11
s_add_u32 s{sT+5}, s{sT+1}, {WS_KM}
s_add_u32 s{sT+6}, s{sT+1}, {WS_VM}
""")
    W=f"s[{sWS}:{sWS+3}]"
    for k in range(4):
        A(f"s_add_u32 s{sT+7}, s{sT+2}, {k*2048}\ns_add_u32 s{sT+8}, s{sT+3}, {k*2048}")
        for tt in range(2):
            A(f"buffer_load_dwordx4 {vr(pQ+16*tt+4*k,4)}, v{vLq}, {W}, s{sT+7} offen offset:{tt*256} sc1")
            A(f"buffer_load_dwordx4 {vr(pK+16*tt+4*k,4)}, v{vLq}, {W}, s{sT+8} offen offset:{tt*256} sc1")
        A(f"buffer_load_dwordx4 {vr(pKM+4*k,4)}, v{vLkm}, {W}, s{sT+5} offen offset:{k*64} sc1")
    for et in range(8):
        A(f"buffer_load_dwordx4 {vr(pV+4*et,4)}, v{vLv}, {W}, s{sT+4} offen offset:{et*256} sc1")
        A(f"buffer_load_dwordx2 {vr(pVM+2*et,2)}, v{vLvm}, {W}, s{sT+6} offen offset:{et*256} sc1")
    A("s_waitcnt vmcnt(16)")
    def S(tt,i): return pS+12*tt+4*i
    for tt in range(2):
        for k in range(4):
            c='0' if k==0 else None
            A(f"v_mfma_f32_16x16x32_bf16 {vr(S(tt,0),4)}, {vr(pKM+4*k,4)}, {vr(pQ+16*tt+4*k,4)}, {c or vr(S(tt,0),4)}")
            A(f"v_mfma_f32_16x16x32_bf16 {vr(S(tt,1),4)}, {vr(pK+4*k,4)}, {vr(pQ+16*tt+4*k,4)}, {c or vr(S(tt,1),4)}")
            if tt==1:
                A(f"v_mfma_f32_16x16x32_bf16 {vr(S(tt,2),4)}, {vr(pK+16+4*k,4)}, {vr(pQ+16*tt+4*k,4)}, {c or vr(S(tt,2),4)}")
    cval=128**-0.5*math.log2(math.e)
    A(f"s_mov_b32 s{sT+7}, {hex(fbits(cval))}\nv_mov_b32 v{t+7}, 0xff800000")
    NEG=t+7
    rinv=[t+4,t+5]
    P=[t+8,t+16]
    for tt in range(2):
        s0=S(tt,0)
        for r in range(4):
            A(f"v_cndmask_b32 v{s0+r}, v{NEG}, v{s0+r}, s[58:59]")
            d=S(tt,1+tt)+r
            A(f"v_cndmask_b32 v{d}, v{NEG}, v{d}, s[{50+2*r}:{51+2*r}]")
        n=8 if tt==0 else 12
        m,mt=t,t+1
        A(f"v_max3_f32 v{m}, v{s0}, v{s0+1}, v{s0+2}\nv_max3_f32 v{mt}, v{s0+3}, v{s0+4}, v{s0+5}\nv_max3_f32 v{m}, v{m}, v{s0+6}, v{s0+7}")
        if n==12: A(f"v_max3_f32 v{mt}, v{mt}, v{s0+8}, v{s0+9}\nv_max3_f32 v{m}, v{m}, v{s0+10}, v{s0+11}")
        A(f"""
v_max_f32 v{m}, v{m}, v{mt}
v_mov_b32 v{mt}, v{m}
v_permlane32_swap_b32 v{m}, v{mt}
v_max_f32 v{m}, v{m}, v{mt}
v_mov_b32 v{mt}, v{m}
v_permlane16_swap_b32 v{m}, v{mt}
v_max_f32 v{m}, v{m}, v{mt}
v_mul_f32 v{mt}, s{sT+7}, v{m}
""")
        for i in range(n): A(f"v_fma_f32 v{s0+i}, v{s0+i}, s{sT+7}, -v{mt}")
        for i in range(n): A(f"v_exp_f32 v{s0+i}, v{s0+i}")
        l,lt=rinv[tt],t+2
        A(f"v_add_f32 v{l}, v{s0}, v{s0+1}")
        for i in range(2,n): A(f"v_add_f32 v{l}, v{l}, v{s0+i}")
        A(f"""
v_mov_b32 v{lt}, v{l}
v_permlane32_swap_b32 v{l}, v{lt}
v_add_f32 v{l}, v{l}, v{lt}
v_mov_b32 v{lt}, v{l}
v_permlane16_swap_b32 v{l}, v{lt}
v_add_f32 v{l}, v{l}, v{lt}
v_rcp_f32 v{l}, v{l}
""")
        p=P[tt]
        A(f"v_cvt_pk_bf16_f32 v{p}, v{s0+4}, v{s0+5}\nv_cvt_pk_bf16_f32 v{p+1}, v{s0+6}, v{s0+7}")
        if tt==0: A(f"v_mov_b32 v{p+2}, 0\nv_mov_b32 v{p+3}, 0")
        else: A(f"v_cvt_pk_bf16_f32 v{p+2}, v{s0+8}, v{s0+9}\nv_cvt_pk_bf16_f32 v{p+3}, v{s0+10}, v{s0+11}")
        A(f"v_cvt_pk_bf16_f32 v{p+4}, v{s0}, v{s0+1}\nv_cvt_pk_bf16_f32 v{p+5}, v{s0+2}, v{s0+3}")
    A("s_waitcnt vmcnt(0)")
    for et in range(8):
        for tt in range(2):
            o=pO+8*et+4*tt
            A(f"v_mfma_f32_16x16x32_bf16 {vr(o,4)}, {vr(pV+4*et,4)}, {vr(P[tt],4)}, 0")
    for et in range(8):
        for tt in range(2):
            o=pO+8*et+4*tt
            A(f"v_mfma_f32_16x16x16_bf16 {vr(o,4)}, {vr(pVM+2*et,2)}, {vr(P[tt]+4,2)}, {vr(o,4)}")
    A(f"s_lshl_b32 s{sT}, s{sW}, 13\nv_add_u32 v{t+6}, s{sT}, v{vL16}")
    n=0
    for kap in range(4):
        for tt in range(2):
            d=pQ+4*(n%8); n+=1
            a=pO+8*(2*kap)+4*tt; b=pO+8*(2*kap+1)+4*tt
            for r in range(4): A(f"v_mul_f32 v{a+r}, v{a+r}, v{rinv[tt]}\nv_mul_f32 v{b+r}, v{b+r}, v{rinv[tt]}")
            A(f"v_cvt_pk_bf16_f32 v{d}, v{a}, v{a+1}\nv_cvt_pk_bf16_f32 v{d+1}, v{a+2}, v{a+3}\nv_cvt_pk_bf16_f32 v{d+2}, v{b}, v{b+1}\nv_cvt_pk_bf16_f32 v{d+3}, v{b+2}, v{b+3}")
            A(f"ds_write_b128 v{t+6}, {vr(d,4)} offset:{ox+kap*2048+tt*1024}")
    A("s_waitcnt lgkmcnt(0)\ns_barrier")
    A(f"""
s_mul_i32 s{sOut}, s{sA}, {P_SLAB}
s_mul_i32 s{sT}, s{sC}, {2*36*1024}
s_add_u32 s{sOut}, s{sOut}, s{sT}
s_mul_i32 s{sT}, s{sB}, {9*1024}
s_add_u32 s{sOut}, s{sOut}, s{sT}
s_add_u32 s{sOut}, s{sOut}, {WS_P}
""")
    labs=[A.uid("L_op") for _ in range(4)]; end=A.uid("L_ope")
    Bf=pK
    acc=pS
    for w in range(4):
        if w<3: A(f"s_cmp_lg_u32 s{sW}, {w}\ns_cbranch_scc1 {labs[w]}")
        tl=tiles(w)
        def rd(k):
            for tt in range(2):
                A(f"ds_read_b128 {vr(Bf+8*(k%4)+4*tt,4)}, v{vL16} offset:{ox+k*2048+tt*1024}")
        for k in range(3): rd(k)
        for k in range(16):
            if k+3<16: rd(k+3)
            A(f"s_waitcnt lgkmcnt({2*(min(15,k+3)-k)})")
            for i,(dt,tt) in enumerate(tl):
                b=woreg(w,dt,k)
                A(f"v_mfma_f32_16x16x32_bf16 {vr(acc+4*i,4)}, a[{b}:{b+3}], {vr(Bf+8*(k%4)+4*tt,4)}, {'0' if k==0 else vr(acc+4*i,4)}")
        for i,(dt,tt) in enumerate(tl):
            A(f"s_add_u32 s{sT}, s{sOut}, {tt*36*1024+dt*1024}")
            A(f"buffer_store_dwordx4 {vr(acc+4*i,4)}, v{vL16}, {W}, s{sT} offen {ST}")
        if w<3: A(f"s_branch {end}\n{labs[w]}:")
    A(f"{end}:")

def emit_combine_tile(A):
    t=pT
    W=f"s[{sWS}:{sWS+3}]"
    A(f"""
s_mul_i32 s{sT}, s{sC}, {36*1024}
s_lshl_b32 s{sT+1}, s{sD}, 10
s_add_u32 s{sT}, s{sT}, s{sT+1}
s_add_u32 s{sT}, s{sT}, {WS_P}
v_lshlrev_b32 v{t}, 4, v0
""")
    for sl in range(NSLAB):
        A(f"buffer_load_dwordx4 {vr(pQ+4*sl,4)}, v{t}, {W}, s{sT} offen sc1\ns_add_u32 s{sT}, s{sT}, {P_SLAB}")
    A(f"""
v_and_b32 v{t+1}, 15, v0
v_mul_u32_u24 v{t+1}, 1152, v{t+1}
v_lshrrev_b32 v{t+2}, 4, v0
v_lshl_add_u32 v{t+1}, v{t+2}, 3, v{t+1}
s_mul_i32 s{sT}, s{sC}, {16*1152}
s_lshl_b32 s{sT+1}, s{sD}, 5
s_add_u32 s{sT}, s{sT}, s{sT+1}
buffer_load_dwordx2 {vr(t+4,2)}, v{t+1}, s[{sXS}:{sXS+3}], s{sT} offen
s_waitcnt vmcnt(0)
""")
    for sl in range(1,NSLAB):
        for r in range(4): A(f"v_add_f32 v{pQ+r}, v{pQ+r}, v{pQ+4*sl+r}")
    A(f"""
v_lshlrev_b32 v{t+6}, 16, v{t+4}
v_and_b32 v{t+7}, 0xffff0000, v{t+4}
v_lshlrev_b32 v{t+8}, 16, v{t+5}
v_and_b32 v{t+9}, 0xffff0000, v{t+5}
v_add_f32 v{pQ}, v{pQ}, v{t+6}
v_add_f32 v{pQ+1}, v{pQ+1}, v{t+7}
v_add_f32 v{pQ+2}, v{pQ+2}, v{t+8}
v_add_f32 v{pQ+3}, v{pQ+3}, v{t+9}
v_cvt_pk_bf16_f32 v{t+4}, v{pQ}, v{pQ+1}
v_cvt_pk_bf16_f32 v{t+5}, v{pQ+2}, v{pQ+3}
buffer_store_dwordx2 {vr(t+4,2)}, v{t+1}, s[{sWSRC}:{sWSRC+3}], s{sT} offen
""")
```

```python
from asmlib import *
from layout import *
def emit_entry(A, n_wg=256):
    A(f"""
s_cmp_ge_u32 s2, {n_wg}
s_cbranch_scc1 L_exit
s_load_dwordx2 s[6:7], s[0:1], {KA_DBG}
s_getreg_b32 s4, hwreg(HW_REG_XCC_ID, 0, 4)
s_and_b32 s4, s4, 7
v_lshrrev_b32 v1, 6, v0
v_readfirstlane_b32 s8, v1
s_cmp_eq_u32 s8, 0
s_cbranch_scc0 L_tk_wait
s_lshl_b32 s9, s4, 2
v_mov_b32 v2, s9
v_mov_b32 v3, 1
s_waitcnt lgkmcnt(0)
s_mov_b64 exec, 1
global_atomic_add v4, v2, v3, s[6:7] sc0
s_waitcnt vmcnt(0)
v_mov_b32 v5, 0
ds_write_b32 v5, v4
s_waitcnt lgkmcnt(0)
s_mov_b64 exec, -1
L_tk_wait:
s_barrier
v_mov_b32 v5, 0
ds_read_b32 v4, v5
s_waitcnt lgkmcnt(0)
v_readfirstlane_b32 s5, v4
s_barrier
""")
```

```python
from asmlib import *
from layout import *
import struct, math
def fbits(x): return struct.unpack("<I",struct.pack("<f",x))[0]
def vr(a,n): return f"v[{a}:{a+n-1}]" if n>1 else f"v{a}"

sRank=10; sW=11; sWS=12; sXS=16; sWSRC=20
sT=24
sXo=36; sWo=37; sRd=38; sWr=39; sIt=40; sOut=41; sTask=42; sA=43; sB=44; sC=45; sD=46
sKarg=0
ST="sc1"

def emit_worker_setup(A):
    A(f"""
s_load_dwordx2 s[{sWS}:{sWS+1}], s[0:1], {KA_WS}
v_lshrrev_b32 v1, 6, v0
v_and_b32 v0, 63, v0
v_readfirstlane_b32 s{sW}, v1
s_mov_b32 s{sWS+2}, {WS_SIZE}
s_mov_b32 s{sWS+3}, 0x20000
s_mov_b32 s{sXS+3}, 0x20000
s_mov_b32 s{sWSRC+3}, 0x20000
s_waitcnt lgkmcnt(0)
""")

def srd_from_karg(A, s, off, nbytes):
    A(f"s_load_dwordx2 s[{s}:{s+1}], s[0:1], {off}\ns_mov_b32 s{s+2}, {nbytes}\ns_waitcnt lgkmcnt(0)")
def srd_from_ws(A, s, off, nbytes):
    A(f"s_add_u32 s{s}, s{sWS}, {off}\ns_addc_u32 s{s+1}, s{sWS+1}, 0\ns_mov_b32 s{s+2}, {nbytes}")

def wave_allsum(A, v, t):
    for r in (8,4,2,1):
        A(f"v_add_f32_dpp v{v}, v{v}, v{v} row_ror:{r} row_mask:0xf bank_mask:0xf")
    A(f"v_mov_b32 v{t}, v{v}\nv_permlane16_swap_b32 v{v}, v{t}\nv_add_f32 v{v}, v{v}, v{t}")
    A(f"v_mov_b32 v{t}, v{v}\nv_permlane32_swap_b32 v{v}, v{t}\nv_add_f32 v{v}, v{v}, v{t}")
def rne_bf16(A, v):
    A(f"v_cvt_pk_bf16_f32 v{v}, v{v}, v{v}\nv_and_b32 v{v}, 0xffff0000, v{v}")
def ln_core(A, X, tmp, vMask):
    s,t,m,d=tmp,tmp+1,tmp+2,tmp+3
    A(f"v_add_f32 v{s}, v{X}, v{X+1}")
    for i in range(2,10): A(f"v_add_f32 v{s}, v{s}, v{X+i}")
    wave_allsum(A,s,t)
    A(f"v_mul_f32 v{s}, {hex(fbits(1.0/576))}, v{s}")
    A(f"v_sub_f32 v{d}, v{X}, v{s}\nv_mul_f32 v{m}, v{d}, v{d}")
    for i in range(1,8): A(f"v_sub_f32 v{d}, v{X+i}, v{s}\nv_fmac_f32 v{m}, v{d}, v{d}")
    for i in (8,9): A(f"v_sub_f32 v{d}, v{X+i}, v{s}\nv_mul_f32 v{d}, v{d}, v{vMask}\nv_fmac_f32 v{m}, v{d}, v{d}")
    wave_allsum(A,m,t)
    A(f"v_mul_f32 v{m}, {hex(fbits(1.0/576))}, v{m}")
    rne_bf16(A,m); rne_bf16(A,s)
    A(f"v_add_f32 v{m}, {hex(fbits(1e-5))}, v{m}"); rne_bf16(A,m)
    A(f"v_sqrt_f32 v{m}, v{m}"); rne_bf16(A,m)
    A(f"v_rcp_f32 v{m}, v{m}")
    for i in range(0,10,2):
        A(f"v_sub_f32 v{X+i}, v{X+i}, v{s}\nv_sub_f32 v{X+i+1}, v{X+i+1}, v{s}")
        A(f"v_cvt_pk_bf16_f32 v{d}, v{X+i}, v{X+i+1}")
        A(f"v_lshlrev_b32 v{X+i}, 16, v{d}\nv_and_b32 v{X+i+1}, 0xffff0000, v{d}")
        A(f"v_mul_f32 v{X+i}, v{X+i}, v{m}\nv_mul_f32 v{X+i+1}, v{X+i+1}, v{m}")
        A(f"v_cvt_pk_bf16_f32 v{d}, v{X+i}, v{X+i+1}")
        A(f"v_mov_b32 v{tmp+4+i//2}, v{d}")
        A(f"v_lshlrev_b32 v{X+i}, 16, v{d}\nv_and_b32 v{X+i+1}, 0xffff0000, v{d}")
    A(f"v_mul_f32 v{X+8}, v{X+8}, v{vMask}\nv_mul_f32 v{X+9}, v{X+9}, v{vMask}")

def emit_ln(A, NW):
    nrow=(2048+NW*4-1)//(NW*4)
    srd_from_karg(A,sXS,KA_X,2048*1152)
    vO,vO2,vMask=2,3,4
    L=8
    A(f"""
v_lshlrev_b32 v{vO}, 4, v0
v_lshlrev_b32 v{vO2}, 2, v0
v_add_u32 v{vO2}, 1024, v{vO2}
v_mov_b32 v5, 0x7ff00000
v_cmp_gt_u32 vcc, 32, v0
v_cndmask_b32 v{vO2}, v5, v{vO2}, vcc
v_cndmask_b32 v{vMask}, 0, 1.0, vcc
s_lshl_b32 s{sA}, s{sRank}, 2
s_add_u32 s{sA}, s{sA}, s{sW}
""")
    for k in range(nrow):
        A(f"s_add_u32 s{sT}, s{sA}, {k*NW*4}\ns_mul_i32 s{sT}, s{sT}, 1152")
        A(f"buffer_load_dwordx4 {vr(L+8*k,4)}, v{vO}, s[{sXS}:{sXS+3}], s{sT} offen")
        A(f"buffer_load_dword v{L+8*k+4}, v{vO2}, s[{sXS}:{sXS+3}], s{sT} offen")
    X=40; tmp=52
    for k in range(nrow):
        lab=A.uid("L_ln")
        A(f"s_add_u32 s{sT}, s{sA}, {k*NW*4}\ns_cmp_ge_u32 s{sT}, 2048\ns_cbranch_scc1 {lab}")
        A(f"s_mul_i32 s{sT}, s{sT}, 1152")
        A(f"s_waitcnt vmcnt({0})")
        for i in range(5):
            A(f"v_lshlrev_b32 v{X+2*i}, 16, v{L+8*k+i}\nv_and_b32 v{X+2*i+1}, 0xffff0000, v{L+8*k+i}")
        for which,off in ((0,WS_XN),(1,WS_HH)):
            ln_core(A,X,tmp,vMask)
            A(f"s_add_u32 s{sT+1}, s{sT}, {off}")
            o=64+8*which
            for i in range(5): A(f"v_mov_b32 v{o+i}, v{tmp+4+i}")
            A(f"buffer_store_dwordx4 {vr(o,4)}, v{vO}, s[{sWS}:{sWS+3}], s{sT+1} offen {ST}")
            A(f"buffer_store_dword v{o+4}, v{vO2}, s[{sWS}:{sWS+3}], s{sT+1} offen {ST}")
        A(f"{lab}:")
    A("s_waitcnt vmcnt(0)")

class Gemm:
    pass

def gemm_mainloop(A, G, tag):
    SB=G.XB+G.WB
    def mf(buf,first):
        for wt in range(G.nWt):
            for xt in range(G.nXt):
                acc=vr(G.acc+16*(wt*G.nXt+xt),16)
                fx=vr(G.fX+buf*4*G.nXt+4*xt,4); fw=vr(G.fW+buf*4*G.nWt+4*wt,4)
                a,b=(fw,fx) if G.orient=="WX" else (fx,fw)
                A(f"v_mfma_f32_32x32x16_bf16 {acc}, {a}, {b}, {'0' if first else acc}")
    def adv(s):
        A(f"s_add_u32 s{s}, s{s}, {SB}\ns_cmp_eq_u32 s{s}, {3*SB}\ns_cselect_b32 s{s}, 0, s{s}")
    A("s_barrier")
    A(f"s_mov_b32 s{sWr}, 0\ns_mov_b32 s{sRd}, 0")
    for i in range(3):
        G.dma(A); adv(sWr)
    A(f"s_waitcnt vmcnt({2*G.D})\ns_barrier")
    G.setaddr(A)
    G.reads(A,0,0)
    def body(first,label_sfx):
        for ks in range(3):
            A("s_waitcnt lgkmcnt(0)")
            G.reads(A,ks+1,(ks+1)%2)
            mf(ks%2, first and ks==0)
        A("s_waitcnt lgkmcnt(0)")
        l_last=A.uid("L_last"); l_nodma=A.uid("L_nodma"); l_w0=A.uid("L_w0"); l_wd=A.uid("L_wd")
        A(f"s_add_u32 s{sIt}, s{sIt}, 1")
        A(f"s_cmp_ge_u32 s{sIt}, {G.nst}\ns_cbranch_scc1 {l_last}")
        A(f"s_add_u32 s{sT}, s{sIt}, 1\ns_cmp_ge_u32 s{sT}, {G.nst}\ns_cbranch_scc1 {l_w0}")
        A(f"s_waitcnt vmcnt({G.D})\ns_branch {l_wd}\n{l_w0}:\ns_waitcnt vmcnt(0)\n{l_wd}:")
        A("s_barrier")
        A(f"s_add_u32 s{sT}, s{sIt}, 2\ns_cmp_ge_u32 s{sT}, {G.nst}\ns_cbranch_scc1 {l_nodma}")
        G.dma(A); adv(sWr)
        A(f"{l_nodma}:")
        adv(sRd)
        G.setaddr(A)
        G.reads(A,0,0)
        A(f"{l_last}:")
        mf(1,False)
    A(f"s_mov_b32 s{sIt}, 0")
    body(True,"a")
    lp=A.uid("L_gl"); le=A.uid("L_ge")
    A(f"s_cmp_ge_u32 s{sIt}, {G.nst}\ns_cbranch_scc1 {le}")
    A(f"{lp}:")
    body(False,"b")
    A(f"s_cmp_lt_u32 s{sIt}, {G.nst}\ns_cbranch_scc1 {lp}")
    A(f"{le}:")
    A("s_nop 15")

def lane_consts(A, t):
    A(f"""
v_bfe_u32 v{t}, v0, 4, 1
v_bfe_u32 v{t+1}, v0, 5, 1
v_bfe_u32 v{t+2}, v0, 2, 2
v_and_b32 v{t+3}, 3, v0
""")

def w_strided_addr(A, dst, n, rowbytes, unit0_sgpr, xorshift_mode, t):
    lane_consts(A,t)
    A(f"""
v_lshl_add_u32 v{t+4}, v{t+1}, 3, v{t+2}
v_mul_u32_u24 v{t+4}, {rowbytes}, v{t+4}
v_and_b32 v{t+5}, 1, v{t+3}
v_lshl_add_u32 v{t+4}, v{t+5}, 3, v{t+4}
v_lshrrev_b32 v{t+5}, 1, v{t+3}
v_lshl_add_u32 v{t+5}, v{t}, 1, v{t+5}
v_add_u32 v{t+5}, s{unit0_sgpr}, v{t+5}
""")
    if xorshift_mode=="r2": A(f"v_lshlrev_b32 v{t+6}, 2, v{t+2}")
    else: A(f"v_lshrrev_b32 v{t+6}, 1, v{t+2}\nv_lshlrev_b32 v{t+6}, 2, v{t+6}")
    for i in range(n):
        A(f"v_add_u32 v{t+7}, {4*i}, v{t+5}\nv_xor_b32 v{t+7}, v{t+7}, v{t+6}\nv_lshl_add_u32 v{dst+i}, v{t+7}, 4, v{t+4}")

def x_contig_addr(A, dst, row0_sgpr, t):
    A(f"""
v_and_b32 v{t}, 31, v0
v_add_u32 v{t}, s{row0_sgpr}, v{t}
v_lshrrev_b32 v{t+1}, 5, v0
v_bfe_u32 v{t+2}, v{t}, 1, 3
v_lshlrev_b32 v{t}, 7, v{t}
""")
    for ks in range(4):
        A(f"v_add_u32 v{t+3}, {2*ks}, v{t+1}\nv_xor_b32 v{t+3}, v{t+3}, v{t+2}\nv_lshl_add_u32 v{dst+ks}, v{t+3}, 4, v{t}")

gDX=2
gDW=5
gAXc=8
gAWc=12
gAX=16; gAW=20
gT=24
gFX=32; gFW=64
gACC=128

def setaddr_generic(A,nX,nW,XB):
    for i in range(nX): A(f"v_add_u32 v{gAX+i}, s{sRd}, v{gAXc+i}")
    A(f"s_add_u32 s{sT+1}, s{sRd}, {XB}")
    for i in range(nW): A(f"v_add_u32 v{gAW+i}, s{sT+1}, v{gAWc+i}")

def pack_swap(A, acc, j, d):
    a=acc+8*j
    A(f"""
v_cvt_pk_bf16_f32 v{d}, v{a}, v{a+1}
v_cvt_pk_bf16_f32 v{d+1}, v{a+2}, v{a+3}
v_cvt_pk_bf16_f32 v{d+2}, v{a+4}, v{a+5}
v_cvt_pk_bf16_f32 v{d+3}, v{a+6}, v{a+7}
v_permlane32_swap_b32 v{d}, v{d+2}
v_permlane32_swap_b32 v{d+1}, v{d+3}
""")

def emit_g1(A):
    G=Gemm(); G.nXt=2; G.nWt=4; G.XB=16384; G.WB=32768; G.nst=9; G.D=12; G.fX=gFX; G.fW=gFW; G.acc=gACC
    t=gT
    srd_from_ws(A,sXS,WS_XN,2048*1152)
    A(f"s_lshl_b32 s{sT}, s{sA}, 3\ns_add_u32 s{sT}, s{sT}, {KA_WQ}\ns_load_dwordx2 s[{sWSRC}:{sWSRC+1}], s[0:1], s{sT}\ns_mov_b32 s{sWSRC+2}, {576*8192}")
    A(f"""
v_lshrrev_b32 v{t}, 3, v0
v_mul_u32_u24 v{t}, 1152, v{t}
v_and_b32 v{t+1}, 7, v0
v_lshrrev_b32 v{t+2}, 4, v0
v_xor_b32 v{t+3}, v{t+1}, v{t+2}
v_lshl_add_u32 v{gDX}, v{t+3}, 4, v{t}
v_xor_b32 v{t+3}, 4, v{t+3}
v_lshl_add_u32 v{gDX+1}, v{t+3}, 4, v{t}
v_lshrrev_b32 v{t}, 5, v0
v_lshlrev_b32 v{t+1}, 2, v{t}
v_lshlrev_b32 v{t}, 13, v{t}
v_and_b32 v{t+2}, 31, v0
v_xor_b32 v{t+3}, v{t+2}, v{t+1}
v_lshl_add_u32 v{gDW}, v{t+3}, 4, v{t}
v_xor_b32 v{t+3}, 8, v{t+3}
v_lshl_add_u32 v{gDW+1}, v{t+3}, 4, v{t}
""")
    A(f"""
s_lshl_b32 s{sT}, s{sB}, 7
s_lshl_b32 s{sT+1}, s{sW}, 5
s_add_u32 s{sT}, s{sT}, s{sT+1}
s_mul_i32 s{sXo}, s{sT}, 1152
s_lshl_b32 s{sWo}, s{sW}, 17
s_lshl_b32 s{sT}, s{sC}, 9
s_add_u32 s{sWo}, s{sWo}, s{sT}
""")
    A(f"s_and_b32 s{sT}, s{sW}, 1\ns_lshl_b32 s{sT}, s{sT}, 6")
    x_contig_addr(A,gAXc,sT,t)
    A(f"s_lshr_b32 s{sT}, s{sW}, 1\ns_lshl_b32 s{sT}, s{sT}, 4")
    w_strided_addr(A,gAWc,4,512,sT,"r2",t)
    def dma(A):
        for j in range(4):
            A(f"s_lshl_b32 s{sT+2}, s{sW}, 12\ns_add_u32 s{sT+2}, s{sT+2}, s{sWr}\ns_add_u32 m0, s{sT+2}, {j*1024}")
            A(f"s_add_u32 s{sT+3}, s{sXo}, {j*8*1152}")
            A(f"buffer_load_dwordx4 v{gDX+(j%2)}, s[{sXS}:{sXS+3}], s{sT+3} offen lds")
        for j in range(8):
            A(f"s_lshl_b32 s{sT+2}, s{sW}, 13\ns_add_u32 s{sT+2}, s{sT+2}, s{sWr}\ns_add_u32 m0, s{sT+2}, {16384+j*1024}")
            A(f"s_add_u32 s{sT+3}, s{sWo}, {j*2*8192}")
            A(f"buffer_load_dwordx4 v{gDW+(j%2)}, s[{sWSRC}:{sWSRC+3}], s{sT+3} offen lds")
        A(f"s_add_u32 s{sXo}, s{sXo}, 128\ns_add_u32 s{sWo}, s{sWo}, {64*8192}")
    G.dma=dma
    G.setaddr=lambda A: setaddr_generic(A,4,4,G.XB)
    def reads(A,ks,buf):
        for xt in range(2):
            A(f"ds_read_b128 {vr(G.fX+buf*8+4*xt,4)}, v{gAX+ks} offset:{xt*4096}")
        for wt in range(4):
            for h in range(2):
                A(f"ds_read_b64_tr_b16 {vr(G.fW+buf*16+4*wt+2*h,2)}, v{gAW+wt} offset:{(16*ks+4*h)*512}")
    G.reads=reads
    A("s_waitcnt lgkmcnt(0)")
    lv=A.uid("L_g1v"); le=A.uid("L_g1e")
    A(f"s_cmp_eq_u32 s{sA}, 2\ns_cbranch_scc1 {lv}")
    G.orient="WX"
    gemm_mainloop(A,G,"g1k")
    A(f"""
s_cmp_eq_u32 s{sA}, 0
s_mov_b32 s{sOut}, {WS_KX}
s_cselect_b32 s{sOut}, {WS_QX}, s{sOut}
s_and_b32 s{sT}, s{sW}, 1
s_lshl_b32 s{sT}, s{sT}, 1
s_lshl_b32 s{sT+1}, s{sB}, 2
s_add_u32 s{sT}, s{sT}, s{sT+1}
s_lshl_b32 s{sT}, s{sT}, 18
s_add_u32 s{sOut}, s{sOut}, s{sT}
s_lshl_b32 s{sT}, s{sC}, 1
s_lshr_b32 s{sT+1}, s{sW}, 1
s_add_u32 s{sT}, s{sT}, s{sT+1}
s_lshl_b32 s{sT}, s{sT}, 13
s_add_u32 s{sOut}, s{sOut}, s{sT}
v_and_b32 v{t}, 31, v0
v_lshlrev_b32 v{t}, 4, v{t}
v_lshrrev_b32 v{t+1}, 5, v0
v_lshl_add_u32 v{t}, v{t+1}, 9, v{t}
""")
    n=0
    for xt in range(2):
        for wt in range(4):
            for j in range(2):
                d=gFX+4*(n%8); n+=1
                pack_swap(A,G.acc+16*(wt*2+xt),j,d)
                A(f"s_add_u32 s{sT}, s{sOut}, {xt*262144+(4*wt+2*j)*512}")
                A(f"buffer_store_dwordx4 {vr(d,4)}, v{t}, s[{sWS}:{sWS+3}], s{sT} offen {ST}")
    A(f"s_branch {le}")
    A(f"{lv}:")
    G.orient="XW"
    gemm_mainloop(A,G,"g1v")
    A(f"""
s_and_b32 s{sT}, s{sW}, 1
s_lshl_b32 s{sT}, s{sT}, 1
s_lshl_b32 s{sT+1}, s{sB}, 2
s_add_u32 s{sT}, s{sT}, s{sT+1}
s_lshl_b32 s{sT}, s{sT}, 18
s_add_u32 s{sOut}, s{sT}, {WS_VT}
s_lshl_b32 s{sT}, s{sC}, 1
s_lshr_b32 s{sT+1}, s{sW}, 1
s_add_u32 s{sT}, s{sT}, s{sT+1}
s_lshl_b32 s{sT}, s{sT}, 13
s_add_u32 s{sOut}, s{sOut}, s{sT}
v_and_b32 v{t}, 31, v0
v_lshlrev_b32 v{t}, 4, v{t}
v_lshrrev_b32 v{t+1}, 5, v0
v_lshl_add_u32 v{t}, v{t+1}, 11, v{t}
""")
    n=0
    for xt in range(2):
        for wt in range(4):
            a=G.acc+16*(wt*2+xt)
            for j in range(2):
                d=gFX+4*(n%8); n+=1
                A(f"""
v_cvt_pk_bf16_f32 v{d}, v{a+4*j}, v{a+4*j+1}
v_cvt_pk_bf16_f32 v{d+1}, v{a+4*j+2}, v{a+4*j+3}
v_cvt_pk_bf16_f32 v{d+2}, v{a+8+4*j}, v{a+8+4*j+1}
v_cvt_pk_bf16_f32 v{d+3}, v{a+8+4*j+2}, v{a+8+4*j+3}
s_add_u32 s{sT}, s{sOut}, {xt*262144+j*4096+wt*512}
buffer_store_dwordx4 {vr(d,4)}, v{t}, s[{sWS}:{sWS+3}], s{sT} offen {ST}
""")
    A(f"{le}:")
    A("s_waitcnt vmcnt(0)")

def emit_g2(A):
    G=Gemm(); G.nXt=3; G.nWt=2; G.XB=24576; G.WB=16384; G.nst=32; G.D=10; G.fX=gFX; G.fW=gFW; G.acc=gACC; G.orient="WX"
    t=gT
    srd_from_ws(A,sXS,WS_HH,2048*1152)
    srd_from_karg(A,sWSRC,KA_W1,2048*9216)
    for v in range(3):
        A(f"""
v_add_u32 v{t}, {64*v}, v0
v_mul_u32_u24 v{t+1}, 2731, v{t}
v_lshrrev_b32 v{t+1}, 16, v{t+1}
v_mul_u32_u24 v{t+2}, 24, v{t+1}
v_sub_u32 v{t+2}, v{t}, v{t+2}
v_bfe_u32 v{t+3}, v{t+1}, 1, 1
v_lshlrev_b32 v{t+3}, 2, v{t+3}
v_xor_b32 v{t+2}, v{t+2}, v{t+3}
v_mul_u32_u24 v{t+1}, 1152, v{t+1}
v_lshl_add_u32 v{gDX+v}, v{t+2}, 4, v{t+1}
""")
    for U in range(192): assert (U*2731)>>16==U//24
    A(f"""
v_lshrrev_b32 v{t}, 4, v0
v_lshlrev_b32 v{t+1}, 2, v{t}
v_mul_u32_u24 v{t}, 9216, v{t}
v_and_b32 v{t+2}, 15, v0
v_xor_b32 v{t+2}, v{t+2}, v{t+1}
v_lshl_add_u32 v{gDW}, v{t+2}, 4, v{t}
s_mul_i32 s{sXo}, s{sW}, {16*1152}
s_mul_i32 s{sT}, s{sA}, 384
s_add_u32 s{sXo}, s{sXo}, s{sT}
s_mul_i32 s{sWo}, s{sW}, {16*9216}
s_lshl_b32 s{sT}, s{sB}, 8
s_add_u32 s{sWo}, s{sWo}, s{sT}
s_and_b32 s{sT}, s{sW}, 1
s_mul_i32 s{sT}, s{sT}, 12
""")
    w_strided_addr(A,gAXc,3,384,sT,"rhi",t)
    A(f"s_lshr_b32 s{sT}, s{sW}, 1\ns_lshl_b32 s{sT}, s{sT}, 3")
    w_strided_addr(A,gAWc,2,256,sT,"r2",t)
    def dma(A):
        for j in range(6):
            A(f"s_mul_i32 s{sT+2}, s{sW}, 6144\ns_add_u32 s{sT+2}, s{sT+2}, s{sWr}\ns_add_u32 m0, s{sT+2}, {j*1024}")
            A(f"s_add_u32 s{sT+3}, s{sXo}, {(j//3)*8*1152}")
            A(f"buffer_load_dwordx4 v{gDX+(j%3)}, s[{sXS}:{sXS+3}], s{sT+3} offen lds")
        for j in range(4):
            A(f"s_lshl_b32 s{sT+2}, s{sW}, 12\ns_add_u32 s{sT+2}, s{sT+2}, s{sWr}\ns_add_u32 m0, s{sT+2}, {24576+j*1024}")
            A(f"s_add_u32 s{sT+3}, s{sWo}, {j*4*9216}")
            A(f"buffer_load_dwordx4 v{gDW}, s[{sWSRC}:{sWSRC+3}], s{sT+3} offen lds")
        A(f"s_add_u32 s{sXo}, s{sXo}, {64*1152}\ns_add_u32 s{sWo}, s{sWo}, {64*9216}")
    G.dma=dma
    G.setaddr=lambda A: setaddr_generic(A,3,2,G.XB)
    def reads(A,ks,buf):
        for xt in range(3):
            for h in range(2):
                A(f"ds_read_b64_tr_b16 {vr(G.fX+buf*12+4*xt+2*h,2)}, v{gAX+xt} offset:{(16*ks+4*h)*384}")
        for wt in range(2):
            for h in range(2):
                A(f"ds_read_b64_tr_b16 {vr(G.fW+buf*8+4*wt+2*h,2)}, v{gAW+wt} offset:{(16*ks+4*h)*256}")
    G.reads=reads
    gemm_mainloop(A,G,"g2")
    srd_from_karg(A,sXS,KA_B1,4608*2)
    A(f"""
s_lshl_b32 s{sT}, s{sB}, 7
s_lshr_b32 s{sT+1}, s{sW}, 1
s_lshl_b32 s{sT+1}, s{sT+1}, 6
s_add_u32 s{sA+3}, s{sT}, s{sT+1}
s_lshl_b32 s{sT}, s{sA+3}, 1
v_lshrrev_b32 v{t}, 5, v0
v_lshlrev_b32 v{t}, 3, v{t}
""")
    Bv=gFW
    for wt in range(2):
        for m in range(4):
            A(f"buffer_load_dwordx2 {vr(Bv+2*(4*wt+m),2)}, v{t}, s[{sXS}:{sXS+3}], s{sT} offen offset:{(32*wt+8*m)*2}")
    A("s_waitcnt vmcnt(0)")
    Bf=gFX
    for i in range(16):
        A(f"v_lshlrev_b32 v{Bf+2*i}, 16, v{Bv+i}\nv_and_b32 v{Bf+2*i+1}, 0xffff0000, v{Bv+i}")
    A(f"""
s_lshr_b32 s{sT}, s{sD}, 3
s_mul_i32 s{sOut}, s{sT}, {576*16}
s_mul_i32 s{sT}, s{sA}, {192*16}
s_add_u32 s{sOut}, s{sOut}, s{sT}
s_and_b32 s{sT}, s{sW}, 1
s_mul_i32 s{sT}, s{sT}, {96*16}
s_add_u32 s{sOut}, s{sOut}, s{sT}
s_add_u32 s{sOut}, s{sOut}, {WS_U}
v_and_b32 v{t}, 31, v0
v_lshlrev_b32 v{t}, 4, v{t}
v_lshrrev_b32 v{t+1}, 5, v0
v_mul_u32_u24 v{t+1}, {576*16}, v{t+1}
v_add_u32 v{t}, v{t}, v{t+1}
s_mov_b32 s{sT+4}, {hex(fbits(0.044715))}
s_mov_b32 s{sT+5}, {hex(fbits(-2.0*math.sqrt(2.0/math.pi)*math.log2(math.e)))}
""")
    x,y=t+2,t+3
    n=0
    for wt in range(2):
        for xt in range(3):
            a=G.acc+16*(wt*3+xt)
            for i in range(16):
                A(f"v_add_f32 v{a+i}, v{a+i}, v{Bf+16*wt+i}")
                A(f"v_mul_f32 v{x}, v{a+i}, v{a+i}")
                A(f"v_mul_f32 v{x}, s{sT+4}, v{x}")
                A(f"v_fma_f32 v{x}, v{x}, v{a+i}, v{a+i}")
                A(f"v_mul_f32 v{x}, s{sT+5}, v{x}")
                A(f"v_exp_f32 v{x}, v{x}")
                A(f"v_add_f32 v{x}, 1.0, v{x}")
                A(f"v_rcp_f32 v{x}, v{x}")
                A(f"v_mul_f32 v{a+i}, v{a+i}, v{x}")
            for j in range(2):
                d=gFW+4*(n%8); n+=1
                pack_swap(A,a,j,d)
                A(f"s_add_u32 s{sT}, s{sOut}, {((32*wt+16*j)//8)*576*16+xt*32*16}")
                A(f"buffer_store_dwordx4 {vr(d,4)}, v{t}, s[{sWS}:{sWS+3}], s{sT} offen {ST}")
    A("s_waitcnt vmcnt(0)")

def emit_g3(A):
    G=Gemm(); G.nXt=3; G.nWt=2; G.XB=24576; G.WB=16384; G.nst=18; G.D=10; G.fX=gFX; G.fW=gFW; G.acc=gACC; G.orient="XW"
    t=gT
    srd_from_ws(A,sXS,WS_U,576*576*16)
    srd_from_karg(A,sWSRC,KA_W2,4608*4096)
    A(f"""
v_lshrrev_b32 v{t}, 3, v0
v_lshlrev_b32 v{t}, 4, v{t}
v_and_b32 v{t+1}, 7, v0
v_lshrrev_b32 v{t+2}, 4, v0
v_xor_b32 v{t+3}, v{t+1}, v{t+2}
v_mul_u32_u24 v{t+4}, {576*16}, v{t+3}
v_add_u32 v{gDX}, v{t+4}, v{t}
v_xor_b32 v{t+3}, 4, v{t+3}
v_mul_u32_u24 v{t+4}, {576*16}, v{t+3}
v_add_u32 v{gDX+1}, v{t+4}, v{t}
v_lshrrev_b32 v{t}, 4, v0
v_lshlrev_b32 v{t+1}, 2, v{t}
v_lshlrev_b32 v{t}, 12, v{t}
v_and_b32 v{t+2}, 15, v0
v_xor_b32 v{t+2}, v{t+2}, v{t+1}
v_lshl_add_u32 v{gDW}, v{t+2}, 4, v{t}
s_mul_i32 s{sXo}, s{sC}, {144*576*16}
s_mul_i32 s{sT}, s{sA}, {192*16}
s_add_u32 s{sXo}, s{sXo}, s{sT}
s_mul_i32 s{sT}, s{sW}, {48*16}
s_add_u32 s{sXo}, s{sXo}, s{sT}
s_mul_i32 s{sWo}, s{sC}, {1152*4096}
s_lshl_b32 s{sT}, s{sW}, 16
s_add_u32 s{sWo}, s{sWo}, s{sT}
s_lshl_b32 s{sT}, s{sB}, 8
s_add_u32 s{sWo}, s{sWo}, s{sT}
s_and_b32 s{sT}, s{sW}, 1
s_mul_i32 s{sT}, s{sT}, 96
""")
    x_contig_addr(A,gAXc,sT,t)
    A(f"s_lshr_b32 s{sT}, s{sW}, 1\ns_lshl_b32 s{sT}, s{sT}, 3")
    w_strided_addr(A,gAWc,2,256,sT,"r2",t)
    def dma(A):
        for j in range(6):
            A(f"s_mul_i32 s{sT+2}, s{sW}, 6144\ns_add_u32 s{sT+2}, s{sT+2}, s{sWr}\ns_add_u32 m0, s{sT+2}, {j*1024}")
            A(f"s_add_u32 s{sT+3}, s{sXo}, {j*8*16}")
            A(f"buffer_load_dwordx4 v{gDX+(j%2)}, s[{sXS}:{sXS+3}], s{sT+3} offen sc1 lds")
        for j in range(4):
            A(f"s_lshl_b32 s{sT+2}, s{sW}, 12\ns_add_u32 s{sT+2}, s{sT+2}, s{sWr}\ns_add_u32 m0, s{sT+2}, {24576+j*1024}")
            A(f"s_add_u32 s{sT+3}, s{sWo}, {j*4*4096}")
            A(f"buffer_load_dwordx4 v{gDW}, s[{sWSRC}:{sWSRC+3}], s{sT+3} offen lds")
        A(f"s_add_u32 s{sXo}, s{sXo}, {8*576*16}\ns_add_u32 s{sWo}, s{sWo}, {64*4096}")
    G.dma=dma
    G.setaddr=lambda A: setaddr_generic(A,4,2,G.XB)
    def reads(A,ks,buf):
        for xt in range(3):
            A(f"ds_read_b128 {vr(G.fX+buf*12+4*xt,4)}, v{gAX+ks} offset:{xt*4096}")
        for wt in range(2):
            for h in range(2):
                A(f"ds_read_b64_tr_b16 {vr(G.fW+buf*8+4*wt+2*h,2)}, v{gAW+wt} offset:{(16*ks+4*h)*256}")
    G.reads=reads
    gemm_mainloop(A,G,"g3")
    srd_from_karg(A,sXS,KA_B2,2048*2)
    A(f"""
s_lshl_b32 s{sT}, s{sB}, 7
s_lshr_b32 s{sT+1}, s{sW}, 1
s_lshl_b32 s{sT+1}, s{sT+1}, 6
s_add_u32 s{sD}, s{sT}, s{sT+1}
s_lshl_b32 s{sT}, s{sD}, 1
v_and_b32 v{t}, 31, v0
v_lshlrev_b32 v{t}, 1, v{t}
buffer_load_ushort v{t+4}, v{t}, s[{sXS}:{sXS+3}], s{sT} offen
buffer_load_ushort v{t+5}, v{t}, s[{sXS}:{sXS+3}], s{sT} offen offset:64
s_lshr_b32 s{sT}, s{sD}, 4
s_mul_i32 s{sOut}, s{sT}, {36*1024}
s_mul_i32 s{sT}, s{sA}, {12*1024}
s_add_u32 s{sOut}, s{sOut}, s{sT}
s_and_b32 s{sT}, s{sW}, 1
s_mul_i32 s{sT}, s{sT}, {6*1024}
s_add_u32 s{sOut}, s{sOut}, s{sT}
s_add_u32 s{sT}, s{sC}, 8
s_mul_i32 s{sT}, s{sT}, {P_SLAB}
s_add_u32 s{sOut}, s{sOut}, s{sT}
s_add_u32 s{sOut}, s{sOut}, {WS_P}
v_and_b32 v{t}, 15, v0
v_lshlrev_b32 v{t}, 4, v{t}
v_lshrrev_b32 v{t+1}, 5, v0
v_lshl_add_u32 v{t}, v{t+1}, 8, v{t}
v_bfe_u32 v{t+1}, v0, 4, 1
v_mul_u32_u24 v{t+1}, {36*1024}, v{t+1}
v_add_u32 v{t}, v{t}, v{t+1}
s_cmp_eq_u32 s{sC}, 0
s_cselect_b32 s{sT+6}, -1, 0
s_waitcnt vmcnt(0)
v_lshlrev_b32 v{t+4}, 16, v{t+4}
v_lshlrev_b32 v{t+5}, 16, v{t+5}
v_and_b32 v{t+4}, s{sT+6}, v{t+4}
v_and_b32 v{t+5}, s{sT+6}, v{t+5}
""")
    for wt in range(2):
        for xt in range(3):
            a=G.acc+16*(wt*3+xt)
            for i in range(16): A(f"v_add_f32 v{a+i}, v{a+i}, v{t+4+wt}")
            for m in range(4):
                A(f"s_add_u32 s{sT}, s{sOut}, {wt*2*36*1024+(2*xt+(m>>1))*1024+(m&1)*512}")
                A(f"buffer_store_dwordx4 {vr(a+4*m,4)}, v{t}, s[{sWS}:{sWS+3}], s{sT} offen {ST}")
    A("s_waitcnt vmcnt(0)")
```

```python
import sys; sys.path.insert(0,'gen')
from asmlib import *
from layout import *
import role, chain, workers as Wk, p4
NAME="parallel_sum__memory_aug_recurrent_mem_tr__mixer_token_mlp__prompt"
def kern(name, body_lines):
    return f""".globl {name}
.p2align 8
.type {name},@function
{name}:
"""+"\n".join(body_lines)+"\n"
def desc(name):
    return f""".amdhsa_kernel {name}
  .amdhsa_next_free_vgpr 512
  .amdhsa_next_free_sgpr 102
  .amdhsa_accum_offset 256
  .amdhsa_group_segment_fixed_size 0
  .amdhsa_kernarg_size 120
  .amdhsa_user_sgpr_count 2
  .amdhsa_user_sgpr_kernarg_segment_ptr 1
  .amdhsa_system_sgpr_workgroup_id_x 1
.end_amdhsa_kernel
"""
class NA(Asm):
    def __init__(s,p): super().__init__(); s.p=p
    def uid(s,q="L"): return super().uid(s.p+q)
def relabel(lines,p,names):
    out=[]
    import re
    for l in lines:
        for n in names: l=re.sub(r'\b'+n+r'\b',p+n,l)
        out.append(l)
    return out
def k_ln():
    A=NA("a"); A(f"s_cmp_ge_u32 s2, 256\ns_cbranch_scc1 La_exit\ns_mov_b32 s{Wk.sRank}, s2")
    Wk.emit_worker_setup(A); Wk.emit_ln(A,256); A("La_exit:\ns_endpgm"); return fix_hazards(A.lines)
def k_g1g2():
    A=NA("b"); A(f"s_cmp_ge_u32 s2, 876\ns_cbranch_scc1 Lb_exit\ns_mov_b32 s{Wk.sRank}, s2")
    Wk.emit_worker_setup(A)
    A(f"s_cmp_ge_u32 s2, 768\ns_cbranch_scc1 Lb_g2")
    A(f"s_lshr_b32 s{Wk.sA}, s2, 8\ns_bfe_u32 s{Wk.sB}, s2, 0x40004\ns_and_b32 s{Wk.sC}, s2, 15")
    Wk.emit_g1(A); A("s_endpgm\nLb_g2:")
    A(f"s_sub_u32 s{Wk.sB}, s2, 768\ns_mul_i32 s{Wk.sA}, s{Wk.sB}, 1821\ns_lshr_b32 s{Wk.sA}, s{Wk.sA}, 16\ns_mul_i32 s{Wk.sT}, s{Wk.sA}, 36\ns_sub_u32 s{Wk.sB}, s{Wk.sB}, s{Wk.sT}")
    for x in range(108): assert (x*1821)>>16==x//36
    Wk.emit_g2(A); A("Lb_exit:\ns_endpgm"); return fix_hazards(A.lines)
def k_chain_g3():
    A=NA("c"); role.emit_entry(A)
    A(f"s_cmp_eq_u32 s4, 0\ns_cbranch_scc0 Lc_work\ns_mov_b32 s{chain.sH}, s5")
    chain.emit_chain(A,nsteps=64,stamps=False)
    A("s_endpgm\nLc_work:")
    A(f"s_sub_u32 s{Wk.sRank}, s4, 1\ns_lshl_b32 s{Wk.sRank}, s{Wk.sRank}, 5\ns_add_u32 s{Wk.sRank}, s{Wk.sRank}, s5\ns_cmp_ge_u32 s{Wk.sRank}, 192\ns_cbranch_scc1 L_exit")
    Wk.emit_worker_setup(A)
    A(f"s_and_b32 s{Wk.sC}, s{Wk.sRank}, 3\ns_bfe_u32 s{Wk.sB}, s{Wk.sRank}, 0x40002\ns_lshr_b32 s{Wk.sA}, s{Wk.sRank}, 6")
    Wk.emit_g3(A); A("L_exit:\ns_endpgm")
    return relabel(fix_hazards(A.lines),"c",[])
def k_p4():
    A=NA("d"); A(f"s_cmp_ge_u32 s2, 256\ns_cbranch_scc1 Ld_exit\ns_mov_b32 s{Wk.sRank}, s2")
    Wk.emit_worker_setup(A)
    A(f"s_and_b32 s{Wk.sA}, s2, 7\ns_bfe_u32 s{Wk.sB}, s2, 0x20003\ns_lshr_b32 s{Wk.sC}, s2, 5")
    p4.emit_p4_setup(A)
    A("Ld_loop:")
    p4.emit_p4_segment(A,0)
    A(f"s_barrier\ns_add_u32 s{Wk.sC}, s{Wk.sC}, 8\ns_cmp_lt_u32 s{Wk.sC}, 64\ns_nop 7\ns_cbranch_scc1 Ld_loop\ns_waitcnt vmcnt(0)\nLd_exit:\ns_endpgm")
    return fix_hazards(A.lines)
def k_comb():
    A=NA("e"); A(f"s_cmp_ge_u32 s2, 1152\ns_cbranch_scc1 Le_exit")
    Wk.emit_worker_setup(A)
    Wk.srd_from_karg(A,Wk.sXS,KA_X,2048*1152); Wk.srd_from_karg(A,Wk.sWSRC,KA_OUT,2048*1152)
    A(f"s_lshl_b32 s{Wk.sT+8}, s2, 2\ns_add_u32 s{Wk.sT+8}, s{Wk.sT+8}, s{Wk.sW}\ns_mul_i32 s{Wk.sC}, s{Wk.sT+8}, 58255\ns_lshr_b32 s{Wk.sC}, s{Wk.sC}, 21\ns_mul_i32 s{Wk.sT+9}, s{Wk.sC}, 36\ns_sub_u32 s{Wk.sD}, s{Wk.sT+8}, s{Wk.sT+9}")
    for x in range(4608): assert (x*58255)>>21==x//36
    p4.emit_combine_tile(A); A("s_waitcnt vmcnt(0)\nLe_exit:\ns_endpgm"); return fix_hazards(A.lines)
def build(upto=5):
    hdr=open('cdna_kernels/'+NAME+'.s.ref').read().split("; Override")[0]
    L=[("k_ln_kernel",256,0,k_ln),("k_g12_kernel",876,163840,k_g1g2),("k_chain_kernel",256,163840,k_chain_g3),("k_p4_kernel",256,163840,k_p4),("k_comb_kernel",1152,0,k_comb)]
    t=hdr
    for n,g,l,f in L[:upto]: t+=f"; @launch kernel={n} grid=({g},1,1) block=(256,1,1) lds={l}\n"
    t+='.amdgcn_target "amdgcn-amd-amdhsa--gfx950"\n.text\n'
    for n,g,l,f in L[:upto]: t+=kern(n,f())
    t+='.section .rodata,"a"\n'
    for n,g,l,f in L[:upto]: t+=".p2align 6\n"+desc(n)
    return t
if __name__=="__main__":
    open(sys.argv[1],"w").write(build())
```

```python
import re

class Asm:
    def __init__(self):
        self.lines = []
        self._uid = 0
    def __call__(self, s):
        for l in s.split("\n"):
            l = l.strip()
            if l: self.lines.append(l)
        return self
    def extend(self, lst):
        for x in lst: self(x)
    def uid(self, p="L"):
        self._uid += 1
        return f"{p}_{self._uid}"
    def text(self): return "\n".join(self.lines) + "\n"

_reg_re = re.compile(r"^(-|\|)?(abs\()?([vas])(?:(\d+)|\[(\d+):(\d+)\])\)?\|?$")
def regs_of(op):
    op = op.strip()
    if op in ("vcc",): return [("s",106),("s",107)]
    if op == "vcc_lo": return [("s",106)]
    if op == "vcc_hi": return [("s",107)]
    if op == "exec": return [("s",126),("s",127)]
    if op == "exec_lo": return [("s",126)]
    if op == "exec_hi": return [("s",127)]
    if op == "m0": return [("s",124)]
    m = _reg_re.match(op)
    if not m: return []
    k = m.group(3)
    if m.group(4) is not None: return [(k,int(m.group(4)))]
    return [(k,i) for i in range(int(m.group(5)), int(m.group(6))+1)]

def split_ops(rest):
    out=[];d=0;cur=""
    for ch in rest:
        if ch in "[(": d+=1
        if ch in "])": d-=1
        if ch=="," and d==0: out.append(cur.strip());cur=""
        else: cur+=ch
    if cur.strip(): out.append(cur.strip())
    return out

TRANS = ("v_exp_f32","v_log_f32","v_rcp_f32","v_rsq_f32","v_sqrt_f32","v_sin_f32","v_cos_f32","v_rcp_iflag_f32")
def mfma_passes(mn):
    if "32x32x16" in mn or "32x32x8" in mn or "smfmac_f32_32x32x32" in mn: return 8
    if "16x16x32" in mn or "16x16x16" in mn or "16x16x64" in mn: return 4
    raise ValueError("unknown mfma "+mn)

class Ins:
    __slots__=("text","mn","cls","dst","src","srcC","idx","passes","dpp","states","storedata","sgpr_const","is_label","is_branch")
def parse(line):
    I=Ins(); I.text=line; I.dst=[]; I.src=[]; I.srcC=[]; I.passes=0; I.dpp=False; I.states=1; I.storedata=[]; I.cls="other"; I.is_label=False; I.is_branch=False; I.mn=""
    l=line.split(";")[0].strip()
    if not l: I.states=0; I.cls="none"; return I
    if l.endswith(":"): I.is_label=True; I.states=0; I.cls="label"; return I
    if l.startswith("."): I.states=0; I.cls="none"; return I
    parts=l.split(None,1); mn=parts[0]; I.mn=mn
    rest=parts[1] if len(parts)>1 else ""
    ops=split_ops(rest)
    if ops:
        last=ops[-1].split()
        mods=last[1:]; ops[-1]=last[0]
    else: mods=[]
    modstr=" ".join(mods)
    R=[regs_of(o) for o in ops]
    if mn=="s_nop": I.states=int(ops[0],0)+1; I.cls="nop"; return I
    if mn.startswith("s_cbranch") or mn=="s_branch" or mn in("s_endpgm","s_setpc_b64","s_swappc_b64"): I.is_branch=True; I.cls="salu"; return I
    if mn.startswith("v_mfma"):
        I.cls="mfma"; I.passes=mfma_passes(mn); I.dst=R[0]; I.src=R[1]+R[2]; I.srcC=R[3]; return I
    if mn.startswith("v_smfmac"):
        I.cls="mfma"; I.passes=mfma_passes(mn); I.dst=R[0]; I.src=R[1]+R[2]+R[3]; I.srcC=R[0]; return I
    if mn.startswith("v_"):
        I.cls="valu"
        if any(m.startswith(("row_","quad_perm","wave_")) for m in mods) or mn.endswith("_dpp"): I.dpp=True
        base=mn.replace("_e32","").replace("_e64","").replace("_dpp","")
        if base.startswith("v_cmp"):
            I.dst=R[0]; I.src=sum(R[1:],[])
            if base.startswith("v_cmpx"): I.dst=I.dst+[("s",126),("s",127)]
        elif base in("v_readfirstlane_b32","v_readlane_b32"):
            I.dst=R[0]; I.src=sum(R[1:],[]); I.cls="valu_rl"
        elif base.startswith("v_permlane") and "swap" in base:
            I.dst=R[0]+R[1]; I.src=R[0]+R[1]; I.cls="valu_perm"
        elif base in("v_add_co_u32","v_sub_co_u32","v_subrev_co_u32"):
            I.dst=R[0]+R[1]; I.src=sum(R[2:],[])
        elif base in("v_addc_co_u32","v_subb_co_u32"):
            I.dst=R[0]+R[1]; I.src=sum(R[2:],[])
        elif base in ("v_fmac_f32","v_dot2c_f32_bf16","v_pk_fmac_f16","v_writelane_b32"):
            I.dst=R[0]; I.src=sum(R,[])
        elif base=="v_cndmask_b32" and len(ops)==3:
            I.dst=R[0]; I.src=R[1]+R[2]+[("s",106),("s",107)]
        elif base=="v_accvgpr_write_b32" or base=="v_accvgpr_read_b32" or base=="v_accvgpr_mov_b32":
            I.dst=R[0]; I.src=R[1]
        else:
            I.dst=R[0]; I.src=sum(R[1:],[])
            if I.dpp: I.src=I.src+R[0]
        if base in TRANS: I.cls="trans" if I.cls=="valu" else I.cls
        return I
    if mn.startswith("ds_"):
        I.cls="ds"
        if mn.startswith(("ds_read","ds_bpermute","ds_permute","ds_swizzle")):
            I.dst=R[0]; I.src=sum(R[1:],[])
        else:
            I.src=sum(R,[])
        return I
    if mn.startswith("buffer_") :
        I.cls="vmem"
        if mn in("buffer_wbl2","buffer_inv"): return I
        lds = "lds" in mods
        if mn.startswith("buffer_load"):
            if lds: I.src=sum(R,[])+[("s",124)]; I.cls="vmem_lds"
            else: I.dst=R[0]; I.src=sum(R[1:],[])
        elif mn.startswith("buffer_store"):
            I.src=sum(R,[])
            if "x3" in mn or "x4" in mn: I.storedata=R[0]
        elif mn.startswith("buffer_atomic"):
            I.src=sum(R,[])
            if "sc0" in mods: I.dst=R[0]
        return I
    if mn.startswith("global_"):
        I.cls="vmem"
        if mn.startswith("global_load_lds"):
            I.src=sum(R,[])+[("s",124)]; I.cls="vmem_lds"
        elif mn.startswith("global_load"):
            I.dst=R[0]; I.src=sum(R[1:],[])
        elif mn.startswith("global_store"):
            I.src=sum(R,[])
            if "x3" in mn or "x4" in mn: I.storedata=R[1]
        elif mn.startswith("global_atomic"):
            if "sc0" in mods: I.dst=R[0]; I.src=sum(R[1:],[])
            else: I.src=sum(R,[])
        return I
    if mn.startswith("s_"):
        I.cls="salu"
        if mn.startswith(("s_cmp","s_bitcmp","s_waitcnt","s_barrier","s_sleep","s_setprio","s_setreg","s_sendmsg","s_endpgm")):
            I.src=sum(R,[])
        elif mn.startswith(("s_load","s_buffer_load","s_memtime","s_memrealtime","s_getreg")):
            I.cls="smem"; I.dst=R[0]; I.src=sum(R[1:],[])
        else:
            I.dst=R[0] if R else []; I.src=sum(R[1:],[])
            if "saveexec" in mn: I.dst=I.dst+[("s",126),("s",127)]
        return I
    raise ValueError("cannot parse: "+line)

NEED_D_VALU={2:5,4:8,8:12,16:20}
NEED_D_AB={2:5,4:8,8:12,16:20}
NEED_D_COVER={2:4,4:6,8:10,16:18}
NEED_C_WAR={2:1,4:3,8:7,16:15}

def lint_offsets(lines):
    for line in lines:
        l=line.split(";")[0]
        m=re.search(r"offset:(-?\d+)",l)
        if not m: continue
        o=int(m.group(1)); mn=l.split()[0]
        if mn.startswith("buffer_"): assert 0<=o<=4095, line
        elif mn.startswith("ds_"): assert 0<=o<=65535, line
        elif mn.startswith("global_"): assert -4096<=o<=4095, line

def fix_hazards(lines, verbose=False):
    lint_offsets(lines)
    out=[]
    pos=0
    lastw={}
    lastC={}
    laststore={}
    snaps={}
    seen=set()
    ninserted=0
    KEEP=24
    def snapshot():
        w={r:[(pos-p,c,pp,rg) for (p,c,pp,rg) in v if pos-p<=KEEP] for r,v in lastw.items()}
        w={r:v for r,v in w.items() if v}
        c={r:[(pos-p,pp) for (p,pp) in v if pos-p<=KEEP] for r,v in lastC.items()}
        c={r:v for r,v in c.items() if v}
        st={r:pos-p for r,p in laststore.items() if pos-p<=KEEP}
        return (w,c,st)
    dead=False
    lastm=None
    for line in lines:
        I=parse(line)
        if I.is_label:
            name=line.split(";")[0].strip()[:-1]
            seen.add(name)
            lastm=None
            if dead:
                lastw={}; lastC={}; laststore={}; dead=False
            for (w,c,st) in snaps.get(name,[]):
                for r,v in w.items():
                    lastw.setdefault(r,[]).extend([(pos-a,cl,pp,rg) for (a,cl,pp,rg) in v])
                for r,v in c.items():
                    lastC.setdefault(r,[]).extend([(pos-a,pp) for (a,pp) in v])
                for r,a in st.items():
                    laststore[r]=max(laststore.get(r,-10**9),pos-a)
            out.append(line); continue
        if I.states==0:
            out.append(line); continue
        if I.cls=="mfma" and lastm is not None:
            pos=max(pos,lastm[0]+lastm[1])
        need=0
        def req(ppos, n):
            nonlocal need
            d=pos-ppos-1
            if d<n: need=max(need,n-d)
        isvalu = I.cls in("valu","trans","valu_rl","valu_perm")
        for r in I.src+I.srcC:
          for (ppos,pcls,pp,prange) in lastw.get(r,[]):
            pvalu = pcls in("valu","trans","valu_rl","valu_perm")
            if r[0] in "va":
                if I.cls=="mfma":
                    if pvalu: req(ppos,2)
                    elif pcls=="mfma":
                        if r in I.srcC and r not in I.src:
                            if tuple(prange)==tuple(I.srcC) and pp==I.passes: pass
                            else: req(ppos,NEED_D_COVER[pp])
                        else: req(ppos,NEED_D_AB[pp])
                else:
                    if pcls=="mfma": req(ppos,NEED_D_VALU[pp])
                    if pvalu:
                        if I.dpp or I.cls=="valu_perm": req(ppos,2)
                        if I.cls=="valu_rl": req(ppos,1)
                        if pcls=="trans" and isvalu and I.cls!="trans": req(ppos,1)
                        if pcls=="trans" and not isvalu: req(ppos,1)
            else:
                if pvalu:
                    if isvalu: req(ppos, 4 if (I.cls=="valu_rl" and I.mn.startswith("v_readlane")) else 2)
                    if I.cls in("vmem","vmem_lds"): req(ppos,5)
                    if I.cls in ("salu","smem"): req(ppos,1)
                elif pcls=="salu":
                    if r==("s",124) and I.cls in("vmem_lds",): req(ppos,1)
        for r in I.dst:
            for (ppos,pcls,pp,prange) in lastw.get(r,[]):
                if pcls=="mfma" and r[0] in "va":
                    if I.cls=="mfma":
                        if not (tuple(prange)==tuple(I.dst) and pp==I.passes): req(ppos,NEED_D_COVER[pp])
                    else: req(ppos,NEED_D_VALU[pp])
            for (cp,cpp) in lastC.get(r,[]):
                if isvalu: req(cp,NEED_C_WAR[cpp])
            s=laststore.get(r)
            if s is not None and I.cls!="salu": req(s,2)
        if need>0:
            n=need
            while n>0:
                k=min(n,16); out.append(f"s_nop {k-1}"); n-=k
            pos+=need; ninserted+=need
        out.append(line)
        if I.cls=="mfma": lastm=(pos,I.passes)
        for r in I.dst: lastw[r]=[(pos,I.cls,I.passes,I.dst)]
        if I.cls=="mfma":
            for r in I.srcC: lastC[r]=[(pos,I.passes)]
        for r in I.storedata: laststore[r]=pos
        pos+=I.states
        if I.is_branch and I.mn!="s_endpgm":
            tgt=line.split(";")[0].split()[1].strip()
            if tgt not in seen:
                snaps.setdefault(tgt,[]).append(snapshot())
            if I.mn=="s_branch": dead=True
        if I.mn=="s_endpgm": dead=True
    if verbose: print("hazard padding inserted states:",ninserted)
    return out

def kernel_text(name, body_lines, launch_lines, header_comment="", vgpr=512, sgpr=102, accum=256):
    t = header_comment
    for l in launch_lines: t += l + "\n"
    t += '.amdgcn_target "amdgcn-amd-amdhsa--gfx950"\n.text\n'
    return t
```

```python
from asmlib import *
from layout import *
import struct, math
def fbits(x): return struct.unpack("<I",struct.pack("<f",x))[0]

vLane=0; vL16M=1; vTR=2; vIdx=3; vWo=4
vH1st=7; vRed=8; vPub=9; vKx=10; vVx=11; vKm=12; vVm=13; vQw=14; vTag=15
vSel=16
vK=20
vV=36
aQ=44; aK=48; aV=52
vA=56
vT=72
def Wq(s): return f"a[{8*s}:{8*s+7}]"
def Wk(s):
    if s<14: return f"a[{144+8*s}:{144+8*s+7}]"
    return f"v[{80+8*(s-14)}:{80+8*(s-14)+7}]"
def Wv(s): return f"v[{112+8*s}:{112+8*s+7}]"
def Wreg(mat,s,q):
    if mat==0: return f"a[{8*s+2*q}:{8*s+2*q+1}]"
    if mat==1:
        if s<14: return f"a[{144+8*s+2*q}:{144+8*s+2*q+1}]"
        return f"v[{80+8*(s-14)+2*q}:{80+8*(s-14)+2*q+1}]"
    return f"v[{112+8*s+2*q}:{112+8*s+2*q+1}]"
def vr(a,n): return f"v[{a}:{a+n-1}]"

sH=10; sW=11; sWS=12; sWT=16
sStep=20
sKXo=21; sVTo=22; sKMo=23; sVMo=24; sH2pub=25; sH2gat=26; sH2rst=27; sH1=28; sH2=29
sTask=30; sHasTask=31; sTagT=32
sTmp=33
sDbg=40; sKarg=42
sRetry=44; sRetry2=45
sMaskF=46
sC=47
sMaskLo=48; sMaskPub=50; sMaskG=52
sWarmK=54; sWarmV=55
sT0=56
WSR=f"s[{sWS}:{sWS+3}]"
QOFF=L_QT-L_MEMT; KOFF=L_KT-L_MEMT; SOFF=L_ST-L_MEMT

class Opt:
    d_red=[0,0,0,0,0]
    d_gat=0
    warm=True
    fused=False
    gmode='split'
    g1wave=2
    kvmode='burst'
    spec1=False
    hs=False
    warmk=[7,7,7,7]
    kvx=3
    warmflag=''
    warmdist=2
    fixkv=False
    fixkm=False
    kmflag='sc1'
    steplog=False
    nred=2
    red_gap=24
    ki=[0,2,6]
    d_g1=[80,40]
    npoll=3
    poll_gap=16
    red_early=True
    clk='s_memtime'
OPT=Opt()
def KVS(): return 8192 if OPT.hs else 262144
def KMS(): return 2048 if OPT.hs else 65536

def emit_setup(A, stamps):
    A(f"""
s_mov_b32 s{sKarg}, s0
s_mov_b32 s{sKarg+1}, s1
s_load_dwordx2 s[{sDbg}:{sDbg+1}], s[0:1], {KA_DBG}
s_load_dwordx2 s[{sWS}:{sWS+1}], s[0:1], {KA_WS}
v_lshrrev_b32 v{vT}, 6, v0
v_and_b32 v{vLane}, 63, v0
v_readfirstlane_b32 s{sW}, v{vT}
s_mov_b32 s{sWS+2}, {WS_SIZE}
s_mov_b32 s{sWS+3}, 0x20000
s_mov_b32 s{sWT+3}, 0x20000
s_mov_b32 s{sH1}, {WS_H1}
s_mov_b32 s{sH2}, {WS_H2}
s_mov_b32 s{sMaskLo}, 0x00ff00ff
s_mov_b32 s{sMaskLo+1}, 0x00ff00ff
s_mov_b32 s{sMaskPub}, 0x00ff00ff
s_mov_b32 s{sMaskPub+1}, 0
s_mov_b32 s{sMaskG}, -1
s_mov_b32 s{sMaskG+1}, 0
s_mov_b32 s{sRetry}, 0
s_mov_b32 s{sRetry2}, 0
s_mov_b32 s{sMaskF}, 0xfffefffe
s_mov_b32 s{sC}, {hex(fbits(128**-0.5*math.log2(math.e)))}
""")
    t0,t1,t2,t3=vT,vT+1,vT+2,vT+3
    if stamps: A("s_memtime s[88:89]")
    if OPT.fused:
        A(f"""
s_cmp_eq_u32 s{sH}, 0
s_cbranch_scc0 L_noclr
s_waitcnt lgkmcnt(0)
v_lshlrev_b32 v{vA}, 4, v{vLane}
v_mov_b32 v{vA+4}, 0
v_mov_b32 v{vA+5}, 0
v_mov_b32 v{vA+6}, 0
v_mov_b32 v{vA+7}, 0
s_mul_i32 s{sTmp}, s{sW}, 6144
s_add_u32 s{sTmp}, s{sTmp}, {WS_CNT}
""")
        for j in range(6):
            A(f"buffer_store_dwordx4 {vr(vA+4,4)}, v{vA}, {WSR}, s{sTmp} offen sc1\ns_add_u32 s{sTmp}, s{sTmp}, 1024")
        A(f"""
s_waitcnt vmcnt(0)
s_barrier
s_cmp_eq_u32 s{sW}, 0
s_cbranch_scc0 L_noclr
v_mov_b32 v{vA}, {DBG_INIT}
v_mov_b32 v{vA+1}, 1
s_mov_b64 exec, 1
global_store_dword v{vA}, v{vA+1}, s[{sDbg}:{sDbg+1}] sc1
s_mov_b64 exec, -1
L_noclr:
""")
    A(f"""
v_lshlrev_b32 v{vL16M}, 4, v{vLane}
v_add_u32 v{vL16M}, {L_MEMT}, v{vL16M}
v_lshrrev_b32 v{t0}, 4, v{vLane}
v_lshlrev_b32 v{t0}, 7, v{t0}
v_bfe_u32 v{t1}, v{vLane}, 2, 2
v_lshl_add_u32 v{t0}, v{t1}, 4, v{t0}
v_and_b32 v{t1}, 1, v{vLane}
v_lshl_add_u32 v{t0}, v{t1}, 3, v{t0}
v_add_u32 v{vTR}, {L_MEMT}, v{t0}
v_and_b32 v{t0}, 8, v{vLane}
v_cmp_ne_u32 vcc, 0, v{t0}
v_mov_b32 v{t0}, 0x4444
v_mov_b32 v{t1}, 0xeeee
v_cndmask_b32 v{vIdx}, v{t0}, v{t1}, vcc
""")
    A(f"""
v_lshlrev_b32 v{vWo}, 4, v{vLane}
v_add_u32 v{vWo+1}, 49152, v{vWo}
v_add_u32 v{vWo+2}, 98304, v{vWo}
""")
    A(f"""
v_bfe_u32 v{t0}, v{vLane}, 5, 1
v_lshlrev_b32 v{t0}, 1, v{t0}
v_bfe_u32 v{t1}, v{vLane}, 3, 1
v_add_u32 v{t0}, v{t0}, v{t1}
v_lshlrev_b32 v{t0}, 12, v{t0}
v_and_b32 v{t1}, 7, v{vLane}
v_lshl_add_u32 v{t0}, v{t1}, 4, v{t0}
v_bfe_u32 v{t1}, v{vLane}, 4, 1
v_lshl_add_u32 v{t0}, v{t1}, 3, v{t0}
s_lshl_b32 s{sTmp+1}, s{sH}, 7
v_add_u32 v{vH1st}, s{sTmp+1}, v{t0}
""")
    A(f"""
s_and_b32 s{sTmp}, s{sH}, 1
s_sub_u32 s{sTmp+1}, s{sW}, 2
s_lshl_b32 s{sTmp+1}, s{sTmp+1}, 1
s_add_u32 s{sTmp}, s{sTmp}, s{sTmp+1}
s_lshl_b32 s{sTmp}, s{sTmp}, 4
s_lshr_b32 s{sTmp+1}, s{sH}, 1
s_add_u32 s{sTask}, s{sTmp}, s{sTmp+1}
s_mov_b32 s{sHasTask}, 1
s_cmp_ge_u32 s{sW}, 2
s_cbranch_scc1 L_task_done
s_lshr_b32 s{sTask}, s{sH}, 2
s_add_u32 s{sTask}, s{sTask}, 64
s_and_b32 s{sTmp}, s{sH}, 3
s_cmp_eq_u32 s{sTmp}, 0
s_cselect_b32 s{sHasTask}, 1, 0
s_cmp_eq_u32 s{sW}, 1
s_cselect_b32 s{sHasTask}, s{sHasTask}, 0
s_cmp_eq_u32 s{sHasTask}, 1
s_cselect_b32 s{sTask}, s{sTask}, 0
L_task_done:
s_lshl_b32 s{sTmp}, s{sTask}, 12
v_lshlrev_b32 v{t0}, 4, v{vLane}
v_add_u32 v{vRed}, s{sTmp}, v{t0}
s_lshl_b32 s{sTmp}, s{sTask}, 7
v_and_b32 v{t0}, 7, v{vLane}
v_lshlrev_b32 v{t0}, 4, v{t0}
v_lshrrev_b32 v{t1}, 4, v{vLane}
v_lshl_add_u32 v{t0}, v{t1}, 3, v{t0}
v_add_u32 v{vPub}, s{sTmp}, v{t0}
v_and_b32 v{t0}, 15, v{vLane}
s_add_u32 s{sTmp}, s{sW}, 3
s_and_b32 s{sTmp}, s{sTmp}, 1
s_lshl_b32 s{sTmp}, s{sTmp}, 4
v_add_u32 v{t0}, s{sTmp}, v{t0}
v_lshlrev_b32 v{t0}, 4, v{t0}
v_lshrrev_b32 v{t1}, 4, v{vLane}
v_lshl_add_u32 v{t0}, v{t1}, 9, v{t0}
s_lshl_b32 s{sTmp}, s{sH}, {19 if OPT.hs else 13}
v_add_u32 v{vKx}, s{sTmp}, v{t0}
v_and_b32 v{t0}, 15, v{vLane}
v_lshlrev_b32 v{t0}, 4, v{t0}
v_lshl_add_u32 v{t0}, v{t1}, 11, v{t0}
s_lshl_b32 s{sTmp}, s{sH}, {19 if OPT.hs else 13}
s_lshl_b32 s{sTmp+1}, s{sW}, 9
s_add_u32 s{sTmp}, s{sTmp}, s{sTmp+1}
v_add_u32 v{vVx}, s{sTmp}, v{t0}
v_and_b32 v{t0}, 7, v{vLane}
v_lshlrev_b32 v{t0}, 8, v{t0}
v_lshl_add_u32 v{vKm}, v{t1}, 4, v{t0}
v_and_b32 v{t0}, 15, v{vLane}
v_bfe_u32 v{t1}, v{vLane}, 5, 1
v_lshl_add_u32 v{t0}, v{t1}, 4, v{t0}
s_lshl_b32 s{sTmp}, s{sW}, 5
v_add_u32 v{t0}, s{sTmp}, v{t0}
v_lshlrev_b32 v{t0}, 4, v{t0}
v_bfe_u32 v{t1}, v{vLane}, 4, 1
v_lshl_add_u32 v{vVm}, v{t1}, 3, v{t0}
v_add_u32 v{vQw}, {L_QT}, v{vVm}
""")
    A(f"v_and_b32 v{t0}, 7, v{vLane}")
    for j in range(4):
        A(f"""
v_mov_b32 v{vSel+j}, 0
v_cmp_eq_u32 vcc, {2*j}, v{t0}
v_mov_b32 v{t1}, 0x3f80
v_cndmask_b32 v{vSel+j}, v{vSel+j}, v{t1}, vcc
v_cmp_eq_u32 vcc, {2*j+1}, v{t0}
v_mov_b32 v{t1}, 0x3f800000
v_cndmask_b32 v{vSel+j}, v{vSel+j}, v{t1}, vcc
""")
    A("s_waitcnt lgkmcnt(0)")
    vW0,vW1,vWoD=vA+4,vA+5,vA+6
    A(f"""
v_lshrrev_b32 v{t0}, 4, v{vLane}
v_and_b32 v{t1}, 1, v{t0}
v_lshlrev_b32 v{t1}, 2, v{t1}
v_and_b32 v{t2}, 15, v{vLane}
v_xor_b32 v{t2}, v{t2}, v{t1}
v_lshlrev_b32 v{t0}, 13, v{t0}
s_lshl_b32 s{sTmp}, s{sH}, 8
s_lshl_b32 s{sTmp+1}, s{sW}, 17
s_add_u32 s{sTmp}, s{sTmp}, s{sTmp+1}
v_add_u32 v{t0}, s{sTmp}, v{t0}
v_lshl_add_u32 v{vW0}, v{t2}, 4, v{t0}
v_xor_b32 v{t2}, 8, v{t2}
v_lshl_add_u32 v{vW1}, v{t2}, 4, v{t0}
""")
    def dma_chunk(c):
        slot=c%9
        if c<27:
            r0=64*(c%9)
            for j in range(4):
                A(f"s_lshl_b32 s{sTmp}, s{sW}, 12\ns_add_u32 m0, s{sTmp}, {slot*16384+j*1024}")
                A(f"s_mov_b32 s{sTmp+1}, {(r0+4*j)*8192}")
                A(f"buffer_load_dwordx4 v{vW0 if j%2==0 else vW1}, s[{sWT}:{sWT+3}], s{sTmp+1} offen lds")
        else:
            cc=c-27
            for j in range(4):
                A(f"s_lshl_b32 s{sTmp}, s{sW}, 2\ns_add_u32 s{sTmp}, s{sTmp}, {16*cc+j}\ns_lshl_b32 s{sTmp}, s{sTmp}, 6")
                A(f"v_add_u32 v{t0}, s{sTmp}, v{vLane}")
                A(f"v_mul_u32_u24 v{t1}, 58255, v{t0}\nv_lshrrev_b32 v{t1}, 26, v{t1}\nv_and_b32 v{t1}, 1, v{t1}\nv_lshlrev_b32 v{t1}, 2, v{t1}\nv_xor_b32 v{t0}, v{t0}, v{t1}\nv_lshlrev_b32 v{vWoD}, 4, v{t0}")
                A(f"s_lshl_b32 s{sTmp}, s{sW}, 12\ns_add_u32 m0, s{sTmp}, {slot*16384+j*1024}")
                A(f"buffer_load_dwordx4 v{vWoD}, s[{sWT}:{sWT+3}], 0 offen lds")
    def set_wsrd(c):
        if c in (0,9,18):
            A(f"s_load_dwordx2 s[{sWT}:{sWT+1}], s[{sKarg}:{sKarg+1}], {[KA_WQ,KA_WK,KA_WV][c//9]}\ns_mov_b32 s{sWT+2}, {576*8192}\ns_waitcnt lgkmcnt(0)")
        if c==27:
            A(f"s_load_dwordx2 s[{sWT}:{sWT+1}], s[{sKarg}:{sKarg+1}], {KA_WO}\ns_waitcnt lgkmcnt(0)")
            A(f"s_mul_i32 s{sTmp}, s{sH}, 147456\ns_add_u32 s{sWT}, s{sWT}, s{sTmp}\ns_addc_u32 s{sWT+1}, s{sWT+1}, 0\ns_mov_b32 s{sWT+2}, 147456")
    vWr=vA+7
    A(f"""
v_lshrrev_b32 v{t0}, 4, v{vLane}
v_bfe_u32 v{t1}, v{vLane}, 2, 1
v_lshl_add_u32 v{t2}, v{t0}, 2, v{t1}
v_lshlrev_b32 v{t2}, 8, v{t2}
v_and_b32 v{t0}, 1, v{t0}
v_lshl_add_u32 v{t0}, v{t0}, 1, v{t1}
v_lshlrev_b32 v{t0}, 2, v{t0}
v_bfe_u32 v{t1}, v{vLane}, 3, 1
v_lshlrev_b32 v{t1}, 1, v{t1}
v_bfe_u32 v{t3}, v{vLane}, 1, 1
v_add_u32 v{t1}, v{t1}, v{t3}
s_lshl_b32 s{sTmp}, s{sW}, 2
v_add_u32 v{t1}, s{sTmp}, v{t1}
v_xor_b32 v{t1}, v{t1}, v{t0}
v_lshl_add_u32 v{t2}, v{t1}, 4, v{t2}
v_and_b32 v{t3}, 1, v{vLane}
v_lshl_add_u32 v{vWr}, v{t3}, 3, v{t2}
v_add_u32 v{vWr+1}, 65536, v{vWr}
v_add_u32 v{vWr+2}, 131072, v{vWr}
""")
    A(f"""
s_load_dwordx2 s[60:61], s[{sKarg}:{sKarg+1}], {KA_MEM0}
s_mov_b32 s62, 9216
s_mov_b32 s63, 0x20000
v_lshrrev_b32 v{vA}, 4, v{vLane}
v_and_b32 v{vA}, 1, v{vA}
v_mul_u32_u24 v{vA}, {4*1152}, v{vA}
v_and_b32 v{vA+1}, 7, v{vLane}
v_lshl_add_u32 v{vA}, v{vA+1}, 1, v{vA}
s_lshl_b32 s{sTmp}, s{sTask}, 4
s_waitcnt lgkmcnt(0)
""")
    for r in range(4):
        A(f"buffer_load_ushort v{vK+r}, v{vA}, s[60:63], s{sTmp} offen offset:{r*1152}")
    A(f"v_mov_b32 v{vT+4}, 0\nv_mov_b32 v{vT+5}, 0\nv_mov_b32 v{vT+6}, -1\nv_mov_b32 v{vT+7}, -1")
    A(f"s_lshl_b32 s{sTmp+2}, s{sW}, 14\ns_add_u32 s{sTmp+2}, s{sTmp+2}, s{sH1}")
    for r in range(4):
        A(f"s_add_u32 s{sTmp}, s{sTmp+2}, {r*65536}")
        A(f"buffer_store_dwordx2 {vr(vT+4,2)}, v{vH1st}, {WSR}, s{sTmp} offen")
    A(f"s_cmp_lt_u32 s{sW}, 2\ns_cbranch_scc0 L_clr1_skip")
    A(f"s_add_u32 s{sTmp}, s{sTmp+2}, {4*65536}")
    A(f"buffer_store_dwordx2 {vr(vT+4,2)}, v{vH1st}, {WSR}, s{sTmp} offen")
    A("L_clr1_skip:")
    A(f"s_cmp_eq_u32 s{sHasTask}, 1\ns_cbranch_scc0 L_clr2_skip")
    A(f"s_mov_b64 exec, s[{sMaskPub}:{sMaskPub+1}]")
    for sl in range(1,4):
        A(f"s_add_u32 s{sTmp}, s{sH2}, {sl*16384}")
        A(f"buffer_store_dwordx2 {vr(vT+6,2)}, v{vPub}, {WSR}, s{sTmp} offen")
    A("s_waitcnt vmcnt(0)")
    A(f"v_lshl_or_b32 v{vK}, v{vK+1}, 16, v{vK}\nv_lshl_or_b32 v{vK+1}, v{vK+3}, 16, v{vK+2}\nv_min_u32 v{vK}, -2, v{vK}")
    A(f"buffer_store_dwordx2 {vr(vK,2)}, v{vPub}, {WSR}, s{sH2} offen")
    A("s_mov_b64 exec, -1\nL_clr2_skip:")
    DEPTH=8
    set_wsrd(0)
    for c in range(DEPTH): dma_chunk(c)
    A(f"s_waitcnt vmcnt({DEPTH*4})")
    A(f"""
s_waitcnt lgkmcnt(0)
s_barrier
s_cmp_eq_u32 s{sW}, 0
s_cbranch_scc0 L_cb_skip
v_mov_b32 v{vT}, 64
v_mov_b32 v{vT+1}, 1
s_mov_b64 exec, 1
global_atomic_add v{vT}, v{vT+1}, s[{sDbg}:{sDbg+1}]
s_mov_b64 exec, -1
L_cb_skip:
""")
    if stamps: A("s_memtime s[90:91]")
    for c in range(27):
        nxt=c+DEPTH
        A(f"s_waitcnt vmcnt({(DEPTH-1)*4 - (1 if c<8 else 0)})" if False else f"s_waitcnt vmcnt({(DEPTH-1)*4})")
        A("s_barrier")
        if nxt<36:
            set_wsrd(nxt); dma_chunk(nxt)
        mat=c//9; slot=c%9
        for ks in range(2):
            s=2*(c%9)+ks
            for q in range(4):
                off=slot*16384+ks*8192+(2*(q&1)+16*(q>>1))*256
                base=vWr+off//65536; off%=65536
                A(f"ds_read_b64_tr_b16 {Wreg(mat,s,q)}, v{base} offset:{off}")
        A("s_waitcnt lgkmcnt(0)")
        A("s_barrier")
    dma_chunk(35)
    A("s_waitcnt vmcnt(0)\ns_barrier")
    vC=vA+10
    A(f"""
v_bfe_u32 v{t0}, v{vLane}, 4, 1
v_bfe_u32 v{t1}, v{vLane}, 5, 1
v_lshlrev_b32 v{t2}, 4, v{t0}
v_lshl_add_u32 v{t2}, v{t1}, 2, v{t2}
v_bfe_u32 v{t3}, v{vLane}, 2, 1
v_add_u32 v{t2}, v{t2}, v{t3}
v_mul_u32_u24 v{t2}, 1152, v{t2}
v_xor_b32 v{t0}, s{sW}, v{t0}
v_lshl_add_u32 v{t2}, v{t0}, 6, v{t2}
v_bfe_u32 v{t3}, v{vLane}, 3, 1
v_lshl_add_u32 v{t2}, v{t3}, 5, v{t2}
v_and_b32 v{t3}, 3, v{vLane}
v_lshl_add_u32 v{vC}, v{t3}, 3, v{t2}
v_add_u32 v{vC+1}, 73728, v{vC}
s_lshl_b32 s{sTmp}, s{sW}, 11
v_add_u32 v{vC+2}, s{sTmp}, v{vWo}
v_add_u32 v{vC+3}, s{sTmp}, v{vWo+1}
v_add_u32 v{vC+4}, s{sTmp}, v{vWo+2}
""")
    for s in range(4):
        base=vC if s<2 else vC+1
        lab=A.uid("L_cv"); lab2=A.uid("L_cw")
        for r in range(5):
            if r==4: A(f"s_cmp_lt_u32 s{sW}, 2\ns_cbranch_scc0 {lab}")
            for q in range(4):
                off=(s%2)*36864+(2*(q&1)+8*(q>>1))*1152+r*256
                A(f"ds_read_b64_tr_b16 {vr(vK-0+8*r+2*q,2)}, v{base} offset:{off}")
            if r%2==1: A("s_waitcnt lgkmcnt(0)")
        A(f"{lab}:\ns_waitcnt lgkmcnt(0)\ns_barrier")
        for r in range(5):
            if r==4: A(f"s_cmp_lt_u32 s{sW}, 2\ns_cbranch_scc0 {lab2}")
            for half in range(2):
                off=s*36864+r*8192+half*1024
                A(f"ds_write_b128 v{vC+2+off//49152}, {vr(vK+8*r+4*half,4)} offset:{off%49152}")
        A(f"{lab2}:\ns_waitcnt lgkmcnt(0)\ns_barrier")
    if stamps: A("s_memtime s[92:93]")
    A(f"""
s_cmp_eq_u32 s{sW}, 0
s_cbranch_scc0 L_cb_wait
v_mov_b32 v{vT}, 64
s_mov_b32 s{sTmp}, 0
L_cb_poll:
global_load_dword v{vT+2}, v{vT}, s[{sDbg}:{sDbg+1}] sc1
s_waitcnt vmcnt(0)
v_readfirstlane_b32 s{sTmp+1}, v{vT+2}
s_add_u32 s{sTmp}, s{sTmp}, 1
s_cmp_gt_u32 s{sTmp}, 2000000
s_cbranch_scc1 L_abort
s_cmp_ge_u32 s{sTmp+1}, 32
s_cbranch_scc0 L_cb_poll
""")
    if OPT.fused:
        A(f"""
s_mov_b32 s{sTmp+2}, {cnt(C_KV)}
L_kv_poll:
buffer_load_dword v{vT+2}, off, {WSR}, s{sTmp+2} sc1
s_waitcnt vmcnt(0)
v_readfirstlane_b32 s{sTmp+1}, v{vT+2}
s_add_u32 s{sTmp}, s{sTmp}, 1
s_cmp_gt_u32 s{sTmp}, 4000000
s_cbranch_scc1 L_abort
s_sleep 1
s_cmp_ge_u32 s{sTmp+1}, 32
s_cbranch_scc0 L_kv_poll
""")
    A(f"""
L_cb_wait:
s_barrier
""")
    if OPT.fused:
        A(f"s_cmp_eq_u32 s{sW}, 3\ns_cbranch_scc0 L_nf\nv_mov_b32 v10, 32\nL_nf:")

PAIRS=[[0,4,8,12,16],[1,5,9,13,17],[2,6,10],[3,7,11,15,14]]
def wo_addr(P, s, half):
    off=s*36864+P*2048+half*1024
    return vWo+off//49152, off%49152

class Cnt:
    def __init__(self,A,name,maxn): self.A=A; self.q=[]; self.name=name; self.maxn=maxn
    def add(self,tag,n=1):
        self.q+= [tag]*n
        assert len(self.q)<=self.maxn, (self.name,self.q)
    def wait(self,tag):
        if tag not in self.q: return
        idx=max(i for i,x in enumerate(self.q) if x==tag)
        self.A(f"s_waitcnt {self.name}({len(self.q)-idx-1})"); del self.q[:idx+1]
    def drain(self):
        self.A(f"s_waitcnt {self.name}(0)"); self.q=[]
    def clear(self): self.q=[]

class Stream:
    def __init__(self, A, w, red_round, nsteps, stamps, stamp_step, sid):
        self.A=A; self.w=w; self.rr=red_round; self.nsteps=nsteps; self.stamps=stamps; self.sid=sid
        self.nst=0; self.names=[]
        self.L=Cnt(A,"lgkmcnt",15); self.V=Cnt(A,"vmcnt",63)
        self.ool=[]
    def stamp(self,name=""):
        if self.stamps==True:
            self.A(f"{OPT.clk} s[{sT0+2*self.nst}:{sT0+2*self.nst+1}]"); self.names.append(name); self.nst+=1
            assert self.nst<=16
    def delay(self,d):
        while d>0: self.A(f"s_nop {min(d,16)-1}"); d-=16
    def trr1(self,dst,off,tag):
        self.A(f"ds_read_b64_tr_b16 {vr(dst,2)}, v{vTR} offset:{off}"); self.L.add(tag)
    def trr(self,dst,off,tag):
        self.trr1(dst,off,tag); self.trr1(dst+2,off+64,tag)
    def gat_issue(self,r,b,tag=None):
        A=self.A
        A(f"s_add_u32 s{sTmp}, s{sH2gat}, {r*2048}")
        A(f"buffer_load_dwordx4 {vr(b,4)}, v{vL16M}, {WSR}, s{sTmp} offen sc1")
        if r<4: A(f"buffer_load_dwordx4 {vr(b+4,4)}, v{vL16M}, {WSR}, s{sTmp} offen offset:1024 sc1")
        if tag: self.V.add(tag,2 if r<4 else 1)
    def gat_check_parts(self,r,b):
        A=self.A
        rt=A.uid("L_grt"); back=A.uid("L_gbk")
        t=vT+6
        g=[]
        g.append(lambda: self.V.wait(("g",r)))
        if r<4:
            g.append(lambda: A(f"v_max3_u32 v{t}, v{b}, v{b+2}, v{b+4}"))
            g.append(lambda: A(f"v_max_u32 v{t}, v{t}, v{b+6}"))
        else:
            g.append(lambda: A(f"v_max_u32 v{t}, v{b}, v{b+2}"))
        g.append(lambda: A(f"v_cmp_eq_u32 vcc, -1, v{t}"))
        def wr():
            A(f"ds_write_b128 v{vL16M}, {vr(b,4)} offset:{r*2048}"); self.L.add(("gw",r))
        def wr2():
            if r<4: A(f"ds_write_b128 v{vL16M}, {vr(b+4,4)} offset:{r*2048+1024}"); self.L.add(("gw",r))
        g.append(wr); g.append(wr2)
        g.append(lambda: A(f"s_cbranch_vccnz {rt}\n{back}:"))
        def ool():
            lp=A.uid("L_glp")
            A(f"{rt}:\n{lp}:\ns_add_u32 s{sRetry2}, s{sRetry2}, 1\ns_cmp_gt_u32 s{sRetry2}, 1000000\ns_cbranch_scc1 L_abort\ns_waitcnt lgkmcnt(0)")
            self.gat_issue(r,b)
            A("s_waitcnt vmcnt(0)")
            if r<4: A(f"v_max3_u32 v{t}, v{b}, v{b+2}, v{b+4}\nv_max_u32 v{t}, v{t}, v{b+6}")
            else: A(f"v_max_u32 v{t}, v{b}, v{b+2}")
            A(f"v_cmp_eq_u32 vcc, -1, v{t}\ns_cbranch_vccnz {lp}")
            A(f"ds_write_b128 v{vL16M}, {vr(b,4)} offset:{r*2048}")
            if r<4: A(f"ds_write_b128 v{vL16M}, {vr(b+4,4)} offset:{r*2048+1024}")
            A(f"s_waitcnt lgkmcnt(0)\ns_branch {back}")
        self.ool.append(ool)
        return g
    def gat_poll(self,r):
        A=self.A
        sets=[vK,vK+8,vV][:OPT.npoll]; NS=len(sets)
        A(f"s_add_u32 s{sTmp+4}, s{sH2gat}, {r*2048}")
        def iss(b):
            A(f"buffer_load_dwordx4 {vr(b,4)}, v{vL16M}, {WSR}, s{sTmp+4} offen sc1")
            A(f"buffer_load_dwordx4 {vr(b+4,4)}, v{vL16M}, {WSR}, s{sTmp+4} offen offset:1024 sc1")
        for i,b in enumerate(sets):
            iss(b)
            if i<NS-1: self.delay(OPT.poll_gap)
        lp=A.uid("L_g0p"); done=A.uid("L_g0d"); oks=[A.uid("L_g0k") for _ in sets]
        A(f"{lp}:")
        for i,b in enumerate(sets):
            A(f"s_waitcnt vmcnt({2*(NS-1)})")
            A(f"v_max3_u32 v{vT+6}, v{b}, v{b+2}, v{b+4}\nv_max_u32 v{vT+6}, v{vT+6}, v{b+6}")
            A(f"v_cmp_eq_u32 vcc, -1, v{vT+6}\ns_cbranch_vccz {oks[i]}")
            iss(b)
        A(f"s_add_u32 s{sRetry2}, s{sRetry2}, 1\ns_cmp_gt_u32 s{sRetry2}, 1000000\ns_cbranch_scc1 L_abort\ns_branch {lp}")
        for i,b in enumerate(sets):
            A(f"{oks[i]}:")
            A(f"ds_write_b128 v{vL16M}, {vr(b,4)} offset:{r*2048}\nds_write_b128 v{vL16M}, {vr(b+4,4)} offset:{r*2048+1024}")
            if i<NS-1: A(f"s_branch {done}")
        A(f"{done}:\ns_waitcnt lgkmcnt(0)")
        self.L.clear()
    def gat_poll01(self):
        A=self.A
        sets=[vK,vA][:OPT.npoll]; NS=len(sets)
        def iss(b):
            A(f"buffer_load_dwordx4 {vr(b,4)}, v{vL16M}, {WSR}, s{sH2gat} offen sc1")
            A(f"buffer_load_dwordx4 {vr(b+4,4)}, v{vL16M}, {WSR}, s{sH2gat} offen offset:1024 sc1")
            A(f"buffer_load_dwordx4 {vr(b+8,4)}, v{vL16M}, {WSR}, s{sH2gat} offen offset:2048 sc1")
            A(f"buffer_load_dwordx4 {vr(b+12,4)}, v{vL16M}, {WSR}, s{sH2gat} offen offset:3072 sc1")
        for i,b in enumerate(sets):
            iss(b)
            if i<NS-1: self.delay(OPT.poll_gap)
        lp=A.uid("L_g0p"); done=A.uid("L_g0d"); oks=[A.uid("L_g0k") for _ in sets]
        A(f"{lp}:")
        for i,b in enumerate(sets):
            A(f"s_waitcnt vmcnt({4*(NS-1)})")
            A(f"v_max3_u32 v{vT+6}, v{b}, v{b+2}, v{b+4}\nv_max3_u32 v{vT+7}, v{b+6}, v{b+8}, v{b+10}\nv_max3_u32 v{vT+6}, v{vT+6}, v{b+12}, v{b+14}\nv_max_u32 v{vT+6}, v{vT+6}, v{vT+7}")
            A(f"v_cmp_eq_u32 vcc, -1, v{vT+6}\ns_cbranch_vccz {oks[i]}")
            iss(b)
        A(f"s_add_u32 s{sRetry2}, s{sRetry2}, 1\ns_cmp_gt_u32 s{sRetry2}, 1000000\ns_cbranch_scc1 L_abort\ns_branch {lp}")
        for i,b in enumerate(sets):
            A(f"{oks[i]}:")
            for j in range(4): A(f"ds_write_b128 v{vL16M}, {vr(b+4*j,4)} offset:{j*1024}")
            if i<NS-1: A(f"s_branch {done}")
        A(f"{done}:\ns_waitcnt vmcnt(0) lgkmcnt(0)")
        self.L.clear()
    def red_iss(self,b):
        for k in range(4):
            self.A(f"buffer_load_dwordx4 {vr(b+4*k,4)}, v{vRed}, {WSR}, s{sH1} offen offset:{k*1024} sc1")
    def red_poll(self,pre_issued=False,younger=0):
        A=self.A
        sets=[vK,vA][:OPT.nred]; NS=len(sets)
        iss=self.red_iss
        for i,b in enumerate(sets):
            if not (i==0 and pre_issued): iss(b)
            if i<NS-1: self.delay(OPT.red_gap)
        lp=A.uid("L_rp"); done=A.uid("L_rd")
        oks={}
        def check(b,cnt):
            A(f"s_waitcnt vmcnt({cnt})")
            A(f"""
v_xor_b32 v{vT+6}, v{b}, v{vTag}
v_bitop3_b32 v{vT+6}, v{vT+6}, v{b+4}, v{vTag} bitop3:0xf6
v_bitop3_b32 v{vT+6}, v{vT+6}, v{b+8}, v{vTag} bitop3:0xf6
v_bitop3_b32 v{vT+6}, v{vT+6}, v{b+12}, v{vTag} bitop3:0xf6
""")
            if OPT.spec1: A(f"v_mfma_f32_16x16x32_bf16 {vr(aV,4)}, {vr(vSel,4)}, {vr(b,4)}, 0")
            A(f"""
v_and_b32 v{vT+6}, 0x10001, v{vT+6}
v_cmp_ne_u32 vcc, 0, v{vT+6}
s_cbranch_vccz {oks.setdefault(b,A.uid("L_rk"))}
""")
            iss(b)
        check(sets[0],4*(NS-1)+(younger if pre_issued else 0))
        order=sets[1:]+sets[:1]
        A(f"{lp}:")
        for b in order: check(b,4*(NS-1))
        A(f"s_add_u32 s{sRetry}, s{sRetry}, 1\ns_cmp_gt_u32 s{sRetry}, 1000000\ns_cbranch_scc1 L_abort\ns_branch {lp}")
        for n_,b in enumerate(sets):
            A(f"{oks[b]}:")
            for k in range(4):
                A(f"v_mfma_f32_16x16x32_bf16 {vr(aV,4)}, {vr(vSel,4)}, {vr(b+4*k,4)}, {'0' if k==0 else vr(aV,4)}")
            if n_<len(sets)-1: A(f"s_branch {done}")
        A(f"{done}:")
        for r in range(4):
            A(f"v_add_f32_dpp v{aV+r}, v{aV+r}, v{aV+r} row_ror:8 row_mask:0xf bank_mask:0xf")
        A(f"""
v_cvt_pk_bf16_f32 v{vT+4}, v{aV}, v{aV+1}
v_cvt_pk_bf16_f32 v{vT+5}, v{aV+2}, v{aV+3}
s_mov_b64 exec, s[{sMaskPub}:{sMaskPub+1}]
v_min_u32 v{vT+4}, -2, v{vT+4}
buffer_store_dwordx2 {vr(vT+4,2)}, v{vPub}, {WSR}, s{sH2pub} offen
v_mov_b32 v{vT+6}, -1
v_mov_b32 v{vT+7}, -1
buffer_store_dwordx2 {vr(vT+6,2)}, v{vPub}, {WSR}, s{sH2rst} offen
s_mov_b64 exec, -1
""")
    def kx_loads(self):
        A=self.A
        A(f"s_add_u32 s{sTmp+1}, s{sKXo}, 4096")
        for s in range(4):
            A(f"buffer_load_dwordx4 {vr(vK+4*s,4)}, v{vKx}, {WSR}, s{sKXo if s<2 else sTmp+1} offen offset:{(s%2)*2048} sc1")
        self.V.add(("kx",0),4)
    def kx1(self,s_):
        A=self.A
        if s_>=2: A(f"s_add_u32 s{sTmp+1}, s{sKXo}, 4096")
        A(f"buffer_load_dwordx4 {vr(vK+4*s_,4)}, v{vKx}, {WSR}, s{sKXo if s_<2 else sTmp+1} offen offset:{(s_%2)*2048} sc1")
        self.V.add(("kx",0))
    def vx1(self,t):
        self.A(f"buffer_load_dwordx4 {vr(vV+4*t,4)}, v{vVx}, {WSR}, s{sVTo} offen offset:{t*256} sc1")
        self.V.add(("vx",0))
    def vx_loads(self):
        for t in range(2):
            self.A(f"buffer_load_dwordx4 {vr(vV+4*t,4)}, v{vVx}, {WSR}, s{sVTo} offen offset:{t*256} sc1")
        self.V.add(("vx",0),2)
    def warm1(self,i):
        A=self.A
        sb=sWarmK if i<2 else sWarmV
        A(f"v_lshlrev_b32 v{vT+7}, 2, v{vL16M}")
        A(f"s_add_u32 s{sTmp+1}, s{sb}, {4096*(i%2)}\nbuffer_load_dword v0, v{vT+7}, {WSR}, s{sTmp+1} offen {OPT.warmflag}")
        self.V.add(("warm",i))
    def zero_acc(self):
        for r in range(4): self.A(f"v_mov_b32 v{aQ+r}, 0\nv_mov_b32 v{aK+r}, 0\nv_mov_b32 v{aV+r}, 0")

    def body(self):
        A=self.A; w=self.w; sid=self.sid; L=self.L; V=self.V
        A(f"L_step_{sid}:")
        self.stamp("top")
        V.q=[]
        if OPT.steplog and w==1:
            A(f"s_memrealtime s[88:89]\ns_waitcnt lgkmcnt(0)\nv_mov_b32 v{vT}, s88\nv_mov_b32 v{vT+1}, s90\nv_mov_b32 v{vT+2}, s92\nv_mov_b32 v{vT+3}, s98\ns_lshl_b32 s{sTmp}, s{sH}, 10\ns_lshl_b32 s{sTmp+1}, s{sStep}, 4\ns_add_u32 s{sTmp}, s{sTmp}, s{sTmp+1}\ns_add_u32 s{sTmp}, s{sTmp}, {WS_STAMP+0x20000}\nv_mov_b32 v{vT+6}, 0\nbuffer_store_dwordx4 {vr(vT,4)}, v{vT+6}, {WSR}, s{sTmp} offen\ns_nop 3")
            V.add(("dbg",0))
        L.q=[]
        smf=lambda acc,b,wt: A(f"v_smfmac_f32_16x16x64_bf16 {vr(acc,4)}, {vr(b,4)}, {wt}, v{vIdx}")
        abuf=lambda k: vA+4*(k%4)
        self.trr(abuf(0),0,("a",0)); self.trr(abuf(1),512,("a",1))
        side={k:[[],[],[]] for k in range(18)}
        def guarded(fn_list):
            return fn_list
        grounds={3:(2,vK),0:(3,vK),1:(4,vT),2:(None,None)}
        gr,gb=grounds[w]
        skip=[None]
        def begin_skip():
            lab=A.uid("L_fs"); skip[0]=lab
            A(f"s_cmp_eq_u32 s{sStep}, 0\ns_cbranch_scc1 {lab}")
        def end_skip():
            A(f"{skip[0]}:")
        if gr is not None:
            parts=self.gat_check_parts(gr,gb)
            kc=4*(gr-1)
            ki={2:OPT.ki[0],3:OPT.ki[1],4:OPT.ki[2]}[gr]
            side[ki][2]+= [lambda: self.gat_issue(gr,gb,("g",gr))]
            nv=len(parts)-4
            side[kc][0]+= parts[:2]
            side[kc][1]+= parts[2:nv+1]
            side[kc][2]+= parts[nv+1:]
        if OPT.kvmode=="spread":
            if w in (1,2):
                for i in range(4): side[i][1]+= [lambda i=i: self.kx1(i)]
                for t in range(2): side[4+t][1]+= [lambda t=t: self.vx1(t)]
            if w==3:
                for t in range(2): side[1+t][1]+= [lambda t=t: self.vx1(t)]
            if w==0:
                for t in range(2): side[t][1]+= [lambda t=t: self.vx1(t)]
        else:
            if w==1: side[0][2]+= [self.kx_loads]; side[3][2]+= [self.vx_loads]
            if w==2: side[0][2]+= [self.kx_loads]; side[2][2]+= [self.vx_loads]
            if w==3: side[3][2]+= [self.vx_loads]
            if w==0: side[0][2]+= [self.vx_loads]
        if w==3 and OPT.warm:
            if OPT.fused:
                def kvcheck():
                    rt=A.uid("L_kvr"); back=A.uid("L_kvb")
                    A(f"v_readfirstlane_b32 s{sTmp+1}, v10\ns_cmp_ge_u32 s{sTmp+1}, 32\ns_cbranch_scc0 {rt}\n{back}:")
                    def ool():
                        lp=A.uid("L_kvl")
                        A(f"{rt}:\ns_add_u32 s{sTmp+2}, s{sStep}, 2\ns_min_u32 s{sTmp+2}, s{sTmp+2}, 63\ns_lshr_b32 s{sTmp+2}, s{sTmp+2}, 2\ns_lshl_b32 s{sTmp+2}, s{sTmp+2}, 7\ns_add_u32 s{sTmp+2}, s{sTmp+2}, {cnt(C_KV)}\n{lp}:")
                        A(f"buffer_load_dword v10, off, {WSR}, s{sTmp+2} sc1\ns_waitcnt vmcnt(0)\nv_readfirstlane_b32 s{sTmp+1}, v10\ns_add_u32 s{sRetry2}, s{sRetry2}, 1\ns_cmp_gt_u32 s{sRetry2}, 4000000\ns_cbranch_scc1 L_abort\ns_sleep 1\ns_cmp_ge_u32 s{sTmp+1}, 32\ns_cbranch_scc0 {lp}\ns_branch {back}")
                    self.ool.append(ool)
                side[min(OPT.warmk)][2]+= [kvcheck]
            for i,kk in enumerate(OPT.warmk):
                if kk is not None and kk<18: side[kk][2]+= [lambda i=i: self.warm1(i)]
            if OPT.fused:
                def kvload():
                    A(f"s_add_u32 s{sTmp+2}, s{sStep}, 3\ns_min_u32 s{sTmp+2}, s{sTmp+2}, 63\ns_lshr_b32 s{sTmp+2}, s{sTmp+2}, 2\ns_lshl_b32 s{sTmp+2}, s{sTmp+2}, 7\ns_add_u32 s{sTmp+2}, s{sTmp+2}, {cnt(C_KV)}")
                    A(f"buffer_load_dword v10, off, {WSR}, s{sTmp+2} sc1"); V.add(("kvf",0))
                side[max(OPT.warmk)][2]+= [kvload]
        for k in range(18):
            L.wait(("a",k))
            b=abuf(k)
            smf(aQ,b,Wq(k))
            if k+2<18: self.trr1(abuf(k+2),(k+2)*512,("a",k+2))
            for f in side[k][0]: f()
            smf(aK,b,Wk(k))
            if k+2<18: self.trr1(abuf(k+2)+2,(k+2)*512+64,("a",k+2))
            for f in side[k][1]: f()
            if k<14: smf(aV,b,Wv(k))
            for f in side[k][2]: f()
            if k%4==1 and 4<k<14:
                rnd=k//4+1
                if rnd==gr: L.wait(("gw",rnd)) if (("gw",rnd) in L.q) else None
                A("s_barrier")
                if k==13 and w==1 and OPT.fused:
                    A(f"v_mov_b32 v{vT+5}, s{sStep}\ns_lshl_b32 s{sTmp+1}, s{sH}, 7\ns_add_u32 s{sTmp+1}, s{sTmp+1}, {cnt(C_PROG)}\ns_mov_b64 exec, 1\nbuffer_store_dword v{vT+5}, off, {WSR}, s{sTmp+1} sc1\ns_mov_b64 exec, -1")
                    V.add(("prog",0))
                if k in (5,13): self.stamp(f"qkB{k}")
        self.stamp("qkend")
        smf(aV,abuf(14),Wv(14))
        A(f"v_cvt_pk_bf16_f32 v{vT}, v{aQ}, v{aQ+1}\nv_cvt_pk_bf16_f32 v{vT+1}, v{aQ+2}, v{aQ+3}")
        A(f"ds_write_b64 v{vQw}, {vr(vT,2)}")
        smf(aV,abuf(15),Wv(15))
        A(f"v_cvt_pk_bf16_f32 v{vT+2}, v{aK}, v{aK+1}\nv_cvt_pk_bf16_f32 v{vT+3}, v{aK+2}, v{aK+3}")
        A(f"ds_write_b64 v{vQw}, {vr(vT+2,2)} offset:2048")
        smf(aV,abuf(16),Wv(16)); smf(aV,abuf(17),Wv(17))
        L.drain()
        A("s_barrier")
        last=f"L_last_{sid}"
        self.stamp("B6")
        if OPT.steplog and w==1: A("s_memrealtime s[90:91]")
        if w==3 and OPT.warm:
            for i,kk in enumerate(OPT.warmk):
                if kk==20: self.warm1(i)
        if w<3:
            if w==0:
                for s in range(3):
                    self.trr(vK+4*s,KOFF+s*512,("k",s)); self.trr(vA+4*s,QOFF+s*512,("q",s))
                A(f"s_cmp_eq_u32 s{sStep}, {self.nsteps-1}\ns_cbranch_scc1 {last}")
                L.wait(("q",0))
                self.trr(vK+12,KOFF+3*512,("k",3)); self.trr(vA+12,QOFF+3*512,("q",3))
                for s in range(4):
                    L.wait(("q",s))
                    A(f"v_mfma_f32_16x16x32_bf16 {vr(vT,4)}, {vr(vK+4*s,4)}, {vr(vA+4*s,4)}, {'0' if s==0 else vr(vT,4)}")
            else:
                for s in range(4): self.trr(vA+4*s,QOFF+s*512,("q",s))
                A(f"s_cmp_eq_u32 s{sStep}, {self.nsteps-1}\ns_cbranch_scc1 {last}")
                V.wait(("kx",0))
                for s in range(4):
                    L.wait(("q",s))
                    A(f"v_mfma_f32_16x16x32_bf16 {vr(vT,4)}, {vr(vK+4*s,4)}, {vr(vA+4*s,4)}, {'0' if s==0 else vr(vT,4)}")
            self.stamp("Smf")
            A(f"v_cvt_pk_bf16_f32 v{aV}, v{aV}, v{aV+1}\nv_cvt_pk_bf16_f32 v{aV+1}, v{aV+2}, v{aV+3}")
            A(f"buffer_store_dwordx2 {vr(aV,2)}, v{vVm}, {WSR}, s{sVMo} offen {OPT.kmflag}"); V.add(("vm",0))
        else:
            A(f"s_cmp_eq_u32 s{sStep}, {self.nsteps-1}\ns_cbranch_scc1 {last}")
            self.stamp("Smf")
            A(f"v_cvt_pk_bf16_f32 v{aV}, v{aV}, v{aV+1}\nv_cvt_pk_bf16_f32 v{aV+1}, v{aV+2}, v{aV+3}")
            A(f"buffer_store_dwordx2 {vr(aV,2)}, v{vVm}, {WSR}, s{sVMo} offen {OPT.kmflag}"); V.add(("vm",0))
        prep=f"""
s_add_u32 s{sTagT}, s{sStep}, 1
s_and_b32 s{sTmp}, s{sTagT}, 1
s_bfe_u32 s{sTmp+1}, s{sTagT}, 0x10001
s_lshl_b32 s{sTmp+1}, s{sTmp+1}, 16
s_or_b32 s{sTmp+2}, s{sTmp}, s{sTmp+1}
s_and_b32 s{sTmp}, s{sTagT}, 3
s_lshl_b32 s{sTmp}, s{sTmp}, 14
s_add_u32 s{sH2pub}, s{sTmp}, s{sH2}
s_sub_u32 s{sH2gat}, s{sH2pub}, {L_MEMT}
s_add_u32 s{sTmp}, s{sStep}, 3
s_and_b32 s{sTmp}, s{sTmp}, 3
s_lshl_b32 s{sTmp}, s{sTmp}, 14
s_add_u32 s{sH2rst}, s{sTmp}, s{sH2}
"""
        if w<3:
            A(prep)
            A(f"ds_write_b128 v{vL16M}, {vr(vT,4)} offset:{SOFF+w*1024}"); L.add(("st",0))
            if w==0:
                A(f"s_mov_b64 exec, s[{sMaskLo}:{sMaskLo+1}]")
                for s in range(4):
                    A(f"buffer_store_dwordx4 {vr(vK+4*s,4)}, v{vKm}, {WSR}, s{sKMo} offen offset:{s*64} {OPT.kmflag}")
                A("s_mov_b64 exec, -1"); V.add(("km",0),4)
            L.drain()
        else:
            A(prep)
        A("s_barrier")
        self.stamp("B7")
        if w==3 and OPT.warm:
            for i,kk in enumerate(OPT.warmk):
                if kk==21: self.warm1(i)
        S=vA
        for t in (1,2,0):
            A(f"ds_read_b128 {vr(S+4*t,4)}, v{vL16M} offset:{SOFF+t*1024}"); L.add(("s",t))
        A(f"v_mov_b32 v{vTag}, s{sTmp+2}")
        prs=PAIRS[w]
        seq=[(j,P,s) for j,P in enumerate(prs) for s in range(4)]
        n=len(seq)
        m,mt=vT,vT+1
        L.wait(("s",2))
        A(f"v_max3_f32 v{m}, v{S+4}, v{S+5}, v{S+6}\nv_max3_f32 v{mt}, v{S+7}, v{S+8}, v{S+9}\nv_max3_f32 v{m}, v{m}, v{S+10}, v{S+11}")
        L.wait(("s",0))
        self.stamp("Srd")
        A(f"""
v_max3_f32 v{mt}, v{mt}, v{S}, v{S+1}
v_max3_f32 v{m}, v{m}, v{S+2}, v{S+3}
v_max_f32 v{m}, v{m}, v{mt}
v_mov_b32 v{mt}, v{m}
v_permlane32_swap_b32 v{m}, v{mt}
v_max_f32 v{m}, v{m}, v{mt}
v_mov_b32 v{mt}, v{m}
v_permlane16_swap_b32 v{m}, v{mt}
v_max_f32 v{m}, v{m}, v{mt}
v_mul_f32 v{mt}, s{sC}, v{m}
""")
        P=vK
        for i in range(4,12): A(f"v_fma_f32 v{S+i}, v{S+i}, s{sC}, -v{mt}")
        for i in range(4,12):
            A(f"v_exp_f32 v{S+i}, v{S+i}")
            if i in (6,8,10): A(f"v_cvt_pk_bf16_f32 v{P+(i-6)//2}, v{S+i-2}, v{S+i-1}")
        for i in range(4): A(f"v_fma_f32 v{S+i}, v{S+i}, s{sC}, -v{mt}")
        A(f"v_cvt_pk_bf16_f32 v{P+3}, v{S+10}, v{S+11}")
        self.stamp("exp")
        V.wait(("vx",0))
        A(f"v_mfma_f32_16x16x32_bf16 {vr(aQ,4)}, {vr(vV,4)}, {vr(P,4)}, 0")
        A(f"v_mfma_f32_16x16x32_bf16 {vr(aK,4)}, {vr(vV+4,4)}, {vr(P,4)}, 0")
        for i in range(4): A(f"v_exp_f32 v{S+i}, v{S+i}")
        l,lt=vT+2,vT+3
        A(f"""
v_add_f32 v{l}, v{S+4}, v{S+5}
v_add_f32 v{lt}, v{S+6}, v{S+7}
v_cvt_pk_bf16_f32 v{P+4}, v{S}, v{S+1}
v_cvt_pk_bf16_f32 v{P+5}, v{S+2}, v{S+3}
v_cndmask_b32 v{P+6}, 0, v{P+4}, s[{sMaskG}:{sMaskG+1}]
v_cndmask_b32 v{P+7}, 0, v{P+5}, s[{sMaskG}:{sMaskG+1}]
v_cndmask_b32 v{P+8}, v{P+4}, 0, s[{sMaskG}:{sMaskG+1}]
v_cndmask_b32 v{P+9}, v{P+5}, 0, s[{sMaskG}:{sMaskG+1}]
v_mfma_f32_16x16x16_bf16 {vr(aQ,4)}, {vr(aV,2)}, {vr(P+6,2)}, {vr(aQ,4)}
v_mfma_f32_16x16x16_bf16 {vr(aK,4)}, {vr(aV,2)}, {vr(P+8,2)}, {vr(aK,4)}
v_add_f32 v{l}, v{l}, v{S+8}
v_add_f32 v{lt}, v{lt}, v{S+9}
v_add_f32 v{l}, v{l}, v{S+10}
v_add_f32 v{lt}, v{lt}, v{S+11}
v_add_f32 v{mt}, v{S}, v{S+1}
v_add_f32 v{m}, v{S+2}, v{S+3}
v_add_f32 v{l}, v{l}, v{lt}
v_add_f32 v{mt}, v{mt}, v{m}
v_fma_f32 v{l}, v{mt}, 0.5, v{l}
v_mov_b32 v{lt}, v{l}
v_permlane32_swap_b32 v{l}, v{lt}
v_add_f32 v{l}, v{l}, v{lt}
v_mov_b32 v{lt}, v{l}
v_permlane16_swap_b32 v{l}, v{lt}
v_add_f32 v{l}, v{l}, v{lt}
v_rcp_f32 v{l}, v{l}
""")
        Bst=[vA,vA+8,vK]
        def wo_rd(i,half=None):
            j,Pp,s=seq[i]
            for hf in ((0,1) if half is None else (half,)):
                b,off=wo_addr(Pp,s,hf)
                A(f"ds_read_b128 {vr(Bst[i%3]+4*hf,4)}, v{b} offset:{off}"); L.add(("w",i))
        wo_rd(0); wo_rd(1)
        for r in range(0,4,2):
            A(f"v_pk_mul_f32 {vr(aQ+r,2)}, {vr(aQ+r,2)}, {vr(l,2)} op_sel_hi:[1,0]")
            A(f"v_pk_mul_f32 {vr(aK+r,2)}, {vr(aK+r,2)}, {vr(l,2)} op_sel_hi:[1,0]")
        oA=[vV,vV+4,vK+8,vK+12]
        A(f"""
v_cvt_pk_bf16_f32 v{vT+4}, v{aQ}, v{aQ+1}
v_cvt_pk_bf16_f32 v{vT+5}, v{aQ+2}, v{aQ+3}
v_cvt_pk_bf16_f32 v{vT+6}, v{aK}, v{aK+1}
v_cvt_pk_bf16_f32 v{vT+7}, v{aK+2}, v{aK+3}
ds_write_b128 v{vL16M}, {vr(vT+4,4)} offset:{QOFF+w*1024}
""")
        L.add(("ow",0))
        self.stamp("owr")
        for r in range(4): A(f"v_mov_b32 v{aQ+r}, 0")
        for r in range(4): A(f"v_mov_b32 v{aK+r}, 0")
        L.drain()
        A("s_barrier")
        self.stamp("B8")
        if OPT.steplog and w==1: A("s_memrealtime s[92:93]")
        for s in range(4):
            A(f"ds_read_b128 {vr(oA[s],4)}, v{vL16M} offset:{QOFF+s*1024}"); L.add(("o",s))
        wo_rd(2)
        def epi_parts(j):
            acc=aQ if j%2==0 else aK
            e=vT+2*(j%2)
            def st():
                A(f"s_add_u32 s{sTmp+3}, s{sH1}, {prs[j]*16384}")
                A(f"buffer_store_dwordx2 {vr(e,2)}, v{vH1st}, {WSR}, s{sTmp+3} offen"); V.add(("h1",j))
            return [lambda: A(f"v_cvt_pk_bf16_f32 v{e}, v{acc}, v{acc+1}"),
                    lambda: A(f"v_cvt_pk_bf16_f32 v{e+1}, v{acc+2}, v{acc+3}"),
                    lambda: A(f"v_and_or_b32 v{e}, v{e}, s{sMaskF}, v{vTag}"), st]
        for i,(j,Pp,s) in enumerate(seq):
            acc=aQ if j%2==0 else aK
            if j==0: L.wait(("o",s))
            L.wait(("w",i))
            A(f"v_smfmac_f32_16x16x64_bf16 {vr(acc,4)}, {vr(oA[s],4)}, {vr(Bst[i%3],8)}, v{vIdx}")
            if i+3<n: wo_rd(i+3)
            if j>0 and s==0:
                for f in epi_parts(j-1)[:2]: f()
            if j>0 and s==1:
                for f in epi_parts(j-1)[2:]: f()
            if s>=2 and j>=1 and j+1<len(prs):
                nacc=aQ if (j+1)%2==0 else aK
                for k_ in (0,1) if s==2 else (2,3): A(f"v_mov_b32 v{nacc+k_}, 0")
        early = self.rr is not None and w>=2 and OPT.red_early
        if early:
            self.delay(OPT.d_red[self.rr])
            self.red_iss(vK)
        for f in epi_parts(len(prs)-1): f()
        self.stamp("opend")
        if OPT.steplog and w==1: A("s_memrealtime s[98:99]")
        if self.rr is not None:
            lab=A.uid("L_nt")
            if w==1: A(f"s_cmp_eq_u32 s{sHasTask}, 1\ns_cbranch_scc0 {lab}")
            if early: self.red_poll(True,1)
            else:
                self.delay(OPT.d_red[self.rr])
                self.red_poll()
            A("s_waitcnt vmcnt(2)")
            A(f"{lab}:")
        self.stamp("redend")
        A(f"L_pre_{sid}:")
        self.zero_acc()
        A(f"""
s_add_u32 s{sStep}, s{sStep}, 1
s_add_u32 s{sKXo}, s{sKXo}, {0 if OPT.fixkv else KVS()}
s_add_u32 s{sVTo}, s{sVTo}, {0 if OPT.fixkv else KVS()}
s_add_u32 s{sKMo}, s{sKMo}, {0 if OPT.fixkm else KMS()}
s_add_u32 s{sVMo}, s{sVMo}, {0 if OPT.fixkm else KMS()}
s_add_u32 s{sTmp}, s{sStep}, {OPT.warmdist}
s_min_u32 s{sTmp}, s{sTmp}, 63
s_lshl_b32 s{sTmp}, s{sTmp}, {13 if OPT.hs else 18}
s_lshl_b32 s{sTmp+1}, s{sH}, {19 if OPT.hs else 13}
s_add_u32 s{sTmp}, s{sTmp}, s{sTmp+1}
s_add_u32 s{sWarmK}, s{sTmp}, {WS_KX-L_MEMT*4}
s_add_u32 s{sWarmV}, s{sTmp}, {WS_VT-L_MEMT*4}
""")
        if OPT.gmode=="joint":
            if w==0:
                self.delay(OPT.d_gat)
                self.gat_poll01()
        else:
            if w==0:
                self.delay(OPT.d_gat)
                self.gat_poll(0)
            if w==OPT.g1wave:
                self.delay(OPT.d_g1[self.rr%2] if self.rr is not None else OPT.d_g1[0])
                self.gat_poll(1)
        self.stamp("gat0")
        A(f"s_barrier\ns_branch L_step_{sid}\n{last}:")
        A(f"v_cvt_pk_bf16_f32 v{aV}, v{aV}, v{aV+1}\nv_cvt_pk_bf16_f32 v{aV+1}, v{aV+2}, v{aV+3}")
        A(f"buffer_store_dwordx2 {vr(aV,2)}, v{vVm}, {WSR}, s{sVMo} offen {OPT.kmflag}")
        if w==0:
            A(f"ds_read_b64_tr_b16 {vr(vK+12,2)}, v{vTR} offset:{KOFF+3*512}\nds_read_b64_tr_b16 {vr(vK+14,2)}, v{vTR} offset:{KOFF+3*512+64}")
            A("s_waitcnt lgkmcnt(0)")
            A(f"s_mov_b64 exec, s[{sMaskLo}:{sMaskLo+1}]")
            for s in range(4):
                A(f"buffer_store_dwordx4 {vr(vK+4*s,4)}, v{vKm}, {WSR}, s{sKMo} offen offset:{s*64} {OPT.kmflag}")
            A("s_mov_b64 exec, -1")
        if OPT.fused:
            A("s_waitcnt vmcnt(0)\ns_barrier")
            if w==1:
                A(f"v_mov_b32 v{vT+5}, 64\ns_lshl_b32 s{sTmp+1}, s{sH}, 7\ns_add_u32 s{sTmp+1}, s{sTmp+1}, {cnt(C_PROG)}\ns_mov_b64 exec, 1\nbuffer_store_dword v{vT+5}, off, {WSR}, s{sTmp+1} sc1\ns_mov_b64 exec, -1")
        A("s_branch L_finish")
        for f in self.ool: f()

def emit_chain(A, nsteps=64, stamps=False, standalone=True, stamp_step=20):
    emit_setup(A, stamps)
    A(f"s_mov_b32 s{sStep}, -1")
    A(f"s_mov_b32 s{sKXo}, {WS_KX-(0 if OPT.fixkv else KVS())}\ns_mov_b32 s{sVTo}, {WS_VT-(0 if OPT.fixkv else KVS())}")
    A(f"s_lshl_b32 s{sTmp}, s{sH}, {17 if OPT.hs else 11}\ns_add_u32 s{sKMo}, s{sTmp}, {WS_KM-(0 if OPT.fixkm else KMS())}\ns_add_u32 s{sVMo}, s{sTmp}, {WS_VM-(0 if OPT.fixkm else KMS())}")
    A(f"s_sub_u32 s{sH2gat}, s{sH2}, {L_MEMT}")
    A(f"s_lshl_b32 s{sTmp+1}, s{sH}, {19 if OPT.hs else 13}\ns_add_u32 s{sTmp}, s{sTmp+1}, {2*KVS()}\ns_add_u32 s{sWarmK}, s{sTmp}, {WS_KX-L_MEMT*4}\ns_add_u32 s{sWarmV}, s{sTmp}, {WS_VT-L_MEMT*4}")
    if stamps: A(f"s_memtime s[94:95]\ns_waitcnt lgkmcnt(0)")
    variants=[("w0",0,None),("w1",1,4),("w2e",2,0),("w2o",2,1),("w3e",3,2),("w3o",3,3)]
    A(f"""
s_cmp_eq_u32 s{sW}, 0
s_cbranch_scc1 L_pre_w0
s_cmp_eq_u32 s{sW}, 1
s_cbranch_scc1 L_pre_w1
s_and_b32 s{sTmp}, s{sH}, 1
s_lshl_b32 s{sTmp+1}, s{sW}, 1
s_add_u32 s{sTmp}, s{sTmp}, s{sTmp+1}
s_cmp_eq_u32 s{sTmp}, 4
s_cbranch_scc1 L_pre_w2e
s_cmp_eq_u32 s{sTmp}, 5
s_cbranch_scc1 L_pre_w2o
s_cmp_eq_u32 s{sTmp}, 6
s_cbranch_scc1 L_pre_w3e
s_branch L_pre_w3o
""")
    nst=0
    for sid,w,rr in variants:
        st=Stream(A,w,rr,nsteps,stamps,stamp_step,sid); st.body(); nst=st.nst
    A("L_finish:")
    if stamps:
        A(f"s_memtime s[96:97]\ns_waitcnt vmcnt(0) lgkmcnt(0)\ns_sub_u32 s96, s96, s94")
        A(f"s_lshl_b32 s{sTmp}, s{sH}, 2\ns_add_u32 s{sTmp}, s{sTmp}, s{sW}\ns_lshl_b32 s{sTmp}, s{sTmp}, 7\ns_add_u32 s{sTmp}, s{sTmp}, {WS_STAMP}")
        A(f"v_mov_b32 v{vK}, s96\nv_mov_b32 v{vK+1}, s{sRetry}\nv_mov_b32 v{vK+2}, s{sRetry2}")
        A(f"s_sub_u32 s90, s90, s88\ns_sub_u32 s92, s92, s88\ns_sub_u32 s94, s94, s88\nv_mov_b32 v{vK+3}, s90\nv_mov_b32 v{vK+4}, s92\nv_mov_b32 v{vK+5}, s94\nv_mov_b32 v{vK+6}, 0\nv_mov_b32 v{vK+7}, 0")
        for i in range(16):
            A(f"v_mov_b32 v{vK+8+i}, s{sT0+2*i}")
        A(f"v_mov_b32 v{vT}, 0\ns_mov_b64 exec, 1")
        for j in range(6):
            A(f"buffer_store_dwordx4 {vr(vK+4*j,4)}, v{vT}, {WSR}, s{sTmp} offen offset:{16*j}")
        A("s_mov_b64 exec, -1")
        global STAMP_NAMES
        STAMP_NAMES=st.names
        print("stamps:",st.names)
    A("L_abort:\ns_waitcnt vmcnt(0)")
OPT.red_lag=1
```

```python
WS_XN=0x0000000; WS_HH=0x0300000
WS_KX=0x1000000; WS_VT=0x2000000; WS_QX=0x3000000
WS_KM=0x4000000; WS_VM=0x4400000
WS_H1=0x4800000; WS_H2=0x4880000
WS_STAMP=0x4900000
WS_CNT=0x4A00000
WS_U=0x5000000
WS_P=0x6000000
P_SLAB=128*36*1024
NSLAB=12
WS_SIZE=0x10000000
assert WS_P+NSLAB*P_SLAB<=WS_SIZE
KA_X=0; KA_MEM0=8; KA_WQ=16; KA_WK=24; KA_WV=32; KA_WO=40; KA_SEG=48; KA_BX=56; KA_W1=64; KA_B1=72; KA_W2=80; KA_B2=88; KA_OUT=96; KA_DBG=104; KA_WS=112
L_WO=0; L_MEMT=147456; L_QT=L_MEMT+9216; L_KT=L_QT+2048; L_ST=L_KT+2048; L_END=L_ST+3072
assert L_END==163840

C_LN=0; C_KV=16; C_Q=32; C_U=48; C_Y=60; C_SEG=80; C_PROG=144; C_QUEUE=176; C_N=192
def cnt(i): return WS_CNT+i*128
DBG_INIT=18*4; DBG_CHB=16*4
```

```python
from asmlib import *
from layout import *
from workers import *
import math
pQ=32
pK=64
pKM=96
pV=112
pVM=144
pS=160
pO=184
pT=8
vLq=2; vLkm=3; vLv=4; vLvm=5; vL16=6; vPst=7
OX0=0
def wo_tiles(w):
    return [[0,1,8],[2,3,8],[4,5],[6,7]][w]
def tiles(w):
    if w==0: return [(0,0),(0,1),(1,0),(1,1),(8,0)]
    if w==1: return [(2,0),(2,1),(3,0),(3,1),(8,1)]
    if w==2: return [(4,0),(4,1),(5,0),(5,1)]
    return [(6,0),(6,1),(7,0),(7,1)]
def woreg(w,dt,k):
    i=wo_tiles(w).index(dt)
    b=64*i+4*k
    return b

def emit_p4_setup(A):
    t=pT
    srd_from_karg(A,sWSRC,KA_WO,4096*1152)
    A("s_barrier")
    A(f"""
s_mul_i32 s{sT}, s{sA}, {512*1152}
s_mul_i32 s{sT+1}, s{sB}, 288
s_add_u32 s{sWo}, s{sT}, s{sT+1}
s_mul_i32 s{sT+4}, s{sW}, {36*64}
""")
    for U in range(9216): assert (U*58255)>>20==U//18, U
    for j in range(36):
        A(f"""
s_add_u32 s{sT+2}, s{sT+4}, {j*64}
v_add_u32 v{t}, s{sT+2}, v0
v_mul_u32_u24 v{t+1}, 58255, v{t}
v_lshrrev_b32 v{t+1}, 20, v{t+1}
v_mul_u32_u24 v{t+2}, 18, v{t+1}
v_sub_u32 v{t+2}, v{t}, v{t+2}
v_mul_u32_u24 v{t+1}, 1152, v{t+1}
v_lshl_add_u32 v{t+3}, v{t+2}, 4, v{t+1}
s_lshl_b32 m0, s{sT+2}, 4
buffer_load_dwordx4 v{t+3}, s[{sWSRC}:{sWSRC+3}], s{sWo} offen lds
""")
    A("s_waitcnt vmcnt(0)\ns_barrier")
    A(f"""
v_lshrrev_b32 v{t}, 4, v0
v_lshlrev_b32 v{t}, 2, v{t}
v_bfe_u32 v{t+1}, v0, 2, 2
v_add_u32 v{t}, v{t}, v{t+1}
v_mul_u32_u24 v{t}, 288, v{t}
v_and_b32 v{t+1}, 3, v0
v_lshl_add_u32 v{t}, v{t+1}, 3, v{t}
v_add_u32 v{t+1}, 65536, v{t}
v_add_u32 v{t+2}, 131072, v{t}
""")
    labs=[A.uid("L_wo") for _ in range(4)]; end=A.uid("L_woe")
    for w in range(4):
        if w<3: A(f"s_cmp_lg_u32 s{sW}, {w}\ns_cbranch_scc1 {labs[w]}")
        n=0
        for dt in wo_tiles(w):
            for k in range(16):
                for h in range(2):
                    off=(32*k+16*h)*288+dt*32
                    b=woreg(w,dt,k)+2*h
                    A(f"ds_read_b64_tr_b16 a[{b}:{b+1}], v{t+off//65536} offset:{off%65536}")
                    n+=1
                    if n%12==0: A("s_waitcnt lgkmcnt(0)")
        A("s_waitcnt lgkmcnt(0)")
        if w<3: A(f"s_branch {end}\n{labs[w]}:")
    A(f"{end}:\ns_barrier")
    A(f"""
v_and_b32 v{t}, 15, v0
v_lshrrev_b32 v{t+1}, 4, v0
v_lshlrev_b32 v{vLq}, 4, v{t}
v_lshl_add_u32 v{vLq}, v{t+1}, 9, v{vLq}
v_and_b32 v{t+2}, 7, v0
v_lshlrev_b32 v{vLkm}, 8, v{t+2}
v_lshl_add_u32 v{vLkm}, v{t+1}, 4, v{vLkm}
v_lshlrev_b32 v{vLv}, 4, v{t}
v_lshl_add_u32 v{vLv}, v{t+1}, 11, v{vLv}
v_lshlrev_b32 v{vLvm}, 4, v{t}
v_and_b32 v{t+2}, 1, v{t+1}
v_lshl_add_u32 v{vLvm}, v{t+2}, 3, v{vLvm}
v_lshlrev_b32 v{vL16}, 4, v0
""")
    A(f"v_lshlrev_b32 v{t+2}, 2, v{t+1}")
    for r in range(4):
        A(f"v_add_u32 v{t+3}, {r}, v{t+2}\nv_cmp_le_u32 s[{50+2*r}:{51+2*r}], v{t+3}, v{t}")
    A("s_mov_b32 s58, -1\ns_mov_b32 s59, 0")

def emit_p4_segment(A, ox, between=None):
    t=pT
    A(f"""
s_lshl_b32 s{sT}, s{sA}, 2
s_add_u32 s{sT}, s{sT}, s{sW}
s_lshl_b32 s{sT+1}, s{sC}, 5
s_add_u32 s{sT}, s{sT}, s{sT+1}
s_lshl_b32 s{sT+1}, s{sT}, 13
s_add_u32 s{sT+2}, s{sT+1}, {WS_QX}
s_add_u32 s{sT+3}, s{sT+1}, {WS_KX}
s_add_u32 s{sT+4}, s{sT+1}, {WS_VT}
s_lshl_b32 s{sT+1}, s{sT}, 11
s_add_u32 s{sT+5}, s{sT+1}, {WS_KM}
s_add_u32 s{sT+6}, s{sT+1}, {WS_VM}
""")
    W=f"s[{sWS}:{sWS+3}]"
    for k in range(4):
        A(f"s_add_u32 s{sT+7}, s{sT+2}, {k*2048}\ns_add_u32 s{sT+8}, s{sT+3}, {k*2048}")
        for tt in range(2):
            A(f"buffer_load_dwordx4 {vr(pQ+16*tt+4*k,4)}, v{vLq}, {W}, s{sT+7} offen offset:{tt*256} sc1")
            A(f"buffer_load_dwordx4 {vr(pK+16*tt+4*k,4)}, v{vLq}, {W}, s{sT+8} offen offset:{tt*256} sc1")
    for et in range(8):
        A(f"buffer_load_dwordx4 {vr(pV+4*et,4)}, v{vLv}, {W}, s{sT+4} offen offset:{et*256} sc1")
    if between is not None: between(A)
    for k in range(4):
        A(f"buffer_load_dwordx4 {vr(pKM+4*k,4)}, v{vLkm}, {W}, s{sT+5} offen offset:{k*64} sc1")
    for et in range(8):
        A(f"buffer_load_dwordx2 {vr(pVM+2*et,2)}, v{vLvm}, {W}, s{sT+6} offen offset:{et*256} sc1")
    A("s_waitcnt vmcnt(8)")
    def S(tt,i): return pS+12*tt+4*i
    for tt in range(2):
        for k in range(4):
            c='0' if k==0 else None
            A(f"v_mfma_f32_16x16x32_bf16 {vr(S(tt,0),4)}, {vr(pKM+4*k,4)}, {vr(pQ+16*tt+4*k,4)}, {c or vr(S(tt,0),4)}")
            A(f"v_mfma_f32_16x16x32_bf16 {vr(S(tt,1),4)}, {vr(pK+4*k,4)}, {vr(pQ+16*tt+4*k,4)}, {c or vr(S(tt,1),4)}")
            if tt==1:
                A(f"v_mfma_f32_16x16x32_bf16 {vr(S(tt,2),4)}, {vr(pK+16+4*k,4)}, {vr(pQ+16*tt+4*k,4)}, {c or vr(S(tt,2),4)}")
    cval=128**-0.5*math.log2(math.e)
    A(f"s_mov_b32 s{sT+7}, {hex(fbits(cval))}\nv_mov_b32 v{t+7}, 0xff800000")
    NEG=t+7
    rinv=[t+4,t+5]
    P=[t+8,t+16]
    for tt in range(2):
        s0=S(tt,0)
        for r in range(4):
            A(f"v_cndmask_b32 v{s0+r}, v{NEG}, v{s0+r}, s[58:59]")
            d=S(tt,1+tt)+r
            A(f"v_cndmask_b32 v{d}, v{NEG}, v{d}, s[{50+2*r}:{51+2*r}]")
        n=8 if tt==0 else 12
        m,mt=t,t+1
        A(f"v_max3_f32 v{m}, v{s0}, v{s0+1}, v{s0+2}\nv_max3_f32 v{mt}, v{s0+3}, v{s0+4}, v{s0+5}\nv_max3_f32 v{m}, v{m}, v{s0+6}, v{s0+7}")
        if n==12: A(f"v_max3_f32 v{mt}, v{mt}, v{s0+8}, v{s0+9}\nv_max3_f32 v{m}, v{m}, v{s0+10}, v{s0+11}")
        A(f"""
v_max_f32 v{m}, v{m}, v{mt}
v_mov_b32 v{mt}, v{m}
v_permlane32_swap_b32 v{m}, v{mt}
v_max_f32 v{m}, v{m}, v{mt}
v_mov_b32 v{mt}, v{m}
v_permlane16_swap_b32 v{m}, v{mt}
v_max_f32 v{m}, v{m}, v{mt}
v_mul_f32 v{mt}, s{sT+7}, v{m}
""")
        for i in range(n): A(f"v_fma_f32 v{s0+i}, v{s0+i}, s{sT+7}, -v{mt}")
        for i in range(n): A(f"v_exp_f32 v{s0+i}, v{s0+i}")
        l,lt=rinv[tt],t+2
        A(f"v_add_f32 v{l}, v{s0}, v{s0+1}")
        for i in range(2,n): A(f"v_add_f32 v{l}, v{l}, v{s0+i}")
        A(f"""
v_mov_b32 v{lt}, v{l}
v_permlane32_swap_b32 v{l}, v{lt}
v_add_f32 v{l}, v{l}, v{lt}
v_mov_b32 v{lt}, v{l}
v_permlane16_swap_b32 v{l}, v{lt}
v_add_f32 v{l}, v{l}, v{lt}
v_rcp_f32 v{l}, v{l}
""")
        p=P[tt]
        A(f"v_cvt_pk_bf16_f32 v{p}, v{s0+4}, v{s0+5}\nv_cvt_pk_bf16_f32 v{p+1}, v{s0+6}, v{s0+7}")
        if tt==0: A(f"v_mov_b32 v{p+2}, 0\nv_mov_b32 v{p+3}, 0")
        else: A(f"v_cvt_pk_bf16_f32 v{p+2}, v{s0+8}, v{s0+9}\nv_cvt_pk_bf16_f32 v{p+3}, v{s0+10}, v{s0+11}")
        A(f"v_cvt_pk_bf16_f32 v{p+4}, v{s0}, v{s0+1}\nv_cvt_pk_bf16_f32 v{p+5}, v{s0+2}, v{s0+3}")
    A("s_waitcnt vmcnt(0)")
    for et in range(8):
        for tt in range(2):
            o=pO+8*et+4*tt
            A(f"v_mfma_f32_16x16x32_bf16 {vr(o,4)}, {vr(pV+4*et,4)}, {vr(P[tt],4)}, 0")
    for et in range(8):
        for tt in range(2):
            o=pO+8*et+4*tt
            A(f"v_mfma_f32_16x16x16_bf16 {vr(o,4)}, {vr(pVM+2*et,2)}, {vr(P[tt]+4,2)}, {vr(o,4)}")
    A(f"s_lshl_b32 s{sT}, s{sW}, 13\nv_add_u32 v{t+6}, s{sT}, v{vL16}")
    n=0
    for kap in range(4):
        for tt in range(2):
            d=pQ+4*(n%8); n+=1
            a=pO+8*(2*kap)+4*tt; b=pO+8*(2*kap+1)+4*tt
            for r in range(4): A(f"v_mul_f32 v{a+r}, v{a+r}, v{rinv[tt]}\nv_mul_f32 v{b+r}, v{b+r}, v{rinv[tt]}")
            A(f"v_cvt_pk_bf16_f32 v{d}, v{a}, v{a+1}\nv_cvt_pk_bf16_f32 v{d+1}, v{a+2}, v{a+3}\nv_cvt_pk_bf16_f32 v{d+2}, v{b}, v{b+1}\nv_cvt_pk_bf16_f32 v{d+3}, v{b+2}, v{b+3}")
            A(f"ds_write_b128 v{t+6}, {vr(d,4)} offset:{ox+kap*2048+tt*1024}")
    A("s_waitcnt lgkmcnt(0)\ns_barrier")
    A(f"""
s_mul_i32 s{sOut}, s{sA}, {P_SLAB}
s_mul_i32 s{sT}, s{sC}, {2*36*1024}
s_add_u32 s{sOut}, s{sOut}, s{sT}
s_mul_i32 s{sT}, s{sB}, {9*1024}
s_add_u32 s{sOut}, s{sOut}, s{sT}
s_add_u32 s{sOut}, s{sOut}, {WS_P}
""")
    labs=[A.uid("L_op") for _ in range(4)]; end=A.uid("L_ope")
    Bf=pK
    acc=pS
    for w in range(4):
        if w<3: A(f"s_cmp_lg_u32 s{sW}, {w}\ns_cbranch_scc1 {labs[w]}")
        tl=tiles(w)
        def rd(k):
            for tt in range(2):
                A(f"ds_read_b128 {vr(Bf+8*(k%4)+4*tt,4)}, v{vL16} offset:{ox+k*2048+tt*1024}")
        for k in range(3): rd(k)
        for k in range(16):
            if k+3<16: rd(k+3)
            A(f"s_waitcnt lgkmcnt({2*(min(15,k+3)-k)})")
            for i,(dt,tt) in enumerate(tl):
                b=woreg(w,dt,k)
                A(f"v_mfma_f32_16x16x32_bf16 {vr(acc+4*i,4)}, a[{b}:{b+3}], {vr(Bf+8*(k%4)+4*tt,4)}, {'0' if k==0 else vr(acc+4*i,4)}")
        for i,(dt,tt) in enumerate(tl):
            A(f"s_add_u32 s{sT}, s{sOut}, {tt*36*1024+dt*1024}")
            A(f"buffer_store_dwordx4 {vr(acc+4*i,4)}, v{vL16}, {W}, s{sT} offen {ST}")
        if w<3: A(f"s_branch {end}\n{labs[w]}:")
    A(f"{end}:")

def emit_combine_tile(A):
    t=pT
    W=f"s[{sWS}:{sWS+3}]"
    A(f"""
s_mul_i32 s{sT}, s{sC}, {36*1024}
s_lshl_b32 s{sT+1}, s{sD}, 10
s_add_u32 s{sT}, s{sT}, s{sT+1}
s_add_u32 s{sT}, s{sT}, {WS_P}
v_lshlrev_b32 v{t}, 4, v0
""")
    for sl in range(NSLAB):
        A(f"buffer_load_dwordx4 {vr(pQ+4*sl,4)}, v{t}, {W}, s{sT} offen sc1\ns_add_u32 s{sT}, s{sT}, {P_SLAB}")
    A(f"""
v_and_b32 v{t+1}, 15, v0
v_mul_u32_u24 v{t+1}, 1152, v{t+1}
v_lshrrev_b32 v{t+2}, 4, v0
v_lshl_add_u32 v{t+1}, v{t+2}, 3, v{t+1}
s_mul_i32 s{sT}, s{sC}, {16*1152}
s_lshl_b32 s{sT+1}, s{sD}, 5
s_add_u32 s{sT}, s{sT}, s{sT+1}
buffer_load_dwordx2 {vr(t+4,2)}, v{t+1}, s[{sXS}:{sXS+3}], s{sT} offen
s_waitcnt vmcnt(0)
""")
    for sl in range(1,NSLAB):
        for r in range(4): A(f"v_add_f32 v{pQ+r}, v{pQ+r}, v{pQ+4*sl+r}")
    A(f"""
v_lshlrev_b32 v{t+6}, 16, v{t+4}
v_and_b32 v{t+7}, 0xffff0000, v{t+4}
v_lshlrev_b32 v{t+8}, 16, v{t+5}
v_and_b32 v{t+9}, 0xffff0000, v{t+5}
v_add_f32 v{pQ}, v{pQ}, v{t+6}
v_add_f32 v{pQ+1}, v{pQ+1}, v{t+7}
v_add_f32 v{pQ+2}, v{pQ+2}, v{t+8}
v_add_f32 v{pQ+3}, v{pQ+3}, v{t+9}
v_cvt_pk_bf16_f32 v{t+4}, v{pQ}, v{pQ+1}
v_cvt_pk_bf16_f32 v{t+5}, v{pQ+2}, v{pQ+3}
buffer_store_dwordx2 {vr(t+4,2)}, v{t+1}, s[{sWSRC}:{sWSRC+3}], s{sT} offen
""")
```

```python
from asmlib import *
from layout import *
import struct, math
def fbits(x): return struct.unpack("<I",struct.pack("<f",x))[0]
def vr(a,n): return f"v[{a}:{a+n-1}]" if n>1 else f"v{a}"

sRank=10; sW=11; sWS=12; sXS=16; sWSRC=20
sT=24
sXo=36; sWo=37; sRd=38; sWr=39; sIt=40; sOut=41; sTask=42; sA=43; sB=44; sC=45; sD=46
sKarg=0
ST="sc1"

def emit_worker_setup(A):
    A(f"""
s_load_dwordx2 s[{sWS}:{sWS+1}], s[0:1], {KA_WS}
v_lshrrev_b32 v1, 6, v0
v_and_b32 v0, 63, v0
v_readfirstlane_b32 s{sW}, v1
s_mov_b32 s{sWS+2}, {WS_SIZE}
s_mov_b32 s{sWS+3}, 0x20000
s_mov_b32 s{sXS+3}, 0x20000
s_mov_b32 s{sWSRC+3}, 0x20000
s_waitcnt lgkmcnt(0)
""")

def srd_from_karg(A, s, off, nbytes):
    A(f"s_load_dwordx2 s[{s}:{s+1}], s[0:1], {off}\ns_mov_b32 s{s+2}, {nbytes}\ns_waitcnt lgkmcnt(0)")
def srd_from_ws(A, s, off, nbytes):
    A(f"s_add_u32 s{s}, s{sWS}, {off}\ns_addc_u32 s{s+1}, s{sWS+1}, 0\ns_mov_b32 s{s+2}, {nbytes}")

def wave_allsum(A, v, t):
    for r in (8,4,2,1):
        A(f"v_add_f32_dpp v{v}, v{v}, v{v} row_ror:{r} row_mask:0xf bank_mask:0xf")
    A(f"v_mov_b32 v{t}, v{v}\nv_permlane16_swap_b32 v{v}, v{t}\nv_add_f32 v{v}, v{v}, v{t}")
    A(f"v_mov_b32 v{t}, v{v}\nv_permlane32_swap_b32 v{v}, v{t}\nv_add_f32 v{v}, v{v}, v{t}")
def rne_bf16(A, v):
    A(f"v_cvt_pk_bf16_f32 v{v}, v{v}, v{v}\nv_and_b32 v{v}, 0xffff0000, v{v}")
def ln_core(A, X, tmp, vMask):
    s,t,m,d=tmp,tmp+1,tmp+2,tmp+3
    A(f"v_add_f32 v{s}, v{X}, v{X+1}")
    for i in range(2,10): A(f"v_add_f32 v{s}, v{s}, v{X+i}")
    wave_allsum(A,s,t)
    A(f"v_mul_f32 v{s}, {hex(fbits(1.0/576))}, v{s}")
    A(f"v_sub_f32 v{d}, v{X}, v{s}\nv_mul_f32 v{m}, v{d}, v{d}")
    for i in range(1,8): A(f"v_sub_f32 v{d}, v{X+i}, v{s}\nv_fmac_f32 v{m}, v{d}, v{d}")
    for i in (8,9): A(f"v_sub_f32 v{d}, v{X+i}, v{s}\nv_mul_f32 v{d}, v{d}, v{vMask}\nv_fmac_f32 v{m}, v{d}, v{d}")
    wave_allsum(A,m,t)
    A(f"v_mul_f32 v{m}, {hex(fbits(1.0/576))}, v{m}")
    rne_bf16(A,m); rne_bf16(A,s)
    A(f"v_add_f32 v{m}, {hex(fbits(1e-5))}, v{m}"); rne_bf16(A,m)
    A(f"v_sqrt_f32 v{m}, v{m}"); rne_bf16(A,m)
    A(f"v_rcp_f32 v{m}, v{m}")
    for i in range(0,10,2):
        A(f"v_sub_f32 v{X+i}, v{X+i}, v{s}\nv_sub_f32 v{X+i+1}, v{X+i+1}, v{s}")
        A(f"v_cvt_pk_bf16_f32 v{d}, v{X+i}, v{X+i+1}")
        A(f"v_lshlrev_b32 v{X+i}, 16, v{d}\nv_and_b32 v{X+i+1}, 0xffff0000, v{d}")
        A(f"v_mul_f32 v{X+i}, v{X+i}, v{m}\nv_mul_f32 v{X+i+1}, v{X+i+1}, v{m}")
        A(f"v_cvt_pk_bf16_f32 v{d}, v{X+i}, v{X+i+1}")
        A(f"v_mov_b32 v{tmp+4+i//2}, v{d}")
        A(f"v_lshlrev_b32 v{X+i}, 16, v{d}\nv_and_b32 v{X+i+1}, 0xffff0000, v{d}")
    A(f"v_mul_f32 v{X+8}, v{X+8}, v{vMask}\nv_mul_f32 v{X+9}, v{X+9}, v{vMask}")

def emit_ln(A, NW, fused=False):
    nrow=(2048+NW*4-1)//(NW*4)
    srd_from_karg(A,sXS,KA_X,2048*1152)
    vO,vO2,vMask=2,3,4
    L=8
    A(f"""
v_lshlrev_b32 v{vO}, 4, v0
v_lshlrev_b32 v{vO2}, 2, v0
v_add_u32 v{vO2}, 1024, v{vO2}
v_mov_b32 v5, 0x7ff00000
v_cmp_gt_u32 vcc, 32, v0
v_cndmask_b32 v{vO2}, v5, v{vO2}, vcc
v_cndmask_b32 v{vMask}, 0, 1.0, vcc
s_lshl_b32 s{sA}, s{sRank}, 2
s_add_u32 s{sA}, s{sA}, s{sW}
""")
    for k in range(nrow):
        A(f"s_add_u32 s{sT}, s{sA}, {k*NW*4}\ns_mul_i32 s{sT}, s{sT}, 1152")
        A(f"buffer_load_dwordx4 {vr(L+8*k,4)}, v{vO}, s[{sXS}:{sXS+3}], s{sT} offen")
        A(f"buffer_load_dword v{L+8*k+4}, v{vO2}, s[{sXS}:{sXS+3}], s{sT} offen")
    X=40; tmp=52
    for k in range(nrow):
        lab=A.uid("L_ln")
        A(f"s_add_u32 s{sT}, s{sA}, {k*NW*4}\ns_cmp_ge_u32 s{sT}, 2048\ns_cbranch_scc1 {lab}")
        A(f"s_mul_i32 s{sT}, s{sT}, 1152")
        A(f"s_waitcnt vmcnt({0})")
        for i in range(5):
            A(f"v_lshlrev_b32 v{X+2*i}, 16, v{L+8*k+i}\nv_and_b32 v{X+2*i+1}, 0xffff0000, v{L+8*k+i}")
        for which,off in ((0,WS_XN),(1,WS_HH)):
            ln_core(A,X,tmp,vMask)
            A(f"s_add_u32 s{sT+1}, s{sT}, {off}")
            o=64+8*which
            for i in range(5): A(f"v_mov_b32 v{o+i}, v{tmp+4+i}")
            A(f"buffer_store_dwordx4 {vr(o,4)}, v{vO}, s[{sWS}:{sWS+3}], s{sT+1} offen {ST}")
            A(f"buffer_store_dword v{o+4}, v{vO2}, s[{sWS}:{sWS+3}], s{sT+1} offen {ST}")
        A(f"{lab}:")
    A("s_waitcnt vmcnt(0)")
    if fused:
        lp=A.uid("L_ini")
        A(f"s_load_dwordx2 s[{sP+4}:{sP+5}], s[0:1], {KA_DBG}\ns_waitcnt lgkmcnt(0)\nv_mov_b32 v2, {DBG_INIT}\ns_mov_b32 s{sP+1}, 0\n{lp}:")
        A(f"global_load_dword v1, v2, s[{sP+4}:{sP+5}] sc1\ns_waitcnt vmcnt(0)\nv_readfirstlane_b32 s{sP+2}, v1")
        ok=A.uid("L_iok")
        A(f"s_cmp_eq_u32 s{sP+2}, 1\ns_cbranch_scc1 {ok}\ns_add_u32 s{sP+1}, s{sP+1}, 1\ns_cmp_gt_u32 s{sP+1}, 4000000\ns_cbranch_scc1 L_abortw\ns_sleep 2\ns_branch {lp}\n{ok}:")
        for k in range(nrow):
            lab=A.uid("L_lns")
            A(f"s_add_u32 s{sT}, s{sA}, {k*NW*4}\ns_cmp_ge_u32 s{sT}, 2048\ns_cbranch_scc1 {lab}")
            A(f"s_lshr_b32 s{sT}, s{sT}, 7\ns_lshl_b32 s{sT}, s{sT}, 7\ns_add_u32 s{sT}, s{sT}, {cnt(C_LN)}")
            wave_signal(A,f"s{sT}")
            A(f"{lab}:")

class Gemm:
    pass

def gemm_mainloop(A, G, tag):
    SB=G.XB+G.WB
    def mf(buf,first):
        for wt in range(G.nWt):
            for xt in range(G.nXt):
                acc=vr(G.acc+16*(wt*G.nXt+xt),16)
                fx=vr(G.fX+buf*4*G.nXt+4*xt,4); fw=vr(G.fW+buf*4*G.nWt+4*wt,4)
                a,b=(fw,fx) if G.orient=="WX" else (fx,fw)
                A(f"v_mfma_f32_32x32x16_bf16 {acc}, {a}, {b}, {'0' if first else acc}")
    def adv(s):
        A(f"s_add_u32 s{s}, s{s}, {SB}\ns_cmp_eq_u32 s{s}, {3*SB}\ns_cselect_b32 s{s}, 0, s{s}")
    A("s_barrier")
    A(f"s_mov_b32 s{sWr}, 0\ns_mov_b32 s{sRd}, 0")
    for i in range(3):
        G.dma(A); adv(sWr)
    A(f"s_waitcnt vmcnt({2*G.D})\ns_barrier")
    G.setaddr(A)
    G.reads(A,0,0)
    def body(first,label_sfx):
        for ks in range(3):
            A("s_waitcnt lgkmcnt(0)")
            G.reads(A,ks+1,(ks+1)%2)
            mf(ks%2, first and ks==0)
        A("s_waitcnt lgkmcnt(0)")
        l_last=A.uid("L_last"); l_nodma=A.uid("L_nodma"); l_w0=A.uid("L_w0"); l_wd=A.uid("L_wd")
        A(f"s_add_u32 s{sIt}, s{sIt}, 1")
        A(f"s_cmp_ge_u32 s{sIt}, {G.nst}\ns_cbranch_scc1 {l_last}")
        A(f"s_add_u32 s{sT}, s{sIt}, 1\ns_cmp_ge_u32 s{sT}, {G.nst}\ns_cbranch_scc1 {l_w0}")
        A(f"s_waitcnt vmcnt({G.D})\ns_branch {l_wd}\n{l_w0}:\ns_waitcnt vmcnt(0)\n{l_wd}:")
        A("s_barrier")
        A(f"s_add_u32 s{sT}, s{sIt}, 2\ns_cmp_ge_u32 s{sT}, {G.nst}\ns_cbranch_scc1 {l_nodma}")
        G.dma(A); adv(sWr)
        A(f"{l_nodma}:")
        adv(sRd)
        G.setaddr(A)
        G.reads(A,0,0)
        A(f"{l_last}:")
        mf(1,False)
    A(f"s_mov_b32 s{sIt}, 0")
    body(True,"a")
    lp=A.uid("L_gl"); le=A.uid("L_ge")
    A(f"s_cmp_ge_u32 s{sIt}, {G.nst}\ns_cbranch_scc1 {le}")
    A(f"{lp}:")
    body(False,"b")
    A(f"s_cmp_lt_u32 s{sIt}, {G.nst}\ns_cbranch_scc1 {lp}")
    A(f"{le}:")
    A("s_nop 15")

def lane_consts(A, t):
    A(f"""
v_bfe_u32 v{t}, v0, 4, 1
v_bfe_u32 v{t+1}, v0, 5, 1
v_bfe_u32 v{t+2}, v0, 2, 2
v_and_b32 v{t+3}, 3, v0
""")

def w_strided_addr(A, dst, n, rowbytes, unit0_sgpr, xorshift_mode, t):
    lane_consts(A,t)
    A(f"""
v_lshl_add_u32 v{t+4}, v{t+1}, 3, v{t+2}
v_mul_u32_u24 v{t+4}, {rowbytes}, v{t+4}
v_and_b32 v{t+5}, 1, v{t+3}
v_lshl_add_u32 v{t+4}, v{t+5}, 3, v{t+4}
v_lshrrev_b32 v{t+5}, 1, v{t+3}
v_lshl_add_u32 v{t+5}, v{t}, 1, v{t+5}
v_add_u32 v{t+5}, s{unit0_sgpr}, v{t+5}
""")
    if xorshift_mode=="r2": A(f"v_lshlrev_b32 v{t+6}, 2, v{t+2}")
    else: A(f"v_lshrrev_b32 v{t+6}, 1, v{t+2}\nv_lshlrev_b32 v{t+6}, 2, v{t+6}")
    for i in range(n):
        A(f"v_add_u32 v{t+7}, {4*i}, v{t+5}\nv_xor_b32 v{t+7}, v{t+7}, v{t+6}\nv_lshl_add_u32 v{dst+i}, v{t+7}, 4, v{t+4}")

def x_contig_addr(A, dst, row0_sgpr, t):
    A(f"""
v_and_b32 v{t}, 31, v0
v_add_u32 v{t}, s{row0_sgpr}, v{t}
v_lshrrev_b32 v{t+1}, 5, v0
v_bfe_u32 v{t+2}, v{t}, 1, 3
v_lshlrev_b32 v{t}, 7, v{t}
""")
    for ks in range(4):
        A(f"v_add_u32 v{t+3}, {2*ks}, v{t+1}\nv_xor_b32 v{t+3}, v{t+3}, v{t+2}\nv_lshl_add_u32 v{dst+ks}, v{t+3}, 4, v{t}")

gDX=2
gDW=5
gAXc=8
gAWc=12
gAX=16; gAW=20
gT=24
gFX=32; gFW=64
gACC=128

def setaddr_generic(A,nX,nW,XB):
    for i in range(nX): A(f"v_add_u32 v{gAX+i}, s{sRd}, v{gAXc+i}")
    A(f"s_add_u32 s{sT+1}, s{sRd}, {XB}")
    for i in range(nW): A(f"v_add_u32 v{gAW+i}, s{sT+1}, v{gAWc+i}")

def pack_swap(A, acc, j, d):
    a=acc+8*j
    A(f"""
v_cvt_pk_bf16_f32 v{d}, v{a}, v{a+1}
v_cvt_pk_bf16_f32 v{d+1}, v{a+2}, v{a+3}
v_cvt_pk_bf16_f32 v{d+2}, v{a+4}, v{a+5}
v_cvt_pk_bf16_f32 v{d+3}, v{a+6}, v{a+7}
v_permlane32_swap_b32 v{d}, v{d+2}
v_permlane32_swap_b32 v{d+1}, v{d+3}
""")

def emit_g1(A):
    G=Gemm(); G.nXt=2; G.nWt=4; G.XB=16384; G.WB=32768; G.nst=9; G.D=12; G.fX=gFX; G.fW=gFW; G.acc=gACC
    t=gT
    srd_from_ws(A,sXS,WS_XN,2048*1152)
    A(f"s_lshl_b32 s{sT}, s{sA}, 3\ns_add_u32 s{sT}, s{sT}, {KA_WQ}\ns_load_dwordx2 s[{sWSRC}:{sWSRC+1}], s[0:1], s{sT}\ns_mov_b32 s{sWSRC+2}, {576*8192}")
    A(f"""
v_lshrrev_b32 v{t}, 3, v0
v_mul_u32_u24 v{t}, 1152, v{t}
v_and_b32 v{t+1}, 7, v0
v_lshrrev_b32 v{t+2}, 4, v0
v_xor_b32 v{t+3}, v{t+1}, v{t+2}
v_lshl_add_u32 v{gDX}, v{t+3}, 4, v{t}
v_xor_b32 v{t+3}, 4, v{t+3}
v_lshl_add_u32 v{gDX+1}, v{t+3}, 4, v{t}
v_lshrrev_b32 v{t}, 5, v0
v_lshlrev_b32 v{t+1}, 2, v{t}
v_lshlrev_b32 v{t}, 13, v{t}
v_and_b32 v{t+2}, 31, v0
v_xor_b32 v{t+3}, v{t+2}, v{t+1}
v_lshl_add_u32 v{gDW}, v{t+3}, 4, v{t}
v_xor_b32 v{t+3}, 8, v{t+3}
v_lshl_add_u32 v{gDW+1}, v{t+3}, 4, v{t}
""")
    A(f"""
s_lshl_b32 s{sT}, s{sB}, 7
s_lshl_b32 s{sT+1}, s{sW}, 5
s_add_u32 s{sT}, s{sT}, s{sT+1}
s_mul_i32 s{sXo}, s{sT}, 1152
s_lshl_b32 s{sWo}, s{sW}, 17
s_lshl_b32 s{sT}, s{sC}, 9
s_add_u32 s{sWo}, s{sWo}, s{sT}
""")
    A(f"s_and_b32 s{sT}, s{sW}, 1\ns_lshl_b32 s{sT}, s{sT}, 6")
    x_contig_addr(A,gAXc,sT,t)
    A(f"s_lshr_b32 s{sT}, s{sW}, 1\ns_lshl_b32 s{sT}, s{sT}, 4")
    w_strided_addr(A,gAWc,4,512,sT,"r2",t)
    def dma(A):
        for j in range(4):
            A(f"s_lshl_b32 s{sT+2}, s{sW}, 12\ns_add_u32 s{sT+2}, s{sT+2}, s{sWr}\ns_add_u32 m0, s{sT+2}, {j*1024}")
            A(f"s_add_u32 s{sT+3}, s{sXo}, {j*8*1152}")
            A(f"buffer_load_dwordx4 v{gDX+(j%2)}, s[{sXS}:{sXS+3}], s{sT+3} offen sc1 lds")
        for j in range(8):
            A(f"s_lshl_b32 s{sT+2}, s{sW}, 13\ns_add_u32 s{sT+2}, s{sT+2}, s{sWr}\ns_add_u32 m0, s{sT+2}, {16384+j*1024}")
            A(f"s_add_u32 s{sT+3}, s{sWo}, {j*2*8192}")
            A(f"buffer_load_dwordx4 v{gDW+(j%2)}, s[{sWSRC}:{sWSRC+3}], s{sT+3} offen lds")
        A(f"s_add_u32 s{sXo}, s{sXo}, 128\ns_add_u32 s{sWo}, s{sWo}, {64*8192}")
    G.dma=dma
    G.setaddr=lambda A: setaddr_generic(A,4,4,G.XB)
    def reads(A,ks,buf):
        for xt in range(2):
            A(f"ds_read_b128 {vr(G.fX+buf*8+4*xt,4)}, v{gAX+ks} offset:{xt*4096}")
        for wt in range(4):
            for h in range(2):
                A(f"ds_read_b64_tr_b16 {vr(G.fW+buf*16+4*wt+2*h,2)}, v{gAW+wt} offset:{(16*ks+4*h)*512}")
    G.reads=reads
    A("s_waitcnt lgkmcnt(0)")
    lv=A.uid("L_g1v"); le=A.uid("L_g1e")
    A(f"s_cmp_eq_u32 s{sA}, 2\ns_cbranch_scc1 {lv}")
    G.orient="WX"
    gemm_mainloop(A,G,"g1k")
    A(f"""
s_cmp_eq_u32 s{sA}, 0
s_mov_b32 s{sOut}, {WS_KX}
s_cselect_b32 s{sOut}, {WS_QX}, s{sOut}
s_and_b32 s{sT}, s{sW}, 1
s_lshl_b32 s{sT}, s{sT}, 1
s_lshl_b32 s{sT+1}, s{sB}, 2
s_add_u32 s{sT}, s{sT}, s{sT+1}
s_lshl_b32 s{sT}, s{sT}, 18
s_add_u32 s{sOut}, s{sOut}, s{sT}
s_lshl_b32 s{sT}, s{sC}, 1
s_lshr_b32 s{sT+1}, s{sW}, 1
s_add_u32 s{sT}, s{sT}, s{sT+1}
s_lshl_b32 s{sT}, s{sT}, 13
s_add_u32 s{sOut}, s{sOut}, s{sT}
v_and_b32 v{t}, 31, v0
v_lshlrev_b32 v{t}, 4, v{t}
v_lshrrev_b32 v{t+1}, 5, v0
v_lshl_add_u32 v{t}, v{t+1}, 9, v{t}
""")
    n=0
    for xt in range(2):
        for wt in range(4):
            for j in range(2):
                d=gFX+4*(n%8); n+=1
                pack_swap(A,G.acc+16*(wt*2+xt),j,d)
                A(f"s_add_u32 s{sT}, s{sOut}, {xt*262144+(4*wt+2*j)*512}")
                A(f"buffer_store_dwordx4 {vr(d,4)}, v{t}, s[{sWS}:{sWS+3}], s{sT} offen {ST}")
    A(f"s_branch {le}")
    A(f"{lv}:")
    G.orient="XW"
    gemm_mainloop(A,G,"g1v")
    A(f"""
s_and_b32 s{sT}, s{sW}, 1
s_lshl_b32 s{sT}, s{sT}, 1
s_lshl_b32 s{sT+1}, s{sB}, 2
s_add_u32 s{sT}, s{sT}, s{sT+1}
s_lshl_b32 s{sT}, s{sT}, 18
s_add_u32 s{sOut}, s{sT}, {WS_VT}
s_lshl_b32 s{sT}, s{sC}, 1
s_lshr_b32 s{sT+1}, s{sW}, 1
s_add_u32 s{sT}, s{sT}, s{sT+1}
s_lshl_b32 s{sT}, s{sT}, 13
s_add_u32 s{sOut}, s{sOut}, s{sT}
v_and_b32 v{t}, 31, v0
v_lshlrev_b32 v{t}, 4, v{t}
v_lshrrev_b32 v{t+1}, 5, v0
v_lshl_add_u32 v{t}, v{t+1}, 11, v{t}
""")
    n=0
    for xt in range(2):
        for wt in range(4):
            a=G.acc+16*(wt*2+xt)
            for j in range(2):
                d=gFX+4*(n%8); n+=1
                A(f"""
v_cvt_pk_bf16_f32 v{d}, v{a+4*j}, v{a+4*j+1}
v_cvt_pk_bf16_f32 v{d+1}, v{a+4*j+2}, v{a+4*j+3}
v_cvt_pk_bf16_f32 v{d+2}, v{a+8+4*j}, v{a+8+4*j+1}
v_cvt_pk_bf16_f32 v{d+3}, v{a+8+4*j+2}, v{a+8+4*j+3}
s_add_u32 s{sT}, s{sOut}, {xt*262144+j*4096+wt*512}
buffer_store_dwordx4 {vr(d,4)}, v{t}, s[{sWS}:{sWS+3}], s{sT} offen {ST}
""")
    A(f"{le}:")
    A("s_waitcnt vmcnt(0)")

def emit_g2(A):
    G=Gemm(); G.nXt=3; G.nWt=2; G.XB=24576; G.WB=16384; G.nst=32; G.D=10; G.fX=gFX; G.fW=gFW; G.acc=gACC; G.orient="WX"
    t=gT
    srd_from_ws(A,sXS,WS_HH,2048*1152)
    srd_from_karg(A,sWSRC,KA_W1,2048*9216)
    for v in range(3):
        A(f"""
v_add_u32 v{t}, {64*v}, v0
v_mul_u32_u24 v{t+1}, 2731, v{t}
v_lshrrev_b32 v{t+1}, 16, v{t+1}
v_mul_u32_u24 v{t+2}, 24, v{t+1}
v_sub_u32 v{t+2}, v{t}, v{t+2}
v_bfe_u32 v{t+3}, v{t+1}, 1, 1
v_lshlrev_b32 v{t+3}, 2, v{t+3}
v_xor_b32 v{t+2}, v{t+2}, v{t+3}
v_mul_u32_u24 v{t+1}, 1152, v{t+1}
v_lshl_add_u32 v{gDX+v}, v{t+2}, 4, v{t+1}
""")
    for U in range(192): assert (U*2731)>>16==U//24
    A(f"""
v_lshrrev_b32 v{t}, 4, v0
v_lshlrev_b32 v{t+1}, 2, v{t}
v_mul_u32_u24 v{t}, 9216, v{t}
v_and_b32 v{t+2}, 15, v0
v_xor_b32 v{t+2}, v{t+2}, v{t+1}
v_lshl_add_u32 v{gDW}, v{t+2}, 4, v{t}
s_mul_i32 s{sXo}, s{sW}, {16*1152}
s_mul_i32 s{sT}, s{sA}, 384
s_add_u32 s{sXo}, s{sXo}, s{sT}
s_mul_i32 s{sWo}, s{sW}, {16*9216}
s_lshl_b32 s{sT}, s{sB}, 8
s_add_u32 s{sWo}, s{sWo}, s{sT}
s_and_b32 s{sT}, s{sW}, 1
s_mul_i32 s{sT}, s{sT}, 12
""")
    w_strided_addr(A,gAXc,3,384,sT,"rhi",t)
    A(f"s_lshr_b32 s{sT}, s{sW}, 1\ns_lshl_b32 s{sT}, s{sT}, 3")
    w_strided_addr(A,gAWc,2,256,sT,"r2",t)
    def dma(A):
        for j in range(6):
            A(f"s_mul_i32 s{sT+2}, s{sW}, 6144\ns_add_u32 s{sT+2}, s{sT+2}, s{sWr}\ns_add_u32 m0, s{sT+2}, {j*1024}")
            A(f"s_add_u32 s{sT+3}, s{sXo}, {(j//3)*8*1152}")
            A(f"buffer_load_dwordx4 v{gDX+(j%3)}, s[{sXS}:{sXS+3}], s{sT+3} offen sc1 lds")
        for j in range(4):
            A(f"s_lshl_b32 s{sT+2}, s{sW}, 12\ns_add_u32 s{sT+2}, s{sT+2}, s{sWr}\ns_add_u32 m0, s{sT+2}, {24576+j*1024}")
            A(f"s_add_u32 s{sT+3}, s{sWo}, {j*4*9216}")
            A(f"buffer_load_dwordx4 v{gDW}, s[{sWSRC}:{sWSRC+3}], s{sT+3} offen lds")
        A(f"s_add_u32 s{sXo}, s{sXo}, {64*1152}\ns_add_u32 s{sWo}, s{sWo}, {64*9216}")
    G.dma=dma
    G.setaddr=lambda A: setaddr_generic(A,3,2,G.XB)
    def reads(A,ks,buf):
        for xt in range(3):
            for h in range(2):
                A(f"ds_read_b64_tr_b16 {vr(G.fX+buf*12+4*xt+2*h,2)}, v{gAX+xt} offset:{(16*ks+4*h)*384}")
        for wt in range(2):
            for h in range(2):
                A(f"ds_read_b64_tr_b16 {vr(G.fW+buf*8+4*wt+2*h,2)}, v{gAW+wt} offset:{(16*ks+4*h)*256}")
    G.reads=reads
    gemm_mainloop(A,G,"g2")
    srd_from_karg(A,sXS,KA_B1,4608*2)
    A(f"""
s_lshl_b32 s{sT}, s{sB}, 7
s_lshr_b32 s{sT+1}, s{sW}, 1
s_lshl_b32 s{sT+1}, s{sT+1}, 6
s_add_u32 s{sA+3}, s{sT}, s{sT+1}
s_lshl_b32 s{sT}, s{sA+3}, 1
v_lshrrev_b32 v{t}, 5, v0
v_lshlrev_b32 v{t}, 3, v{t}
""")
    Bv=gFW
    for wt in range(2):
        for m in range(4):
            A(f"buffer_load_dwordx2 {vr(Bv+2*(4*wt+m),2)}, v{t}, s[{sXS}:{sXS+3}], s{sT} offen offset:{(32*wt+8*m)*2}")
    A("s_waitcnt vmcnt(0)")
    Bf=gFX
    for i in range(16):
        A(f"v_lshlrev_b32 v{Bf+2*i}, 16, v{Bv+i}\nv_and_b32 v{Bf+2*i+1}, 0xffff0000, v{Bv+i}")
    A(f"""
s_lshr_b32 s{sT}, s{sD}, 3
s_mul_i32 s{sOut}, s{sT}, {576*16}
s_mul_i32 s{sT}, s{sA}, {192*16}
s_add_u32 s{sOut}, s{sOut}, s{sT}
s_and_b32 s{sT}, s{sW}, 1
s_mul_i32 s{sT}, s{sT}, {96*16}
s_add_u32 s{sOut}, s{sOut}, s{sT}
s_add_u32 s{sOut}, s{sOut}, {WS_U}
v_and_b32 v{t}, 31, v0
v_lshlrev_b32 v{t}, 4, v{t}
v_lshrrev_b32 v{t+1}, 5, v0
v_mul_u32_u24 v{t+1}, {576*16}, v{t+1}
v_add_u32 v{t}, v{t}, v{t+1}
s_mov_b32 s{sT+4}, {hex(fbits(0.044715))}
s_mov_b32 s{sT+5}, {hex(fbits(-2.0*math.sqrt(2.0/math.pi)*math.log2(math.e)))}
""")
    x,y=t+2,t+3
    n=0
    for wt in range(2):
        for xt in range(3):
            a=G.acc+16*(wt*3+xt)
            for i in range(16):
                A(f"v_add_f32 v{a+i}, v{a+i}, v{Bf+16*wt+i}")
                A(f"v_mul_f32 v{x}, v{a+i}, v{a+i}")
                A(f"v_mul_f32 v{x}, s{sT+4}, v{x}")
                A(f"v_fma_f32 v{x}, v{x}, v{a+i}, v{a+i}")
                A(f"v_mul_f32 v{x}, s{sT+5}, v{x}")
                A(f"v_exp_f32 v{x}, v{x}")
                A(f"v_add_f32 v{x}, 1.0, v{x}")
                A(f"v_rcp_f32 v{x}, v{x}")
                A(f"v_mul_f32 v{a+i}, v{a+i}, v{x}")
            for j in range(2):
                d=gFW+4*(n%8); n+=1
                pack_swap(A,a,j,d)
                A(f"s_add_u32 s{sT}, s{sOut}, {((32*wt+16*j)//8)*576*16+xt*32*16}")
                A(f"buffer_store_dwordx4 {vr(d,4)}, v{t}, s[{sWS}:{sWS+3}], s{sT} offen {ST}")
    A("s_waitcnt vmcnt(0)")

def emit_g3(A):
    G=Gemm(); G.nXt=3; G.nWt=2; G.XB=24576; G.WB=16384; G.nst=18; G.D=10; G.fX=gFX; G.fW=gFW; G.acc=gACC; G.orient="XW"
    t=gT
    srd_from_ws(A,sXS,WS_U,576*576*16)
    srd_from_karg(A,sWSRC,KA_W2,4608*4096)
    A(f"""
v_lshrrev_b32 v{t}, 3, v0
v_lshlrev_b32 v{t}, 4, v{t}
v_and_b32 v{t+1}, 7, v0
v_lshrrev_b32 v{t+2}, 4, v0
v_xor_b32 v{t+3}, v{t+1}, v{t+2}
v_mul_u32_u24 v{t+4}, {576*16}, v{t+3}
v_add_u32 v{gDX}, v{t+4}, v{t}
v_xor_b32 v{t+3}, 4, v{t+3}
v_mul_u32_u24 v{t+4}, {576*16}, v{t+3}
v_add_u32 v{gDX+1}, v{t+4}, v{t}
v_lshrrev_b32 v{t}, 4, v0
v_lshlrev_b32 v{t+1}, 2, v{t}
v_lshlrev_b32 v{t}, 12, v{t}
v_and_b32 v{t+2}, 15, v0
v_xor_b32 v{t+2}, v{t+2}, v{t+1}
v_lshl_add_u32 v{gDW}, v{t+2}, 4, v{t}
s_mul_i32 s{sXo}, s{sC}, {144*576*16}
s_mul_i32 s{sT}, s{sA}, {192*16}
s_add_u32 s{sXo}, s{sXo}, s{sT}
s_mul_i32 s{sT}, s{sW}, {48*16}
s_add_u32 s{sXo}, s{sXo}, s{sT}
s_mul_i32 s{sWo}, s{sC}, {1152*4096}
s_lshl_b32 s{sT}, s{sW}, 16
s_add_u32 s{sWo}, s{sWo}, s{sT}
s_lshl_b32 s{sT}, s{sB}, 8
s_add_u32 s{sWo}, s{sWo}, s{sT}
s_and_b32 s{sT}, s{sW}, 1
s_mul_i32 s{sT}, s{sT}, 96
""")
    x_contig_addr(A,gAXc,sT,t)
    A(f"s_lshr_b32 s{sT}, s{sW}, 1\ns_lshl_b32 s{sT}, s{sT}, 3")
    w_strided_addr(A,gAWc,2,256,sT,"r2",t)
    def dma(A):
        for j in range(6):
            A(f"s_mul_i32 s{sT+2}, s{sW}, 6144\ns_add_u32 s{sT+2}, s{sT+2}, s{sWr}\ns_add_u32 m0, s{sT+2}, {j*1024}")
            A(f"s_add_u32 s{sT+3}, s{sXo}, {j*8*16}")
            A(f"buffer_load_dwordx4 v{gDX+(j%2)}, s[{sXS}:{sXS+3}], s{sT+3} offen sc1 lds")
        for j in range(4):
            A(f"s_lshl_b32 s{sT+2}, s{sW}, 12\ns_add_u32 s{sT+2}, s{sT+2}, s{sWr}\ns_add_u32 m0, s{sT+2}, {24576+j*1024}")
            A(f"s_add_u32 s{sT+3}, s{sWo}, {j*4*4096}")
            A(f"buffer_load_dwordx4 v{gDW}, s[{sWSRC}:{sWSRC+3}], s{sT+3} offen lds")
        A(f"s_add_u32 s{sXo}, s{sXo}, {8*576*16}\ns_add_u32 s{sWo}, s{sWo}, {64*4096}")
    G.dma=dma
    G.setaddr=lambda A: setaddr_generic(A,4,2,G.XB)
    def reads(A,ks,buf):
        for xt in range(3):
            A(f"ds_read_b128 {vr(G.fX+buf*12+4*xt,4)}, v{gAX+ks} offset:{xt*4096}")
        for wt in range(2):
            for h in range(2):
                A(f"ds_read_b64_tr_b16 {vr(G.fW+buf*8+4*wt+2*h,2)}, v{gAW+wt} offset:{(16*ks+4*h)*256}")
    G.reads=reads
    gemm_mainloop(A,G,"g3")
    srd_from_karg(A,sXS,KA_B2,2048*2)
    A(f"""
s_lshl_b32 s{sT}, s{sB}, 7
s_lshr_b32 s{sT+1}, s{sW}, 1
s_lshl_b32 s{sT+1}, s{sT+1}, 6
s_add_u32 s{sD}, s{sT}, s{sT+1}
s_lshl_b32 s{sT}, s{sD}, 1
v_and_b32 v{t}, 31, v0
v_lshlrev_b32 v{t}, 1, v{t}
buffer_load_ushort v{t+4}, v{t}, s[{sXS}:{sXS+3}], s{sT} offen
buffer_load_ushort v{t+5}, v{t}, s[{sXS}:{sXS+3}], s{sT} offen offset:64
s_lshr_b32 s{sT}, s{sD}, 4
s_mul_i32 s{sOut}, s{sT}, {36*1024}
s_mul_i32 s{sT}, s{sA}, {12*1024}
s_add_u32 s{sOut}, s{sOut}, s{sT}
s_and_b32 s{sT}, s{sW}, 1
s_mul_i32 s{sT}, s{sT}, {6*1024}
s_add_u32 s{sOut}, s{sOut}, s{sT}
s_add_u32 s{sT}, s{sC}, 8
s_mul_i32 s{sT}, s{sT}, {P_SLAB}
s_add_u32 s{sOut}, s{sOut}, s{sT}
s_add_u32 s{sOut}, s{sOut}, {WS_P}
v_and_b32 v{t}, 15, v0
v_lshlrev_b32 v{t}, 4, v{t}
v_lshrrev_b32 v{t+1}, 5, v0
v_lshl_add_u32 v{t}, v{t+1}, 8, v{t}
v_bfe_u32 v{t+1}, v0, 4, 1
v_mul_u32_u24 v{t+1}, {36*1024}, v{t+1}
v_add_u32 v{t}, v{t}, v{t+1}
s_cmp_eq_u32 s{sC}, 0
s_cselect_b32 s{sT+6}, -1, 0
s_waitcnt vmcnt(0)
v_lshlrev_b32 v{t+4}, 16, v{t+4}
v_lshlrev_b32 v{t+5}, 16, v{t+5}
v_and_b32 v{t+4}, s{sT+6}, v{t+4}
v_and_b32 v{t+5}, s{sT+6}, v{t+5}
""")
    for wt in range(2):
        for xt in range(3):
            a=G.acc+16*(wt*3+xt)
            for i in range(16): A(f"v_add_f32 v{a+i}, v{a+i}, v{t+4+wt}")
            for m in range(4):
                A(f"s_add_u32 s{sT}, s{sOut}, {wt*2*36*1024+(2*xt+(m>>1))*1024+(m&1)*512}")
                A(f"buffer_store_dwordx4 {vr(a+4*m,4)}, v{t}, s[{sWS}:{sWS+3}], s{sT} offen {ST}")
    A("s_waitcnt vmcnt(0)")

sP=60
def wg_wait_cnt(A, off_sgpr_or_const, target, label="L_abortw"):
    done=A.uid("L_wd"); lp=A.uid("L_wp")
    A(f"s_cmp_lg_u32 s{sW}, 0\ns_cbranch_scc1 {done}")
    if isinstance(off_sgpr_or_const,int): A(f"s_mov_b32 s{sP}, {off_sgpr_or_const}")
    else: A(f"s_mov_b32 s{sP}, {off_sgpr_or_const}")
    A(f"s_mov_b32 s{sP+1}, 0\n{lp}:")
    A(f"buffer_load_dword v1, off, s[{sWS}:{sWS+3}], s{sP} sc1\ns_waitcnt vmcnt(0)\nv_readfirstlane_b32 s{sP+2}, v1")
    A(f"s_cmp_ge_u32 s{sP+2}, {target}\ns_cbranch_scc1 {done}")
    A(f"s_add_u32 s{sP+1}, s{sP+1}, 1\ns_cmp_gt_u32 s{sP+1}, 4000000\ns_cbranch_scc1 {label}\ns_sleep 4\ns_branch {lp}")
    A(f"{done}:\ns_barrier")
def wg_signal(A, off_expr):
    done=A.uid("L_sg")
    A(f"s_barrier\ns_cmp_lg_u32 s{sW}, 0\ns_cbranch_scc1 {done}")
    A(f"s_mov_b32 s{sP}, {off_expr}\nv_mov_b32 v1, 1\ns_mov_b64 exec, 1\nbuffer_atomic_add v1, off, s[{sWS}:{sWS+3}], s{sP}\ns_mov_b64 exec, -1")
    A(f"{done}:")
def wave_signal(A, off_expr):
    A(f"s_mov_b32 s{sP}, {off_expr}\nv_mov_b32 v1, 1\ns_mov_b64 exec, 1\nbuffer_atomic_add v1, off, s[{sWS}:{sWS+3}], s{sP}\ns_mov_b64 exec, -1")

def wg_wait_multi(A, base_expr, n, target_expr, label="L_abortw"):
    done=A.uid("L_wd"); lp=A.uid("L_wp")
    A(f"s_cmp_lg_u32 s{sW}, 0\ns_cbranch_scc1 {done}")
    A(f"s_mov_b32 s{sP}, {base_expr}\ns_mov_b32 s{sP+3}, {target_expr}\ns_mov_b32 s{sP+1}, 0")
    A(f"v_min_u32 v1, {n-1}, v0\nv_lshlrev_b32 v1, 7, v1\n{lp}:")
    A(f"buffer_load_dword v250, v1, s[{sWS}:{sWS+3}], s{sP} offen sc1\ns_waitcnt vmcnt(0)")
    A(f"v_cmp_gt_u32 vcc, s{sP+3}, v250\ns_cbranch_vccz {done}")
    A(f"s_add_u32 s{sP+1}, s{sP+1}, 1\ns_cmp_gt_u32 s{sP+1}, 4000000\ns_cbranch_scc1 {label}\ns_sleep 4\ns_branch {lp}")
    A(f"{done}:\ns_barrier")
```

```python
import sys, os; sys.path.insert(0,'gen')
from asmlib import *
from layout import *
import role, chain3 as chain, workers as Wk, p4
NAME="parallel_sum__memory_aug_recurrent_mem_tr__mixer_token_mlp__prompt"
sT=Wk.sT; sA,sB,sC,sD=Wk.sA,Wk.sB,Wk.sC,Wk.sD; sW=Wk.sW; sRank=Wk.sRank; sWS=Wk.sWS
sTask=Wk.sTask
sPrev=47; sSeg=48; sKc=49
NW=224; NG=7
def build(chopt=""):
    for kv in chopt.split(";"):
        if "=" in kv:
            k,v=kv.split("="); setattr(chain.OPT,k,eval(v))
    chain.OPT.fused=True
    A=Asm()
    role.emit_entry(A)
    A(f"s_cmp_ge_u32 s5, 32\ns_cbranch_scc1 L_exit\ns_cmp_eq_u32 s4, 0\ns_cbranch_scc0 L_work\ns_mov_b32 s{chain.sH}, s5")
    chain.emit_chain(A,nsteps=64,stamps=False)
    A("s_endpgm\nL_work:")
    A(f"s_sub_u32 s{sRank}, s4, 1\ns_lshl_b32 s{sRank}, s{sRank}, 5\ns_add_u32 s{sRank}, s{sRank}, s5")
    Wk.emit_worker_setup(A)
    Wk.emit_ln(A,NW,fused=True)
    A("L_next:")
    A(f"""
s_barrier
s_cmp_lg_u32 s{sW}, 0
s_cbranch_scc1 L_tk2
s_mov_b32 s60, {cnt(C_QUEUE)}
v_mov_b32 v1, 1
s_mov_b64 exec, 1
buffer_atomic_add v1, off, s[{sWS}:{sWS+3}], s60 sc0
s_waitcnt vmcnt(0)
v_mov_b32 v2, 160000
ds_write_b32 v2, v1
s_waitcnt lgkmcnt(0)
s_mov_b64 exec, -1
L_tk2:
s_barrier
v_mov_b32 v2, 160000
ds_read_b32 v1, v2
s_waitcnt lgkmcnt(0)
v_readfirstlane_b32 s{sTask}, v1
s_cmp_lt_u32 s{sTask}, 512
s_cbranch_scc1 L_t_kv
s_cmp_lt_u32 s{sTask}, 620
s_cbranch_scc1 L_t_g2
s_cmp_lt_u32 s{sTask}, 876
s_cbranch_scc1 L_t_q
s_cmp_lt_u32 s{sTask}, 1068
s_cbranch_scc1 L_t_g3
s_branch L_p4
L_t_q:
s_sub_u32 s{sT}, s{sTask}, 620
s_mov_b32 s{sA}, 0
s_lshr_b32 s{sB}, s{sT}, 4
s_and_b32 s{sC}, s{sT}, 15
s_branch L_t_g1
L_t_kv:
s_lshr_b32 s{sB}, s{sTask}, 5
s_bfe_u32 s{sA}, s{sTask}, 0x10004
s_add_u32 s{sA}, s{sA}, 1
s_and_b32 s{sC}, s{sTask}, 15
L_t_g1:
s_lshl_b32 s{sT}, s{sB}, 7
s_add_u32 s{sT}, s{sT}, {cnt(C_LN)}
""")
    Wk.wg_wait_cnt(A,f"s{sT}",128)
    Wk.emit_g1(A)
    A(f"s_cmp_eq_u32 s{sA}, 0\ns_mov_b32 s{sT}, {cnt(C_KV)}\ns_cselect_b32 s{sT}, {cnt(C_Q)}, s{sT}\ns_lshl_b32 s{sT+1}, s{sB}, 7\ns_add_u32 s{sT}, s{sT}, s{sT+1}")
    Wk.wg_signal(A,f"s{sT}")
    A("s_branch L_next\nL_t_g2:")
    A(f"s_sub_u32 s{sB}, s{sTask}, 512\ns_mul_i32 s{sA}, s{sB}, 1821\ns_lshr_b32 s{sA}, s{sA}, 16\ns_mul_i32 s{sT}, s{sA}, 36\ns_sub_u32 s{sB}, s{sB}, s{sT}")
    Wk.wg_wait_multi(A,cnt(C_LN),16,128)
    Wk.emit_g2(A)
    A(f"s_mul_i32 s{sT}, s{sB}, 7282\ns_lshr_b32 s{sT}, s{sT}, 16\ns_lshl_b32 s{sT+1}, s{sA}, 2\ns_add_u32 s{sT}, s{sT}, s{sT+1}\ns_lshl_b32 s{sT}, s{sT}, 7\ns_add_u32 s{sT}, s{sT}, {cnt(C_U)}")
    for x in range(36): assert (x*7282)>>16==x//9
    Wk.wg_signal(A,f"s{sT}")
    A("s_branch L_next\nL_t_g3:")
    A(f"s_sub_u32 s{sT}, s{sTask}, 876\ns_and_b32 s{sC}, s{sT}, 3\ns_bfe_u32 s{sB}, s{sT}, 0x40002\ns_lshr_b32 s{sA}, s{sT}, 6")
    A(f"s_lshl_b32 s{sT}, s{sA}, 2\ns_add_u32 s{sT}, s{sT}, s{sC}\ns_lshl_b32 s{sT}, s{sT}, 7\ns_add_u32 s{sT}, s{sT}, {cnt(C_U)}")
    Wk.wg_wait_cnt(A,f"s{sT}",9)
    Wk.emit_g3(A)
    A(f"s_lshl_b32 s{sT}, s{sB}, 7\ns_add_u32 s{sT}, s{sT}, {cnt(C_Y)}")
    Wk.wg_signal(A,f"s{sT}")
    A("s_branch L_next")
    A("L_p4:")
    A(f"s_and_b32 s{sA}, s{sRank}, 7\ns_bfe_u32 s{sB}, s{sRank}, 0x20003\ns_lshr_b32 s{sSeg}, s{sRank}, 5\ns_mov_b32 s{sPrev}, -1")
    p4.emit_p4_setup(A)
    Wk.srd_from_karg(A,Wk.sXS,KA_X,2048*1152); Wk.srd_from_karg(A,Wk.sWSRC,KA_OUT,2048*1152)
    def combine():
        skip=A.uid("L_cs")
        A(f"s_cmp_lt_i32 s{sPrev}, 0\ns_cbranch_scc1 {skip}")
        A(f"s_lshl_b32 s{sT}, s{sPrev}, 7\ns_add_u32 s{sT}, s{sT}, {cnt(C_SEG)}")
        Wk.wg_wait_cnt(A,f"s{sT}",32)
        A(f"s_lshr_b32 s{sT}, s{sPrev}, 2\ns_lshl_b32 s{sT}, s{sT}, 7\ns_add_u32 s{sT}, s{sT}, {cnt(C_Y)}")
        Wk.wg_wait_cnt(A,f"s{sT}",12)
        A(f"s_lshl_b32 s{sT+8}, s{sA}, 2\ns_add_u32 s{sT+8}, s{sT+8}, s{sW}\ns_cmp_ge_u32 s{sT+8}, 18\ns_cbranch_scc1 {skip}")
        A(f"s_cmp_ge_u32 s{sT+8}, 9\ns_cselect_b32 s{sT+9}, 1, 0\ns_mul_i32 s{sT+10}, s{sT+9}, 9\ns_sub_u32 s{sT+8}, s{sT+8}, s{sT+10}")
        A(f"s_lshl_b32 s{sC}, s{sPrev}, 1\ns_add_u32 s{sC}, s{sC}, s{sT+9}\ns_mul_i32 s{sD}, s{sB}, 9\ns_add_u32 s{sD}, s{sD}, s{sT+8}")
        p4.emit_combine_tile(A)
        A(f"{skip}:")
    A("L_p4loop:")
    combine()
    A(f"s_lshr_b32 s{sT}, s{sSeg}, 2\ns_lshl_b32 s{sT}, s{sT}, 7\ns_add_u32 s{sT}, s{sT}, {cnt(C_Q)}")
    Wk.wg_wait_cnt(A,f"s{sT}",16)
    A(f"s_lshr_b32 s{sT}, s{sSeg}, 2\ns_lshl_b32 s{sT}, s{sT}, 7\ns_add_u32 s{sT}, s{sT}, {cnt(C_KV)}")
    Wk.wg_wait_cnt(A,f"s{sT}",32)
    A(f"s_mov_b32 s{sC}, s{sSeg}")
    def between(A):
        A(f"s_lshl_b32 s68, s{sA}, 9\ns_add_u32 s68, s68, {cnt(C_PROG)}\ns_add_u32 s69, s{sSeg}, 1")
        Wk.wg_wait_multi(A,"s68",4,"s69")
    p4.emit_p4_segment(A,0,between)
    A("s_waitcnt vmcnt(0)")
    A(f"s_lshl_b32 s{sT}, s{sSeg}, 7\ns_add_u32 s{sT}, s{sT}, {cnt(C_SEG)}")
    Wk.wg_signal(A,f"s{sT}")
    A(f"s_mov_b32 s{sPrev}, s{sSeg}\ns_add_u32 s{sSeg}, s{sSeg}, {NG}\ns_cmp_lt_u32 s{sSeg}, 64\ns_nop 7\ns_cbranch_scc1 L_p4loop")
    combine()
    A("L_abortw:\ns_waitcnt vmcnt(0)\nL_exit:\ns_endpgm")
    lines=fix_hazards(A.lines,True)
    hdr=open('cdna_kernels/'+NAME+'.s.ref').read().split("; Override")[0]
    name=NAME+"_kernel"
    t=hdr+f"; @launch kernel={name} grid=(256,1,1) block=(256,1,1) lds=163840\n"
    t+=f'.amdgcn_target "amdgcn-amd-amdhsa--gfx950"\n.text\n.globl {name}\n.p2align 8\n.type {name},@function\n{name}:\n'
    t+="\n".join(lines)+"\n"
    t+=f""".section .rodata,"a"
.p2align 6
.amdhsa_kernel {name}
  .amdhsa_next_free_vgpr 512
  .amdhsa_next_free_sgpr 102
  .amdhsa_accum_offset 256
  .amdhsa_group_segment_fixed_size 0
  .amdhsa_kernarg_size 120
  .amdhsa_user_sgpr_count 2
  .amdhsa_user_sgpr_kernarg_segment_ptr 1
  .amdhsa_system_sgpr_workgroup_id_x 1
.end_amdhsa_kernel
"""
    return t
if __name__=="__main__":
    opt=os.environ.get("CHOPT","nred=2;red_gap=40;npoll=3;poll_gap=25;d_gat=60;d_red=[0,5,0,30,30];d_g1=[30,25];red_early=False;warmk=[7,8,9,10]")
    open(sys.argv[1],"w").write(build(opt))
```

```python
import re

class Asm:
    def __init__(self):
        self.lines = []
        self._uid = 0
    def __call__(self, s):
        for l in s.split("\n"):
            l = l.strip()
            if l: self.lines.append(l)
        return self
    def extend(self, lst):
        for x in lst: self(x)
    def uid(self, p="L"):
        self._uid += 1
        return f"{p}_{self._uid}"
    def text(self): return "\n".join(self.lines) + "\n"

_reg_re = re.compile(r"^(-|\|)?(abs\()?([vas])(?:(\d+)|\[(\d+):(\d+)\])\)?\|?$")
def regs_of(op):
    op = op.strip()
    if op in ("vcc",): return [("s",106),("s",107)]
    if op == "vcc_lo": return [("s",106)]
    if op == "vcc_hi": return [("s",107)]
    if op == "exec": return [("s",126),("s",127)]
    if op == "exec_lo": return [("s",126)]
    if op == "exec_hi": return [("s",127)]
    if op == "m0": return [("s",124)]
    m = _reg_re.match(op)
    if not m: return []
    k = m.group(3)
    if m.group(4) is not None: return [(k,int(m.group(4)))]
    return [(k,i) for i in range(int(m.group(5)), int(m.group(6))+1)]

def split_ops(rest):
    out=[];d=0;cur=""
    for ch in rest:
        if ch in "[(": d+=1
        if ch in "])": d-=1
        if ch=="," and d==0: out.append(cur.strip());cur=""
        else: cur+=ch
    if cur.strip(): out.append(cur.strip())
    return out

TRANS = ("v_exp_f32","v_log_f32","v_rcp_f32","v_rsq_f32","v_sqrt_f32","v_sin_f32","v_cos_f32","v_rcp_iflag_f32")
def mfma_passes(mn):
    if "32x32x16" in mn or "32x32x8" in mn or "smfmac_f32_32x32x32" in mn: return 8
    if "16x16x32" in mn or "16x16x16" in mn or "16x16x64" in mn: return 4
    raise ValueError("unknown mfma "+mn)

class Ins:
    __slots__=("text","mn","cls","dst","src","srcC","idx","passes","dpp","states","storedata","sgpr_const","is_label","is_branch")
def parse(line):
    I=Ins(); I.text=line; I.dst=[]; I.src=[]; I.srcC=[]; I.passes=0; I.dpp=False; I.states=1; I.storedata=[]; I.cls="other"; I.is_label=False; I.is_branch=False; I.mn=""
    l=line.split(";")[0].strip()
    if not l: I.states=0; I.cls="none"; return I
    if l.endswith(":"): I.is_label=True; I.states=0; I.cls="label"; return I
    if l.startswith("."): I.states=0; I.cls="none"; return I
    parts=l.split(None,1); mn=parts[0]; I.mn=mn
    rest=parts[1] if len(parts)>1 else ""
    ops=split_ops(rest)
    if ops:
        last=ops[-1].split()
        mods=last[1:]; ops[-1]=last[0]
    else: mods=[]
    modstr=" ".join(mods)
    R=[regs_of(o) for o in ops]
    if mn=="s_nop": I.states=int(ops[0],0)+1; I.cls="nop"; return I
    if mn.startswith("s_cbranch") or mn=="s_branch" or mn in("s_endpgm","s_setpc_b64","s_swappc_b64"): I.is_branch=True; I.cls="salu"; return I
    if mn.startswith("v_mfma"):
        I.cls="mfma"; I.passes=mfma_passes(mn); I.dst=R[0]; I.src=R[1]+R[2]; I.srcC=R[3]; return I
    if mn.startswith("v_smfmac"):
        I.cls="mfma"; I.passes=mfma_passes(mn); I.dst=R[0]; I.src=R[1]+R[2]+R[3]; I.srcC=R[0]; return I
    if mn.startswith("v_"):
        I.cls="valu"
        if any(m.startswith(("row_","quad_perm","wave_")) for m in mods) or mn.endswith("_dpp"): I.dpp=True
        base=mn.replace("_e32","").replace("_e64","").replace("_dpp","")
        if base.startswith("v_cmp"):
            I.dst=R[0]; I.src=sum(R[1:],[])
            if base.startswith("v_cmpx"): I.dst=I.dst+[("s",126),("s",127)]
        elif base in("v_readfirstlane_b32","v_readlane_b32"):
            I.dst=R[0]; I.src=sum(R[1:],[]); I.cls="valu_rl"
        elif base.startswith("v_permlane") and "swap" in base:
            I.dst=R[0]+R[1]; I.src=R[0]+R[1]; I.cls="valu_perm"
        elif base in("v_add_co_u32","v_sub_co_u32","v_subrev_co_u32"):
            I.dst=R[0]+R[1]; I.src=sum(R[2:],[])
        elif base in("v_addc_co_u32","v_subb_co_u32"):
            I.dst=R[0]+R[1]; I.src=sum(R[2:],[])
        elif base in ("v_fmac_f32","v_dot2c_f32_bf16","v_pk_fmac_f16","v_writelane_b32"):
            I.dst=R[0]; I.src=sum(R,[])
        elif base=="v_cndmask_b32" and len(ops)==3:
            I.dst=R[0]; I.src=R[1]+R[2]+[("s",106),("s",107)]
        elif base=="v_accvgpr_write_b32" or base=="v_accvgpr_read_b32" or base=="v_accvgpr_mov_b32":
            I.dst=R[0]; I.src=R[1]
        else:
            I.dst=R[0]; I.src=sum(R[1:],[])
            if I.dpp: I.src=I.src+R[0]
        if base in TRANS: I.cls="trans" if I.cls=="valu" else I.cls
        return I
    if mn.startswith("ds_"):
        I.cls="ds"
        if mn.startswith(("ds_read","ds_bpermute","ds_permute","ds_swizzle")):
            I.dst=R[0]; I.src=sum(R[1:],[])
        else:
            I.src=sum(R,[])
        return I
    if mn.startswith("buffer_") :
        I.cls="vmem"
        if mn in("buffer_wbl2","buffer_inv"): return I
        lds = "lds" in mods
        if mn.startswith("buffer_load"):
            if lds: I.src=sum(R,[])+[("s",124)]; I.cls="vmem_lds"
            else: I.dst=R[0]; I.src=sum(R[1:],[])
        elif mn.startswith("buffer_store"):
            I.src=sum(R,[])
            if "x3" in mn or "x4" in mn: I.storedata=R[0]
        elif mn.startswith("buffer_atomic"):
            I.src=sum(R,[])
            if "sc0" in mods: I.dst=R[0]
        return I
    if mn.startswith("global_"):
        I.cls="vmem"
        if mn.startswith("global_load_lds"):
            I.src=sum(R,[])+[("s",124)]; I.cls="vmem_lds"
        elif mn.startswith("global_load"):
            I.dst=R[0]; I.src=sum(R[1:],[])
        elif mn.startswith("global_store"):
            I.src=sum(R,[])
            if "x3" in mn or "x4" in mn: I.storedata=R[1]
        elif mn.startswith("global_atomic"):
            if "sc0" in mods: I.dst=R[0]; I.src=sum(R[1:],[])
            else: I.src=sum(R,[])
        return I
    if mn.startswith("s_"):
        I.cls="salu"
        if mn.startswith(("s_cmp","s_bitcmp","s_waitcnt","s_barrier","s_sleep","s_setprio","s_setreg","s_sendmsg","s_endpgm")):
            I.src=sum(R,[])
        elif mn.startswith(("s_load","s_buffer_load","s_memtime","s_memrealtime","s_getreg")):
            I.cls="smem"; I.dst=R[0]; I.src=sum(R[1:],[])
        else:
            I.dst=R[0] if R else []; I.src=sum(R[1:],[])
            if "saveexec" in mn: I.dst=I.dst+[("s",126),("s",127)]
        return I
    raise ValueError("cannot parse: "+line)

NEED_D_VALU={2:5,4:8,8:12,16:20}
NEED_D_AB={2:5,4:8,8:12,16:20}
NEED_D_COVER={2:4,4:6,8:10,16:18}
NEED_C_WAR={2:1,4:3,8:7,16:15}

def lint_offsets(lines):
    for line in lines:
        l=line.split(";")[0]
        m=re.search(r"offset:(-?\d+)",l)
        if not m: continue
        o=int(m.group(1)); mn=l.split()[0]
        if mn.startswith("buffer_"): assert 0<=o<=4095, line
        elif mn.startswith("ds_"): assert 0<=o<=65535, line
        elif mn.startswith("global_"): assert -4096<=o<=4095, line

def fix_hazards(lines, verbose=False):
    lint_offsets(lines)
    out=[]
    pos=0
    lastw={}
    lastC={}
    laststore={}
    snaps={}
    seen=set()
    ninserted=0
    KEEP=24
    def snapshot():
        w={r:[(pos-p,c,pp,rg) for (p,c,pp,rg) in v if pos-p<=KEEP] for r,v in lastw.items()}
        w={r:v for r,v in w.items() if v}
        c={r:[(pos-p,pp) for (p,pp) in v if pos-p<=KEEP] for r,v in lastC.items()}
        c={r:v for r,v in c.items() if v}
        st={r:pos-p for r,p in laststore.items() if pos-p<=KEEP}
        return (w,c,st)
    dead=False
    lastm=None
    for line in lines:
        I=parse(line)
        if I.is_label:
            name=line.split(";")[0].strip()[:-1]
            seen.add(name)
            lastm=None
            if dead:
                lastw={}; lastC={}; laststore={}; dead=False
            for (w,c,st) in snaps.get(name,[]):
                for r,v in w.items():
                    lastw.setdefault(r,[]).extend([(pos-a,cl,pp,rg) for (a,cl,pp,rg) in v])
                for r,v in c.items():
                    lastC.setdefault(r,[]).extend([(pos-a,pp) for (a,pp) in v])
                for r,a in st.items():
                    laststore[r]=max(laststore.get(r,-10**9),pos-a)
            out.append(line); continue
        if I.states==0:
            out.append(line); continue
        if I.cls=="mfma" and lastm is not None:
            pos=max(pos,lastm[0]+lastm[1])
        need=0
        def req(ppos, n):
            nonlocal need
            d=pos-ppos-1
            if d<n: need=max(need,n-d)
        isvalu = I.cls in("valu","trans","valu_rl","valu_perm")
        for r in I.src+I.srcC:
          for (ppos,pcls,pp,prange) in lastw.get(r,[]):
            pvalu = pcls in("valu","trans","valu_rl","valu_perm")
            if r[0] in "va":
                if I.cls=="mfma":
                    if pvalu: req(ppos,2)
                    elif pcls=="mfma":
                        if r in I.srcC and r not in I.src:
                            if tuple(prange)==tuple(I.srcC) and pp==I.passes: pass
                            else: req(ppos,NEED_D_COVER[pp])
                        else: req(ppos,NEED_D_AB[pp])
                else:
                    if pcls=="mfma": req(ppos,NEED_D_VALU[pp])
                    if pvalu:
                        if I.dpp or I.cls=="valu_perm": req(ppos,2)
                        if I.cls=="valu_rl": req(ppos,1)
                        if pcls=="trans" and isvalu and I.cls!="trans": req(ppos,1)
                        if pcls=="trans" and not isvalu: req(ppos,1)
            else:
                if pvalu:
                    if isvalu: req(ppos, 4 if (I.cls=="valu_rl" and I.mn.startswith("v_readlane")) else 2)
                    if I.cls in("vmem","vmem_lds"): req(ppos,5)
                    if I.cls in ("salu","smem"): req(ppos,1)
                elif pcls=="salu":
                    if r==("s",124) and I.cls in("vmem_lds",): req(ppos,1)
        for r in I.dst:
            for (ppos,pcls,pp,prange) in lastw.get(r,[]):
                if pcls=="mfma" and r[0] in "va":
                    if I.cls=="mfma":
                        if not (tuple(prange)==tuple(I.dst) and pp==I.passes): req(ppos,NEED_D_COVER[pp])
                    else: req(ppos,NEED_D_VALU[pp])
            for (cp,cpp) in lastC.get(r,[]):
                if isvalu: req(cp,NEED_C_WAR[cpp])
            s=laststore.get(r)
            if s is not None and I.cls!="salu": req(s,2)
        if need>0:
            n=need
            while n>0:
                k=min(n,16); out.append(f"s_nop {k-1}"); n-=k
            pos+=need; ninserted+=need
        out.append(line)
        if I.cls=="mfma": lastm=(pos,I.passes)
        for r in I.dst: lastw[r]=[(pos,I.cls,I.passes,I.dst)]
        if I.cls=="mfma":
            for r in I.srcC: lastC[r]=[(pos,I.passes)]
        for r in I.storedata: laststore[r]=pos
        pos+=I.states
        if I.is_branch and I.mn!="s_endpgm":
            tgt=line.split(";")[0].split()[1].strip()
            if tgt not in seen:
                snaps.setdefault(tgt,[]).append(snapshot())
            if I.mn=="s_branch": dead=True
        if I.mn=="s_endpgm": dead=True
    if verbose: print("hazard padding inserted states:",ninserted)
    return out

def kernel_text(name, body_lines, launch_lines, header_comment="", vgpr=512, sgpr=102, accum=256):
    t = header_comment
    for l in launch_lines: t += l + "\n"
    t += '.amdgcn_target "amdgcn-amd-amdhsa--gfx950"\n.text\n'
    return t

import subprocess, tempfile, os
def inst_sizes(lines):
    d=tempfile.mkdtemp()
    src='.amdgcn_target "amdgcn-amd-amdhsa--gfx950"\n.text\nk:\n'+"\n".join(lines)+"\n"
    open(d+"/a.s","w").write(src)
    r=subprocess.run(["clang","-x","assembler","-target","amdgcn-amd-amdhsa","-mcpu=gfx950","-c",d+"/a.s","-o",d+"/a.o"],capture_output=True,text=True)
    assert r.returncode==0, r.stderr[:2000]
    o=subprocess.run(["llvm-objdump","-d","--mcpu=gfx950",d+"/a.o"],capture_output=True,text=True).stdout
    sz=[]
    for l in o.split("\n"):
        m=re.search(r"//\s+([0-9A-F]{12}):\s+((?:[0-9A-F]{8}\s*)+)$",l)
        if m: sz.append(4*len(m.group(2).split()))
    out=[];k=0
    for l in lines:
        I=parse(l)
        if I.states==0: out.append(None)
        else: out.append(sz[k]); k+=1
    assert k==len(sz),(k,len(sz))
    return out

def align_runs(lines, minrun=3, start_off=0, verbose=False):
    sz=inst_sizes(lines)
    n=len(lines); out=[]; off=start_off; ins=0
    i=0
    idx=[j for j in range(n) if sz[j] is not None]
    run={}
    cnt=0
    for j in reversed(idx):
        cnt = cnt+1 if sz[j]==8 else 0
        run[j]=cnt
    prev8=False
    for j,l in enumerate(lines):
        if sz[j] is None:
            out.append(l); continue
        if sz[j]==8 and not prev8 and run[j]>=minrun and off%8==4:
            out.append("s_nop 0"); off+=4; ins+=1
        out.append(l); off+=sz[j]
        prev8=(sz[j]==8)
    if verbose: print("alignment nops inserted:",ins)
    return out
```

```python
from asmlib import *
from layout import *
import struct, math
def fbits(x): return struct.unpack("<I",struct.pack("<f",x))[0]

vLane=0; vL16M=1; vTR=2; vIdx=3; vWo=4
vH1st=7; vRed=8; vPub=9; vKx=10; vVx=11; vKm=12; vVm=13; vQw=14; vTag=15
vSel=16
vK=20
vV=36
aQ=44; aK=48; aV=52
vA=56
vT=72
def Wq(s): return f"a[{8*s}:{8*s+7}]"
def Wk(s):
    if s<14: return f"a[{144+8*s}:{144+8*s+7}]"
    return f"v[{80+8*(s-14)}:{80+8*(s-14)+7}]"
def Wv(s): return f"v[{112+8*s}:{112+8*s+7}]"
def Wreg(mat,s,q):
    if mat==0: return f"a[{8*s+2*q}:{8*s+2*q+1}]"
    if mat==1:
        if s<14: return f"a[{144+8*s+2*q}:{144+8*s+2*q+1}]"
        return f"v[{80+8*(s-14)+2*q}:{80+8*(s-14)+2*q+1}]"
    return f"v[{112+8*s+2*q}:{112+8*s+2*q+1}]"
def vr(a,n): return f"v[{a}:{a+n-1}]"

sH=10; sW=11; sWS=12; sWT=16
sStep=20
sKXo=21; sVTo=22; sKMo=23; sVMo=24; sH2pub=25; sH2gat=26; sH2rst=27; sH1=28; sH2=29
sTask=30; sHasTask=31; sTagT=32
sTmp=33
sDbg=40; sKarg=42
sRetry=44; sRetry2=45
sMaskF=46
sC=47
sMaskLo=48; sMaskPub=50; sMaskG=52
sWarmK=54; sWarmV=55
sT0=56
WSR=f"s[{sWS}:{sWS+3}]"
QOFF=L_QT-L_MEMT; KOFF=L_KT-L_MEMT; SOFF=L_ST-L_MEMT

class Opt:
    d_red=[0,0,0,0,0]
    d_gat=0
    warm=True
    prewarm=False
    codewarm=0
    commwave=False
    d_g2=[70,10]
    pd=2
    fused=False
    gmode='split'
    g1wave=2
    kvmode='burst'
    spec1=False
    hs=False
    warmk=[7,7,7,7]
    kvx=3
    warmflag=''
    warmdist=2
    fixkv=False
    fixkm=False
    kmflag='sc1'
    steplog=False
    nred=2
    red_gap=24
    ki=[0,2,6]
    d_g1=[80,40]
    npoll=3
    poll_gap=16
    red_early=True
    clk='s_memtime'
OPT=Opt()
def KVS(): return 8192 if OPT.hs else 262144
def KMS(): return 2048 if OPT.hs else 65536

def emit_setup(A, stamps):
    A(f"""
s_mov_b32 s{sKarg}, s0
s_mov_b32 s{sKarg+1}, s1
s_load_dwordx2 s[{sDbg}:{sDbg+1}], s[0:1], {KA_DBG}
s_load_dwordx2 s[{sWS}:{sWS+1}], s[0:1], {KA_WS}
v_lshrrev_b32 v{vT}, 6, v0
v_and_b32 v{vLane}, 63, v0
v_readfirstlane_b32 s{sW}, v{vT}
s_mov_b32 s{sWS+2}, {WS_SIZE}
s_mov_b32 s{sWS+3}, 0x20000
s_mov_b32 s{sWT+3}, 0x20000
s_mov_b32 s{sH1}, {WS_H1}
s_mov_b32 s{sH2}, {WS_H2}
s_mov_b32 s{sMaskLo}, 0x00ff00ff
s_mov_b32 s{sMaskLo+1}, 0x00ff00ff
s_mov_b32 s{sMaskPub}, 0x00ff00ff
s_mov_b32 s{sMaskPub+1}, 0
s_mov_b32 s{sMaskG}, -1
s_mov_b32 s{sMaskG+1}, 0
s_mov_b32 s{sRetry}, 0
s_mov_b32 s{sRetry2}, 0
s_mov_b32 s{sMaskF}, 0xfffefffe
s_mov_b32 s{sC}, {hex(fbits(128**-0.5*math.log2(math.e)))}
""")
    t0,t1,t2,t3=vT,vT+1,vT+2,vT+3
    if stamps: A("s_memtime s[88:89]")
    if OPT.fused:
        A(f"""
s_cmp_eq_u32 s{sH}, 0
s_cbranch_scc0 L_noclr
s_waitcnt lgkmcnt(0)
v_lshlrev_b32 v{vA}, 4, v{vLane}
v_mov_b32 v{vA+4}, 0
v_mov_b32 v{vA+5}, 0
v_mov_b32 v{vA+6}, 0
v_mov_b32 v{vA+7}, 0
s_mul_i32 s{sTmp}, s{sW}, 6144
s_add_u32 s{sTmp}, s{sTmp}, {WS_CNT}
""")
        for j in range(6):
            A(f"buffer_store_dwordx4 {vr(vA+4,4)}, v{vA}, {WSR}, s{sTmp} offen sc1\ns_add_u32 s{sTmp}, s{sTmp}, 1024")
        A(f"""
s_waitcnt vmcnt(0)
s_barrier
s_cmp_eq_u32 s{sW}, 0
s_cbranch_scc0 L_noclr
v_mov_b32 v{vA}, {DBG_INIT}
v_mov_b32 v{vA+1}, 1
s_mov_b64 exec, 1
global_store_dword v{vA}, v{vA+1}, s[{sDbg}:{sDbg+1}] sc1
s_mov_b64 exec, -1
L_noclr:
""")
    A(f"""
v_lshlrev_b32 v{vL16M}, 4, v{vLane}
v_add_u32 v{vL16M}, {L_MEMT}, v{vL16M}
v_lshrrev_b32 v{t0}, 4, v{vLane}
v_lshlrev_b32 v{t0}, 7, v{t0}
v_bfe_u32 v{t1}, v{vLane}, 2, 2
v_lshl_add_u32 v{t0}, v{t1}, 4, v{t0}
v_and_b32 v{t1}, 1, v{vLane}
v_lshl_add_u32 v{t0}, v{t1}, 3, v{t0}
v_add_u32 v{vTR}, {L_MEMT}, v{t0}
v_and_b32 v{t0}, 8, v{vLane}
v_cmp_ne_u32 vcc, 0, v{t0}
v_mov_b32 v{t0}, 0x4444
v_mov_b32 v{t1}, 0xeeee
v_cndmask_b32 v{vIdx}, v{t0}, v{t1}, vcc
""")
    A(f"""
v_lshlrev_b32 v{vWo}, 4, v{vLane}
v_add_u32 v{vWo+1}, 49152, v{vWo}
v_add_u32 v{vWo+2}, 98304, v{vWo}
""")
    A(f"""
v_bfe_u32 v{t0}, v{vLane}, 5, 1
v_lshlrev_b32 v{t0}, 1, v{t0}
v_bfe_u32 v{t1}, v{vLane}, 3, 1
v_add_u32 v{t0}, v{t0}, v{t1}
v_lshlrev_b32 v{t0}, 12, v{t0}
v_and_b32 v{t1}, 7, v{vLane}
v_lshl_add_u32 v{t0}, v{t1}, 4, v{t0}
v_bfe_u32 v{t1}, v{vLane}, 4, 1
v_lshl_add_u32 v{t0}, v{t1}, 3, v{t0}
s_lshl_b32 s{sTmp+1}, s{sH}, 7
v_add_u32 v{vH1st}, s{sTmp+1}, v{t0}
""")
    A(f"""
s_and_b32 s{sTmp}, s{sH}, 1
s_sub_u32 s{sTmp+1}, s{sW}, 2
s_lshl_b32 s{sTmp+1}, s{sTmp+1}, 1
s_add_u32 s{sTmp}, s{sTmp}, s{sTmp+1}
s_lshl_b32 s{sTmp}, s{sTmp}, 4
s_lshr_b32 s{sTmp+1}, s{sH}, 1
s_add_u32 s{sTask}, s{sTmp}, s{sTmp+1}
s_mov_b32 s{sHasTask}, 1
s_cmp_ge_u32 s{sW}, 2
s_cbranch_scc1 L_task_done
s_lshr_b32 s{sTask}, s{sH}, 2
s_add_u32 s{sTask}, s{sTask}, 64
s_and_b32 s{sTmp}, s{sH}, 3
s_cmp_eq_u32 s{sTmp}, 0
s_cselect_b32 s{sHasTask}, 1, 0
s_cmp_eq_u32 s{sW}, 1
s_cselect_b32 s{sHasTask}, s{sHasTask}, 0
s_cmp_eq_u32 s{sHasTask}, 1
s_cselect_b32 s{sTask}, s{sTask}, 0
L_task_done:
s_lshl_b32 s{sTmp}, s{sTask}, 12
v_lshlrev_b32 v{t0}, 4, v{vLane}
v_add_u32 v{vRed}, s{sTmp}, v{t0}
s_lshl_b32 s{sTmp}, s{sTask}, 7
v_and_b32 v{t0}, 7, v{vLane}
v_lshlrev_b32 v{t0}, 4, v{t0}
v_lshrrev_b32 v{t1}, 4, v{vLane}
v_lshl_add_u32 v{t0}, v{t1}, 3, v{t0}
v_add_u32 v{vPub}, s{sTmp}, v{t0}
v_and_b32 v{t0}, 15, v{vLane}
s_add_u32 s{sTmp}, s{sW}, 3
s_and_b32 s{sTmp}, s{sTmp}, 1
s_lshl_b32 s{sTmp}, s{sTmp}, 4
v_add_u32 v{t0}, s{sTmp}, v{t0}
v_lshlrev_b32 v{t0}, 4, v{t0}
v_lshrrev_b32 v{t1}, 4, v{vLane}
v_lshl_add_u32 v{t0}, v{t1}, 9, v{t0}
s_lshl_b32 s{sTmp}, s{sH}, {19 if OPT.hs else 13}
v_add_u32 v{vKx}, s{sTmp}, v{t0}
v_and_b32 v{t0}, 15, v{vLane}
v_lshlrev_b32 v{t0}, 4, v{t0}
v_lshl_add_u32 v{t0}, v{t1}, 11, v{t0}
s_lshl_b32 s{sTmp}, s{sH}, {19 if OPT.hs else 13}
s_lshl_b32 s{sTmp+1}, s{sW}, 9
s_add_u32 s{sTmp}, s{sTmp}, s{sTmp+1}
v_add_u32 v{vVx}, s{sTmp}, v{t0}
v_and_b32 v{t0}, 7, v{vLane}
v_lshlrev_b32 v{t0}, 8, v{t0}
v_lshl_add_u32 v{vKm}, v{t1}, 4, v{t0}
v_and_b32 v{t0}, 15, v{vLane}
v_bfe_u32 v{t1}, v{vLane}, 5, 1
v_lshl_add_u32 v{t0}, v{t1}, 4, v{t0}
s_lshl_b32 s{sTmp}, s{sW}, 5
v_add_u32 v{t0}, s{sTmp}, v{t0}
v_lshlrev_b32 v{t0}, 4, v{t0}
v_bfe_u32 v{t1}, v{vLane}, 4, 1
v_lshl_add_u32 v{vVm}, v{t1}, 3, v{t0}
v_add_u32 v{vQw}, {L_QT}, v{vVm}
""")
    A(f"v_and_b32 v{t0}, 7, v{vLane}")
    for j in range(4):
        A(f"""
v_mov_b32 v{vSel+j}, 0
v_cmp_eq_u32 vcc, {2*j}, v{t0}
v_mov_b32 v{t1}, 0x3f80
v_cndmask_b32 v{vSel+j}, v{vSel+j}, v{t1}, vcc
v_cmp_eq_u32 vcc, {2*j+1}, v{t0}
v_mov_b32 v{t1}, 0x3f800000
v_cndmask_b32 v{vSel+j}, v{vSel+j}, v{t1}, vcc
""")
    A("s_waitcnt lgkmcnt(0)")
    vW0,vW1,vWoD=vA+4,vA+5,vA+6
    A(f"""
v_lshrrev_b32 v{t0}, 4, v{vLane}
v_and_b32 v{t1}, 1, v{t0}
v_lshlrev_b32 v{t1}, 2, v{t1}
v_and_b32 v{t2}, 15, v{vLane}
v_xor_b32 v{t2}, v{t2}, v{t1}
v_lshlrev_b32 v{t0}, 13, v{t0}
s_lshl_b32 s{sTmp}, s{sH}, 8
s_lshl_b32 s{sTmp+1}, s{sW}, 17
s_add_u32 s{sTmp}, s{sTmp}, s{sTmp+1}
v_add_u32 v{t0}, s{sTmp}, v{t0}
v_lshl_add_u32 v{vW0}, v{t2}, 4, v{t0}
v_xor_b32 v{t2}, 8, v{t2}
v_lshl_add_u32 v{vW1}, v{t2}, 4, v{t0}
""")
    def dma_chunk(c):
        slot=c%9
        if c<27:
            r0=64*(c%9)
            for j in range(4):
                A(f"s_lshl_b32 s{sTmp}, s{sW}, 12\ns_add_u32 m0, s{sTmp}, {slot*16384+j*1024}")
                A(f"s_mov_b32 s{sTmp+1}, {(r0+4*j)*8192}")
                A(f"buffer_load_dwordx4 v{vW0 if j%2==0 else vW1}, s[{sWT}:{sWT+3}], s{sTmp+1} offen lds")
        else:
            cc=c-27
            for j in range(4):
                A(f"s_lshl_b32 s{sTmp}, s{sW}, 2\ns_add_u32 s{sTmp}, s{sTmp}, {16*cc+j}\ns_lshl_b32 s{sTmp}, s{sTmp}, 6")
                A(f"v_add_u32 v{t0}, s{sTmp}, v{vLane}")
                A(f"v_mul_u32_u24 v{t1}, 58255, v{t0}\nv_lshrrev_b32 v{t1}, 26, v{t1}\nv_and_b32 v{t1}, 1, v{t1}\nv_lshlrev_b32 v{t1}, 2, v{t1}\nv_xor_b32 v{t0}, v{t0}, v{t1}\nv_lshlrev_b32 v{vWoD}, 4, v{t0}")
                A(f"s_lshl_b32 s{sTmp}, s{sW}, 12\ns_add_u32 m0, s{sTmp}, {slot*16384+j*1024}")
                A(f"buffer_load_dwordx4 v{vWoD}, s[{sWT}:{sWT+3}], 0 offen lds")
    def set_wsrd(c):
        if c in (0,9,18):
            A(f"s_load_dwordx2 s[{sWT}:{sWT+1}], s[{sKarg}:{sKarg+1}], {[KA_WQ,KA_WK,KA_WV][c//9]}\ns_mov_b32 s{sWT+2}, {576*8192}\ns_waitcnt lgkmcnt(0)")
        if c==27:
            A(f"s_load_dwordx2 s[{sWT}:{sWT+1}], s[{sKarg}:{sKarg+1}], {KA_WO}\ns_waitcnt lgkmcnt(0)")
            A(f"s_mul_i32 s{sTmp}, s{sH}, 147456\ns_add_u32 s{sWT}, s{sWT}, s{sTmp}\ns_addc_u32 s{sWT+1}, s{sWT+1}, 0\ns_mov_b32 s{sWT+2}, 147456")
    vWr=vA+7
    A(f"""
v_lshrrev_b32 v{t0}, 4, v{vLane}
v_bfe_u32 v{t1}, v{vLane}, 2, 1
v_lshl_add_u32 v{t2}, v{t0}, 2, v{t1}
v_lshlrev_b32 v{t2}, 8, v{t2}
v_and_b32 v{t0}, 1, v{t0}
v_lshl_add_u32 v{t0}, v{t0}, 1, v{t1}
v_lshlrev_b32 v{t0}, 2, v{t0}
v_bfe_u32 v{t1}, v{vLane}, 3, 1
v_lshlrev_b32 v{t1}, 1, v{t1}
v_bfe_u32 v{t3}, v{vLane}, 1, 1
v_add_u32 v{t1}, v{t1}, v{t3}
s_lshl_b32 s{sTmp}, s{sW}, 2
v_add_u32 v{t1}, s{sTmp}, v{t1}
v_xor_b32 v{t1}, v{t1}, v{t0}
v_lshl_add_u32 v{t2}, v{t1}, 4, v{t2}
v_and_b32 v{t3}, 1, v{vLane}
v_lshl_add_u32 v{vWr}, v{t3}, 3, v{t2}
v_add_u32 v{vWr+1}, 65536, v{vWr}
v_add_u32 v{vWr+2}, 131072, v{vWr}
""")
    A(f"""
s_load_dwordx2 s[60:61], s[{sKarg}:{sKarg+1}], {KA_MEM0}
s_mov_b32 s62, 9216
s_mov_b32 s63, 0x20000
v_lshrrev_b32 v{vA}, 4, v{vLane}
v_and_b32 v{vA}, 1, v{vA}
v_mul_u32_u24 v{vA}, {4*1152}, v{vA}
v_and_b32 v{vA+1}, 7, v{vLane}
v_lshl_add_u32 v{vA}, v{vA+1}, 1, v{vA}
s_lshl_b32 s{sTmp}, s{sTask}, 4
s_waitcnt lgkmcnt(0)
""")
    for r in range(4):
        A(f"buffer_load_ushort v{vK+r}, v{vA}, s[60:63], s{sTmp} offen offset:{r*1152}")
    A(f"v_mov_b32 v{vT+4}, 0\nv_mov_b32 v{vT+5}, 0\nv_mov_b32 v{vT+6}, -1\nv_mov_b32 v{vT+7}, -1")
    A(f"s_lshl_b32 s{sTmp+2}, s{sW}, 14\ns_add_u32 s{sTmp+2}, s{sTmp+2}, s{sH1}")
    for r in range(4):
        A(f"s_add_u32 s{sTmp}, s{sTmp+2}, {r*65536}")
        A(f"buffer_store_dwordx2 {vr(vT+4,2)}, v{vH1st}, {WSR}, s{sTmp} offen")
    A(f"s_cmp_lt_u32 s{sW}, 2\ns_cbranch_scc0 L_clr1_skip")
    A(f"s_add_u32 s{sTmp}, s{sTmp+2}, {4*65536}")
    A(f"buffer_store_dwordx2 {vr(vT+4,2)}, v{vH1st}, {WSR}, s{sTmp} offen")
    A("L_clr1_skip:")
    A(f"s_cmp_eq_u32 s{sHasTask}, 1\ns_cbranch_scc0 L_clr2_skip")
    A(f"s_mov_b64 exec, s[{sMaskPub}:{sMaskPub+1}]")
    for sl in range(1,4):
        A(f"s_add_u32 s{sTmp}, s{sH2}, {sl*16384}")
        A(f"buffer_store_dwordx2 {vr(vT+6,2)}, v{vPub}, {WSR}, s{sTmp} offen")
    A("s_waitcnt vmcnt(0)")
    A(f"v_lshl_or_b32 v{vK}, v{vK+1}, 16, v{vK}\nv_lshl_or_b32 v{vK+1}, v{vK+3}, 16, v{vK+2}\nv_min_u32 v{vK}, -2, v{vK}")
    A(f"buffer_store_dwordx2 {vr(vK,2)}, v{vPub}, {WSR}, s{sH2} offen")
    A("s_mov_b64 exec, -1\nL_clr2_skip:")
    if OPT.codewarm:
        A(f"""
s_getpc_b64 s[64:65]
L_pcref:
s_add_u32 s64, s64, L_code_begin-L_pcref
s_addc_u32 s65, s65, 0
v_lshlrev_b32 v{vT+7}, 6, v{vLane}
s_lshl_b32 s{sTmp}, s{sW}, 12
v_add_u32 v{vT+7}, s{sTmp}, v{vT+7}
""")
        for j in range(OPT.codewarm):
            A(f"global_load_dword v{vA+1}, v{vT+7}, s[64:65]\nv_add_u32 v{vT+7}, 16384, v{vT+7}")
    DEPTH=8
    set_wsrd(0)
    for c in range(DEPTH): dma_chunk(c)
    A(f"s_waitcnt vmcnt({DEPTH*4})")
    A(f"""
s_waitcnt lgkmcnt(0)
s_barrier
s_cmp_eq_u32 s{sW}, 0
s_cbranch_scc0 L_cb_skip
v_mov_b32 v{vT}, 64
v_mov_b32 v{vT+1}, 1
s_mov_b64 exec, 1
global_atomic_add v{vT}, v{vT+1}, s[{sDbg}:{sDbg+1}]
s_mov_b64 exec, -1
L_cb_skip:
""")
    if stamps: A("s_memtime s[90:91]")
    for c in range(27):
        nxt=c+DEPTH
        A(f"s_waitcnt vmcnt({(DEPTH-1)*4 - (1 if c<8 else 0)})" if False else f"s_waitcnt vmcnt({(DEPTH-1)*4})")
        A("s_barrier")
        if nxt<36:
            set_wsrd(nxt); dma_chunk(nxt)
        mat=c//9; slot=c%9
        for ks in range(2):
            s=2*(c%9)+ks
            for q in range(4):
                off=slot*16384+ks*8192+(2*(q&1)+16*(q>>1))*256
                base=vWr+off//65536; off%=65536
                A(f"ds_read_b64_tr_b16 {Wreg(mat,s,q)}, v{base} offset:{off}")
        A("s_waitcnt lgkmcnt(0)")
        A("s_barrier")
    dma_chunk(35)
    A("s_waitcnt vmcnt(0)\ns_barrier")
    vC=vA+10
    A(f"""
v_bfe_u32 v{t0}, v{vLane}, 4, 1
v_bfe_u32 v{t1}, v{vLane}, 5, 1
v_lshlrev_b32 v{t2}, 4, v{t0}
v_lshl_add_u32 v{t2}, v{t1}, 2, v{t2}
v_bfe_u32 v{t3}, v{vLane}, 2, 1
v_add_u32 v{t2}, v{t2}, v{t3}
v_mul_u32_u24 v{t2}, 1152, v{t2}
v_xor_b32 v{t0}, s{sW}, v{t0}
v_lshl_add_u32 v{t2}, v{t0}, 6, v{t2}
v_bfe_u32 v{t3}, v{vLane}, 3, 1
v_lshl_add_u32 v{t2}, v{t3}, 5, v{t2}
v_and_b32 v{t3}, 3, v{vLane}
v_lshl_add_u32 v{vC}, v{t3}, 3, v{t2}
v_add_u32 v{vC+1}, 73728, v{vC}
s_lshl_b32 s{sTmp}, s{sW}, 11
v_add_u32 v{vC+2}, s{sTmp}, v{vWo}
v_add_u32 v{vC+3}, s{sTmp}, v{vWo+1}
v_add_u32 v{vC+4}, s{sTmp}, v{vWo+2}
""")
    for s in range(4):
        base=vC if s<2 else vC+1
        lab=A.uid("L_cv"); lab2=A.uid("L_cw")
        for r in range(5):
            if r==4: A(f"s_cmp_lt_u32 s{sW}, 2\ns_cbranch_scc0 {lab}")
            for q in range(4):
                off=(s%2)*36864+(2*(q&1)+8*(q>>1))*1152+r*256
                A(f"ds_read_b64_tr_b16 {vr(vK-0+8*r+2*q,2)}, v{base} offset:{off}")
            if r%2==1: A("s_waitcnt lgkmcnt(0)")
        A(f"{lab}:\ns_waitcnt lgkmcnt(0)\ns_barrier")
        for r in range(5):
            if r==4: A(f"s_cmp_lt_u32 s{sW}, 2\ns_cbranch_scc0 {lab2}")
            for half in range(2):
                off=s*36864+r*8192+half*1024
                A(f"ds_write_b128 v{vC+2+off//49152}, {vr(vK+8*r+4*half,4)} offset:{off%49152}")
        A(f"{lab2}:\ns_waitcnt lgkmcnt(0)\ns_barrier")
    if stamps: A("s_memtime s[92:93]")
    A(f"""
s_cmp_eq_u32 s{sW}, 0
s_cbranch_scc0 L_cb_wait
v_mov_b32 v{vT}, 64
s_mov_b32 s{sTmp}, 0
L_cb_poll:
global_load_dword v{vT+2}, v{vT}, s[{sDbg}:{sDbg+1}] sc1
s_waitcnt vmcnt(0)
v_readfirstlane_b32 s{sTmp+1}, v{vT+2}
s_add_u32 s{sTmp}, s{sTmp}, 1
s_cmp_gt_u32 s{sTmp}, 2000000
s_cbranch_scc1 L_abort
s_cmp_ge_u32 s{sTmp+1}, 32
s_cbranch_scc0 L_cb_poll
""")
    if OPT.fused and stamps: A("s_memtime s[90:91]")
    if OPT.fused:
        A(f"""
s_mov_b32 s{sTmp+2}, {cnt(C_KV)}
L_kv_poll:
buffer_load_dword v{vT+2}, off, {WSR}, s{sTmp+2} sc1
s_waitcnt vmcnt(0)
v_readfirstlane_b32 s{sTmp+1}, v{vT+2}
s_add_u32 s{sTmp}, s{sTmp}, 1
s_cmp_gt_u32 s{sTmp}, 4000000
s_cbranch_scc1 L_abort
s_sleep 1
s_cmp_ge_u32 s{sTmp+1}, 32
s_cbranch_scc0 L_kv_poll
""")
    A(f"""
L_cb_wait:
s_barrier
""")
    if OPT.fused:
        A(f"s_cmp_eq_u32 s{sW}, 3\ns_cbranch_scc0 L_nf\nv_mov_b32 v10, 32\nL_nf:")
    if OPT.prewarm:
        A(f"v_lshlrev_b32 v{vT+7}, 2, v{vL16M}\ns_lshl_b32 s{sTmp}, s{sH}, 13\ns_lshl_b32 s{sTmp+1}, s{sW}, 12\ns_and_b32 s{sTmp+1}, s{sTmp+1}, 4096\ns_add_u32 s{sTmp}, s{sTmp}, s{sTmp+1}")
        A(f"s_cmp_lt_u32 s{sW}, 2\ns_mov_b32 s{sTmp+2}, {WS_VT-L_MEMT*4}\ns_cselect_b32 s{sTmp+2}, {WS_KX-L_MEMT*4}, s{sTmp+2}\ns_add_u32 s{sTmp}, s{sTmp}, s{sTmp+2}")
        for sg in range(2):
            A(f"buffer_load_dword v0, v{vT+7}, {WSR}, s{sTmp} offen\ns_add_u32 s{sTmp}, s{sTmp}, 262144")
        A("s_waitcnt vmcnt(0)")

PAIRS=[[0,4,8,12,16],[1,5,9,13,17],[2,6,10],[3,7,11,15,14]]
PAIRS_C=[[0,3,6,9,12,15],[1,4,7,10,13,16],[],[2,5,8,11,14,17]]
def pairs(w): return PAIRS_C[w] if OPT.commwave==True else PAIRS[w]
def wo_addr(P, s, half):
    off=s*36864+P*2048+half*1024
    return vWo+off//49152, off%49152

class Cnt:
    def __init__(self,A,name,maxn): self.A=A; self.q=[]; self.name=name; self.maxn=maxn
    def add(self,tag,n=1):
        self.q+= [tag]*n
        assert len(self.q)<=self.maxn, (self.name,self.q)
    def wait(self,tag):
        if tag not in self.q: return
        idx=max(i for i,x in enumerate(self.q) if x==tag)
        self.A(f"s_waitcnt {self.name}({len(self.q)-idx-1})"); del self.q[:idx+1]
    def drain(self):
        self.A(f"s_waitcnt {self.name}(0)"); self.q=[]
    def clear(self): self.q=[]

class Stream:
    def __init__(self, A, w, red_round, nsteps, stamps, stamp_step, sid):
        self.A=A; self.w=w; self.rr=red_round; self.nsteps=nsteps; self.stamps=stamps; self.sid=sid
        self.nst=0; self.names=[]
        self.L=Cnt(A,"lgkmcnt",15); self.V=Cnt(A,"vmcnt",63)
        self.ool=[]
    def stamp(self,name=""):
        if self.stamps==True:
            self.A(f"{OPT.clk} s[{sT0+2*self.nst}:{sT0+2*self.nst+1}]"); self.names.append(name); self.nst+=1
            assert self.nst<=16
    def delay(self,d):
        while d>0: self.A(f"s_nop {min(d,16)-1}"); d-=16
    def trr1(self,dst,off,tag):
        self.A(f"ds_read_b64_tr_b16 {vr(dst,2)}, v{vTR} offset:{off}"); self.L.add(tag)
    def trr(self,dst,off,tag):
        self.trr1(dst,off,tag); self.trr1(dst+2,off+64,tag)
    def gat_issue(self,r,b,tag=None):
        A=self.A
        A(f"s_add_u32 s{sTmp}, s{sH2gat}, {r*2048}")
        A(f"buffer_load_dwordx4 {vr(b,4)}, v{vL16M}, {WSR}, s{sTmp} offen sc1")
        if r<4: A(f"buffer_load_dwordx4 {vr(b+4,4)}, v{vL16M}, {WSR}, s{sTmp} offen offset:1024 sc1")
        if tag: self.V.add(tag,2 if r<4 else 1)
    def gat_check_parts(self,r,b):
        A=self.A
        rt=A.uid("L_grt"); back=A.uid("L_gbk")
        t=vT+6
        g=[]
        g.append(lambda: self.V.wait(("g",r)))
        if r<4:
            g.append(lambda: A(f"v_max3_u32 v{t}, v{b}, v{b+2}, v{b+4}"))
            g.append(lambda: A(f"v_max_u32 v{t}, v{t}, v{b+6}"))
        else:
            g.append(lambda: A(f"v_max_u32 v{t}, v{b}, v{b+2}"))
        g.append(lambda: A(f"v_cmp_eq_u32 vcc, -1, v{t}"))
        def wr():
            A(f"ds_write_b128 v{vL16M}, {vr(b,4)} offset:{r*2048}"); self.L.add(("gw",r))
        def wr2():
            if r<4: A(f"ds_write_b128 v{vL16M}, {vr(b+4,4)} offset:{r*2048+1024}"); self.L.add(("gw",r))
        g.append(wr); g.append(wr2)
        g.append(lambda: A(f"s_cbranch_vccnz {rt}\n{back}:"))
        def ool():
            lp=A.uid("L_glp")
            A(f"{rt}:\n{lp}:\ns_add_u32 s{sRetry2}, s{sRetry2}, 1\ns_cmp_gt_u32 s{sRetry2}, 1000000\ns_cbranch_scc1 L_abort\ns_waitcnt lgkmcnt(0)")
            self.gat_issue(r,b)
            A("s_waitcnt vmcnt(0)")
            if r<4: A(f"v_max3_u32 v{t}, v{b}, v{b+2}, v{b+4}\nv_max_u32 v{t}, v{t}, v{b+6}")
            else: A(f"v_max_u32 v{t}, v{b}, v{b+2}")
            A(f"v_cmp_eq_u32 vcc, -1, v{t}\ns_cbranch_vccnz {lp}")
            A(f"ds_write_b128 v{vL16M}, {vr(b,4)} offset:{r*2048}")
            if r<4: A(f"ds_write_b128 v{vL16M}, {vr(b+4,4)} offset:{r*2048+1024}")
            A(f"s_waitcnt lgkmcnt(0)\ns_branch {back}")
        self.ool.append(ool)
        return g
    def gat_poll(self,r):
        A=self.A
        sets=[vK,vK+8,vV][:OPT.npoll]; NS=len(sets)
        A(f"s_add_u32 s{sTmp+4}, s{sH2gat}, {r*2048}")
        def iss(b):
            A(f"buffer_load_dwordx4 {vr(b,4)}, v{vL16M}, {WSR}, s{sTmp+4} offen sc1")
            A(f"buffer_load_dwordx4 {vr(b+4,4)}, v{vL16M}, {WSR}, s{sTmp+4} offen offset:1024 sc1")
        for i,b in enumerate(sets):
            iss(b)
            if i<NS-1: self.delay(OPT.poll_gap)
        lp=A.uid("L_g0p"); done=A.uid("L_g0d"); oks=[A.uid("L_g0k") for _ in sets]
        A(f"{lp}:")
        for i,b in enumerate(sets):
            A(f"s_waitcnt vmcnt({2*(NS-1)})")
            A(f"v_max3_u32 v{vT+6}, v{b}, v{b+2}, v{b+4}\nv_max_u32 v{vT+6}, v{vT+6}, v{b+6}")
            A(f"v_cmp_eq_u32 vcc, -1, v{vT+6}\ns_cbranch_vccz {oks[i]}")
            iss(b)
        A(f"s_add_u32 s{sRetry2}, s{sRetry2}, 1\ns_cmp_gt_u32 s{sRetry2}, 1000000\ns_cbranch_scc1 L_abort\ns_branch {lp}")
        for i,b in enumerate(sets):
            A(f"{oks[i]}:")
            A(f"ds_write_b128 v{vL16M}, {vr(b,4)} offset:{r*2048}\nds_write_b128 v{vL16M}, {vr(b+4,4)} offset:{r*2048+1024}")
            if i<NS-1: A(f"s_branch {done}")
        A(f"{done}:\ns_waitcnt lgkmcnt(0)")
        self.L.clear()
    def gat_poll01(self):
        A=self.A
        sets=[vK,vA][:OPT.npoll]; NS=len(sets)
        def iss(b):
            A(f"buffer_load_dwordx4 {vr(b,4)}, v{vL16M}, {WSR}, s{sH2gat} offen sc1")
            A(f"buffer_load_dwordx4 {vr(b+4,4)}, v{vL16M}, {WSR}, s{sH2gat} offen offset:1024 sc1")
            A(f"buffer_load_dwordx4 {vr(b+8,4)}, v{vL16M}, {WSR}, s{sH2gat} offen offset:2048 sc1")
            A(f"buffer_load_dwordx4 {vr(b+12,4)}, v{vL16M}, {WSR}, s{sH2gat} offen offset:3072 sc1")
        for i,b in enumerate(sets):
            iss(b)
            if i<NS-1: self.delay(OPT.poll_gap)
        lp=A.uid("L_g0p"); done=A.uid("L_g0d"); oks=[A.uid("L_g0k") for _ in sets]
        A(f"{lp}:")
        for i,b in enumerate(sets):
            A(f"s_waitcnt vmcnt({4*(NS-1)})")
            A(f"v_max3_u32 v{vT+6}, v{b}, v{b+2}, v{b+4}\nv_max3_u32 v{vT+7}, v{b+6}, v{b+8}, v{b+10}\nv_max3_u32 v{vT+6}, v{vT+6}, v{b+12}, v{b+14}\nv_max_u32 v{vT+6}, v{vT+6}, v{vT+7}")
            A(f"v_cmp_eq_u32 vcc, -1, v{vT+6}\ns_cbranch_vccz {oks[i]}")
            iss(b)
        A(f"s_add_u32 s{sRetry2}, s{sRetry2}, 1\ns_cmp_gt_u32 s{sRetry2}, 1000000\ns_cbranch_scc1 L_abort\ns_branch {lp}")
        for i,b in enumerate(sets):
            A(f"{oks[i]}:")
            for j in range(4): A(f"ds_write_b128 v{vL16M}, {vr(b+4*j,4)} offset:{j*1024}")
            if i<NS-1: A(f"s_branch {done}")
        A(f"{done}:\ns_waitcnt vmcnt(0) lgkmcnt(0)")
        self.L.clear()
    def red_iss(self,b,second=False):
        if second: self.A(f"s_add_u32 s{sTmp+5}, s{sH1}, {32*4096}")
        for k in range(4):
            self.A(f"buffer_load_dwordx4 {vr(b+4*k,4)}, v{vRed}, {WSR}, s{sTmp+5 if second else sH1} offen offset:{k*1024} sc1")
    def red_poll(self,pre_issued=False,younger=0,second=False):
        A=self.A
        sets=[vK,vA][:OPT.nred]; NS=len(sets)
        iss=lambda b: self.red_iss(b,second)
        for i,b in enumerate(sets):
            if not (i==0 and pre_issued): iss(b)
            if i<NS-1: self.delay(OPT.red_gap)
        lp=A.uid("L_rp"); done=A.uid("L_rd")
        oks={}
        def check(b,cnt):
            A(f"s_waitcnt vmcnt({cnt})")
            A(f"""
v_xor_b32 v{vT+6}, v{b}, v{vTag}
v_bitop3_b32 v{vT+6}, v{vT+6}, v{b+4}, v{vTag} bitop3:0xf6
v_bitop3_b32 v{vT+6}, v{vT+6}, v{b+8}, v{vTag} bitop3:0xf6
v_bitop3_b32 v{vT+6}, v{vT+6}, v{b+12}, v{vTag} bitop3:0xf6
""")
            if OPT.spec1: A(f"v_mfma_f32_16x16x32_bf16 {vr(aV,4)}, {vr(vSel,4)}, {vr(b,4)}, 0")
            A(f"""
v_and_b32 v{vT+6}, 0x10001, v{vT+6}
v_cmp_ne_u32 vcc, 0, v{vT+6}
s_cbranch_vccz {oks.setdefault(b,A.uid("L_rk"))}
""")
            iss(b)
        check(sets[0],4*(NS-1)+(younger if pre_issued else 0))
        order=sets[1:]+sets[:1]
        A(f"{lp}:")
        for b in order: check(b,4*(NS-1))
        A(f"s_add_u32 s{sRetry}, s{sRetry}, 1\ns_cmp_gt_u32 s{sRetry}, 1000000\ns_cbranch_scc1 L_abort\ns_branch {lp}")
        for n_,b in enumerate(sets):
            A(f"{oks[b]}:")
            for k in range(4):
                A(f"v_mfma_f32_16x16x32_bf16 {vr(aV,4)}, {vr(vSel,4)}, {vr(b+4*k,4)}, {'0' if k==0 else vr(aV,4)}")
            if n_<len(sets)-1: A(f"s_branch {done}")
        A(f"{done}:")
        for r in range(4):
            A(f"v_add_f32_dpp v{aV+r}, v{aV+r}, v{aV+r} row_ror:8 row_mask:0xf bank_mask:0xf")
        A(f"""
v_cvt_pk_bf16_f32 v{vT+4}, v{aV}, v{aV+1}
v_cvt_pk_bf16_f32 v{vT+5}, v{aV+2}, v{aV+3}
s_mov_b64 exec, s[{sMaskPub}:{sMaskPub+1}]
v_min_u32 v{vT+4}, -2, v{vT+4}
""")
        if second: A(f"s_add_u32 s{sTmp+5}, s{sH2pub}, 4096\ns_add_u32 s{sTmp+6}, s{sH2rst}, 4096")
        A(f"""
buffer_store_dwordx2 {vr(vT+4,2)}, v{vPub}, {WSR}, s{sTmp+5 if second else sH2pub} offen
v_mov_b32 v{vT+6}, -1
v_mov_b32 v{vT+7}, -1
buffer_store_dwordx2 {vr(vT+6,2)}, v{vPub}, {WSR}, s{sTmp+6 if second else sH2rst} offen
s_mov_b64 exec, -1
""")
    def kx_loads(self):
        A=self.A
        A(f"s_add_u32 s{sTmp+1}, s{sKXo}, 4096")
        for s in range(4):
            A(f"buffer_load_dwordx4 {vr(vK+4*s,4)}, v{vKx}, {WSR}, s{sKXo if s<2 else sTmp+1} offen offset:{(s%2)*2048} sc1")
        self.V.add(("kx",0),4)
    def kx1(self,s_):
        A=self.A
        if s_>=2: A(f"s_add_u32 s{sTmp+1}, s{sKXo}, 4096")
        A(f"buffer_load_dwordx4 {vr(vK+4*s_,4)}, v{vKx}, {WSR}, s{sKXo if s_<2 else sTmp+1} offen offset:{(s_%2)*2048} sc1")
        self.V.add(("kx",0))
    def vx1(self,t):
        self.A(f"buffer_load_dwordx4 {vr(vV+4*t,4)}, v{vVx}, {WSR}, s{sVTo} offen offset:{t*256} sc1")
        self.V.add(("vx",0))
    def vx_loads(self):
        for t in range(2):
            self.A(f"buffer_load_dwordx4 {vr(vV+4*t,4)}, v{vVx}, {WSR}, s{sVTo} offen offset:{t*256} sc1")
        self.V.add(("vx",0),2)
    def warm1(self,i):
        A=self.A
        sb=sWarmK if i<2 else sWarmV
        A(f"v_lshlrev_b32 v{vT+7}, 2, v{vL16M}")
        A(f"s_add_u32 s{sTmp+1}, s{sb}, {4096*(i%2)}\nbuffer_load_dword v0, v{vT+7}, {WSR}, s{sTmp+1} offen {OPT.warmflag}")
        self.V.add(("warm",i))
    def zero_acc(self):
        for r in range(4): self.A(f"v_mov_b32 v{aQ+r}, 0\nv_mov_b32 v{aK+r}, 0\nv_mov_b32 v{aV+r}, 0")

    def body(self):
        A=self.A; w=self.w; sid=self.sid; L=self.L; V=self.V
        A(f"L_step_{sid}:")
        self.stamp("top")
        V.q=[]
        if OPT.steplog and w==1:
            A(f"s_memrealtime s[88:89]\ns_waitcnt lgkmcnt(0)\nv_mov_b32 v{vT}, s88\nv_mov_b32 v{vT+1}, s90\nv_mov_b32 v{vT+2}, s92\nv_mov_b32 v{vT+3}, s98\ns_lshl_b32 s{sTmp}, s{sH}, 10\ns_lshl_b32 s{sTmp+1}, s{sStep}, 4\ns_add_u32 s{sTmp}, s{sTmp}, s{sTmp+1}\ns_add_u32 s{sTmp}, s{sTmp}, {WS_STAMP+0x20000}\nv_mov_b32 v{vT+6}, 0\nbuffer_store_dwordx4 {vr(vT,4)}, v{vT+6}, {WSR}, s{sTmp} offen\ns_nop 3")
            V.add(("dbg",0))
        L.q=[]
        smf=lambda acc,b,wt: A(f"v_smfmac_f32_16x16x64_bf16 {vr(acc,4)}, {vr(b,4)}, {wt}, v{vIdx}")
        abuf=lambda k: vA+4*(k%4)
        PD=OPT.pd
        for k in range(PD): self.trr(abuf(k),k*512,("a",k))
        side={k:[[],[],[]] for k in range(18)}
        def guarded(fn_list):
            return fn_list
        grounds={3:(2,vK),0:(3,vK),1:(4,vT),2:(None,None)}
        gr,gb=grounds[w]
        skip=[None]
        def begin_skip():
            lab=A.uid("L_fs"); skip[0]=lab
            A(f"s_cmp_eq_u32 s{sStep}, 0\ns_cbranch_scc1 {lab}")
        def end_skip():
            A(f"{skip[0]}:")
        if gr is not None:
            parts=self.gat_check_parts(gr,gb)
            kc=4*(gr-1)-(OPT.pd-2)
            ki={2:OPT.ki[0],3:OPT.ki[1],4:OPT.ki[2]}[gr]
            if ki>=0: side[ki][2]+= [lambda: self.gat_issue(gr,gb,("g",gr))]
            else: V.add(("g",gr),2 if gr<4 else 1)
            nv=len(parts)-4
            side[kc][0]+= parts[:2]
            side[kc][1]+= parts[2:nv+1]
            side[kc][2]+= parts[nv+1:]
        if OPT.kvmode=="spread":
            if w in (1,2):
                for i in range(4): side[i][1]+= [lambda i=i: self.kx1(i)]
                for t in range(2): side[4+t][1]+= [lambda t=t: self.vx1(t)]
            if w==3:
                for t in range(2): side[1+t][1]+= [lambda t=t: self.vx1(t)]
            if w==0:
                for t in range(2): side[t][1]+= [lambda t=t: self.vx1(t)]
        else:
            if w==1: side[0][2]+= [self.kx_loads]; side[3][2]+= [self.vx_loads]
            if w==2: side[0][2]+= [self.kx_loads]; side[2][2]+= [self.vx_loads]
            if w==3: side[3][2]+= [self.vx_loads]
            if w==0: side[0][2]+= [self.vx_loads]
        if w==3 and OPT.warm:
            if OPT.fused:
                def kvcheck():
                    rt=A.uid("L_kvr"); back=A.uid("L_kvb")
                    A(f"v_readfirstlane_b32 s{sTmp+1}, v10\ns_cmp_ge_u32 s{sTmp+1}, 32\ns_cbranch_scc0 {rt}\n{back}:")
                    def ool():
                        lp=A.uid("L_kvl")
                        A(f"{rt}:\ns_add_u32 s{sTmp+2}, s{sStep}, 2\ns_min_u32 s{sTmp+2}, s{sTmp+2}, 63\ns_lshr_b32 s{sTmp+2}, s{sTmp+2}, 2\ns_lshl_b32 s{sTmp+2}, s{sTmp+2}, 7\ns_add_u32 s{sTmp+2}, s{sTmp+2}, {cnt(C_KV)}\n{lp}:")
                        A(f"buffer_load_dword v10, off, {WSR}, s{sTmp+2} sc1\ns_waitcnt vmcnt(0)\nv_readfirstlane_b32 s{sTmp+1}, v10\ns_add_u32 s{sRetry2}, s{sRetry2}, 1\ns_cmp_gt_u32 s{sRetry2}, 4000000\ns_cbranch_scc1 L_abort\ns_sleep 1\ns_cmp_ge_u32 s{sTmp+1}, 32\ns_cbranch_scc0 {lp}\ns_branch {back}")
                    self.ool.append(ool)
                side[min(OPT.warmk)][2]+= [kvcheck]
            for i,kk in enumerate(OPT.warmk):
                if kk is not None and kk<18: side[kk][2]+= [lambda i=i: self.warm1(i)]
            if OPT.fused:
                def kvload():
                    A(f"s_add_u32 s{sTmp+2}, s{sStep}, 3\ns_min_u32 s{sTmp+2}, s{sTmp+2}, 63\ns_lshr_b32 s{sTmp+2}, s{sTmp+2}, 2\ns_lshl_b32 s{sTmp+2}, s{sTmp+2}, 7\ns_add_u32 s{sTmp+2}, s{sTmp+2}, {cnt(C_KV)}")
                    A(f"buffer_load_dword v10, off, {WSR}, s{sTmp+2} sc1"); V.add(("kvf",0))
                side[max(OPT.warmk)][2]+= [kvload]
        for k in range(18):
            L.wait(("a",k))
            b=abuf(k)
            smf(aQ,b,Wq(k))
            if k+PD<18: self.trr1(abuf(k+PD),(k+PD)*512,("a",k+PD))
            for f in side[k][0]: f()
            smf(aK,b,Wk(k))
            if k+PD<18: self.trr1(abuf(k+PD)+2,(k+PD)*512+64,("a",k+PD))
            for f in side[k][1]: f()
            if k<14: smf(aV,b,Wv(k))
            for f in side[k][2]: f()
            if (k+1+PD)%4==0 and (k+1+PD)//4>=2 and (k+1+PD)//4<=4:
                rnd=(k+1+PD)//4
                if rnd==gr: L.wait(("gw",rnd)) if (("gw",rnd) in L.q) else None
                A("s_barrier")
                if rnd==4 and w==1 and OPT.fused:
                    A(f"v_mov_b32 v{vT+5}, s{sStep}\ns_lshl_b32 s{sTmp+1}, s{sH}, 7\ns_add_u32 s{sTmp+1}, s{sTmp+1}, {cnt(C_PROG)}\ns_mov_b64 exec, 1\nbuffer_store_dword v{vT+5}, off, {WSR}, s{sTmp+1} sc1\ns_mov_b64 exec, -1")
                    V.add(("prog",0))
                if rnd in (2,4): self.stamp(f"qkB{rnd}")
        self.stamp("qkend")
        smf(aV,abuf(14),Wv(14))
        A(f"v_cvt_pk_bf16_f32 v{vT}, v{aQ}, v{aQ+1}\nv_cvt_pk_bf16_f32 v{vT+1}, v{aQ+2}, v{aQ+3}")
        A(f"ds_write_b64 v{vQw}, {vr(vT,2)}")
        smf(aV,abuf(15),Wv(15))
        A(f"v_cvt_pk_bf16_f32 v{vT+2}, v{aK}, v{aK+1}\nv_cvt_pk_bf16_f32 v{vT+3}, v{aK+2}, v{aK+3}")
        A(f"ds_write_b64 v{vQw}, {vr(vT+2,2)} offset:2048")
        smf(aV,abuf(16),Wv(16)); smf(aV,abuf(17),Wv(17))
        L.drain()
        A("s_barrier")
        last=f"L_last_{sid}"
        self.stamp("B6")
        if OPT.steplog and w==1: A("s_memrealtime s[90:91]")
        if w==3 and OPT.warm:
            for i,kk in enumerate(OPT.warmk):
                if kk==20: self.warm1(i)
        if w<3:
            if w==0:
                for s in range(3):
                    self.trr(vK+4*s,KOFF+s*512,("k",s)); self.trr(vA+4*s,QOFF+s*512,("q",s))
                A(f"s_cmp_eq_u32 s{sStep}, {self.nsteps-1}\ns_cbranch_scc1 {last}")
                L.wait(("q",0))
                self.trr(vK+12,KOFF+3*512,("k",3)); self.trr(vA+12,QOFF+3*512,("q",3))
                for s in range(4):
                    L.wait(("q",s))
                    A(f"v_mfma_f32_16x16x32_bf16 {vr(vT,4)}, {vr(vK+4*s,4)}, {vr(vA+4*s,4)}, {'0' if s==0 else vr(vT,4)}")
            else:
                for s in range(4): self.trr(vA+4*s,QOFF+s*512,("q",s))
                A(f"s_cmp_eq_u32 s{sStep}, {self.nsteps-1}\ns_cbranch_scc1 {last}")
                V.wait(("kx",0))
                for s in range(4):
                    L.wait(("q",s))
                    A(f"v_mfma_f32_16x16x32_bf16 {vr(vT,4)}, {vr(vK+4*s,4)}, {vr(vA+4*s,4)}, {'0' if s==0 else vr(vT,4)}")
            self.stamp("Smf")
            A(f"v_cvt_pk_bf16_f32 v{aV}, v{aV}, v{aV+1}\nv_cvt_pk_bf16_f32 v{aV+1}, v{aV+2}, v{aV+3}")
            A(f"buffer_store_dwordx2 {vr(aV,2)}, v{vVm}, {WSR}, s{sVMo} offen {OPT.kmflag}"); V.add(("vm",0))
        else:
            A(f"s_cmp_eq_u32 s{sStep}, {self.nsteps-1}\ns_cbranch_scc1 {last}")
            self.stamp("Smf")
            A(f"v_cvt_pk_bf16_f32 v{aV}, v{aV}, v{aV+1}\nv_cvt_pk_bf16_f32 v{aV+1}, v{aV+2}, v{aV+3}")
            A(f"buffer_store_dwordx2 {vr(aV,2)}, v{vVm}, {WSR}, s{sVMo} offen {OPT.kmflag}"); V.add(("vm",0))
        prep=f"""
s_add_u32 s{sTagT}, s{sStep}, 1
s_and_b32 s{sTmp}, s{sTagT}, 1
s_bfe_u32 s{sTmp+1}, s{sTagT}, 0x10001
s_lshl_b32 s{sTmp+1}, s{sTmp+1}, 16
s_or_b32 s{sTmp+2}, s{sTmp}, s{sTmp+1}
s_and_b32 s{sTmp}, s{sTagT}, 3
s_lshl_b32 s{sTmp}, s{sTmp}, 14
s_add_u32 s{sH2pub}, s{sTmp}, s{sH2}
s_sub_u32 s{sH2gat}, s{sH2pub}, {L_MEMT}
s_add_u32 s{sTmp}, s{sStep}, 3
s_and_b32 s{sTmp}, s{sTmp}, 3
s_lshl_b32 s{sTmp}, s{sTmp}, 14
s_add_u32 s{sH2rst}, s{sTmp}, s{sH2}
"""
        if w<3:
            A(prep)
            A(f"ds_write_b128 v{vL16M}, {vr(vT,4)} offset:{SOFF+w*1024}"); L.add(("st",0))
            if w==0:
                A(f"s_mov_b64 exec, s[{sMaskLo}:{sMaskLo+1}]")
                for s in range(4):
                    A(f"buffer_store_dwordx4 {vr(vK+4*s,4)}, v{vKm}, {WSR}, s{sKMo} offen offset:{s*64} {OPT.kmflag}")
                A("s_mov_b64 exec, -1"); V.add(("km",0),4)
            L.drain()
        else:
            A(prep)
        A("s_barrier")
        self.stamp("B7")
        if w==3 and OPT.warm:
            for i,kk in enumerate(OPT.warmk):
                if kk==21: self.warm1(i)
        S=vA
        for t in (1,2,0):
            A(f"ds_read_b128 {vr(S+4*t,4)}, v{vL16M} offset:{SOFF+t*1024}"); L.add(("s",t))
        A(f"v_mov_b32 v{vTag}, s{sTmp+2}")
        prs=pairs(w)
        seq=[(j,P,s) for j,P in enumerate(prs) for s in range(4)]
        n=len(seq)
        m,mt=vT,vT+1
        L.wait(("s",2))
        A(f"v_max3_f32 v{m}, v{S+4}, v{S+5}, v{S+6}\nv_max3_f32 v{mt}, v{S+7}, v{S+8}, v{S+9}\nv_max3_f32 v{m}, v{m}, v{S+10}, v{S+11}")
        L.wait(("s",0))
        self.stamp("Srd")
        A(f"""
v_max3_f32 v{mt}, v{mt}, v{S}, v{S+1}
v_max3_f32 v{m}, v{m}, v{S+2}, v{S+3}
v_max_f32 v{m}, v{m}, v{mt}
v_mov_b32 v{mt}, v{m}
v_permlane32_swap_b32 v{m}, v{mt}
v_max_f32 v{m}, v{m}, v{mt}
v_mov_b32 v{mt}, v{m}
v_permlane16_swap_b32 v{m}, v{mt}
v_max_f32 v{m}, v{m}, v{mt}
v_mul_f32 v{mt}, s{sC}, v{m}
""")
        P=vK
        for i in range(4,12): A(f"v_fma_f32 v{S+i}, v{S+i}, s{sC}, -v{mt}")
        for i in range(4,12):
            A(f"v_exp_f32 v{S+i}, v{S+i}")
            if i in (6,8,10): A(f"v_cvt_pk_bf16_f32 v{P+(i-6)//2}, v{S+i-2}, v{S+i-1}")
        for i in range(4): A(f"v_fma_f32 v{S+i}, v{S+i}, s{sC}, -v{mt}")
        A(f"v_cvt_pk_bf16_f32 v{P+3}, v{S+10}, v{S+11}")
        self.stamp("exp")
        V.wait(("vx",0))
        A(f"v_mfma_f32_16x16x32_bf16 {vr(aQ,4)}, {vr(vV,4)}, {vr(P,4)}, 0")
        A(f"v_mfma_f32_16x16x32_bf16 {vr(aK,4)}, {vr(vV+4,4)}, {vr(P,4)}, 0")
        for i in range(4): A(f"v_exp_f32 v{S+i}, v{S+i}")
        l,lt=vT+2,vT+3
        A(f"""
v_add_f32 v{l}, v{S+4}, v{S+5}
v_add_f32 v{lt}, v{S+6}, v{S+7}
v_cvt_pk_bf16_f32 v{P+4}, v{S}, v{S+1}
v_cvt_pk_bf16_f32 v{P+5}, v{S+2}, v{S+3}
v_cndmask_b32 v{P+6}, 0, v{P+4}, s[{sMaskG}:{sMaskG+1}]
v_cndmask_b32 v{P+7}, 0, v{P+5}, s[{sMaskG}:{sMaskG+1}]
v_cndmask_b32 v{P+8}, v{P+4}, 0, s[{sMaskG}:{sMaskG+1}]
v_cndmask_b32 v{P+9}, v{P+5}, 0, s[{sMaskG}:{sMaskG+1}]
v_mfma_f32_16x16x16_bf16 {vr(aQ,4)}, {vr(aV,2)}, {vr(P+6,2)}, {vr(aQ,4)}
v_mfma_f32_16x16x16_bf16 {vr(aK,4)}, {vr(aV,2)}, {vr(P+8,2)}, {vr(aK,4)}
v_add_f32 v{l}, v{l}, v{S+8}
v_add_f32 v{lt}, v{lt}, v{S+9}
v_add_f32 v{l}, v{l}, v{S+10}
v_add_f32 v{lt}, v{lt}, v{S+11}
v_add_f32 v{mt}, v{S}, v{S+1}
v_add_f32 v{m}, v{S+2}, v{S+3}
v_add_f32 v{l}, v{l}, v{lt}
v_add_f32 v{mt}, v{mt}, v{m}
v_fma_f32 v{l}, v{mt}, 0.5, v{l}
v_mov_b32 v{lt}, v{l}
v_permlane32_swap_b32 v{l}, v{lt}
v_add_f32 v{l}, v{l}, v{lt}
v_mov_b32 v{lt}, v{l}
v_permlane16_swap_b32 v{l}, v{lt}
v_add_f32 v{l}, v{l}, v{lt}
v_rcp_f32 v{l}, v{l}
""")
        Bst=[vA,vA+8,vK]
        def wo_rd(i,half=None):
            j,Pp,s=seq[i]
            for hf in ((0,1) if half is None else (half,)):
                b,off=wo_addr(Pp,s,hf)
                A(f"ds_read_b128 {vr(Bst[i%3]+4*hf,4)}, v{b} offset:{off}"); L.add(("w",i))
        if n>0: wo_rd(0); wo_rd(1)
        for r in range(0,4,2):
            A(f"v_pk_mul_f32 {vr(aQ+r,2)}, {vr(aQ+r,2)}, {vr(l,2)} op_sel_hi:[1,0]")
            A(f"v_pk_mul_f32 {vr(aK+r,2)}, {vr(aK+r,2)}, {vr(l,2)} op_sel_hi:[1,0]")
        oA=[vV,vV+4,vK+8,vK+12]
        A(f"""
v_cvt_pk_bf16_f32 v{vT+4}, v{aQ}, v{aQ+1}
v_cvt_pk_bf16_f32 v{vT+5}, v{aQ+2}, v{aQ+3}
v_cvt_pk_bf16_f32 v{vT+6}, v{aK}, v{aK+1}
v_cvt_pk_bf16_f32 v{vT+7}, v{aK+2}, v{aK+3}
ds_write_b128 v{vL16M}, {vr(vT+4,4)} offset:{QOFF+w*1024}
""")
        L.add(("ow",0))
        self.stamp("owr")
        for r in range(4): A(f"v_mov_b32 v{aQ+r}, 0")
        for r in range(4): A(f"v_mov_b32 v{aK+r}, 0")
        L.drain()
        A("s_barrier")
        self.stamp("B8")
        if OPT.steplog and w==1: A("s_memrealtime s[92:93]")
        if n>0:
            for s in range(4):
                A(f"ds_read_b128 {vr(oA[s],4)}, v{vL16M} offset:{QOFF+s*1024}"); L.add(("o",s))
            wo_rd(2)
        def epi_parts(j):
            acc=aQ if j%2==0 else aK
            e=vT+2*(j%2)
            def st():
                A(f"s_add_u32 s{sTmp+3}, s{sH1}, {prs[j]*16384}")
                A(f"buffer_store_dwordx2 {vr(e,2)}, v{vH1st}, {WSR}, s{sTmp+3} offen"); V.add(("h1",j))
            return [lambda: A(f"v_cvt_pk_bf16_f32 v{e}, v{acc}, v{acc+1}"),
                    lambda: A(f"v_cvt_pk_bf16_f32 v{e+1}, v{acc+2}, v{acc+3}"),
                    lambda: A(f"v_and_or_b32 v{e}, v{e}, s{sMaskF}, v{vTag}"), st]
        for i,(j,Pp,s) in enumerate(seq):
            acc=aQ if j%2==0 else aK
            if j==0: L.wait(("o",s))
            L.wait(("w",i))
            A(f"v_smfmac_f32_16x16x64_bf16 {vr(acc,4)}, {vr(oA[s],4)}, {vr(Bst[i%3],8)}, v{vIdx}")
            if i+3<n: wo_rd(i+3)
            if j>0 and s==0:
                for f in epi_parts(j-1)[:2]: f()
            if j>0 and s==1:
                for f in epi_parts(j-1)[2:]: f()
            if s>=2 and j>=1 and j+1<len(prs):
                nacc=aQ if (j+1)%2==0 else aK
                for k_ in (0,1) if s==2 else (2,3): A(f"v_mov_b32 v{nacc+k_}, 0")
        early = self.rr is not None and w>=2 and OPT.red_early and not OPT.commwave
        if early:
            self.delay(OPT.d_red[self.rr])
            self.red_iss(vK)
        if n>0:
            for f in epi_parts(len(prs)-1): f()
        self.stamp("opend")
        if OPT.steplog and w==1: A("s_memrealtime s[98:99]")
        if self.rr is not None:
            lab=A.uid("L_nt")
            if w==1: A(f"s_cmp_eq_u32 s{sHasTask}, 1\ns_cbranch_scc0 {lab}")
            if early: self.red_poll(True,1)
            else:
                self.delay(OPT.d_red[self.rr])
                self.red_poll()
            if OPT.commwave and w==2:
                self.delay(OPT.d_red[self.rr+2])
                self.red_poll(second=True)
            A("s_waitcnt vmcnt(2)")
            A(f"{lab}:")
        self.stamp("redend")
        A(f"L_pre_{sid}:")
        self.zero_acc()
        A(f"""
s_add_u32 s{sStep}, s{sStep}, 1
s_add_u32 s{sKXo}, s{sKXo}, {0 if OPT.fixkv else KVS()}
s_add_u32 s{sVTo}, s{sVTo}, {0 if OPT.fixkv else KVS()}
s_add_u32 s{sKMo}, s{sKMo}, {0 if OPT.fixkm else KMS()}
s_add_u32 s{sVMo}, s{sVMo}, {0 if OPT.fixkm else KMS()}
s_add_u32 s{sTmp}, s{sStep}, {OPT.warmdist}
s_min_u32 s{sTmp}, s{sTmp}, 63
s_lshl_b32 s{sTmp}, s{sTmp}, {13 if OPT.hs else 18}
s_lshl_b32 s{sTmp+1}, s{sH}, {19 if OPT.hs else 13}
s_add_u32 s{sTmp}, s{sTmp}, s{sTmp+1}
s_add_u32 s{sWarmK}, s{sTmp}, {WS_KX-L_MEMT*4}
s_add_u32 s{sWarmV}, s{sTmp}, {WS_VT-L_MEMT*4}
""")
        if OPT.gmode=="joint":
            if w==0:
                self.delay(OPT.d_gat)
                self.gat_poll01()
        else:
            if w==0:
                self.delay(OPT.d_gat)
                self.gat_poll(0)
            if w==OPT.g1wave:
                self.delay(OPT.d_g1[self.rr%2] if self.rr is not None else OPT.d_g1[0])
                self.gat_poll(1)
        if w==3 and OPT.ki[0]<0:
            self.delay(OPT.d_g2[(self.rr or 0)%2])
            self.gat_issue(2,vK)
        self.stamp("gat0")
        A(f"s_barrier\ns_branch L_step_{sid}\n{last}:")
        A(f"v_cvt_pk_bf16_f32 v{aV}, v{aV}, v{aV+1}\nv_cvt_pk_bf16_f32 v{aV+1}, v{aV+2}, v{aV+3}")
        A(f"buffer_store_dwordx2 {vr(aV,2)}, v{vVm}, {WSR}, s{sVMo} offen {OPT.kmflag}")
        if w==0:
            A(f"ds_read_b64_tr_b16 {vr(vK+12,2)}, v{vTR} offset:{KOFF+3*512}\nds_read_b64_tr_b16 {vr(vK+14,2)}, v{vTR} offset:{KOFF+3*512+64}")
            A("s_waitcnt lgkmcnt(0)")
            A(f"s_mov_b64 exec, s[{sMaskLo}:{sMaskLo+1}]")
            for s in range(4):
                A(f"buffer_store_dwordx4 {vr(vK+4*s,4)}, v{vKm}, {WSR}, s{sKMo} offen offset:{s*64} {OPT.kmflag}")
            A("s_mov_b64 exec, -1")
        if OPT.fused:
            A("s_waitcnt vmcnt(0)\ns_barrier")
            if w==1:
                A(f"v_mov_b32 v{vT+5}, 64\ns_lshl_b32 s{sTmp+1}, s{sH}, 7\ns_add_u32 s{sTmp+1}, s{sTmp+1}, {cnt(C_PROG)}\ns_mov_b64 exec, 1\nbuffer_store_dword v{vT+5}, off, {WSR}, s{sTmp+1} sc1\ns_mov_b64 exec, -1")
        A("s_branch L_finish")
        for f in self.ool: f()

def emit_chain(A, nsteps=64, stamps=False, standalone=True, stamp_step=20):
    emit_setup(A, stamps)
    A(f"s_mov_b32 s{sStep}, -1")
    A(f"s_mov_b32 s{sKXo}, {WS_KX-(0 if OPT.fixkv else KVS())}\ns_mov_b32 s{sVTo}, {WS_VT-(0 if OPT.fixkv else KVS())}")
    A(f"s_lshl_b32 s{sTmp}, s{sH}, {17 if OPT.hs else 11}\ns_add_u32 s{sKMo}, s{sTmp}, {WS_KM-(0 if OPT.fixkm else KMS())}\ns_add_u32 s{sVMo}, s{sTmp}, {WS_VM-(0 if OPT.fixkm else KMS())}")
    A(f"s_sub_u32 s{sH2gat}, s{sH2}, {L_MEMT}")
    A(f"s_lshl_b32 s{sTmp+1}, s{sH}, {19 if OPT.hs else 13}\ns_add_u32 s{sTmp}, s{sTmp+1}, {2*KVS()}\ns_add_u32 s{sWarmK}, s{sTmp}, {WS_KX-L_MEMT*4}\ns_add_u32 s{sWarmV}, s{sTmp}, {WS_VT-L_MEMT*4}")
    if stamps: A(f"s_memtime s[94:95]\ns_waitcnt lgkmcnt(0)")
    variants=[("w0",0,None),("w1",1,4),("w2e",2,0),("w2o",2,1),("w3e",3,2),("w3o",3,3)]
    if OPT.commwave: variants=[("w0",0,None),("w1",1,4),("w2e",2,0),("w2o",2,1),("w3e",3,None)]
    A(f"""
s_cmp_eq_u32 s{sW}, 0
s_cbranch_scc1 L_pre_w0
s_cmp_eq_u32 s{sW}, 1
s_cbranch_scc1 L_pre_w1
s_and_b32 s{sTmp}, s{sH}, 1
s_lshl_b32 s{sTmp+1}, s{sW}, 1
s_add_u32 s{sTmp}, s{sTmp}, s{sTmp+1}
s_cmp_eq_u32 s{sTmp}, 4
s_cbranch_scc1 L_pre_w2e
s_cmp_eq_u32 s{sTmp}, 5
s_cbranch_scc1 L_pre_w2o
s_cmp_eq_u32 s{sTmp}, 6
s_cbranch_scc1 L_pre_w3e
s_branch {"L_pre_w3e" if OPT.commwave else "L_pre_w3o"}
""")
    A("L_code_begin:")
    nst=0
    for sid,w,rr in variants:
        st=Stream(A,w,rr,nsteps,stamps,stamp_step,sid); st.body(); nst=st.nst
    A("L_finish:")
    if stamps:
        A(f"s_memtime s[96:97]\ns_waitcnt vmcnt(0) lgkmcnt(0)\ns_sub_u32 s96, s96, s94")
        A(f"s_lshl_b32 s{sTmp}, s{sH}, 2\ns_add_u32 s{sTmp}, s{sTmp}, s{sW}\ns_lshl_b32 s{sTmp}, s{sTmp}, 7\ns_add_u32 s{sTmp}, s{sTmp}, {WS_STAMP}")
        A(f"v_mov_b32 v{vK}, s96\nv_mov_b32 v{vK+1}, s{sRetry}\nv_mov_b32 v{vK+2}, s{sRetry2}")
        A(f"s_sub_u32 s90, s90, s88\ns_sub_u32 s92, s92, s88\ns_sub_u32 s94, s94, s88\nv_mov_b32 v{vK+3}, s90\nv_mov_b32 v{vK+4}, s92\nv_mov_b32 v{vK+5}, s94\nv_mov_b32 v{vK+6}, 0\nv_mov_b32 v{vK+7}, 0")
        for i in range(16):
            A(f"v_mov_b32 v{vK+8+i}, s{sT0+2*i}")
        A(f"v_mov_b32 v{vT}, 0\ns_mov_b64 exec, 1")
        for j in range(6):
            A(f"buffer_store_dwordx4 {vr(vK+4*j,4)}, v{vT}, {WSR}, s{sTmp} offen offset:{16*j}")
        A("s_mov_b64 exec, -1")
        global STAMP_NAMES
        STAMP_NAMES=st.names
        print("stamps:",st.names)
    A("L_abort:\ns_waitcnt vmcnt(0)")
OPT.red_lag=1
```

```python
from asmlib import *
from layout import *
import struct, math
def fbits(x): return struct.unpack("<I",struct.pack("<f",x))[0]
def vr(a,n): return f"v[{a}:{a+n-1}]" if n>1 else f"v{a}"

sRank=10; sW=11; sWS=12; sXS=16; sWSRC=20
sT=24
sXo=36; sWo=37; sRd=38; sWr=39; sIt=40; sOut=41; sTask=42; sA=43; sB=44; sC=45; sD=46
sKarg=0
ST="sc1"
sP=60

def emit_worker_setup(A):
    A(f"""
s_load_dwordx2 s[{sWS}:{sWS+1}], s[0:1], {KA_WS}
v_lshrrev_b32 v1, 6, v0
v_and_b32 v0, 63, v0
v_readfirstlane_b32 s{sW}, v1
s_mov_b32 s{sWS+2}, {WS_SIZE}
s_mov_b32 s{sWS+3}, 0x20000
s_mov_b32 s{sXS+3}, 0x20000
s_mov_b32 s{sWSRC+3}, 0x20000
s_waitcnt lgkmcnt(0)
""")

def srd_from_karg(A, s, off, nbytes):
    A(f"s_load_dwordx2 s[{s}:{s+1}], s[0:1], {off}\ns_mov_b32 s{s+2}, {nbytes}\ns_waitcnt lgkmcnt(0)")
def srd_from_ws(A, s, off, nbytes):
    A(f"s_add_u32 s{s}, s{sWS}, {off}\ns_addc_u32 s{s+1}, s{sWS+1}, 0\ns_mov_b32 s{s+2}, {nbytes}")

def wave_allsum(A, v, t):
    for r in (8,4,2,1):
        A(f"v_add_f32_dpp v{v}, v{v}, v{v} row_ror:{r} row_mask:0xf bank_mask:0xf")
    A(f"v_mov_b32 v{t}, v{v}\nv_permlane16_swap_b32 v{v}, v{t}\nv_add_f32 v{v}, v{v}, v{t}")
    A(f"v_mov_b32 v{t}, v{v}\nv_permlane32_swap_b32 v{v}, v{t}\nv_add_f32 v{v}, v{v}, v{t}")
def rne_bf16(A, v):
    A(f"v_cvt_pk_bf16_f32 v{v}, v{v}, v{v}\nv_and_b32 v{v}, 0xffff0000, v{v}")
def ln_core(A, X, tmp, vMask):
    s,t,m,d=tmp,tmp+1,tmp+2,tmp+3
    A(f"v_add_f32 v{s}, v{X}, v{X+1}")
    for i in range(2,10): A(f"v_add_f32 v{s}, v{s}, v{X+i}")
    wave_allsum(A,s,t)
    A(f"v_mul_f32 v{s}, {hex(fbits(1.0/576))}, v{s}")
    A(f"v_sub_f32 v{d}, v{X}, v{s}\nv_mul_f32 v{m}, v{d}, v{d}")
    for i in range(1,8): A(f"v_sub_f32 v{d}, v{X+i}, v{s}\nv_fmac_f32 v{m}, v{d}, v{d}")
    for i in (8,9): A(f"v_sub_f32 v{d}, v{X+i}, v{s}\nv_mul_f32 v{d}, v{d}, v{vMask}\nv_fmac_f32 v{m}, v{d}, v{d}")
    wave_allsum(A,m,t)
    A(f"v_mul_f32 v{m}, {hex(fbits(1.0/576))}, v{m}")
    rne_bf16(A,m); rne_bf16(A,s)
    A(f"v_add_f32 v{m}, {hex(fbits(1e-5))}, v{m}"); rne_bf16(A,m)
    A(f"v_sqrt_f32 v{m}, v{m}"); rne_bf16(A,m)
    A(f"v_rcp_f32 v{m}, v{m}")
    for i in range(0,10,2):
        A(f"v_sub_f32 v{X+i}, v{X+i}, v{s}\nv_sub_f32 v{X+i+1}, v{X+i+1}, v{s}")
        A(f"v_cvt_pk_bf16_f32 v{d}, v{X+i}, v{X+i+1}")
        A(f"v_lshlrev_b32 v{X+i}, 16, v{d}\nv_and_b32 v{X+i+1}, 0xffff0000, v{d}")
        A(f"v_mul_f32 v{X+i}, v{X+i}, v{m}\nv_mul_f32 v{X+i+1}, v{X+i+1}, v{m}")
        A(f"v_cvt_pk_bf16_f32 v{d}, v{X+i}, v{X+i+1}")
        A(f"v_mov_b32 v{tmp+4+i//2}, v{d}")
        A(f"v_lshlrev_b32 v{X+i}, 16, v{d}\nv_and_b32 v{X+i+1}, 0xffff0000, v{d}")
    A(f"v_mul_f32 v{X+8}, v{X+8}, v{vMask}\nv_mul_f32 v{X+9}, v{X+9}, v{vMask}")

def emit_ln(A, NW, fused=False):
    nrow=(2048+NW*4-1)//(NW*4)
    srd_from_karg(A,sXS,KA_X,2048*1152)
    vO,vO2,vMask=2,3,4
    L=8
    A(f"""
v_lshlrev_b32 v{vO}, 4, v0
v_lshlrev_b32 v{vO2}, 2, v0
v_add_u32 v{vO2}, 1024, v{vO2}
v_mov_b32 v5, 0x7ff00000
v_cmp_gt_u32 vcc, 32, v0
v_cndmask_b32 v{vO2}, v5, v{vO2}, vcc
v_cndmask_b32 v{vMask}, 0, 1.0, vcc
s_lshl_b32 s{sA}, s{sRank}, 2
s_add_u32 s{sA}, s{sA}, s{sW}
""")
    for k in range(nrow):
        A(f"s_add_u32 s{sT}, s{sA}, {k*NW*4}\ns_mul_i32 s{sT}, s{sT}, 1152")
        A(f"buffer_load_dwordx4 {vr(L+8*k,4)}, v{vO}, s[{sXS}:{sXS+3}], s{sT} offen")
        A(f"buffer_load_dword v{L+8*k+4}, v{vO2}, s[{sXS}:{sXS+3}], s{sT} offen")
    X=40; tmp=52
    if fused:
        A(f"s_load_dwordx2 s[{sP+4}:{sP+5}], s[0:1], {KA_DBG}\ns_waitcnt lgkmcnt(0)\nv_mov_b32 v6, {DBG_INIT}")
    A("s_waitcnt vmcnt(0)")
    def signal_row(k):
        lab=A.uid("L_lns")
        A(f"s_add_u32 s{sT}, s{sA}, {k*NW*4}\ns_cmp_ge_u32 s{sT}, 2048\ns_cbranch_scc1 {lab}")
        A(f"s_lshr_b32 s{sT}, s{sT}, 7\ns_lshl_b32 s{sT}, s{sT}, 7\ns_add_u32 s{sT}, s{sT}, {cnt(C_LN)}")
        wave_signal(A,f"s{sT}")
        A(f"{lab}:")
    for k in range(nrow):
        lab=A.uid("L_ln")
        A(f"s_add_u32 s{sT}, s{sA}, {k*NW*4}\ns_cmp_ge_u32 s{sT}, 2048\ns_cbranch_scc1 {lab}")
        A(f"s_mul_i32 s{sT}, s{sT}, 1152")
        for i in range(5):
            A(f"v_lshlrev_b32 v{X+2*i}, 16, v{L+8*k+i}\nv_and_b32 v{X+2*i+1}, 0xffff0000, v{L+8*k+i}")
        for which,off in ((0,WS_XN),(1,WS_HH)):
            ln_core(A,X,tmp,vMask)
            A(f"s_add_u32 s{sT+1}, s{sT}, {off}")
            o=64+16*k+8*which
            for i in range(5): A(f"v_mov_b32 v{o+i}, v{tmp+4+i}")
            A(f"buffer_store_dwordx4 {vr(o,4)}, v{vO}, s[{sWS}:{sWS+3}], s{sT+1} offen {ST}")
            A(f"buffer_store_dword v{o+4}, v{vO2}, s[{sWS}:{sWS+3}], s{sT+1} offen {ST}")
        A(f"{lab}:")
        if fused and k==0:
            lp=A.uid("L_ini"); ok=A.uid("L_iok")
            A(f"s_mov_b32 s{sP+1}, 0\n{lp}:")
            A(f"global_load_dword v1, v6, s[{sP+4}:{sP+5}] sc1\ns_waitcnt vmcnt(0)\nv_readfirstlane_b32 s{sP+2}, v1")
            A(f"s_cmp_eq_u32 s{sP+2}, 1\ns_cbranch_scc1 {ok}\ns_add_u32 s{sP+1}, s{sP+1}, 1\ns_cmp_gt_u32 s{sP+1}, 4000000\ns_cbranch_scc1 L_abortw\ns_sleep 2\ns_branch {lp}\n{ok}:")
            signal_row(0)
    A("s_waitcnt vmcnt(0)")
    if fused:
        for k in range(1,nrow): signal_row(k)

class Gemm:
    pass

def gemm_mainloop(A, G, tag):
    SB=G.XB+G.WB
    def mf(buf,first):
        for wt in range(G.nWt):
            for xt in range(G.nXt):
                acc=vr(G.acc+16*(wt*G.nXt+xt),16)
                fx=vr(G.fX+buf*4*G.nXt+4*xt,4); fw=vr(G.fW+buf*4*G.nWt+4*wt,4)
                a,b=(fw,fx) if G.orient=="WX" else (fx,fw)
                A(f"v_mfma_f32_32x32x16_bf16 {acc}, {a}, {b}, {'0' if first else acc}")
    def adv(s):
        A(f"s_add_u32 s{s}, s{s}, {SB}\ns_cmp_eq_u32 s{s}, {3*SB}\ns_cselect_b32 s{s}, 0, s{s}")
    A("s_barrier")
    A(f"s_mov_b32 s{sWr}, 0\ns_mov_b32 s{sRd}, 0")
    G.dma(A,"w")
    if getattr(G,"dep",None) is not None: G.dep(A)
    G.dma(A,"x"); adv(sWr)
    for i in range(2):
        G.dma(A,"x"); G.dma(A,"w"); adv(sWr)
    A(f"s_waitcnt vmcnt({2*G.D})\ns_barrier")
    G.setaddr(A)
    G.reads(A,0,0)
    def body(first,label_sfx):
        for ks in range(3):
            A("s_waitcnt lgkmcnt(0)")
            G.reads(A,ks+1,(ks+1)%2)
            mf(ks%2, first and ks==0)
        A("s_waitcnt lgkmcnt(0)")
        l_last=A.uid("L_last"); l_nodma=A.uid("L_nodma"); l_w0=A.uid("L_w0"); l_wd=A.uid("L_wd")
        A(f"s_add_u32 s{sIt}, s{sIt}, 1")
        A(f"s_cmp_ge_u32 s{sIt}, {G.nst}\ns_cbranch_scc1 {l_last}")
        A(f"s_add_u32 s{sT}, s{sIt}, 1\ns_cmp_ge_u32 s{sT}, {G.nst}\ns_cbranch_scc1 {l_w0}")
        A(f"s_waitcnt vmcnt({G.D})\ns_branch {l_wd}\n{l_w0}:\ns_waitcnt vmcnt(0)\n{l_wd}:")
        A("s_barrier")
        A(f"s_add_u32 s{sT}, s{sIt}, 2\ns_cmp_ge_u32 s{sT}, {G.nst}\ns_cbranch_scc1 {l_nodma}")
        G.dma(A,"x"); G.dma(A,"w"); adv(sWr)
        A(f"{l_nodma}:")
        adv(sRd)
        G.setaddr(A)
        G.reads(A,0,0)
        A(f"{l_last}:")
        mf(1,False)
    A(f"s_mov_b32 s{sIt}, 0")
    body(True,"a")
    lp=A.uid("L_gl"); le=A.uid("L_ge")
    A(f"s_cmp_ge_u32 s{sIt}, {G.nst}\ns_cbranch_scc1 {le}")
    A(f"{lp}:")
    body(False,"b")
    A(f"s_cmp_lt_u32 s{sIt}, {G.nst}\ns_cbranch_scc1 {lp}")
    A(f"{le}:")
    A("s_nop 15")

def lane_consts(A, t):
    A(f"""
v_bfe_u32 v{t}, v0, 4, 1
v_bfe_u32 v{t+1}, v0, 5, 1
v_bfe_u32 v{t+2}, v0, 2, 2
v_and_b32 v{t+3}, 3, v0
""")

def w_strided_addr(A, dst, n, rowbytes, unit0_sgpr, xorshift_mode, t):
    lane_consts(A,t)
    A(f"""
v_lshl_add_u32 v{t+4}, v{t+1}, 3, v{t+2}
v_mul_u32_u24 v{t+4}, {rowbytes}, v{t+4}
v_and_b32 v{t+5}, 1, v{t+3}
v_lshl_add_u32 v{t+4}, v{t+5}, 3, v{t+4}
v_lshrrev_b32 v{t+5}, 1, v{t+3}
v_lshl_add_u32 v{t+5}, v{t}, 1, v{t+5}
v_add_u32 v{t+5}, s{unit0_sgpr}, v{t+5}
""")
    if xorshift_mode=="r2": A(f"v_lshlrev_b32 v{t+6}, 2, v{t+2}")
    else: A(f"v_lshrrev_b32 v{t+6}, 1, v{t+2}\nv_lshlrev_b32 v{t+6}, 2, v{t+6}")
    for i in range(n):
        A(f"v_add_u32 v{t+7}, {4*i}, v{t+5}\nv_xor_b32 v{t+7}, v{t+7}, v{t+6}\nv_lshl_add_u32 v{dst+i}, v{t+7}, 4, v{t+4}")

def x_contig_addr(A, dst, row0_sgpr, t):
    A(f"""
v_and_b32 v{t}, 31, v0
v_add_u32 v{t}, s{row0_sgpr}, v{t}
v_lshrrev_b32 v{t+1}, 5, v0
v_bfe_u32 v{t+2}, v{t}, 1, 3
v_lshlrev_b32 v{t}, 7, v{t}
""")
    for ks in range(4):
        A(f"v_add_u32 v{t+3}, {2*ks}, v{t+1}\nv_xor_b32 v{t+3}, v{t+3}, v{t+2}\nv_lshl_add_u32 v{dst+ks}, v{t+3}, 4, v{t}")

gDX=2
gDW=5
gAXc=8
gAWc=12
gAX=16; gAW=20
gT=24
gFX=32; gFW=64
gACC=128

def setaddr_generic(A,nX,nW,XB):
    for i in range(nX): A(f"v_add_u32 v{gAX+i}, s{sRd}, v{gAXc+i}")
    A(f"s_add_u32 s{sT+1}, s{sRd}, {XB}")
    for i in range(nW): A(f"v_add_u32 v{gAW+i}, s{sT+1}, v{gAWc+i}")

def pack_swap(A, acc, j, d):
    a=acc+8*j
    A(f"""
v_cvt_pk_bf16_f32 v{d}, v{a}, v{a+1}
v_cvt_pk_bf16_f32 v{d+1}, v{a+2}, v{a+3}
v_cvt_pk_bf16_f32 v{d+2}, v{a+4}, v{a+5}
v_cvt_pk_bf16_f32 v{d+3}, v{a+6}, v{a+7}
v_permlane32_swap_b32 v{d}, v{d+2}
v_permlane32_swap_b32 v{d+1}, v{d+3}
""")

def emit_g1(A,dep=None):
    G=Gemm(); G.nXt=2; G.nWt=4; G.XB=16384; G.WB=32768; G.nst=9; G.D=12; G.DX=4; G.dep=dep; G.fX=gFX; G.fW=gFW; G.acc=gACC
    t=gT
    srd_from_ws(A,sXS,WS_XN,2048*1152)
    A(f"s_lshl_b32 s{sT}, s{sA}, 3\ns_add_u32 s{sT}, s{sT}, {KA_WQ}\ns_load_dwordx2 s[{sWSRC}:{sWSRC+1}], s[0:1], s{sT}\ns_mov_b32 s{sWSRC+2}, {576*8192}")
    A(f"""
v_lshrrev_b32 v{t}, 3, v0
v_mul_u32_u24 v{t}, 1152, v{t}
v_and_b32 v{t+1}, 7, v0
v_lshrrev_b32 v{t+2}, 4, v0
v_xor_b32 v{t+3}, v{t+1}, v{t+2}
v_lshl_add_u32 v{gDX}, v{t+3}, 4, v{t}
v_xor_b32 v{t+3}, 4, v{t+3}
v_lshl_add_u32 v{gDX+1}, v{t+3}, 4, v{t}
v_lshrrev_b32 v{t}, 5, v0
v_lshlrev_b32 v{t+1}, 2, v{t}
v_lshlrev_b32 v{t}, 13, v{t}
v_and_b32 v{t+2}, 31, v0
v_xor_b32 v{t+3}, v{t+2}, v{t+1}
v_lshl_add_u32 v{gDW}, v{t+3}, 4, v{t}
v_xor_b32 v{t+3}, 8, v{t+3}
v_lshl_add_u32 v{gDW+1}, v{t+3}, 4, v{t}
""")
    A(f"""
s_lshl_b32 s{sT}, s{sB}, 7
s_lshl_b32 s{sT+1}, s{sW}, 5
s_add_u32 s{sT}, s{sT}, s{sT+1}
s_mul_i32 s{sXo}, s{sT}, 1152
s_lshl_b32 s{sWo}, s{sW}, 17
s_lshl_b32 s{sT}, s{sC}, 9
s_add_u32 s{sWo}, s{sWo}, s{sT}
""")
    A(f"s_and_b32 s{sT}, s{sW}, 1\ns_lshl_b32 s{sT}, s{sT}, 6")
    x_contig_addr(A,gAXc,sT,t)
    A(f"s_lshr_b32 s{sT}, s{sW}, 1\ns_lshl_b32 s{sT}, s{sT}, 4")
    w_strided_addr(A,gAWc,4,512,sT,"r2",t)
    def dma(A,part):
        if part=='x':
            for j in range(4):
                A(f"s_lshl_b32 s{sT+2}, s{sW}, 12\ns_add_u32 s{sT+2}, s{sT+2}, s{sWr}\ns_add_u32 m0, s{sT+2}, {j*1024}")
                A(f"s_add_u32 s{sT+3}, s{sXo}, {j*8*1152}")
                A(f"buffer_load_dwordx4 v{gDX+(j%2)}, s[{sXS}:{sXS+3}], s{sT+3} offen sc1 lds")
            A(f"s_add_u32 s{sXo}, s{sXo}, 128")
        else:
            for j in range(8):
                A(f"s_lshl_b32 s{sT+2}, s{sW}, 13\ns_add_u32 s{sT+2}, s{sT+2}, s{sWr}\ns_add_u32 m0, s{sT+2}, {16384+j*1024}")
                A(f"s_add_u32 s{sT+3}, s{sWo}, {j*2*8192}")
                A(f"buffer_load_dwordx4 v{gDW+(j%2)}, s[{sWSRC}:{sWSRC+3}], s{sT+3} offen lds")
            A(f"s_add_u32 s{sWo}, s{sWo}, {64*8192}")
    G.dma=dma
    G.setaddr=lambda A: setaddr_generic(A,4,4,G.XB)
    def reads(A,ks,buf):
        for xt in range(2):
            A(f"ds_read_b128 {vr(G.fX+buf*8+4*xt,4)}, v{gAX+ks} offset:{xt*4096}")
        for wt in range(4):
            for h in range(2):
                A(f"ds_read_b64_tr_b16 {vr(G.fW+buf*16+4*wt+2*h,2)}, v{gAW+wt} offset:{(16*ks+4*h)*512}")
    G.reads=reads
    A("s_waitcnt lgkmcnt(0)")
    lv=A.uid("L_g1v"); le=A.uid("L_g1e")
    A(f"s_cmp_eq_u32 s{sA}, 2\ns_cbranch_scc1 {lv}")
    G.orient="WX"
    gemm_mainloop(A,G,"g1k")
    A(f"""
s_cmp_eq_u32 s{sA}, 0
s_mov_b32 s{sOut}, {WS_KX}
s_cselect_b32 s{sOut}, {WS_QX}, s{sOut}
s_and_b32 s{sT}, s{sW}, 1
s_lshl_b32 s{sT}, s{sT}, 1
s_lshl_b32 s{sT+1}, s{sB}, 2
s_add_u32 s{sT}, s{sT}, s{sT+1}
s_lshl_b32 s{sT}, s{sT}, 18
s_add_u32 s{sOut}, s{sOut}, s{sT}
s_lshl_b32 s{sT}, s{sC}, 1
s_lshr_b32 s{sT+1}, s{sW}, 1
s_add_u32 s{sT}, s{sT}, s{sT+1}
s_lshl_b32 s{sT}, s{sT}, 13
s_add_u32 s{sOut}, s{sOut}, s{sT}
v_and_b32 v{t}, 31, v0
v_lshlrev_b32 v{t}, 4, v{t}
v_lshrrev_b32 v{t+1}, 5, v0
v_lshl_add_u32 v{t}, v{t+1}, 9, v{t}
""")
    n=0
    for xt in range(2):
        for wt in range(4):
            for j in range(2):
                d=gFX+4*(n%8); n+=1
                pack_swap(A,G.acc+16*(wt*2+xt),j,d)
                A(f"s_add_u32 s{sT}, s{sOut}, {xt*262144+(4*wt+2*j)*512}")
                A(f"buffer_store_dwordx4 {vr(d,4)}, v{t}, s[{sWS}:{sWS+3}], s{sT} offen {ST}")
    A(f"s_branch {le}")
    A(f"{lv}:")
    G.orient="XW"
    gemm_mainloop(A,G,"g1v")
    A(f"""
s_and_b32 s{sT}, s{sW}, 1
s_lshl_b32 s{sT}, s{sT}, 1
s_lshl_b32 s{sT+1}, s{sB}, 2
s_add_u32 s{sT}, s{sT}, s{sT+1}
s_lshl_b32 s{sT}, s{sT}, 18
s_add_u32 s{sOut}, s{sT}, {WS_VT}
s_lshl_b32 s{sT}, s{sC}, 1
s_lshr_b32 s{sT+1}, s{sW}, 1
s_add_u32 s{sT}, s{sT}, s{sT+1}
s_lshl_b32 s{sT}, s{sT}, 13
s_add_u32 s{sOut}, s{sOut}, s{sT}
v_and_b32 v{t}, 31, v0
v_lshlrev_b32 v{t}, 4, v{t}
v_lshrrev_b32 v{t+1}, 5, v0
v_lshl_add_u32 v{t}, v{t+1}, 11, v{t}
""")
    n=0
    for xt in range(2):
        for wt in range(4):
            a=G.acc+16*(wt*2+xt)
            for j in range(2):
                d=gFX+4*(n%8); n+=1
                A(f"""
v_cvt_pk_bf16_f32 v{d}, v{a+4*j}, v{a+4*j+1}
v_cvt_pk_bf16_f32 v{d+1}, v{a+4*j+2}, v{a+4*j+3}
v_cvt_pk_bf16_f32 v{d+2}, v{a+8+4*j}, v{a+8+4*j+1}
v_cvt_pk_bf16_f32 v{d+3}, v{a+8+4*j+2}, v{a+8+4*j+3}
s_add_u32 s{sT}, s{sOut}, {xt*262144+j*4096+wt*512}
buffer_store_dwordx4 {vr(d,4)}, v{t}, s[{sWS}:{sWS+3}], s{sT} offen {ST}
""")
    A(f"{le}:")
    A("s_waitcnt vmcnt(0)")

def emit_g2(A,dep=None):
    G=Gemm(); G.nXt=3; G.nWt=2; G.XB=24576; G.WB=16384; G.nst=32; G.D=10; G.DX=6; G.dep=dep; G.fX=gFX; G.fW=gFW; G.acc=gACC; G.orient="WX"
    t=gT
    srd_from_ws(A,sXS,WS_HH,2048*1152)
    srd_from_karg(A,sWSRC,KA_W1,2048*9216)
    for v in range(3):
        A(f"""
v_add_u32 v{t}, {64*v}, v0
v_mul_u32_u24 v{t+1}, 2731, v{t}
v_lshrrev_b32 v{t+1}, 16, v{t+1}
v_mul_u32_u24 v{t+2}, 24, v{t+1}
v_sub_u32 v{t+2}, v{t}, v{t+2}
v_bfe_u32 v{t+3}, v{t+1}, 1, 1
v_lshlrev_b32 v{t+3}, 2, v{t+3}
v_xor_b32 v{t+2}, v{t+2}, v{t+3}
v_mul_u32_u24 v{t+1}, 1152, v{t+1}
v_lshl_add_u32 v{gDX+v}, v{t+2}, 4, v{t+1}
""")
    for U in range(192): assert (U*2731)>>16==U//24
    A(f"""
v_lshrrev_b32 v{t}, 4, v0
v_lshlrev_b32 v{t+1}, 2, v{t}
v_mul_u32_u24 v{t}, 9216, v{t}
v_and_b32 v{t+2}, 15, v0
v_xor_b32 v{t+2}, v{t+2}, v{t+1}
v_lshl_add_u32 v{gDW}, v{t+2}, 4, v{t}
s_mul_i32 s{sXo}, s{sW}, {16*1152}
s_mul_i32 s{sT}, s{sA}, 384
s_add_u32 s{sXo}, s{sXo}, s{sT}
s_mul_i32 s{sWo}, s{sW}, {16*9216}
s_lshl_b32 s{sT}, s{sB}, 8
s_add_u32 s{sWo}, s{sWo}, s{sT}
s_and_b32 s{sT}, s{sW}, 1
s_mul_i32 s{sT}, s{sT}, 12
""")
    w_strided_addr(A,gAXc,3,384,sT,"rhi",t)
    A(f"s_lshr_b32 s{sT}, s{sW}, 1\ns_lshl_b32 s{sT}, s{sT}, 3")
    w_strided_addr(A,gAWc,2,256,sT,"r2",t)
    def dma(A,part):
        if part=='x':
            for j in range(6):
                A(f"s_mul_i32 s{sT+2}, s{sW}, 6144\ns_add_u32 s{sT+2}, s{sT+2}, s{sWr}\ns_add_u32 m0, s{sT+2}, {j*1024}")
                A(f"s_add_u32 s{sT+3}, s{sXo}, {(j//3)*8*1152}")
                A(f"buffer_load_dwordx4 v{gDX+(j%3)}, s[{sXS}:{sXS+3}], s{sT+3} offen sc1 lds")
            A(f"s_add_u32 s{sXo}, s{sXo}, {64*1152}")
        else:
            for j in range(4):
                A(f"s_lshl_b32 s{sT+2}, s{sW}, 12\ns_add_u32 s{sT+2}, s{sT+2}, s{sWr}\ns_add_u32 m0, s{sT+2}, {24576+j*1024}")
                A(f"s_add_u32 s{sT+3}, s{sWo}, {j*4*9216}")
                A(f"buffer_load_dwordx4 v{gDW}, s[{sWSRC}:{sWSRC+3}], s{sT+3} offen lds")
            A(f"s_add_u32 s{sWo}, s{sWo}, {64*9216}")
    G.dma=dma
    G.setaddr=lambda A: setaddr_generic(A,3,2,G.XB)
    def reads(A,ks,buf):
        for xt in range(3):
            for h in range(2):
                A(f"ds_read_b64_tr_b16 {vr(G.fX+buf*12+4*xt+2*h,2)}, v{gAX+xt} offset:{(16*ks+4*h)*384}")
        for wt in range(2):
            for h in range(2):
                A(f"ds_read_b64_tr_b16 {vr(G.fW+buf*8+4*wt+2*h,2)}, v{gAW+wt} offset:{(16*ks+4*h)*256}")
    G.reads=reads
    gemm_mainloop(A,G,"g2")
    srd_from_karg(A,sXS,KA_B1,4608*2)
    A(f"""
s_lshl_b32 s{sT}, s{sB}, 7
s_lshr_b32 s{sT+1}, s{sW}, 1
s_lshl_b32 s{sT+1}, s{sT+1}, 6
s_add_u32 s{sA+3}, s{sT}, s{sT+1}
s_lshl_b32 s{sT}, s{sA+3}, 1
v_lshrrev_b32 v{t}, 5, v0
v_lshlrev_b32 v{t}, 3, v{t}
""")
    Bv=gFW
    for wt in range(2):
        for m in range(4):
            A(f"buffer_load_dwordx2 {vr(Bv+2*(4*wt+m),2)}, v{t}, s[{sXS}:{sXS+3}], s{sT} offen offset:{(32*wt+8*m)*2}")
    A("s_waitcnt vmcnt(0)")
    Bf=gFX
    for i in range(16):
        A(f"v_lshlrev_b32 v{Bf+2*i}, 16, v{Bv+i}\nv_and_b32 v{Bf+2*i+1}, 0xffff0000, v{Bv+i}")
    A(f"""
s_lshr_b32 s{sT}, s{sD}, 3
s_mul_i32 s{sOut}, s{sT}, {576*16}
s_mul_i32 s{sT}, s{sA}, {192*16}
s_add_u32 s{sOut}, s{sOut}, s{sT}
s_and_b32 s{sT}, s{sW}, 1
s_mul_i32 s{sT}, s{sT}, {96*16}
s_add_u32 s{sOut}, s{sOut}, s{sT}
s_add_u32 s{sOut}, s{sOut}, {WS_U}
v_and_b32 v{t}, 31, v0
v_lshlrev_b32 v{t}, 4, v{t}
v_lshrrev_b32 v{t+1}, 5, v0
v_mul_u32_u24 v{t+1}, {576*16}, v{t+1}
v_add_u32 v{t}, v{t}, v{t+1}
s_mov_b32 s{sT+4}, {hex(fbits(0.044715))}
s_mov_b32 s{sT+5}, {hex(fbits(-2.0*math.sqrt(2.0/math.pi)*math.log2(math.e)))}
""")
    x,y=t+2,t+3
    n=0
    for wt in range(2):
        for xt in range(3):
            a=G.acc+16*(wt*3+xt)
            for i in range(16):
                A(f"v_add_f32 v{a+i}, v{a+i}, v{Bf+16*wt+i}")
                A(f"v_mul_f32 v{x}, v{a+i}, v{a+i}")
                A(f"v_mul_f32 v{x}, s{sT+4}, v{x}")
                A(f"v_fma_f32 v{x}, v{x}, v{a+i}, v{a+i}")
                A(f"v_mul_f32 v{x}, s{sT+5}, v{x}")
                A(f"v_exp_f32 v{x}, v{x}")
                A(f"v_add_f32 v{x}, 1.0, v{x}")
                A(f"v_rcp_f32 v{x}, v{x}")
                A(f"v_mul_f32 v{a+i}, v{a+i}, v{x}")
            for j in range(2):
                d=gFW+4*(n%8); n+=1
                pack_swap(A,a,j,d)
                A(f"s_add_u32 s{sT}, s{sOut}, {((32*wt+16*j)//8)*576*16+xt*32*16}")
                A(f"buffer_store_dwordx4 {vr(d,4)}, v{t}, s[{sWS}:{sWS+3}], s{sT} offen {ST}")
    A("s_waitcnt vmcnt(0)")

def emit_g3(A,dep=None):
    G=Gemm(); G.nXt=3; G.nWt=2; G.XB=24576; G.WB=16384; G.nst=18; G.D=10; G.DX=6; G.dep=dep; G.fX=gFX; G.fW=gFW; G.acc=gACC; G.orient="XW"
    t=gT
    srd_from_ws(A,sXS,WS_U,576*576*16)
    srd_from_karg(A,sWSRC,KA_W2,4608*4096)
    A(f"""
v_lshrrev_b32 v{t}, 3, v0
v_lshlrev_b32 v{t}, 4, v{t}
v_and_b32 v{t+1}, 7, v0
v_lshrrev_b32 v{t+2}, 4, v0
v_xor_b32 v{t+3}, v{t+1}, v{t+2}
v_mul_u32_u24 v{t+4}, {576*16}, v{t+3}
v_add_u32 v{gDX}, v{t+4}, v{t}
v_xor_b32 v{t+3}, 4, v{t+3}
v_mul_u32_u24 v{t+4}, {576*16}, v{t+3}
v_add_u32 v{gDX+1}, v{t+4}, v{t}
v_lshrrev_b32 v{t}, 4, v0
v_lshlrev_b32 v{t+1}, 2, v{t}
v_lshlrev_b32 v{t}, 12, v{t}
v_and_b32 v{t+2}, 15, v0
v_xor_b32 v{t+2}, v{t+2}, v{t+1}
v_lshl_add_u32 v{gDW}, v{t+2}, 4, v{t}
s_mul_i32 s{sXo}, s{sC}, {144*576*16}
s_mul_i32 s{sT}, s{sA}, {192*16}
s_add_u32 s{sXo}, s{sXo}, s{sT}
s_mul_i32 s{sT}, s{sW}, {48*16}
s_add_u32 s{sXo}, s{sXo}, s{sT}
s_mul_i32 s{sWo}, s{sC}, {1152*4096}
s_lshl_b32 s{sT}, s{sW}, 16
s_add_u32 s{sWo}, s{sWo}, s{sT}
s_lshl_b32 s{sT}, s{sB}, 8
s_add_u32 s{sWo}, s{sWo}, s{sT}
s_and_b32 s{sT}, s{sW}, 1
s_mul_i32 s{sT}, s{sT}, 96
""")
    x_contig_addr(A,gAXc,sT,t)
    A(f"s_lshr_b32 s{sT}, s{sW}, 1\ns_lshl_b32 s{sT}, s{sT}, 3")
    w_strided_addr(A,gAWc,2,256,sT,"r2",t)
    def dma(A,part):
        if part=='x':
            for j in range(6):
                A(f"s_mul_i32 s{sT+2}, s{sW}, 6144\ns_add_u32 s{sT+2}, s{sT+2}, s{sWr}\ns_add_u32 m0, s{sT+2}, {j*1024}")
                A(f"s_add_u32 s{sT+3}, s{sXo}, {j*8*16}")
                A(f"buffer_load_dwordx4 v{gDX+(j%2)}, s[{sXS}:{sXS+3}], s{sT+3} offen sc1 lds")
            A(f"s_add_u32 s{sXo}, s{sXo}, {8*576*16}")
        else:
            for j in range(4):
                A(f"s_lshl_b32 s{sT+2}, s{sW}, 12\ns_add_u32 s{sT+2}, s{sT+2}, s{sWr}\ns_add_u32 m0, s{sT+2}, {24576+j*1024}")
                A(f"s_add_u32 s{sT+3}, s{sWo}, {j*4*4096}")
                A(f"buffer_load_dwordx4 v{gDW}, s[{sWSRC}:{sWSRC+3}], s{sT+3} offen lds")
            A(f"s_add_u32 s{sWo}, s{sWo}, {64*4096}")
    G.dma=dma
    G.setaddr=lambda A: setaddr_generic(A,4,2,G.XB)
    def reads(A,ks,buf):
        for xt in range(3):
            A(f"ds_read_b128 {vr(G.fX+buf*12+4*xt,4)}, v{gAX+ks} offset:{xt*4096}")
        for wt in range(2):
            for h in range(2):
                A(f"ds_read_b64_tr_b16 {vr(G.fW+buf*8+4*wt+2*h,2)}, v{gAW+wt} offset:{(16*ks+4*h)*256}")
    G.reads=reads
    gemm_mainloop(A,G,"g3")
    srd_from_karg(A,sXS,KA_B2,2048*2)
    A(f"""
s_lshl_b32 s{sT}, s{sB}, 7
s_lshr_b32 s{sT+1}, s{sW}, 1
s_lshl_b32 s{sT+1}, s{sT+1}, 6
s_add_u32 s{sD}, s{sT}, s{sT+1}
s_lshl_b32 s{sT}, s{sD}, 1
v_and_b32 v{t}, 31, v0
v_lshlrev_b32 v{t}, 1, v{t}
buffer_load_ushort v{t+4}, v{t}, s[{sXS}:{sXS+3}], s{sT} offen
buffer_load_ushort v{t+5}, v{t}, s[{sXS}:{sXS+3}], s{sT} offen offset:64
s_lshr_b32 s{sT}, s{sD}, 4
s_mul_i32 s{sOut}, s{sT}, {36*1024}
s_mul_i32 s{sT}, s{sA}, {12*1024}
s_add_u32 s{sOut}, s{sOut}, s{sT}
s_and_b32 s{sT}, s{sW}, 1
s_mul_i32 s{sT}, s{sT}, {6*1024}
s_add_u32 s{sOut}, s{sOut}, s{sT}
s_add_u32 s{sT}, s{sC}, 8
s_mul_i32 s{sT}, s{sT}, {P_SLAB}
s_add_u32 s{sOut}, s{sOut}, s{sT}
s_add_u32 s{sOut}, s{sOut}, {WS_P}
v_and_b32 v{t}, 15, v0
v_lshlrev_b32 v{t}, 4, v{t}
v_lshrrev_b32 v{t+1}, 5, v0
v_lshl_add_u32 v{t}, v{t+1}, 8, v{t}
v_bfe_u32 v{t+1}, v0, 4, 1
v_mul_u32_u24 v{t+1}, {36*1024}, v{t+1}
v_add_u32 v{t}, v{t}, v{t+1}
s_cmp_eq_u32 s{sC}, 0
s_cselect_b32 s{sT+6}, -1, 0
s_waitcnt vmcnt(0)
v_lshlrev_b32 v{t+4}, 16, v{t+4}
v_lshlrev_b32 v{t+5}, 16, v{t+5}
v_and_b32 v{t+4}, s{sT+6}, v{t+4}
v_and_b32 v{t+5}, s{sT+6}, v{t+5}
""")
    for wt in range(2):
        for xt in range(3):
            a=G.acc+16*(wt*3+xt)
            for i in range(16): A(f"v_add_f32 v{a+i}, v{a+i}, v{t+4+wt}")
            for m in range(4):
                A(f"s_add_u32 s{sT}, s{sOut}, {wt*2*36*1024+(2*xt+(m>>1))*1024+(m&1)*512}")
                A(f"buffer_store_dwordx4 {vr(a+4*m,4)}, v{t}, s[{sWS}:{sWS+3}], s{sT} offen {ST}")
    A("s_waitcnt vmcnt(0)")

def wg_wait_cnt(A, off_sgpr_or_const, target, label="L_abortw"):
    done=A.uid("L_wd"); lp=A.uid("L_wp")
    A(f"s_cmp_lg_u32 s{sW}, 0\ns_cbranch_scc1 {done}")
    if isinstance(off_sgpr_or_const,int): A(f"s_mov_b32 s{sP}, {off_sgpr_or_const}")
    else: A(f"s_mov_b32 s{sP}, {off_sgpr_or_const}")
    A(f"s_mov_b32 s{sP+1}, 0\n{lp}:")
    A(f"buffer_load_dword v1, off, s[{sWS}:{sWS+3}], s{sP} sc1\ns_waitcnt vmcnt(0)\nv_readfirstlane_b32 s{sP+2}, v1")
    A(f"s_cmp_ge_u32 s{sP+2}, {target}\ns_cbranch_scc1 {done}")
    A(f"s_add_u32 s{sP+1}, s{sP+1}, 1\ns_cmp_gt_u32 s{sP+1}, 4000000\ns_cbranch_scc1 {label}\ns_sleep 4\ns_branch {lp}")
    A(f"{done}:\ns_barrier")
def wg_signal(A, off_expr):
    done=A.uid("L_sg")
    A(f"s_barrier\ns_cmp_lg_u32 s{sW}, 0\ns_cbranch_scc1 {done}")
    A(f"s_mov_b32 s{sP}, {off_expr}\nv_mov_b32 v1, 1\ns_mov_b64 exec, 1\nbuffer_atomic_add v1, off, s[{sWS}:{sWS+3}], s{sP}\ns_mov_b64 exec, -1")
    A(f"{done}:")
def wave_signal(A, off_expr):
    A(f"s_mov_b32 s{sP}, {off_expr}\nv_mov_b32 v1, 1\ns_mov_b64 exec, 1\nbuffer_atomic_add v1, off, s[{sWS}:{sWS+3}], s{sP}\ns_mov_b64 exec, -1")

def wg_wait_multi(A, base_expr, n, target_expr, label="L_abortw"):
    done=A.uid("L_wd"); lp=A.uid("L_wp")
    A(f"s_cmp_lg_u32 s{sW}, 0\ns_cbranch_scc1 {done}")
    A(f"s_mov_b32 s{sP}, {base_expr}\ns_mov_b32 s{sP+3}, {target_expr}\ns_mov_b32 s{sP+1}, 0")
    A(f"v_min_u32 v1, {n-1}, v0\nv_lshlrev_b32 v1, 7, v1\n{lp}:")
    A(f"buffer_load_dword v250, v1, s[{sWS}:{sWS+3}], s{sP} offen sc1\ns_waitcnt vmcnt(0)")
    A(f"v_cmp_gt_u32 vcc, s{sP+3}, v250\ns_cbranch_vccz {done}")
    A(f"s_add_u32 s{sP+1}, s{sP+1}, 1\ns_cmp_gt_u32 s{sP+1}, 4000000\ns_cbranch_scc1 {label}\ns_sleep 4\ns_branch {lp}")
    A(f"{done}:\ns_barrier")
```

```python
import os
import sys, os; sys.path.insert(0,'gen')
from asmlib import *
from layout import *
import role, chain3 as chain, workers as Wk, p4
NAME="parallel_sum__memory_aug_recurrent_mem_tr__mixer_token_mlp__prompt"
sT=Wk.sT; sA,sB,sC,sD=Wk.sA,Wk.sB,Wk.sC,Wk.sD; sW=Wk.sW; sRank=Wk.sRank; sWS=Wk.sWS
sTask=Wk.sTask
sPrev=47; sSeg=48; sKc=49
NW=224; NG=7
def build(chopt=""):
    for kv in chopt.split(";"):
        if "=" in kv:
            k,v=kv.split("="); setattr(chain.OPT,k,eval(v))
    chain.OPT.fused=True
    if os.environ.get("PROF","0")=="1": chain.OPT.steplog=True
    A=Asm()
    prof=os.environ.get("PROF","0") in ("1","2")
    if prof: A("s_memrealtime s[94:95]")
    role.emit_entry(A)
    A(f"s_cmp_ge_u32 s5, 32\ns_cbranch_scc1 L_exit\ns_cmp_eq_u32 s4, 0\ns_cbranch_scc0 L_work\ns_mov_b32 s{chain.sH}, s5")
    chain.emit_chain(A,nsteps=64,stamps=("total" if os.environ.get("PROF","0")=="2" else False))
    A("s_endpgm\nL_work:")
    A(f"s_sub_u32 s{sRank}, s4, 1\ns_lshl_b32 s{sRank}, s{sRank}, 5\ns_add_u32 s{sRank}, s{sRank}, s5")
    Wk.emit_worker_setup(A)
    Wk.emit_ln(A,NW,fused=True)
    if prof: A("s_memrealtime s[70:71]")
    A(f"s_mov_b32 s{sTask}, s{sRank}\ns_branch L_dispatch")
    A("L_next:")
    A(f"""
s_barrier
s_cmp_lg_u32 s{sW}, 0
s_cbranch_scc1 L_tk2
s_mov_b32 s60, {cnt(C_QUEUE)}
v_mov_b32 v1, 1
s_mov_b64 exec, 1
buffer_atomic_add v1, off, s[{sWS}:{sWS+3}], s60 sc0
s_waitcnt vmcnt(0)
v_mov_b32 v2, 160000
ds_write_b32 v2, v1
s_waitcnt lgkmcnt(0)
s_mov_b64 exec, -1
L_tk2:
s_barrier
v_mov_b32 v2, 160000
ds_read_b32 v1, v2
s_waitcnt lgkmcnt(0)
v_readfirstlane_b32 s{sTask}, v1
s_add_u32 s{sTask}, s{sTask}, {NW}
L_dispatch:
s_cmp_ge_u32 s{sTask}, 1068
s_cbranch_scc1 L_p4
s_cmp_lt_u32 s{sTask}, 512
s_cbranch_scc1 L_t_kv
s_cmp_lt_u32 s{sTask}, 620
s_cbranch_scc1 L_t_g2
s_cmp_lt_u32 s{sTask}, 876
s_cbranch_scc1 L_t_q
s_branch L_t_g3
L_t_q:
s_sub_u32 s{sT}, s{sTask}, 620
s_mov_b32 s{sA}, 0
s_lshr_b32 s{sB}, s{sT}, 4
s_and_b32 s{sC}, s{sT}, 15
s_branch L_t_g1
L_t_kv:
s_lshr_b32 s{sB}, s{sTask}, 5
s_bfe_u32 s{sA}, s{sTask}, 0x10004
s_add_u32 s{sA}, s{sA}, 1
s_and_b32 s{sC}, s{sTask}, 15
L_t_g1:
""")
    def dep1(A):
        A(f"s_lshl_b32 s76, s{sB}, 7\ns_add_u32 s76, s76, {cnt(C_LN)}")
        Wk.wg_wait_cnt(A,"s76",128)
    Wk.emit_g1(A,dep1)
    A(f"s_cmp_eq_u32 s{sA}, 0\ns_mov_b32 s{sT}, {cnt(C_KV)}\ns_cselect_b32 s{sT}, {cnt(C_Q)}, s{sT}\ns_lshl_b32 s{sT+1}, s{sB}, 7\ns_add_u32 s{sT}, s{sT}, s{sT+1}")
    Wk.wg_signal(A,f"s{sT}")
    A("s_branch L_next\nL_t_g2:")
    A(f"s_sub_u32 s{sB}, s{sTask}, 512\ns_mul_i32 s{sA}, s{sB}, 1821\ns_lshr_b32 s{sA}, s{sA}, 16\ns_mul_i32 s{sT}, s{sA}, 36\ns_sub_u32 s{sB}, s{sB}, s{sT}")
    Wk.emit_g2(A,lambda A: Wk.wg_wait_multi(A,cnt(C_LN),16,128))
    A(f"s_mul_i32 s{sT}, s{sB}, 7282\ns_lshr_b32 s{sT}, s{sT}, 16\ns_lshl_b32 s{sT+1}, s{sA}, 2\ns_add_u32 s{sT}, s{sT}, s{sT+1}\ns_lshl_b32 s{sT}, s{sT}, 7\ns_add_u32 s{sT}, s{sT}, {cnt(C_U)}")
    for x in range(36): assert (x*7282)>>16==x//9
    Wk.wg_signal(A,f"s{sT}")
    A("s_branch L_next\nL_t_g3:")
    A(f"s_sub_u32 s{sT}, s{sTask}, 876\ns_and_b32 s{sC}, s{sT}, 3\ns_bfe_u32 s{sB}, s{sT}, 0x40002\ns_lshr_b32 s{sA}, s{sT}, 6")
    def dep3(A):
        A(f"s_lshl_b32 s76, s{sA}, 2\ns_add_u32 s76, s76, s{sC}\ns_lshl_b32 s76, s76, 7\ns_add_u32 s76, s76, {cnt(C_U)}")
        Wk.wg_wait_cnt(A,"s76",9)
    Wk.emit_g3(A,dep3)
    A(f"s_lshl_b32 s{sT}, s{sB}, 7\ns_add_u32 s{sT}, s{sT}, {cnt(C_Y)}")
    Wk.wg_signal(A,f"s{sT}")
    A("s_branch L_next")
    A("L_p4:")
    if prof: A("s_memrealtime s[72:73]")
    A(f"s_and_b32 s{sA}, s{sRank}, 7\ns_bfe_u32 s{sB}, s{sRank}, 0x20003\ns_lshr_b32 s{sSeg}, s{sRank}, 5\ns_mov_b32 s{sPrev}, -1")
    p4.emit_p4_setup(A)
    Wk.srd_from_karg(A,Wk.sXS,KA_X,2048*1152); Wk.srd_from_karg(A,Wk.sWSRC,KA_OUT,2048*1152)
    def combine():
        skip=A.uid("L_cs")
        A(f"s_cmp_lt_i32 s{sPrev}, 0\ns_cbranch_scc1 {skip}")
        A(f"s_lshl_b32 s{sT}, s{sPrev}, 7\ns_add_u32 s{sT}, s{sT}, {cnt(C_SEG)}")
        Wk.wg_wait_cnt(A,f"s{sT}",32)
        A(f"s_lshr_b32 s{sT}, s{sPrev}, 2\ns_lshl_b32 s{sT}, s{sT}, 7\ns_add_u32 s{sT}, s{sT}, {cnt(C_Y)}")
        Wk.wg_wait_cnt(A,f"s{sT}",12)
        A(f"s_lshl_b32 s{sT+8}, s{sA}, 2\ns_add_u32 s{sT+8}, s{sT+8}, s{sW}\ns_cmp_ge_u32 s{sT+8}, 18\ns_cbranch_scc1 {skip}")
        A(f"s_cmp_ge_u32 s{sT+8}, 9\ns_cselect_b32 s{sT+9}, 1, 0\ns_mul_i32 s{sT+10}, s{sT+9}, 9\ns_sub_u32 s{sT+8}, s{sT+8}, s{sT+10}")
        A(f"s_lshl_b32 s{sC}, s{sPrev}, 1\ns_add_u32 s{sC}, s{sC}, s{sT+9}\ns_mul_i32 s{sD}, s{sB}, 9\ns_add_u32 s{sD}, s{sD}, s{sT+8}")
        p4.emit_combine_tile(A)
        A(f"{skip}:")
    A("L_p4loop:")
    combine()
    A(f"s_lshr_b32 s{sT}, s{sSeg}, 2\ns_lshl_b32 s{sT}, s{sT}, 7\ns_add_u32 s{sT}, s{sT}, {cnt(C_Q)}")
    Wk.wg_wait_cnt(A,f"s{sT}",16)
    A(f"s_lshr_b32 s{sT}, s{sSeg}, 2\ns_lshl_b32 s{sT}, s{sT}, 7\ns_add_u32 s{sT}, s{sT}, {cnt(C_KV)}")
    Wk.wg_wait_cnt(A,f"s{sT}",32)
    A(f"s_mov_b32 s{sC}, s{sSeg}")
    def between(A):
        A(f"s_lshl_b32 s68, s{sA}, 9\ns_add_u32 s68, s68, {cnt(C_PROG)}\ns_add_u32 s69, s{sSeg}, 1")
        Wk.wg_wait_multi(A,"s68",4,"s69")
    p4.emit_p4_segment(A,0,between)
    A("s_waitcnt vmcnt(0)")
    A(f"s_lshl_b32 s{sT}, s{sSeg}, 7\ns_add_u32 s{sT}, s{sT}, {cnt(C_SEG)}")
    Wk.wg_signal(A,f"s{sT}")
    A(f"s_mov_b32 s{sPrev}, s{sSeg}\ns_add_u32 s{sSeg}, s{sSeg}, {NG}\ns_cmp_lt_u32 s{sSeg}, 64\ns_nop 7\ns_cbranch_scc1 L_p4loop")
    combine()
    A("L_abortw:\ns_waitcnt vmcnt(0)")
    if prof:
        A(f"""s_memrealtime s[74:75]
s_load_dwordx2 s[6:7], s[0:1], {KA_WS}
s_waitcnt lgkmcnt(0)
s_add_u32 s6, s6, {WS_STAMP+0x10000}
s_addc_u32 s7, s7, 0
s_lshl_b32 s8, s{sRank}, 4
v_mov_b32 v1, s8
v_mov_b32 v2, s94
v_mov_b32 v3, s70
v_mov_b32 v4, s72
v_mov_b32 v5, s74
global_store_dwordx4 v1, v[2:5], s[6:7]
s_waitcnt vmcnt(0)""")
    A("L_exit:\ns_endpgm")
    lines=fix_hazards(A.lines,True)
    if os.environ.get('ALIGN','3')!='0': lines=align_runs(lines,int(os.environ.get('ALIGN','3')),0,True)
    hdr=open('cdna_kernels/'+NAME+'.s.ref').read().split("; Override")[0]
    name=NAME+"_kernel"
    t=hdr+f"; @launch kernel={name} grid=(256,1,1) block=(256,1,1) lds=163840\n"
    t+=f'.amdgcn_target "amdgcn-amd-amdhsa--gfx950"\n.text\n.globl {name}\n.p2align 8\n.type {name},@function\n{name}:\n'
    t+="\n".join(lines)+"\n"
    t+=f""".section .rodata,"a"
.p2align 6
.amdhsa_kernel {name}
  .amdhsa_next_free_vgpr 512
  .amdhsa_next_free_sgpr 102
  .amdhsa_accum_offset 256
  .amdhsa_group_segment_fixed_size 0
  .amdhsa_kernarg_size 120
  .amdhsa_user_sgpr_count 2
  .amdhsa_user_sgpr_kernarg_segment_ptr 1
  .amdhsa_system_sgpr_workgroup_id_x 1
.end_amdhsa_kernel
"""
    return t
if __name__=="__main__":
    opt=os.environ.get("CHOPT","nred=2;red_gap=40;npoll=3;poll_gap=25;d_gat=60;d_red=[0,5,0,30,30];d_g1=[30,25];red_early=False;warmk=[7,8,9,10];kvmode='spread';ki=[0,1,3];prewarm=True;codewarm=3")
    open(sys.argv[1],"w").write(build(opt))
```

```python
from asmlib import *
from layout import *
import struct, math
def fbits(x): return struct.unpack("<I",struct.pack("<f",x))[0]

vLane=0; vL16M=1; vTR=2; vIdx=3; vWo=4
vH1st=7; vRed=8; vPub=9; vKx=10; vVx=11; vKm=12; vVm=13; vQw=14; vTag=15
vSel=16
vK=20
vV=36
aQ=44; aK=48; aV=52
vA=56
vT=72
def Wq(s): return f"a[{8*s}:{8*s+7}]"
def Wk(s):
    if s<14: return f"a[{144+8*s}:{144+8*s+7}]"
    return f"v[{80+8*(s-14)}:{80+8*(s-14)+7}]"
def Wv(s): return f"v[{112+8*s}:{112+8*s+7}]"
def Wreg(mat,s,q):
    if mat==0: return f"a[{8*s+2*q}:{8*s+2*q+1}]"
    if mat==1:
        if s<14: return f"a[{144+8*s+2*q}:{144+8*s+2*q+1}]"
        return f"v[{80+8*(s-14)+2*q}:{80+8*(s-14)+2*q+1}]"
    return f"v[{112+8*s+2*q}:{112+8*s+2*q+1}]"
def vr(a,n): return f"v[{a}:{a+n-1}]"

sH=10; sW=11; sWS=12; sWT=16
sStep=20
sKXo=21; sVTo=22; sKMo=23; sVMo=24; sH2pub=25; sH2gat=26; sH2rst=27; sH1=28; sH2=29
sTask=30; sHasTask=31; sTagT=32
sTmp=33
sDbg=40; sKarg=42
sRetry=44; sRetry2=45
sMaskF=46
sC=47
sMaskLo=48; sMaskPub=50; sMaskG=52
sWarmK=54; sWarmV=55
sT0=56
WSR=f"s[{sWS}:{sWS+3}]"
QOFF=L_QT-L_MEMT; KOFF=L_KT-L_MEMT; SOFF=L_ST-L_MEMT

class Opt:
    d_red=[0,0,0,0,0]
    d_gat=0
    warm=True
    pmode=0
    d_g1m=120
    prewarm=False
    codewarm=0
    commwave=False
    d_g2=[70,10]
    pd=2
    fused=False
    gmode='split'
    g1wave=2
    kvmode='burst'
    spec1=False
    hs=False
    warmk=[7,7,7,7]
    kvx=3
    warmflag=''
    warmdist=2
    fixkv=False
    fixkm=False
    kmflag='sc1'
    steplog=False
    nred=2
    red_gap=24
    ki=[0,2,6]
    d_g1=[80,40]
    npoll=3
    poll_gap=16
    red_early=True
    clk='s_memtime'
OPT=Opt()
def KVS(): return 8192 if OPT.hs else 262144
def KMS(): return 2048 if OPT.hs else 65536

def emit_setup(A, stamps):
    A(f"""
s_mov_b32 s{sKarg}, s0
s_mov_b32 s{sKarg+1}, s1
s_load_dwordx2 s[{sDbg}:{sDbg+1}], s[0:1], {KA_DBG}
s_load_dwordx2 s[{sWS}:{sWS+1}], s[0:1], {KA_WS}
v_lshrrev_b32 v{vT}, 6, v0
v_and_b32 v{vLane}, 63, v0
v_readfirstlane_b32 s{sW}, v{vT}
s_mov_b32 s{sWS+2}, {WS_SIZE}
s_mov_b32 s{sWS+3}, 0x20000
s_mov_b32 s{sWT+3}, 0x20000
s_mov_b32 s{sH1}, {WS_H1}
s_mov_b32 s{sH2}, {WS_H2}
s_mov_b32 s{sMaskLo}, 0x00ff00ff
s_mov_b32 s{sMaskLo+1}, 0x00ff00ff
s_mov_b32 s{sMaskPub}, 0x00ff00ff
s_mov_b32 s{sMaskPub+1}, 0
s_mov_b32 s{sMaskG}, -1
s_mov_b32 s{sMaskG+1}, 0
s_mov_b32 s{sRetry}, 0
s_mov_b32 s{sRetry2}, 0
s_mov_b32 s{sMaskF}, 0xfffefffe
s_mov_b32 s{sC}, {hex(fbits(128**-0.5*math.log2(math.e)))}
""")
    t0,t1,t2,t3=vT,vT+1,vT+2,vT+3
    if stamps: A("s_memtime s[88:89]")
    if OPT.fused:
        A(f"""
s_cmp_eq_u32 s{sH}, 0
s_cbranch_scc0 L_noclr
s_waitcnt lgkmcnt(0)
v_lshlrev_b32 v{vA}, 4, v{vLane}
v_mov_b32 v{vA+4}, 0
v_mov_b32 v{vA+5}, 0
v_mov_b32 v{vA+6}, 0
v_mov_b32 v{vA+7}, 0
s_mul_i32 s{sTmp}, s{sW}, 6144
s_add_u32 s{sTmp}, s{sTmp}, {WS_CNT}
""")
        for j in range(6):
            A(f"buffer_store_dwordx4 {vr(vA+4,4)}, v{vA}, {WSR}, s{sTmp} offen sc1\ns_add_u32 s{sTmp}, s{sTmp}, 1024")
        A(f"""
s_waitcnt vmcnt(0)
s_barrier
s_cmp_eq_u32 s{sW}, 0
s_cbranch_scc0 L_noclr
v_mov_b32 v{vA}, {DBG_INIT}
v_mov_b32 v{vA+1}, 1
s_mov_b64 exec, 1
global_store_dword v{vA}, v{vA+1}, s[{sDbg}:{sDbg+1}] sc1
s_mov_b64 exec, -1
L_noclr:
""")
    A(f"""
v_lshlrev_b32 v{vL16M}, 4, v{vLane}
v_add_u32 v{vL16M}, {L_MEMT}, v{vL16M}
v_lshrrev_b32 v{t0}, 4, v{vLane}
v_lshlrev_b32 v{t0}, 7, v{t0}
v_bfe_u32 v{t1}, v{vLane}, 2, 2
v_lshl_add_u32 v{t0}, v{t1}, 4, v{t0}
v_and_b32 v{t1}, 1, v{vLane}
v_lshl_add_u32 v{t0}, v{t1}, 3, v{t0}
v_add_u32 v{vTR}, {L_MEMT}, v{t0}
v_and_b32 v{t0}, 8, v{vLane}
v_cmp_ne_u32 vcc, 0, v{t0}
v_mov_b32 v{t0}, 0x4444
v_mov_b32 v{t1}, 0xeeee
v_cndmask_b32 v{vIdx}, v{t0}, v{t1}, vcc
""")
    A(f"""
v_lshlrev_b32 v{vWo}, 4, v{vLane}
v_add_u32 v{vWo+1}, 49152, v{vWo}
v_add_u32 v{vWo+2}, 98304, v{vWo}
""")
    A(f"""
v_bfe_u32 v{t0}, v{vLane}, 5, 1
v_lshlrev_b32 v{t0}, 1, v{t0}
v_bfe_u32 v{t1}, v{vLane}, 3, 1
v_add_u32 v{t0}, v{t0}, v{t1}
v_lshlrev_b32 v{t0}, 12, v{t0}
v_and_b32 v{t1}, 7, v{vLane}
v_lshl_add_u32 v{t0}, v{t1}, 4, v{t0}
v_bfe_u32 v{t1}, v{vLane}, 4, 1
v_lshl_add_u32 v{t0}, v{t1}, 3, v{t0}
s_lshl_b32 s{sTmp+1}, s{sH}, 7
v_add_u32 v{vH1st}, s{sTmp+1}, v{t0}
""")
    A(f"""
s_and_b32 s{sTmp}, s{sH}, 1
s_sub_u32 s{sTmp+1}, s{sW}, 2
s_lshl_b32 s{sTmp+1}, s{sTmp+1}, 1
s_add_u32 s{sTmp}, s{sTmp}, s{sTmp+1}
s_lshl_b32 s{sTmp}, s{sTmp}, 4
s_lshr_b32 s{sTmp+1}, s{sH}, 1
s_add_u32 s{sTask}, s{sTmp}, s{sTmp+1}
s_mov_b32 s{sHasTask}, 1
s_cmp_ge_u32 s{sW}, 2
s_cbranch_scc1 L_task_done
s_lshr_b32 s{sTask}, s{sH}, 2
s_add_u32 s{sTask}, s{sTask}, 64
s_and_b32 s{sTmp}, s{sH}, 3
s_cmp_eq_u32 s{sTmp}, 0
s_cselect_b32 s{sHasTask}, 1, 0
s_cmp_eq_u32 s{sW}, 1
s_cselect_b32 s{sHasTask}, s{sHasTask}, 0
s_cmp_eq_u32 s{sHasTask}, 1
s_cselect_b32 s{sTask}, s{sTask}, 0
L_task_done:
s_lshl_b32 s{sTmp}, s{sTask}, 12
v_lshlrev_b32 v{t0}, 4, v{vLane}
v_add_u32 v{vRed}, s{sTmp}, v{t0}
s_lshl_b32 s{sTmp}, s{sTask}, 7
v_and_b32 v{t0}, 7, v{vLane}
v_lshlrev_b32 v{t0}, 4, v{t0}
v_lshrrev_b32 v{t1}, 4, v{vLane}
v_lshl_add_u32 v{t0}, v{t1}, 3, v{t0}
v_add_u32 v{vPub}, s{sTmp}, v{t0}
v_and_b32 v{t0}, 15, v{vLane}
s_add_u32 s{sTmp}, s{sW}, 3
s_and_b32 s{sTmp}, s{sTmp}, 1
s_lshl_b32 s{sTmp}, s{sTmp}, 4
v_add_u32 v{t0}, s{sTmp}, v{t0}
v_lshlrev_b32 v{t0}, 4, v{t0}
v_lshrrev_b32 v{t1}, 4, v{vLane}
v_lshl_add_u32 v{t0}, v{t1}, 9, v{t0}
s_lshl_b32 s{sTmp}, s{sH}, {19 if OPT.hs else 13}
v_add_u32 v{vKx}, s{sTmp}, v{t0}
v_and_b32 v{t0}, 15, v{vLane}
v_lshlrev_b32 v{t0}, 4, v{t0}
v_lshl_add_u32 v{t0}, v{t1}, 11, v{t0}
s_lshl_b32 s{sTmp}, s{sH}, {19 if OPT.hs else 13}
s_lshl_b32 s{sTmp+1}, s{sW}, 9
s_add_u32 s{sTmp}, s{sTmp}, s{sTmp+1}
v_add_u32 v{vVx}, s{sTmp}, v{t0}
v_and_b32 v{t0}, 7, v{vLane}
v_lshlrev_b32 v{t0}, 8, v{t0}
v_lshl_add_u32 v{vKm}, v{t1}, 4, v{t0}
v_and_b32 v{t0}, 15, v{vLane}
v_bfe_u32 v{t1}, v{vLane}, 5, 1
v_lshl_add_u32 v{t0}, v{t1}, 4, v{t0}
s_lshl_b32 s{sTmp}, s{sW}, 5
v_add_u32 v{t0}, s{sTmp}, v{t0}
v_lshlrev_b32 v{t0}, 4, v{t0}
v_bfe_u32 v{t1}, v{vLane}, 4, 1
v_lshl_add_u32 v{vVm}, v{t1}, 3, v{t0}
v_add_u32 v{vQw}, {L_QT}, v{vVm}
""")
    A(f"v_and_b32 v{t0}, 7, v{vLane}")
    for j in range(4):
        A(f"""
v_mov_b32 v{vSel+j}, 0
v_cmp_eq_u32 vcc, {2*j}, v{t0}
v_mov_b32 v{t1}, 0x3f80
v_cndmask_b32 v{vSel+j}, v{vSel+j}, v{t1}, vcc
v_cmp_eq_u32 vcc, {2*j+1}, v{t0}
v_mov_b32 v{t1}, 0x3f800000
v_cndmask_b32 v{vSel+j}, v{vSel+j}, v{t1}, vcc
""")
    A("s_waitcnt lgkmcnt(0)")
    vW0,vW1,vWoD=vA+4,vA+5,vA+6
    A(f"""
v_lshrrev_b32 v{t0}, 4, v{vLane}
v_and_b32 v{t1}, 1, v{t0}
v_lshlrev_b32 v{t1}, 2, v{t1}
v_and_b32 v{t2}, 15, v{vLane}
v_xor_b32 v{t2}, v{t2}, v{t1}
v_lshlrev_b32 v{t0}, 13, v{t0}
s_lshl_b32 s{sTmp}, s{sH}, 8
s_lshl_b32 s{sTmp+1}, s{sW}, 17
s_add_u32 s{sTmp}, s{sTmp}, s{sTmp+1}
v_add_u32 v{t0}, s{sTmp}, v{t0}
v_lshl_add_u32 v{vW0}, v{t2}, 4, v{t0}
v_xor_b32 v{t2}, 8, v{t2}
v_lshl_add_u32 v{vW1}, v{t2}, 4, v{t0}
""")
    def dma_chunk(c):
        slot=c%9
        if c<27:
            r0=64*(c%9)
            for j in range(4):
                A(f"s_lshl_b32 s{sTmp}, s{sW}, 12\ns_add_u32 m0, s{sTmp}, {slot*16384+j*1024}")
                A(f"s_mov_b32 s{sTmp+1}, {(r0+4*j)*8192}")
                A(f"buffer_load_dwordx4 v{vW0 if j%2==0 else vW1}, s[{sWT}:{sWT+3}], s{sTmp+1} offen lds")
        else:
            cc=c-27
            for j in range(4):
                A(f"s_lshl_b32 s{sTmp}, s{sW}, 2\ns_add_u32 s{sTmp}, s{sTmp}, {16*cc+j}\ns_lshl_b32 s{sTmp}, s{sTmp}, 6")
                A(f"v_add_u32 v{t0}, s{sTmp}, v{vLane}")
                A(f"v_mul_u32_u24 v{t1}, 58255, v{t0}\nv_lshrrev_b32 v{t1}, 26, v{t1}\nv_and_b32 v{t1}, 1, v{t1}\nv_lshlrev_b32 v{t1}, 2, v{t1}\nv_xor_b32 v{t0}, v{t0}, v{t1}\nv_lshlrev_b32 v{vWoD}, 4, v{t0}")
                A(f"s_lshl_b32 s{sTmp}, s{sW}, 12\ns_add_u32 m0, s{sTmp}, {slot*16384+j*1024}")
                A(f"buffer_load_dwordx4 v{vWoD}, s[{sWT}:{sWT+3}], 0 offen lds")
    def set_wsrd(c):
        if c in (0,9,18):
            A(f"s_load_dwordx2 s[{sWT}:{sWT+1}], s[{sKarg}:{sKarg+1}], {[KA_WQ,KA_WK,KA_WV][c//9]}\ns_mov_b32 s{sWT+2}, {576*8192}\ns_waitcnt lgkmcnt(0)")
        if c==27:
            A(f"s_load_dwordx2 s[{sWT}:{sWT+1}], s[{sKarg}:{sKarg+1}], {KA_WO}\ns_waitcnt lgkmcnt(0)")
            A(f"s_mul_i32 s{sTmp}, s{sH}, 147456\ns_add_u32 s{sWT}, s{sWT}, s{sTmp}\ns_addc_u32 s{sWT+1}, s{sWT+1}, 0\ns_mov_b32 s{sWT+2}, 147456")
    vWr=vA+7
    A(f"""
v_lshrrev_b32 v{t0}, 4, v{vLane}
v_bfe_u32 v{t1}, v{vLane}, 2, 1
v_lshl_add_u32 v{t2}, v{t0}, 2, v{t1}
v_lshlrev_b32 v{t2}, 8, v{t2}
v_and_b32 v{t0}, 1, v{t0}
v_lshl_add_u32 v{t0}, v{t0}, 1, v{t1}
v_lshlrev_b32 v{t0}, 2, v{t0}
v_bfe_u32 v{t1}, v{vLane}, 3, 1
v_lshlrev_b32 v{t1}, 1, v{t1}
v_bfe_u32 v{t3}, v{vLane}, 1, 1
v_add_u32 v{t1}, v{t1}, v{t3}
s_lshl_b32 s{sTmp}, s{sW}, 2
v_add_u32 v{t1}, s{sTmp}, v{t1}
v_xor_b32 v{t1}, v{t1}, v{t0}
v_lshl_add_u32 v{t2}, v{t1}, 4, v{t2}
v_and_b32 v{t3}, 1, v{vLane}
v_lshl_add_u32 v{vWr}, v{t3}, 3, v{t2}
v_add_u32 v{vWr+1}, 65536, v{vWr}
v_add_u32 v{vWr+2}, 131072, v{vWr}
""")
    A(f"""
s_load_dwordx2 s[60:61], s[{sKarg}:{sKarg+1}], {KA_MEM0}
s_mov_b32 s62, 9216
s_mov_b32 s63, 0x20000
v_lshrrev_b32 v{vA}, 4, v{vLane}
v_and_b32 v{vA}, 1, v{vA}
v_mul_u32_u24 v{vA}, {4*1152}, v{vA}
v_and_b32 v{vA+1}, 7, v{vLane}
v_lshl_add_u32 v{vA}, v{vA+1}, 1, v{vA}
s_lshl_b32 s{sTmp}, s{sTask}, 4
s_waitcnt lgkmcnt(0)
""")
    for r in range(4):
        A(f"buffer_load_ushort v{vK+r}, v{vA}, s[60:63], s{sTmp} offen offset:{r*1152}")
    A(f"v_mov_b32 v{vT+4}, 0\nv_mov_b32 v{vT+5}, 0\nv_mov_b32 v{vT+6}, -1\nv_mov_b32 v{vT+7}, -1")
    A(f"s_lshl_b32 s{sTmp+2}, s{sW}, 14\ns_add_u32 s{sTmp+2}, s{sTmp+2}, s{sH1}")
    for r in range(4):
        A(f"s_add_u32 s{sTmp}, s{sTmp+2}, {r*65536}")
        A(f"buffer_store_dwordx2 {vr(vT+4,2)}, v{vH1st}, {WSR}, s{sTmp} offen")
    A(f"s_cmp_lt_u32 s{sW}, 2\ns_cbranch_scc0 L_clr1_skip")
    A(f"s_add_u32 s{sTmp}, s{sTmp+2}, {4*65536}")
    A(f"buffer_store_dwordx2 {vr(vT+4,2)}, v{vH1st}, {WSR}, s{sTmp} offen")
    A("L_clr1_skip:")
    A(f"s_cmp_eq_u32 s{sHasTask}, 1\ns_cbranch_scc0 L_clr2_skip")
    A(f"s_mov_b64 exec, s[{sMaskPub}:{sMaskPub+1}]")
    for sl in range(1,4):
        A(f"s_add_u32 s{sTmp}, s{sH2}, {sl*16384}")
        A(f"buffer_store_dwordx2 {vr(vT+6,2)}, v{vPub}, {WSR}, s{sTmp} offen")
    A("s_waitcnt vmcnt(0)")
    A(f"v_lshl_or_b32 v{vK}, v{vK+1}, 16, v{vK}\nv_lshl_or_b32 v{vK+1}, v{vK+3}, 16, v{vK+2}\nv_min_u32 v{vK}, -2, v{vK}")
    A(f"buffer_store_dwordx2 {vr(vK,2)}, v{vPub}, {WSR}, s{sH2} offen")
    A("s_mov_b64 exec, -1\nL_clr2_skip:")
    if OPT.codewarm:
        A(f"""
s_getpc_b64 s[64:65]
L_pcref:
s_add_u32 s64, s64, L_code_begin-L_pcref
s_addc_u32 s65, s65, 0
v_lshlrev_b32 v{vT+7}, 6, v{vLane}
s_lshl_b32 s{sTmp}, s{sW}, 12
v_add_u32 v{vT+7}, s{sTmp}, v{vT+7}
""")
        for j in range(OPT.codewarm):
            A(f"global_load_dword v{vA+1}, v{vT+7}, s[64:65]\nv_add_u32 v{vT+7}, 16384, v{vT+7}")
    DEPTH=8
    set_wsrd(0)
    for c in range(DEPTH): dma_chunk(c)
    A(f"s_waitcnt vmcnt({DEPTH*4})")
    A(f"""
s_waitcnt lgkmcnt(0)
s_barrier
s_cmp_eq_u32 s{sW}, 0
s_cbranch_scc0 L_cb_skip
v_mov_b32 v{vT}, 64
v_mov_b32 v{vT+1}, 1
s_mov_b64 exec, 1
global_atomic_add v{vT}, v{vT+1}, s[{sDbg}:{sDbg+1}]
s_mov_b64 exec, -1
L_cb_skip:
""")
    if stamps: A("s_memtime s[90:91]")
    for c in range(27):
        nxt=c+DEPTH
        A(f"s_waitcnt vmcnt({(DEPTH-1)*4 - (1 if c<8 else 0)})" if False else f"s_waitcnt vmcnt({(DEPTH-1)*4})")
        A("s_barrier")
        if nxt<36:
            set_wsrd(nxt); dma_chunk(nxt)
        mat=c//9; slot=c%9
        for ks in range(2):
            s=2*(c%9)+ks
            for q in range(4):
                off=slot*16384+ks*8192+(2*(q&1)+16*(q>>1))*256
                base=vWr+off//65536; off%=65536
                A(f"ds_read_b64_tr_b16 {Wreg(mat,s,q)}, v{base} offset:{off}")
        A("s_waitcnt lgkmcnt(0)")
        A("s_barrier")
    dma_chunk(35)
    A("s_waitcnt vmcnt(0)\ns_barrier")
    vC=vA+10
    A(f"""
v_bfe_u32 v{t0}, v{vLane}, 4, 1
v_bfe_u32 v{t1}, v{vLane}, 5, 1
v_lshlrev_b32 v{t2}, 4, v{t0}
v_lshl_add_u32 v{t2}, v{t1}, 2, v{t2}
v_bfe_u32 v{t3}, v{vLane}, 2, 1
v_add_u32 v{t2}, v{t2}, v{t3}
v_mul_u32_u24 v{t2}, 1152, v{t2}
v_xor_b32 v{t0}, s{sW}, v{t0}
v_lshl_add_u32 v{t2}, v{t0}, 6, v{t2}
v_bfe_u32 v{t3}, v{vLane}, 3, 1
v_lshl_add_u32 v{t2}, v{t3}, 5, v{t2}
v_and_b32 v{t3}, 3, v{vLane}
v_lshl_add_u32 v{vC}, v{t3}, 3, v{t2}
v_add_u32 v{vC+1}, 73728, v{vC}
s_lshl_b32 s{sTmp}, s{sW}, 11
v_add_u32 v{vC+2}, s{sTmp}, v{vWo}
v_add_u32 v{vC+3}, s{sTmp}, v{vWo+1}
v_add_u32 v{vC+4}, s{sTmp}, v{vWo+2}
""")
    for s in range(4):
        base=vC if s<2 else vC+1
        lab=A.uid("L_cv"); lab2=A.uid("L_cw")
        for r in range(5):
            if r==4: A(f"s_cmp_lt_u32 s{sW}, 2\ns_cbranch_scc0 {lab}")
            for q in range(4):
                off=(s%2)*36864+(2*(q&1)+8*(q>>1))*1152+r*256
                A(f"ds_read_b64_tr_b16 {vr(vK-0+8*r+2*q,2)}, v{base} offset:{off}")
            if r%2==1: A("s_waitcnt lgkmcnt(0)")
        A(f"{lab}:\ns_waitcnt lgkmcnt(0)\ns_barrier")
        for r in range(5):
            if r==4: A(f"s_cmp_lt_u32 s{sW}, 2\ns_cbranch_scc0 {lab2}")
            for half in range(2):
                off=s*36864+r*8192+half*1024
                A(f"ds_write_b128 v{vC+2+off//49152}, {vr(vK+8*r+4*half,4)} offset:{off%49152}")
        A(f"{lab2}:\ns_waitcnt lgkmcnt(0)\ns_barrier")
    if stamps: A("s_memtime s[92:93]")
    A(f"""
s_cmp_eq_u32 s{sW}, 0
s_cbranch_scc0 L_cb_wait
v_mov_b32 v{vT}, 64
s_mov_b32 s{sTmp}, 0
L_cb_poll:
global_load_dword v{vT+2}, v{vT}, s[{sDbg}:{sDbg+1}] sc1
s_waitcnt vmcnt(0)
v_readfirstlane_b32 s{sTmp+1}, v{vT+2}
s_add_u32 s{sTmp}, s{sTmp}, 1
s_cmp_gt_u32 s{sTmp}, 2000000
s_cbranch_scc1 L_abort
s_cmp_ge_u32 s{sTmp+1}, 32
s_cbranch_scc0 L_cb_poll
""")
    if OPT.fused and stamps: A("s_memtime s[90:91]")
    if OPT.fused:
        A(f"""
s_mov_b32 s{sTmp+2}, {cnt(C_KV)}
L_kv_poll:
buffer_load_dword v{vT+2}, off, {WSR}, s{sTmp+2} sc1
s_waitcnt vmcnt(0)
v_readfirstlane_b32 s{sTmp+1}, v{vT+2}
s_add_u32 s{sTmp}, s{sTmp}, 1
s_cmp_gt_u32 s{sTmp}, 4000000
s_cbranch_scc1 L_abort
s_sleep 1
s_cmp_ge_u32 s{sTmp+1}, 32
s_cbranch_scc0 L_kv_poll
""")
    A(f"""
L_cb_wait:
s_barrier
""")
    if OPT.fused:
        A(f"s_cmp_eq_u32 s{sW}, 3\ns_cbranch_scc0 L_nf\nv_mov_b32 v10, 32\nL_nf:")
    if OPT.prewarm:
        A(f"v_lshlrev_b32 v{vT+7}, 2, v{vL16M}\ns_lshl_b32 s{sTmp}, s{sH}, 13\ns_lshl_b32 s{sTmp+1}, s{sW}, 12\ns_and_b32 s{sTmp+1}, s{sTmp+1}, 4096\ns_add_u32 s{sTmp}, s{sTmp}, s{sTmp+1}")
        A(f"s_cmp_lt_u32 s{sW}, 2\ns_mov_b32 s{sTmp+2}, {WS_VT-L_MEMT*4}\ns_cselect_b32 s{sTmp+2}, {WS_KX-L_MEMT*4}, s{sTmp+2}\ns_add_u32 s{sTmp}, s{sTmp}, s{sTmp+2}")
        for sg in range(2):
            A(f"buffer_load_dword v0, v{vT+7}, {WSR}, s{sTmp} offen\ns_add_u32 s{sTmp}, s{sTmp}, 262144")
        A("s_waitcnt vmcnt(0)")

PAIRS=[[0,4,8,12,16],[1,5,9,13,17],[2,6,10],[3,7,11,15,14]]
PAIRS_C=[[0,3,6,9,12,15],[1,4,7,10,13,16],[],[2,5,8,11,14,17]]
PAIRS_D=[[0,4,8,10,14,17],[1,5,9,12,15],[2,6],[3,7,11,13,16]]
PAIRS_E=[[0,4,8,12,16],[1,5,9,13,17],[2,6],[3,7,10,11,14,15]]
def pairs(w): return PAIRS_C[w] if OPT.commwave==True else {0:PAIRS,1:PAIRS_D,2:PAIRS_E}[OPT.pmode][w]
def wo_addr(P, s, half):
    off=s*36864+P*2048+half*1024
    return vWo+off//49152, off%49152

class Cnt:
    def __init__(self,A,name,maxn): self.A=A; self.q=[]; self.name=name; self.maxn=maxn
    def add(self,tag,n=1):
        self.q+= [tag]*n
        assert len(self.q)<=self.maxn, (self.name,self.q)
    def wait(self,tag):
        if tag not in self.q: return
        idx=max(i for i,x in enumerate(self.q) if x==tag)
        self.A(f"s_waitcnt {self.name}({len(self.q)-idx-1})"); del self.q[:idx+1]
    def drain(self):
        self.A(f"s_waitcnt {self.name}(0)"); self.q=[]
    def clear(self): self.q=[]

class Stream:
    def __init__(self, A, w, red_round, nsteps, stamps, stamp_step, sid):
        self.A=A; self.w=w; self.rr=red_round; self.nsteps=nsteps; self.stamps=stamps; self.sid=sid
        self.nst=0; self.names=[]
        self.L=Cnt(A,"lgkmcnt",15); self.V=Cnt(A,"vmcnt",63)
        self.ool=[]
    def stamp(self,name=""):
        if self.stamps==True:
            self.A(f"{OPT.clk} s[{sT0+2*self.nst}:{sT0+2*self.nst+1}]"); self.names.append(name); self.nst+=1
            assert self.nst<=16
    def delay(self,d):
        while d>0: self.A(f"s_nop {min(d,16)-1}"); d-=16
    def trr1(self,dst,off,tag):
        self.A(f"ds_read_b64_tr_b16 {vr(dst,2)}, v{vTR} offset:{off}"); self.L.add(tag)
    def trr(self,dst,off,tag):
        self.trr1(dst,off,tag); self.trr1(dst+2,off+64,tag)
    def gat_issue(self,r,b,tag=None):
        A=self.A
        A(f"s_add_u32 s{sTmp}, s{sH2gat}, {r*2048}")
        A(f"buffer_load_dwordx4 {vr(b,4)}, v{vL16M}, {WSR}, s{sTmp} offen sc1")
        if r<4: A(f"buffer_load_dwordx4 {vr(b+4,4)}, v{vL16M}, {WSR}, s{sTmp} offen offset:1024 sc1")
        if tag: self.V.add(tag,2 if r<4 else 1)
    def gat_check_parts(self,r,b):
        A=self.A
        rt=A.uid("L_grt"); back=A.uid("L_gbk")
        t=vT+6
        g=[]
        g.append(lambda: self.V.wait(("g",r)))
        if r<4:
            g.append(lambda: A(f"v_max3_u32 v{t}, v{b}, v{b+2}, v{b+4}"))
            g.append(lambda: A(f"v_max_u32 v{t}, v{t}, v{b+6}"))
        else:
            g.append(lambda: A(f"v_max_u32 v{t}, v{b}, v{b+2}"))
        g.append(lambda: A(f"v_cmp_eq_u32 vcc, -1, v{t}"))
        def wr():
            A(f"ds_write_b128 v{vL16M}, {vr(b,4)} offset:{r*2048}"); self.L.add(("gw",r))
        def wr2():
            if r<4: A(f"ds_write_b128 v{vL16M}, {vr(b+4,4)} offset:{r*2048+1024}"); self.L.add(("gw",r))
        g.append(wr); g.append(wr2)
        g.append(lambda: A(f"s_cbranch_vccnz {rt}\n{back}:"))
        def ool():
            lp=A.uid("L_glp")
            A(f"{rt}:\n{lp}:\ns_add_u32 s{sRetry2}, s{sRetry2}, 1\ns_cmp_gt_u32 s{sRetry2}, 1000000\ns_cbranch_scc1 L_abort\ns_waitcnt lgkmcnt(0)")
            self.gat_issue(r,b)
            A("s_waitcnt vmcnt(0)")
            if r<4: A(f"v_max3_u32 v{t}, v{b}, v{b+2}, v{b+4}\nv_max_u32 v{t}, v{t}, v{b+6}")
            else: A(f"v_max_u32 v{t}, v{b}, v{b+2}")
            A(f"v_cmp_eq_u32 vcc, -1, v{t}\ns_cbranch_vccnz {lp}")
            A(f"ds_write_b128 v{vL16M}, {vr(b,4)} offset:{r*2048}")
            if r<4: A(f"ds_write_b128 v{vL16M}, {vr(b+4,4)} offset:{r*2048+1024}")
            A(f"s_waitcnt lgkmcnt(0)\ns_branch {back}")
        self.ool.append(ool)
        return g
    def gat_poll(self,r):
        A=self.A
        sets=[vK,vK+8,vV][:OPT.npoll]; NS=len(sets)
        A(f"s_add_u32 s{sTmp+4}, s{sH2gat}, {r*2048}")
        def iss(b):
            A(f"buffer_load_dwordx4 {vr(b,4)}, v{vL16M}, {WSR}, s{sTmp+4} offen sc1")
            A(f"buffer_load_dwordx4 {vr(b+4,4)}, v{vL16M}, {WSR}, s{sTmp+4} offen offset:1024 sc1")
        for i,b in enumerate(sets):
            iss(b)
            if i<NS-1: self.delay(OPT.poll_gap)
        lp=A.uid("L_g0p"); done=A.uid("L_g0d"); oks=[A.uid("L_g0k") for _ in sets]
        A(f"{lp}:")
        for i,b in enumerate(sets):
            A(f"s_waitcnt vmcnt({2*(NS-1)})")
            A(f"v_max3_u32 v{vT+6}, v{b}, v{b+2}, v{b+4}\nv_max_u32 v{vT+6}, v{vT+6}, v{b+6}")
            A(f"v_cmp_eq_u32 vcc, -1, v{vT+6}\ns_cbranch_vccz {oks[i]}")
            iss(b)
        A(f"s_add_u32 s{sRetry2}, s{sRetry2}, 1\ns_cmp_gt_u32 s{sRetry2}, 1000000\ns_cbranch_scc1 L_abort\ns_branch {lp}")
        for i,b in enumerate(sets):
            A(f"{oks[i]}:")
            A(f"ds_write_b128 v{vL16M}, {vr(b,4)} offset:{r*2048}\nds_write_b128 v{vL16M}, {vr(b+4,4)} offset:{r*2048+1024}")
            if i<NS-1: A(f"s_branch {done}")
        A(f"{done}:\ns_waitcnt lgkmcnt(0)")
        self.L.clear()
    def gat_poll01(self):
        A=self.A
        sets=[vK,vA][:OPT.npoll]; NS=len(sets)
        def iss(b):
            A(f"buffer_load_dwordx4 {vr(b,4)}, v{vL16M}, {WSR}, s{sH2gat} offen sc1")
            A(f"buffer_load_dwordx4 {vr(b+4,4)}, v{vL16M}, {WSR}, s{sH2gat} offen offset:1024 sc1")
            A(f"buffer_load_dwordx4 {vr(b+8,4)}, v{vL16M}, {WSR}, s{sH2gat} offen offset:2048 sc1")
            A(f"buffer_load_dwordx4 {vr(b+12,4)}, v{vL16M}, {WSR}, s{sH2gat} offen offset:3072 sc1")
        for i,b in enumerate(sets):
            iss(b)
            if i<NS-1: self.delay(OPT.poll_gap)
        lp=A.uid("L_g0p"); done=A.uid("L_g0d"); oks=[A.uid("L_g0k") for _ in sets]
        A(f"{lp}:")
        for i,b in enumerate(sets):
            A(f"s_waitcnt vmcnt({4*(NS-1)})")
            A(f"v_max3_u32 v{vT+6}, v{b}, v{b+2}, v{b+4}\nv_max3_u32 v{vT+7}, v{b+6}, v{b+8}, v{b+10}\nv_max3_u32 v{vT+6}, v{vT+6}, v{b+12}, v{b+14}\nv_max_u32 v{vT+6}, v{vT+6}, v{vT+7}")
            A(f"v_cmp_eq_u32 vcc, -1, v{vT+6}\ns_cbranch_vccz {oks[i]}")
            iss(b)
        A(f"s_add_u32 s{sRetry2}, s{sRetry2}, 1\ns_cmp_gt_u32 s{sRetry2}, 1000000\ns_cbranch_scc1 L_abort\ns_branch {lp}")
        for i,b in enumerate(sets):
            A(f"{oks[i]}:")
            for j in range(4): A(f"ds_write_b128 v{vL16M}, {vr(b+4*j,4)} offset:{j*1024}")
            if i<NS-1: A(f"s_branch {done}")
        A(f"{done}:\ns_waitcnt vmcnt(0) lgkmcnt(0)")
        self.L.clear()
    def red_iss(self,b,second=False):
        if second: self.A(f"s_add_u32 s{sTmp+5}, s{sH1}, {32*4096}")
        for k in range(4):
            self.A(f"buffer_load_dwordx4 {vr(b+4*k,4)}, v{vRed}, {WSR}, s{sTmp+5 if second else sH1} offen offset:{k*1024} sc1")
    def red_poll(self,pre_issued=False,younger=0,second=False):
        A=self.A
        sets=[vK,vA][:OPT.nred]; NS=len(sets)
        iss=lambda b: self.red_iss(b,second)
        for i,b in enumerate(sets):
            if not (i==0 and pre_issued): iss(b)
            if i<NS-1: self.delay(OPT.red_gap)
        lp=A.uid("L_rp"); done=A.uid("L_rd")
        oks={}
        def check(b,cnt):
            A(f"s_waitcnt vmcnt({cnt})")
            A(f"""
v_xor_b32 v{vT+6}, v{b}, v{vTag}
v_bitop3_b32 v{vT+6}, v{vT+6}, v{b+4}, v{vTag} bitop3:0xf6
v_bitop3_b32 v{vT+6}, v{vT+6}, v{b+8}, v{vTag} bitop3:0xf6
v_bitop3_b32 v{vT+6}, v{vT+6}, v{b+12}, v{vTag} bitop3:0xf6
""")
            if OPT.spec1: A(f"v_mfma_f32_16x16x32_bf16 {vr(aV,4)}, {vr(vSel,4)}, {vr(b,4)}, 0")
            A(f"""
v_and_b32 v{vT+6}, 0x10001, v{vT+6}
v_cmp_ne_u32 vcc, 0, v{vT+6}
s_cbranch_vccz {oks.setdefault(b,A.uid("L_rk"))}
""")
            iss(b)
        check(sets[0],4*(NS-1)+(younger if pre_issued else 0))
        order=sets[1:]+sets[:1]
        A(f"{lp}:")
        for b in order: check(b,4*(NS-1))
        A(f"s_add_u32 s{sRetry}, s{sRetry}, 1\ns_cmp_gt_u32 s{sRetry}, 1000000\ns_cbranch_scc1 L_abort\ns_branch {lp}")
        for n_,b in enumerate(sets):
            A(f"{oks[b]}:")
            for k in range(4):
                A(f"v_mfma_f32_16x16x32_bf16 {vr(aV,4)}, {vr(vSel,4)}, {vr(b+4*k,4)}, {'0' if k==0 else vr(aV,4)}")
            if n_<len(sets)-1: A(f"s_branch {done}")
        A(f"{done}:")
        for r in range(4):
            A(f"v_add_f32_dpp v{aV+r}, v{aV+r}, v{aV+r} row_ror:8 row_mask:0xf bank_mask:0xf")
        A(f"""
v_cvt_pk_bf16_f32 v{vT+4}, v{aV}, v{aV+1}
v_cvt_pk_bf16_f32 v{vT+5}, v{aV+2}, v{aV+3}
s_mov_b64 exec, s[{sMaskPub}:{sMaskPub+1}]
v_min_u32 v{vT+4}, -2, v{vT+4}
""")
        if second: A(f"s_add_u32 s{sTmp+5}, s{sH2pub}, 4096\ns_add_u32 s{sTmp+6}, s{sH2rst}, 4096")
        A(f"""
buffer_store_dwordx2 {vr(vT+4,2)}, v{vPub}, {WSR}, s{sTmp+5 if second else sH2pub} offen
v_mov_b32 v{vT+6}, -1
v_mov_b32 v{vT+7}, -1
buffer_store_dwordx2 {vr(vT+6,2)}, v{vPub}, {WSR}, s{sTmp+6 if second else sH2rst} offen
s_mov_b64 exec, -1
""")
    def kx_loads(self):
        A=self.A
        A(f"s_add_u32 s{sTmp+1}, s{sKXo}, 4096")
        for s in range(4):
            A(f"buffer_load_dwordx4 {vr(vK+4*s,4)}, v{vKx}, {WSR}, s{sKXo if s<2 else sTmp+1} offen offset:{(s%2)*2048} sc1")
        self.V.add(("kx",0),4)
    def kx1(self,s_):
        A=self.A
        if s_>=2: A(f"s_add_u32 s{sTmp+1}, s{sKXo}, 4096")
        A(f"buffer_load_dwordx4 {vr(vK+4*s_,4)}, v{vKx}, {WSR}, s{sKXo if s_<2 else sTmp+1} offen offset:{(s_%2)*2048} sc1")
        self.V.add(("kx",0))
    def vx1(self,t):
        self.A(f"buffer_load_dwordx4 {vr(vV+4*t,4)}, v{vVx}, {WSR}, s{sVTo} offen offset:{t*256} sc1")
        self.V.add(("vx",0))
    def vx_loads(self):
        for t in range(2):
            self.A(f"buffer_load_dwordx4 {vr(vV+4*t,4)}, v{vVx}, {WSR}, s{sVTo} offen offset:{t*256} sc1")
        self.V.add(("vx",0),2)
    def warm1(self,i):
        A=self.A
        sb=sWarmK if i<2 else sWarmV
        A(f"v_lshlrev_b32 v{vT+7}, 2, v{vL16M}")
        A(f"s_add_u32 s{sTmp+1}, s{sb}, {4096*(i%2)}\nbuffer_load_dword v0, v{vT+7}, {WSR}, s{sTmp+1} offen {OPT.warmflag}")
        self.V.add(("warm",i))
    def zero_acc(self):
        for r in range(4): self.A(f"v_mov_b32 v{aQ+r}, 0\nv_mov_b32 v{aK+r}, 0\nv_mov_b32 v{aV+r}, 0")

    def body(self):
        A=self.A; w=self.w; sid=self.sid; L=self.L; V=self.V
        A(f"L_step_{sid}:")
        self.stamp("top")
        V.q=[]
        if OPT.steplog and w==1:
            A(f"s_memrealtime s[88:89]\ns_waitcnt lgkmcnt(0)\nv_mov_b32 v{vT}, s88\nv_mov_b32 v{vT+1}, s90\nv_mov_b32 v{vT+2}, s92\nv_mov_b32 v{vT+3}, s98\ns_lshl_b32 s{sTmp}, s{sH}, 10\ns_lshl_b32 s{sTmp+1}, s{sStep}, 4\ns_add_u32 s{sTmp}, s{sTmp}, s{sTmp+1}\ns_add_u32 s{sTmp}, s{sTmp}, {WS_STAMP+0x20000}\nv_mov_b32 v{vT+6}, 0\nbuffer_store_dwordx4 {vr(vT,4)}, v{vT+6}, {WSR}, s{sTmp} offen\ns_nop 3")
            V.add(("dbg",0))
        L.q=[]
        smf=lambda acc,b,wt: A(f"v_smfmac_f32_16x16x64_bf16 {vr(acc,4)}, {vr(b,4)}, {wt}, v{vIdx}")
        abuf=lambda k: vA+4*(k%4)
        PD=OPT.pd
        for k in range(PD): self.trr(abuf(k),k*512,("a",k))
        side={k:[[],[],[]] for k in range(18)}
        def guarded(fn_list):
            return fn_list
        grounds={3:(2,vK),0:(3,vK),1:(4,vT),2:(None,None)}
        gr,gb=grounds[w]
        skip=[None]
        def begin_skip():
            lab=A.uid("L_fs"); skip[0]=lab
            A(f"s_cmp_eq_u32 s{sStep}, 0\ns_cbranch_scc1 {lab}")
        def end_skip():
            A(f"{skip[0]}:")
        if gr is not None:
            parts=self.gat_check_parts(gr,gb)
            kc=4*(gr-1)-(OPT.pd-2)
            ki={2:OPT.ki[0],3:OPT.ki[1],4:OPT.ki[2]}[gr]
            if ki>=0: side[ki][2]+= [lambda: self.gat_issue(gr,gb,("g",gr))]
            else: V.add(("g",gr),2 if gr<4 else 1)
            nv=len(parts)-4
            side[kc][0]+= parts[:2]
            side[kc][1]+= parts[2:nv+1]
            side[kc][2]+= parts[nv+1:]
        if OPT.kvmode=="spread":
            if w in (1,2):
                for i in range(4): side[i][1]+= [lambda i=i: self.kx1(i)]
                for t in range(2): side[4+t][1]+= [lambda t=t: self.vx1(t)]
            if w==3:
                for t in range(2): side[1+t][1]+= [lambda t=t: self.vx1(t)]
            if w==0:
                for t in range(2): side[t][1]+= [lambda t=t: self.vx1(t)]
        else:
            if w==1: side[0][2]+= [self.kx_loads]; side[3][2]+= [self.vx_loads]
            if w==2: side[0][2]+= [self.kx_loads]; side[2][2]+= [self.vx_loads]
            if w==3: side[3][2]+= [self.vx_loads]
            if w==0: side[0][2]+= [self.vx_loads]
        if w==3 and OPT.warm:
            if OPT.fused:
                def kvcheck():
                    rt=A.uid("L_kvr"); back=A.uid("L_kvb")
                    A(f"v_readfirstlane_b32 s{sTmp+1}, v10\ns_cmp_ge_u32 s{sTmp+1}, 32\ns_cbranch_scc0 {rt}\n{back}:")
                    def ool():
                        lp=A.uid("L_kvl")
                        A(f"{rt}:\ns_add_u32 s{sTmp+2}, s{sStep}, 2\ns_min_u32 s{sTmp+2}, s{sTmp+2}, 63\ns_lshr_b32 s{sTmp+2}, s{sTmp+2}, 2\ns_lshl_b32 s{sTmp+2}, s{sTmp+2}, 7\ns_add_u32 s{sTmp+2}, s{sTmp+2}, {cnt(C_KV)}\n{lp}:")
                        A(f"buffer_load_dword v10, off, {WSR}, s{sTmp+2} sc1\ns_waitcnt vmcnt(0)\nv_readfirstlane_b32 s{sTmp+1}, v10\ns_add_u32 s{sRetry2}, s{sRetry2}, 1\ns_cmp_gt_u32 s{sRetry2}, 4000000\ns_cbranch_scc1 L_abort\ns_sleep 1\ns_cmp_ge_u32 s{sTmp+1}, 32\ns_cbranch_scc0 {lp}\ns_branch {back}")
                    self.ool.append(ool)
                side[min(OPT.warmk)][2]+= [kvcheck]
            for i,kk in enumerate(OPT.warmk):
                if kk is not None and kk<18: side[kk][2]+= [lambda i=i: self.warm1(i)]
            if OPT.fused:
                def kvload():
                    A(f"s_add_u32 s{sTmp+2}, s{sStep}, 3\ns_min_u32 s{sTmp+2}, s{sTmp+2}, 63\ns_lshr_b32 s{sTmp+2}, s{sTmp+2}, 2\ns_lshl_b32 s{sTmp+2}, s{sTmp+2}, 7\ns_add_u32 s{sTmp+2}, s{sTmp+2}, {cnt(C_KV)}")
                    A(f"buffer_load_dword v10, off, {WSR}, s{sTmp+2} sc1"); V.add(("kvf",0))
                side[max(OPT.warmk)][2]+= [kvload]
        for k in range(18):
            L.wait(("a",k))
            b=abuf(k)
            smf(aQ,b,Wq(k))
            if k+PD<18: self.trr1(abuf(k+PD),(k+PD)*512,("a",k+PD))
            for f in side[k][0]: f()
            smf(aK,b,Wk(k))
            if k+PD<18: self.trr1(abuf(k+PD)+2,(k+PD)*512+64,("a",k+PD))
            for f in side[k][1]: f()
            if k<14: smf(aV,b,Wv(k))
            for f in side[k][2]: f()
            if (k+1+PD)%4==0 and (k+1+PD)//4>=2 and (k+1+PD)//4<=4:
                rnd=(k+1+PD)//4
                if rnd==gr: L.wait(("gw",rnd)) if (("gw",rnd) in L.q) else None
                A("s_barrier")
                if rnd==4 and w==1 and OPT.fused:
                    A(f"v_mov_b32 v{vT+5}, s{sStep}\ns_lshl_b32 s{sTmp+1}, s{sH}, 7\ns_add_u32 s{sTmp+1}, s{sTmp+1}, {cnt(C_PROG)}\ns_mov_b64 exec, 1\nbuffer_store_dword v{vT+5}, off, {WSR}, s{sTmp+1} sc1\ns_mov_b64 exec, -1")
                    V.add(("prog",0))
                if rnd in (2,4): self.stamp(f"qkB{rnd}")
        self.stamp("qkend")
        smf(aV,abuf(14),Wv(14))
        A(f"v_cvt_pk_bf16_f32 v{vT}, v{aQ}, v{aQ+1}\nv_cvt_pk_bf16_f32 v{vT+1}, v{aQ+2}, v{aQ+3}")
        A(f"ds_write_b64 v{vQw}, {vr(vT,2)}")
        smf(aV,abuf(15),Wv(15))
        A(f"v_cvt_pk_bf16_f32 v{vT+2}, v{aK}, v{aK+1}\nv_cvt_pk_bf16_f32 v{vT+3}, v{aK+2}, v{aK+3}")
        A(f"ds_write_b64 v{vQw}, {vr(vT+2,2)} offset:2048")
        smf(aV,abuf(16),Wv(16)); smf(aV,abuf(17),Wv(17))
        L.drain()
        A("s_barrier")
        last=f"L_last_{sid}"
        self.stamp("B6")
        if OPT.steplog and w==1: A("s_memrealtime s[90:91]")
        if w==3 and OPT.warm:
            for i,kk in enumerate(OPT.warmk):
                if kk==20: self.warm1(i)
        if w<3:
            if w==0:
                for s in range(3):
                    self.trr(vK+4*s,KOFF+s*512,("k",s)); self.trr(vA+4*s,QOFF+s*512,("q",s))
                A(f"s_cmp_eq_u32 s{sStep}, {self.nsteps-1}\ns_cbranch_scc1 {last}")
                L.wait(("q",0))
                self.trr(vK+12,KOFF+3*512,("k",3)); self.trr(vA+12,QOFF+3*512,("q",3))
                for s in range(4):
                    L.wait(("q",s))
                    A(f"v_mfma_f32_16x16x32_bf16 {vr(vT,4)}, {vr(vK+4*s,4)}, {vr(vA+4*s,4)}, {'0' if s==0 else vr(vT,4)}")
            else:
                for s in range(4): self.trr(vA+4*s,QOFF+s*512,("q",s))
                A(f"s_cmp_eq_u32 s{sStep}, {self.nsteps-1}\ns_cbranch_scc1 {last}")
                V.wait(("kx",0))
                for s in range(4):
                    L.wait(("q",s))
                    A(f"v_mfma_f32_16x16x32_bf16 {vr(vT,4)}, {vr(vK+4*s,4)}, {vr(vA+4*s,4)}, {'0' if s==0 else vr(vT,4)}")
            self.stamp("Smf")
            A(f"v_cvt_pk_bf16_f32 v{aV}, v{aV}, v{aV+1}\nv_cvt_pk_bf16_f32 v{aV+1}, v{aV+2}, v{aV+3}")
            A(f"buffer_store_dwordx2 {vr(aV,2)}, v{vVm}, {WSR}, s{sVMo} offen {OPT.kmflag}"); V.add(("vm",0))
        else:
            A(f"s_cmp_eq_u32 s{sStep}, {self.nsteps-1}\ns_cbranch_scc1 {last}")
            self.stamp("Smf")
            A(f"v_cvt_pk_bf16_f32 v{aV}, v{aV}, v{aV+1}\nv_cvt_pk_bf16_f32 v{aV+1}, v{aV+2}, v{aV+3}")
            A(f"buffer_store_dwordx2 {vr(aV,2)}, v{vVm}, {WSR}, s{sVMo} offen {OPT.kmflag}"); V.add(("vm",0))
        prep=f"""
s_add_u32 s{sTagT}, s{sStep}, 1
s_and_b32 s{sTmp}, s{sTagT}, 1
s_bfe_u32 s{sTmp+1}, s{sTagT}, 0x10001
s_lshl_b32 s{sTmp+1}, s{sTmp+1}, 16
s_or_b32 s{sTmp+2}, s{sTmp}, s{sTmp+1}
s_and_b32 s{sTmp}, s{sTagT}, 3
s_lshl_b32 s{sTmp}, s{sTmp}, 14
s_add_u32 s{sH2pub}, s{sTmp}, s{sH2}
s_sub_u32 s{sH2gat}, s{sH2pub}, {L_MEMT}
s_add_u32 s{sTmp}, s{sStep}, 3
s_and_b32 s{sTmp}, s{sTmp}, 3
s_lshl_b32 s{sTmp}, s{sTmp}, 14
s_add_u32 s{sH2rst}, s{sTmp}, s{sH2}
"""
        if w<3:
            A(prep)
            A(f"ds_write_b128 v{vL16M}, {vr(vT,4)} offset:{SOFF+w*1024}"); L.add(("st",0))
            if w==0:
                A(f"s_mov_b64 exec, s[{sMaskLo}:{sMaskLo+1}]")
                for s in range(4):
                    A(f"buffer_store_dwordx4 {vr(vK+4*s,4)}, v{vKm}, {WSR}, s{sKMo} offen offset:{s*64} {OPT.kmflag}")
                A("s_mov_b64 exec, -1"); V.add(("km",0),4)
            L.drain()
        else:
            A(prep)
        A("s_barrier")
        self.stamp("B7")
        if w==3 and OPT.warm:
            for i,kk in enumerate(OPT.warmk):
                if kk==21: self.warm1(i)
        S=vA
        for t in (1,2,0):
            A(f"ds_read_b128 {vr(S+4*t,4)}, v{vL16M} offset:{SOFF+t*1024}"); L.add(("s",t))
        A(f"v_mov_b32 v{vTag}, s{sTmp+2}")
        prs=pairs(w)
        seq=[(j,P,s) for j,P in enumerate(prs) for s in range(4)]
        n=len(seq)
        m,mt=vT,vT+1
        L.wait(("s",2))
        A(f"v_max3_f32 v{m}, v{S+4}, v{S+5}, v{S+6}\nv_max3_f32 v{mt}, v{S+7}, v{S+8}, v{S+9}\nv_max3_f32 v{m}, v{m}, v{S+10}, v{S+11}")
        L.wait(("s",0))
        self.stamp("Srd")
        A(f"""
v_max3_f32 v{mt}, v{mt}, v{S}, v{S+1}
v_max3_f32 v{m}, v{m}, v{S+2}, v{S+3}
v_max_f32 v{m}, v{m}, v{mt}
v_mov_b32 v{mt}, v{m}
v_permlane32_swap_b32 v{m}, v{mt}
v_max_f32 v{m}, v{m}, v{mt}
v_mov_b32 v{mt}, v{m}
v_permlane16_swap_b32 v{m}, v{mt}
v_max_f32 v{m}, v{m}, v{mt}
v_mul_f32 v{mt}, s{sC}, v{m}
""")
        P=vK
        for i in range(4,12): A(f"v_fma_f32 v{S+i}, v{S+i}, s{sC}, -v{mt}")
        for i in range(4,12):
            A(f"v_exp_f32 v{S+i}, v{S+i}")
            if i in (6,8,10): A(f"v_cvt_pk_bf16_f32 v{P+(i-6)//2}, v{S+i-2}, v{S+i-1}")
        for i in range(4): A(f"v_fma_f32 v{S+i}, v{S+i}, s{sC}, -v{mt}")
        A(f"v_cvt_pk_bf16_f32 v{P+3}, v{S+10}, v{S+11}")
        self.stamp("exp")
        V.wait(("vx",0))
        A(f"v_mfma_f32_16x16x32_bf16 {vr(aQ,4)}, {vr(vV,4)}, {vr(P,4)}, 0")
        A(f"v_mfma_f32_16x16x32_bf16 {vr(aK,4)}, {vr(vV+4,4)}, {vr(P,4)}, 0")
        for i in range(4): A(f"v_exp_f32 v{S+i}, v{S+i}")
        l,lt=vT+2,vT+3
        A(f"""
v_add_f32 v{l}, v{S+4}, v{S+5}
v_add_f32 v{lt}, v{S+6}, v{S+7}
v_cvt_pk_bf16_f32 v{P+4}, v{S}, v{S+1}
v_cvt_pk_bf16_f32 v{P+5}, v{S+2}, v{S+3}
v_cndmask_b32 v{P+6}, 0, v{P+4}, s[{sMaskG}:{sMaskG+1}]
v_cndmask_b32 v{P+7}, 0, v{P+5}, s[{sMaskG}:{sMaskG+1}]
v_cndmask_b32 v{P+8}, v{P+4}, 0, s[{sMaskG}:{sMaskG+1}]
v_cndmask_b32 v{P+9}, v{P+5}, 0, s[{sMaskG}:{sMaskG+1}]
v_mfma_f32_16x16x16_bf16 {vr(aQ,4)}, {vr(aV,2)}, {vr(P+6,2)}, {vr(aQ,4)}
v_mfma_f32_16x16x16_bf16 {vr(aK,4)}, {vr(aV,2)}, {vr(P+8,2)}, {vr(aK,4)}
v_add_f32 v{l}, v{l}, v{S+8}
v_add_f32 v{lt}, v{lt}, v{S+9}
v_add_f32 v{l}, v{l}, v{S+10}
v_add_f32 v{lt}, v{lt}, v{S+11}
v_add_f32 v{mt}, v{S}, v{S+1}
v_add_f32 v{m}, v{S+2}, v{S+3}
v_add_f32 v{l}, v{l}, v{lt}
v_add_f32 v{mt}, v{mt}, v{m}
v_fma_f32 v{l}, v{mt}, 0.5, v{l}
v_mov_b32 v{lt}, v{l}
v_permlane32_swap_b32 v{l}, v{lt}
v_add_f32 v{l}, v{l}, v{lt}
v_mov_b32 v{lt}, v{l}
v_permlane16_swap_b32 v{l}, v{lt}
v_add_f32 v{l}, v{l}, v{lt}
v_rcp_f32 v{l}, v{l}
""")
        Bst=[vA,vA+8,vK]
        def wo_rd(i,half=None):
            j,Pp,s=seq[i]
            for hf in ((0,1) if half is None else (half,)):
                b,off=wo_addr(Pp,s,hf)
                A(f"ds_read_b128 {vr(Bst[i%3]+4*hf,4)}, v{b} offset:{off}"); L.add(("w",i))
        if n>0: wo_rd(0); wo_rd(1)
        for r in range(0,4,2):
            A(f"v_pk_mul_f32 {vr(aQ+r,2)}, {vr(aQ+r,2)}, {vr(l,2)} op_sel_hi:[1,0]")
            A(f"v_pk_mul_f32 {vr(aK+r,2)}, {vr(aK+r,2)}, {vr(l,2)} op_sel_hi:[1,0]")
        oA=[vV,vV+4,vK+8,vK+12]
        A(f"""
v_cvt_pk_bf16_f32 v{vT+4}, v{aQ}, v{aQ+1}
v_cvt_pk_bf16_f32 v{vT+5}, v{aQ+2}, v{aQ+3}
v_cvt_pk_bf16_f32 v{vT+6}, v{aK}, v{aK+1}
v_cvt_pk_bf16_f32 v{vT+7}, v{aK+2}, v{aK+3}
ds_write_b128 v{vL16M}, {vr(vT+4,4)} offset:{QOFF+w*1024}
""")
        L.add(("ow",0))
        self.stamp("owr")
        for r in range(4): A(f"v_mov_b32 v{aQ+r}, 0")
        for r in range(4): A(f"v_mov_b32 v{aK+r}, 0")
        L.drain()
        A("s_barrier")
        self.stamp("B8")
        if OPT.steplog and w==1: A("s_memrealtime s[92:93]")
        if n>0:
            for s in range(4):
                A(f"ds_read_b128 {vr(oA[s],4)}, v{vL16M} offset:{QOFF+s*1024}"); L.add(("o",s))
            wo_rd(2)
        def epi_parts(j):
            acc=aQ if j%2==0 else aK
            e=vT+2*(j%2)
            def st():
                A(f"s_add_u32 s{sTmp+3}, s{sH1}, {prs[j]*16384}")
                A(f"buffer_store_dwordx2 {vr(e,2)}, v{vH1st}, {WSR}, s{sTmp+3} offen"); V.add(("h1",j))
            return [lambda: A(f"v_cvt_pk_bf16_f32 v{e}, v{acc}, v{acc+1}"),
                    lambda: A(f"v_cvt_pk_bf16_f32 v{e+1}, v{acc+2}, v{acc+3}"),
                    lambda: A(f"v_and_or_b32 v{e}, v{e}, s{sMaskF}, v{vTag}"), st]
        for i,(j,Pp,s) in enumerate(seq):
            acc=aQ if j%2==0 else aK
            if j==0: L.wait(("o",s))
            L.wait(("w",i))
            A(f"v_smfmac_f32_16x16x64_bf16 {vr(acc,4)}, {vr(oA[s],4)}, {vr(Bst[i%3],8)}, v{vIdx}")
            if i+3<n: wo_rd(i+3)
            if j>0 and s==0:
                for f in epi_parts(j-1)[:2]: f()
            if j>0 and s==1:
                for f in epi_parts(j-1)[2:]: f()
            if s>=2 and j>=1 and j+1<len(prs):
                nacc=aQ if (j+1)%2==0 else aK
                for k_ in (0,1) if s==2 else (2,3): A(f"v_mov_b32 v{nacc+k_}, 0")
        early = self.rr is not None and w>=2 and OPT.red_early and not OPT.commwave
        if early:
            self.delay(OPT.d_red[self.rr])
            self.red_iss(vK)
        if n>0:
            for f in epi_parts(len(prs)-1): f()
        self.stamp("opend")
        if OPT.steplog and w==1: A("s_memrealtime s[98:99]")
        if self.rr is not None:
            lab=A.uid("L_nt")
            if w==1: A(f"s_cmp_eq_u32 s{sHasTask}, 1\ns_cbranch_scc0 {lab}")
            if early: self.red_poll(True,1)
            else:
                self.delay(OPT.d_red[self.rr])
                self.red_poll()
            if OPT.commwave and w==2:
                self.delay(OPT.d_red[self.rr+2])
                self.red_poll(second=True)
            A("s_waitcnt vmcnt(2)")
            A(f"{lab}:")
        self.stamp("redend")
        A(f"L_pre_{sid}:")
        self.zero_acc()
        A(f"""
s_add_u32 s{sStep}, s{sStep}, 1
s_add_u32 s{sKXo}, s{sKXo}, {0 if OPT.fixkv else KVS()}
s_add_u32 s{sVTo}, s{sVTo}, {0 if OPT.fixkv else KVS()}
s_add_u32 s{sKMo}, s{sKMo}, {0 if OPT.fixkm else KMS()}
s_add_u32 s{sVMo}, s{sVMo}, {0 if OPT.fixkm else KMS()}
s_add_u32 s{sTmp}, s{sStep}, {OPT.warmdist}
s_min_u32 s{sTmp}, s{sTmp}, 63
s_lshl_b32 s{sTmp}, s{sTmp}, {13 if OPT.hs else 18}
s_lshl_b32 s{sTmp+1}, s{sH}, {19 if OPT.hs else 13}
s_add_u32 s{sTmp}, s{sTmp}, s{sTmp+1}
s_add_u32 s{sWarmK}, s{sTmp}, {WS_KX-L_MEMT*4}
s_add_u32 s{sWarmV}, s{sTmp}, {WS_VT-L_MEMT*4}
""")
        if OPT.gmode=="joint":
            if w==0:
                self.delay(OPT.d_gat)
                self.gat_poll01()
        else:
            if w==0:
                self.delay(OPT.d_gat)
                self.gat_poll(0)
            if OPT.g1wave=="mix":
                if w==1:
                    l=A.uid("L_g1s")
                    A(f"s_cmp_eq_u32 s{sHasTask}, 1\ns_cbranch_scc1 {l}")
                    self.delay(OPT.d_g1m); self.gat_poll(1)
                    A(f"{l}:")
                if w==2:
                    l=A.uid("L_g1s")
                    A(f"s_and_b32 s{sTmp}, s{sH}, 3\ns_cmp_eq_u32 s{sTmp}, 0\ns_cbranch_scc0 {l}")
                    self.delay(OPT.d_g1[self.rr%2]); self.gat_poll(1)
                    A(f"{l}:")
            elif w==OPT.g1wave:
                self.delay(OPT.d_g1[self.rr%2] if self.rr is not None else OPT.d_g1[0])
                self.gat_poll(1)
        if w==3 and OPT.ki[0]<0:
            self.delay(OPT.d_g2[(self.rr or 0)%2])
            self.gat_issue(2,vK)
        self.stamp("gat0")
        A(f"s_barrier\ns_branch L_step_{sid}\n{last}:")
        A(f"v_cvt_pk_bf16_f32 v{aV}, v{aV}, v{aV+1}\nv_cvt_pk_bf16_f32 v{aV+1}, v{aV+2}, v{aV+3}")
        A(f"buffer_store_dwordx2 {vr(aV,2)}, v{vVm}, {WSR}, s{sVMo} offen {OPT.kmflag}")
        if w==0:
            A(f"ds_read_b64_tr_b16 {vr(vK+12,2)}, v{vTR} offset:{KOFF+3*512}\nds_read_b64_tr_b16 {vr(vK+14,2)}, v{vTR} offset:{KOFF+3*512+64}")
            A("s_waitcnt lgkmcnt(0)")
            A(f"s_mov_b64 exec, s[{sMaskLo}:{sMaskLo+1}]")
            for s in range(4):
                A(f"buffer_store_dwordx4 {vr(vK+4*s,4)}, v{vKm}, {WSR}, s{sKMo} offen offset:{s*64} {OPT.kmflag}")
            A("s_mov_b64 exec, -1")
        if OPT.fused:
            A("s_waitcnt vmcnt(0)\ns_barrier")
            if w==1:
                A(f"v_mov_b32 v{vT+5}, 64\ns_lshl_b32 s{sTmp+1}, s{sH}, 7\ns_add_u32 s{sTmp+1}, s{sTmp+1}, {cnt(C_PROG)}\ns_mov_b64 exec, 1\nbuffer_store_dword v{vT+5}, off, {WSR}, s{sTmp+1} sc1\ns_mov_b64 exec, -1")
        A("s_branch L_finish")
        for f in self.ool: f()

def emit_chain(A, nsteps=64, stamps=False, standalone=True, stamp_step=20):
    emit_setup(A, stamps)
    A(f"s_mov_b32 s{sStep}, -1")
    A(f"s_mov_b32 s{sKXo}, {WS_KX-(0 if OPT.fixkv else KVS())}\ns_mov_b32 s{sVTo}, {WS_VT-(0 if OPT.fixkv else KVS())}")
    A(f"s_lshl_b32 s{sTmp}, s{sH}, {17 if OPT.hs else 11}\ns_add_u32 s{sKMo}, s{sTmp}, {WS_KM-(0 if OPT.fixkm else KMS())}\ns_add_u32 s{sVMo}, s{sTmp}, {WS_VM-(0 if OPT.fixkm else KMS())}")
    A(f"s_sub_u32 s{sH2gat}, s{sH2}, {L_MEMT}")
    A(f"s_lshl_b32 s{sTmp+1}, s{sH}, {19 if OPT.hs else 13}\ns_add_u32 s{sTmp}, s{sTmp+1}, {2*KVS()}\ns_add_u32 s{sWarmK}, s{sTmp}, {WS_KX-L_MEMT*4}\ns_add_u32 s{sWarmV}, s{sTmp}, {WS_VT-L_MEMT*4}")
    if stamps: A(f"s_memtime s[94:95]\ns_waitcnt lgkmcnt(0)")
    variants=[("w0",0,None),("w1",1,4),("w2e",2,0),("w2o",2,1),("w3e",3,2),("w3o",3,3)]
    if OPT.commwave: variants=[("w0",0,None),("w1",1,4),("w2e",2,0),("w2o",2,1),("w3e",3,None)]
    A(f"""
s_cmp_eq_u32 s{sW}, 0
s_cbranch_scc1 L_pre_w0
s_cmp_eq_u32 s{sW}, 1
s_cbranch_scc1 L_pre_w1
s_and_b32 s{sTmp}, s{sH}, 1
s_lshl_b32 s{sTmp+1}, s{sW}, 1
s_add_u32 s{sTmp}, s{sTmp}, s{sTmp+1}
s_cmp_eq_u32 s{sTmp}, 4
s_cbranch_scc1 L_pre_w2e
s_cmp_eq_u32 s{sTmp}, 5
s_cbranch_scc1 L_pre_w2o
s_cmp_eq_u32 s{sTmp}, 6
s_cbranch_scc1 L_pre_w3e
s_branch {"L_pre_w3e" if OPT.commwave else "L_pre_w3o"}
""")
    A("L_code_begin:")
    nst=0
    for sid,w,rr in variants:
        st=Stream(A,w,rr,nsteps,stamps,stamp_step,sid); st.body(); nst=st.nst
    A("L_finish:")
    if stamps:
        A(f"s_memtime s[96:97]\ns_waitcnt vmcnt(0) lgkmcnt(0)\ns_sub_u32 s96, s96, s94")
        A(f"s_lshl_b32 s{sTmp}, s{sH}, 2\ns_add_u32 s{sTmp}, s{sTmp}, s{sW}\ns_lshl_b32 s{sTmp}, s{sTmp}, 7\ns_add_u32 s{sTmp}, s{sTmp}, {WS_STAMP}")
        A(f"v_mov_b32 v{vK}, s96\nv_mov_b32 v{vK+1}, s{sRetry}\nv_mov_b32 v{vK+2}, s{sRetry2}")
        A(f"s_sub_u32 s90, s90, s88\ns_sub_u32 s92, s92, s88\ns_sub_u32 s94, s94, s88\nv_mov_b32 v{vK+3}, s90\nv_mov_b32 v{vK+4}, s92\nv_mov_b32 v{vK+5}, s94\nv_mov_b32 v{vK+6}, 0\nv_mov_b32 v{vK+7}, 0")
        for i in range(16):
            A(f"v_mov_b32 v{vK+8+i}, s{sT0+2*i}")
        A(f"v_mov_b32 v{vT}, 0\ns_mov_b64 exec, 1")
        for j in range(6):
            A(f"buffer_store_dwordx4 {vr(vK+4*j,4)}, v{vT}, {WSR}, s{sTmp} offen offset:{16*j}")
        A("s_mov_b64 exec, -1")
        global STAMP_NAMES
        STAMP_NAMES=st.names
        print("stamps:",st.names)
    A("L_abort:\ns_waitcnt vmcnt(0)")
OPT.red_lag=1
```

```python
from asmlib import *
from layout import *
import struct, math
def fbits(x): return struct.unpack("<I",struct.pack("<f",x))[0]
def vr(a,n): return f"v[{a}:{a+n-1}]" if n>1 else f"v{a}"

sRank=10; sW=11; sWS=12; sXS=16; sWSRC=20
sT=24
sXo=36; sWo=37; sRd=38; sWr=39; sIt=40; sOut=41; sTask=42; sA=43; sB=44; sC=45; sD=46
sKarg=0
ST="sc1"
sP=60

def emit_worker_setup(A):
    A(f"""
s_load_dwordx2 s[{sWS}:{sWS+1}], s[0:1], {KA_WS}
v_lshrrev_b32 v1, 6, v0
v_and_b32 v0, 63, v0
v_readfirstlane_b32 s{sW}, v1
s_mov_b32 s{sWS+2}, {WS_SIZE}
s_mov_b32 s{sWS+3}, 0x20000
s_mov_b32 s{sXS+3}, 0x20000
s_mov_b32 s{sWSRC+3}, 0x20000
s_waitcnt lgkmcnt(0)
""")

def srd_from_karg(A, s, off, nbytes):
    A(f"s_load_dwordx2 s[{s}:{s+1}], s[0:1], {off}\ns_mov_b32 s{s+2}, {nbytes}\ns_waitcnt lgkmcnt(0)")
def srd_from_ws(A, s, off, nbytes):
    A(f"s_add_u32 s{s}, s{sWS}, {off}\ns_addc_u32 s{s+1}, s{sWS+1}, 0\ns_mov_b32 s{s+2}, {nbytes}")

def wave_allsum(A, v, t):
    for r in (8,4,2,1):
        A(f"v_add_f32_dpp v{v}, v{v}, v{v} row_ror:{r} row_mask:0xf bank_mask:0xf")
    A(f"v_mov_b32 v{t}, v{v}\nv_permlane16_swap_b32 v{v}, v{t}\nv_add_f32 v{v}, v{v}, v{t}")
    A(f"v_mov_b32 v{t}, v{v}\nv_permlane32_swap_b32 v{v}, v{t}\nv_add_f32 v{v}, v{v}, v{t}")
def rne_bf16(A, v):
    A(f"v_cvt_pk_bf16_f32 v{v}, v{v}, v{v}\nv_and_b32 v{v}, 0xffff0000, v{v}")
def ln_core(A, X, tmp, vMask):
    s,t,m,d=tmp,tmp+1,tmp+2,tmp+3
    A(f"v_add_f32 v{s}, v{X}, v{X+1}")
    for i in range(2,10): A(f"v_add_f32 v{s}, v{s}, v{X+i}")
    wave_allsum(A,s,t)
    A(f"v_mul_f32 v{s}, {hex(fbits(1.0/576))}, v{s}")
    A(f"v_sub_f32 v{d}, v{X}, v{s}\nv_mul_f32 v{m}, v{d}, v{d}")
    for i in range(1,8): A(f"v_sub_f32 v{d}, v{X+i}, v{s}\nv_fmac_f32 v{m}, v{d}, v{d}")
    for i in (8,9): A(f"v_sub_f32 v{d}, v{X+i}, v{s}\nv_mul_f32 v{d}, v{d}, v{vMask}\nv_fmac_f32 v{m}, v{d}, v{d}")
    wave_allsum(A,m,t)
    A(f"v_mul_f32 v{m}, {hex(fbits(1.0/576))}, v{m}")
    rne_bf16(A,m); rne_bf16(A,s)
    A(f"v_add_f32 v{m}, {hex(fbits(1e-5))}, v{m}"); rne_bf16(A,m)
    A(f"v_sqrt_f32 v{m}, v{m}"); rne_bf16(A,m)
    A(f"v_rcp_f32 v{m}, v{m}")
    for i in range(0,10,2):
        A(f"v_sub_f32 v{X+i}, v{X+i}, v{s}\nv_sub_f32 v{X+i+1}, v{X+i+1}, v{s}")
        A(f"v_cvt_pk_bf16_f32 v{d}, v{X+i}, v{X+i+1}")
        A(f"v_lshlrev_b32 v{X+i}, 16, v{d}\nv_and_b32 v{X+i+1}, 0xffff0000, v{d}")
        A(f"v_mul_f32 v{X+i}, v{X+i}, v{m}\nv_mul_f32 v{X+i+1}, v{X+i+1}, v{m}")
        A(f"v_cvt_pk_bf16_f32 v{d}, v{X+i}, v{X+i+1}")
        A(f"v_mov_b32 v{tmp+4+i//2}, v{d}")
        A(f"v_lshlrev_b32 v{X+i}, 16, v{d}\nv_and_b32 v{X+i+1}, 0xffff0000, v{d}")
    A(f"v_mul_f32 v{X+8}, v{X+8}, v{vMask}\nv_mul_f32 v{X+9}, v{X+9}, v{vMask}")

def emit_ln(A, NW, fused=False, after_loads=None):
    nrow=(2048+NW*4-1)//(NW*4)
    srd_from_karg(A,sXS,KA_X,2048*1152)
    vO,vO2,vMask=2,3,4
    L=8
    A(f"""
v_lshlrev_b32 v{vO}, 4, v0
v_lshlrev_b32 v{vO2}, 2, v0
v_add_u32 v{vO2}, 1024, v{vO2}
v_mov_b32 v5, 0x7ff00000
v_cmp_gt_u32 vcc, 32, v0
v_cndmask_b32 v{vO2}, v5, v{vO2}, vcc
v_cndmask_b32 v{vMask}, 0, 1.0, vcc
s_lshl_b32 s{sA}, s{sRank}, 2
s_add_u32 s{sA}, s{sA}, s{sW}
""")
    for k in range(nrow):
        A(f"s_add_u32 s{sT}, s{sA}, {k*NW*4}\ns_mul_i32 s{sT}, s{sT}, 1152")
        A(f"buffer_load_dwordx4 {vr(L+8*k,4)}, v{vO}, s[{sXS}:{sXS+3}], s{sT} offen")
        A(f"buffer_load_dword v{L+8*k+4}, v{vO2}, s[{sXS}:{sXS+3}], s{sT} offen")
    if after_loads is not None: after_loads(A)
    X=40; tmp=52
    if fused:
        A(f"s_load_dwordx2 s[{sP+4}:{sP+5}], s[0:1], {KA_DBG}\ns_waitcnt lgkmcnt(0)\nv_mov_b32 v6, {DBG_INIT}")
    A(f"s_waitcnt vmcnt({3 if after_loads is not None else 0})")
    def signal_row(k):
        lab=A.uid("L_lns")
        A(f"s_add_u32 s{sT}, s{sA}, {k*NW*4}\ns_cmp_ge_u32 s{sT}, 2048\ns_cbranch_scc1 {lab}")
        A(f"s_lshr_b32 s{sT}, s{sT}, 7\ns_lshl_b32 s{sT}, s{sT}, 7\ns_add_u32 s{sT}, s{sT}, {cnt(C_LN)}")
        wave_signal(A,f"s{sT}")
        A(f"{lab}:")
    for k in range(nrow):
        lab=A.uid("L_ln")
        A(f"s_add_u32 s{sT}, s{sA}, {k*NW*4}\ns_cmp_ge_u32 s{sT}, 2048\ns_cbranch_scc1 {lab}")
        A(f"s_mul_i32 s{sT}, s{sT}, 1152")
        for i in range(5):
            A(f"v_lshlrev_b32 v{X+2*i}, 16, v{L+8*k+i}\nv_and_b32 v{X+2*i+1}, 0xffff0000, v{L+8*k+i}")
        for which,off in ((0,WS_XN),(1,WS_HH)):
            ln_core(A,X,tmp,vMask)
            A(f"s_add_u32 s{sT+1}, s{sT}, {off}")
            o=64+16*k+8*which
            for i in range(5): A(f"v_mov_b32 v{o+i}, v{tmp+4+i}")
            A(f"buffer_store_dwordx4 {vr(o,4)}, v{vO}, s[{sWS}:{sWS+3}], s{sT+1} offen {ST}")
            A(f"buffer_store_dword v{o+4}, v{vO2}, s[{sWS}:{sWS+3}], s{sT+1} offen {ST}")
        A(f"{lab}:")
        if fused and k==0:
            lp=A.uid("L_ini"); ok=A.uid("L_iok")
            A(f"s_mov_b32 s{sP+1}, 0\n{lp}:")
            A(f"global_load_dword v1, v6, s[{sP+4}:{sP+5}] sc1\ns_waitcnt vmcnt(0)\nv_readfirstlane_b32 s{sP+2}, v1")
            A(f"s_cmp_eq_u32 s{sP+2}, 1\ns_cbranch_scc1 {ok}\ns_add_u32 s{sP+1}, s{sP+1}, 1\ns_cmp_gt_u32 s{sP+1}, 4000000\ns_cbranch_scc1 L_abortw\ns_sleep 2\ns_branch {lp}\n{ok}:")
            signal_row(0)
    A("s_waitcnt vmcnt(0)")
    if fused:
        for k in range(1,nrow): signal_row(k)

class Gemm:
    pass

class _Rec:
    def __init__(s): s.lines=[]
    def __call__(s,t):
        for l in t.split("\n"):
            l=l.strip()
            if l: s.lines.append(l)
def dma_pieces(G):
    R=_Rec(); G.dma(R,"x"); G.dma(R,"w")
    pieces=[]; cur=[]
    for l in R.lines:
        cur.append(l)
        if l.startswith("buffer_load"): pieces.append(cur); cur=[]
    if cur: pieces[-1]=pieces[-1]+cur
    return pieces

def gemm_mainloop(A, G, tag):
    SB=G.XB+G.WB
    def mf_list(buf,first):
        out=[]
        for wt in range(G.nWt):
            for xt in range(G.nXt):
                acc=vr(G.acc+16*(wt*G.nXt+xt),16)
                fx=vr(G.fX+buf*4*G.nXt+4*xt,4); fw=vr(G.fW+buf*4*G.nWt+4*wt,4)
                a,b=(fw,fx) if G.orient=="WX" else (fx,fw)
                out.append(f"v_mfma_f32_32x32x16_bf16 {acc}, {a}, {b}, {'0' if first else acc}")
        return out
    def adv(s):
        A(f"s_add_u32 s{s}, s{s}, {SB}\ns_cmp_eq_u32 s{s}, {3*SB}\ns_cselect_b32 s{s}, 0, s{s}")
    A("s_barrier")
    A(f"s_mov_b32 s{sWr}, 0\ns_mov_b32 s{sRd}, 0")
    G.dma(A,"w")
    if getattr(G,"dep",None) is not None: G.dep(A)
    G.dma(A,"x"); adv(sWr)
    for i in range(2):
        G.dma(A,"x"); G.dma(A,"w"); adv(sWr)
    A(f"s_waitcnt vmcnt({2*G.D})\ns_barrier")
    G.setaddr(A)
    G.reads(A,0,0)
    def body(first,dma,trans):
        pcs=dma_pieces(G) if dma else []
        per=(len(pcs)+3)//4
        for ks in range(4):
            A("s_waitcnt lgkmcnt(0)")
            if ks<3: G.reads(A,ks+1,(ks+1)%2)
            elif trans is not None:
                A(f"s_waitcnt vmcnt({trans})\ns_barrier")
                adv(sRd); G.setaddr(A); G.reads(A,0,0)
            m=mf_list(ks%2, first and ks==0)
            mine=pcs[ks*per:(ks+1)*per] if ks<3 else pcs[3*per:]
            for n,x in enumerate(m):
                A(x)
                if ks<3 and n<len(mine):
                    for l in mine[n]: A(l)
        if dma: adv(sWr)
    def body2(first,dma,trans):
        pcs=dma_pieces(G) if dma else []
        per=(len(pcs)+2)//3
        for ks in range(4):
            A("s_waitcnt lgkmcnt(0)")
            if ks<3: G.reads(A,ks+1,(ks+1)%2)
            elif trans is not None:
                A(f"s_waitcnt vmcnt({trans})\ns_barrier")
                adv(sRd); G.setaddr(A); G.reads(A,0,0)
            m=mf_list(ks%2, first and ks==0)
            mine=pcs[ks*per:(ks+1)*per] if ks<3 else []
            for n,x in enumerate(m):
                A(x)
                if n<len(mine):
                    for l in mine[n]: A(l)
            assert len(mine)<=len(m)
        if dma: adv(sWr)
    body2(True,False,G.D)
    A(f"s_mov_b32 s{sIt}, 1")
    lp=A.uid("L_gl")
    A(f"{lp}:")
    body2(False,True,G.D)
    A(f"s_add_u32 s{sIt}, s{sIt}, 1\ns_cmp_lt_u32 s{sIt}, {G.nst-2}\ns_cbranch_scc1 {lp}")
    body2(False,False,0)
    body2(False,False,None)
    A("s_nop 15")

def lane_consts(A, t):
    A(f"""
v_bfe_u32 v{t}, v0, 4, 1
v_bfe_u32 v{t+1}, v0, 5, 1
v_bfe_u32 v{t+2}, v0, 2, 2
v_and_b32 v{t+3}, 3, v0
""")

def w_strided_addr(A, dst, n, rowbytes, unit0_sgpr, xorshift_mode, t):
    lane_consts(A,t)
    A(f"""
v_lshl_add_u32 v{t+4}, v{t+1}, 3, v{t+2}
v_mul_u32_u24 v{t+4}, {rowbytes}, v{t+4}
v_and_b32 v{t+5}, 1, v{t+3}
v_lshl_add_u32 v{t+4}, v{t+5}, 3, v{t+4}
v_lshrrev_b32 v{t+5}, 1, v{t+3}
v_lshl_add_u32 v{t+5}, v{t}, 1, v{t+5}
v_add_u32 v{t+5}, s{unit0_sgpr}, v{t+5}
""")
    if xorshift_mode=="r2": A(f"v_lshlrev_b32 v{t+6}, 2, v{t+2}")
    else: A(f"v_lshrrev_b32 v{t+6}, 1, v{t+2}\nv_lshlrev_b32 v{t+6}, 2, v{t+6}")
    for i in range(n):
        A(f"v_add_u32 v{t+7}, {4*i}, v{t+5}\nv_xor_b32 v{t+7}, v{t+7}, v{t+6}\nv_lshl_add_u32 v{dst+i}, v{t+7}, 4, v{t+4}")

def x_contig_addr(A, dst, row0_sgpr, t):
    A(f"""
v_and_b32 v{t}, 31, v0
v_add_u32 v{t}, s{row0_sgpr}, v{t}
v_lshrrev_b32 v{t+1}, 5, v0
v_bfe_u32 v{t+2}, v{t}, 1, 3
v_lshlrev_b32 v{t}, 7, v{t}
""")
    for ks in range(4):
        A(f"v_add_u32 v{t+3}, {2*ks}, v{t+1}\nv_xor_b32 v{t+3}, v{t+3}, v{t+2}\nv_lshl_add_u32 v{dst+ks}, v{t+3}, 4, v{t}")

gDX=2
gDW=5
gAXc=8
gAWc=12
gAX=16; gAW=20
gT=24
gFX=32; gFW=64
gACC=128

def setaddr_generic(A,nX,nW,XB):
    for i in range(nX): A(f"v_add_u32 v{gAX+i}, s{sRd}, v{gAXc+i}")
    A(f"s_add_u32 s{sT+1}, s{sRd}, {XB}")
    for i in range(nW): A(f"v_add_u32 v{gAW+i}, s{sT+1}, v{gAWc+i}")

def pack_swap(A, acc, j, d):
    a=acc+8*j
    A(f"""
v_cvt_pk_bf16_f32 v{d}, v{a}, v{a+1}
v_cvt_pk_bf16_f32 v{d+1}, v{a+2}, v{a+3}
v_cvt_pk_bf16_f32 v{d+2}, v{a+4}, v{a+5}
v_cvt_pk_bf16_f32 v{d+3}, v{a+6}, v{a+7}
v_permlane32_swap_b32 v{d}, v{d+2}
v_permlane32_swap_b32 v{d+1}, v{d+3}
""")

def emit_g1(A,dep=None):
    G=Gemm(); G.nXt=2; G.nWt=4; G.XB=16384; G.WB=32768; G.nst=9; G.D=12; G.DX=4; G.dep=dep; G.fX=gFX; G.fW=gFW; G.acc=gACC
    t=gT
    srd_from_ws(A,sXS,WS_XN,2048*1152)
    A(f"s_lshl_b32 s{sT}, s{sA}, 3\ns_add_u32 s{sT}, s{sT}, {KA_WQ}\ns_load_dwordx2 s[{sWSRC}:{sWSRC+1}], s[0:1], s{sT}\ns_mov_b32 s{sWSRC+2}, {576*8192}")
    A(f"""
v_lshrrev_b32 v{t}, 3, v0
v_mul_u32_u24 v{t}, 1152, v{t}
v_and_b32 v{t+1}, 7, v0
v_lshrrev_b32 v{t+2}, 4, v0
v_xor_b32 v{t+3}, v{t+1}, v{t+2}
v_lshl_add_u32 v{gDX}, v{t+3}, 4, v{t}
v_xor_b32 v{t+3}, 4, v{t+3}
v_lshl_add_u32 v{gDX+1}, v{t+3}, 4, v{t}
v_lshrrev_b32 v{t}, 5, v0
v_lshlrev_b32 v{t+1}, 2, v{t}
v_lshlrev_b32 v{t}, 13, v{t}
v_and_b32 v{t+2}, 31, v0
v_xor_b32 v{t+3}, v{t+2}, v{t+1}
v_lshl_add_u32 v{gDW}, v{t+3}, 4, v{t}
v_xor_b32 v{t+3}, 8, v{t+3}
v_lshl_add_u32 v{gDW+1}, v{t+3}, 4, v{t}
""")
    A(f"""
s_lshl_b32 s{sT}, s{sB}, 7
s_lshl_b32 s{sT+1}, s{sW}, 5
s_add_u32 s{sT}, s{sT}, s{sT+1}
s_mul_i32 s{sXo}, s{sT}, 1152
s_lshl_b32 s{sWo}, s{sW}, 17
s_lshl_b32 s{sT}, s{sC}, 9
s_add_u32 s{sWo}, s{sWo}, s{sT}
""")
    A(f"s_and_b32 s{sT}, s{sW}, 1\ns_lshl_b32 s{sT}, s{sT}, 6")
    x_contig_addr(A,gAXc,sT,t)
    A(f"s_lshr_b32 s{sT}, s{sW}, 1\ns_lshl_b32 s{sT}, s{sT}, 4")
    w_strided_addr(A,gAWc,4,512,sT,"r2",t)
    def dma(A,part):
        if part=='x':
            for j in range(4):
                A(f"s_lshl_b32 s{sT+2}, s{sW}, 12\ns_add_u32 s{sT+2}, s{sT+2}, s{sWr}\ns_add_u32 m0, s{sT+2}, {j*1024}")
                A(f"s_add_u32 s{sT+3}, s{sXo}, {j*8*1152}")
                A(f"buffer_load_dwordx4 v{gDX+(j%2)}, s[{sXS}:{sXS+3}], s{sT+3} offen sc1 lds")
            A(f"s_add_u32 s{sXo}, s{sXo}, 128")
        else:
            for j in range(8):
                A(f"s_lshl_b32 s{sT+2}, s{sW}, 13\ns_add_u32 s{sT+2}, s{sT+2}, s{sWr}\ns_add_u32 m0, s{sT+2}, {16384+j*1024}")
                A(f"s_add_u32 s{sT+3}, s{sWo}, {j*2*8192}")
                A(f"buffer_load_dwordx4 v{gDW+(j%2)}, s[{sWSRC}:{sWSRC+3}], s{sT+3} offen lds")
            A(f"s_add_u32 s{sWo}, s{sWo}, {64*8192}")
    G.dma=dma
    G.setaddr=lambda A: setaddr_generic(A,4,4,G.XB)
    def reads(A,ks,buf):
        for xt in range(2):
            A(f"ds_read_b128 {vr(G.fX+buf*8+4*xt,4)}, v{gAX+ks} offset:{xt*4096}")
        for wt in range(4):
            for h in range(2):
                A(f"ds_read_b64_tr_b16 {vr(G.fW+buf*16+4*wt+2*h,2)}, v{gAW+wt} offset:{(16*ks+4*h)*512}")
    G.reads=reads
    A("s_waitcnt lgkmcnt(0)")
    lv=A.uid("L_g1v"); le=A.uid("L_g1e")
    A(f"s_cmp_eq_u32 s{sA}, 2\ns_cbranch_scc1 {lv}")
    G.orient="WX"
    gemm_mainloop(A,G,"g1k")
    A(f"""
s_cmp_eq_u32 s{sA}, 0
s_mov_b32 s{sOut}, {WS_KX}
s_cselect_b32 s{sOut}, {WS_QX}, s{sOut}
s_and_b32 s{sT}, s{sW}, 1
s_lshl_b32 s{sT}, s{sT}, 1
s_lshl_b32 s{sT+1}, s{sB}, 2
s_add_u32 s{sT}, s{sT}, s{sT+1}
s_lshl_b32 s{sT}, s{sT}, 18
s_add_u32 s{sOut}, s{sOut}, s{sT}
s_lshl_b32 s{sT}, s{sC}, 1
s_lshr_b32 s{sT+1}, s{sW}, 1
s_add_u32 s{sT}, s{sT}, s{sT+1}
s_lshl_b32 s{sT}, s{sT}, 13
s_add_u32 s{sOut}, s{sOut}, s{sT}
v_and_b32 v{t}, 31, v0
v_lshlrev_b32 v{t}, 4, v{t}
v_lshrrev_b32 v{t+1}, 5, v0
v_lshl_add_u32 v{t}, v{t+1}, 9, v{t}
""")
    n=0
    for xt in range(2):
        for wt in range(4):
            for j in range(2):
                d=gFX+4*(n%8); n+=1
                pack_swap(A,G.acc+16*(wt*2+xt),j,d)
                A(f"s_add_u32 s{sT}, s{sOut}, {xt*262144+(4*wt+2*j)*512}")
                A(f"buffer_store_dwordx4 {vr(d,4)}, v{t}, s[{sWS}:{sWS+3}], s{sT} offen {ST}")
    A(f"s_branch {le}")
    A(f"{lv}:")
    G.orient="XW"
    gemm_mainloop(A,G,"g1v")
    A(f"""
s_and_b32 s{sT}, s{sW}, 1
s_lshl_b32 s{sT}, s{sT}, 1
s_lshl_b32 s{sT+1}, s{sB}, 2
s_add_u32 s{sT}, s{sT}, s{sT+1}
s_lshl_b32 s{sT}, s{sT}, 18
s_add_u32 s{sOut}, s{sT}, {WS_VT}
s_lshl_b32 s{sT}, s{sC}, 1
s_lshr_b32 s{sT+1}, s{sW}, 1
s_add_u32 s{sT}, s{sT}, s{sT+1}
s_lshl_b32 s{sT}, s{sT}, 13
s_add_u32 s{sOut}, s{sOut}, s{sT}
v_and_b32 v{t}, 31, v0
v_lshlrev_b32 v{t}, 4, v{t}
v_lshrrev_b32 v{t+1}, 5, v0
v_lshl_add_u32 v{t}, v{t+1}, 11, v{t}
""")
    n=0
    for xt in range(2):
        for wt in range(4):
            a=G.acc+16*(wt*2+xt)
            for j in range(2):
                d=gFX+4*(n%8); n+=1
                A(f"""
v_cvt_pk_bf16_f32 v{d}, v{a+4*j}, v{a+4*j+1}
v_cvt_pk_bf16_f32 v{d+1}, v{a+4*j+2}, v{a+4*j+3}
v_cvt_pk_bf16_f32 v{d+2}, v{a+8+4*j}, v{a+8+4*j+1}
v_cvt_pk_bf16_f32 v{d+3}, v{a+8+4*j+2}, v{a+8+4*j+3}
s_add_u32 s{sT}, s{sOut}, {xt*262144+j*4096+wt*512}
buffer_store_dwordx4 {vr(d,4)}, v{t}, s[{sWS}:{sWS+3}], s{sT} offen {ST}
""")
    A(f"{le}:")
    A("s_waitcnt vmcnt(0)")

def emit_g2(A,dep=None):
    G=Gemm(); G.nXt=3; G.nWt=2; G.XB=24576; G.WB=16384; G.nst=32; G.D=10; G.DX=6; G.dep=dep; G.fX=gFX; G.fW=gFW; G.acc=gACC; G.orient="WX"
    t=gT
    srd_from_ws(A,sXS,WS_HH,2048*1152)
    srd_from_karg(A,sWSRC,KA_W1,2048*9216)
    for v in range(3):
        A(f"""
v_add_u32 v{t}, {64*v}, v0
v_mul_u32_u24 v{t+1}, 2731, v{t}
v_lshrrev_b32 v{t+1}, 16, v{t+1}
v_mul_u32_u24 v{t+2}, 24, v{t+1}
v_sub_u32 v{t+2}, v{t}, v{t+2}
v_bfe_u32 v{t+3}, v{t+1}, 1, 1
v_lshlrev_b32 v{t+3}, 2, v{t+3}
v_xor_b32 v{t+2}, v{t+2}, v{t+3}
v_mul_u32_u24 v{t+1}, 1152, v{t+1}
v_lshl_add_u32 v{gDX+v}, v{t+2}, 4, v{t+1}
""")
    for U in range(192): assert (U*2731)>>16==U//24
    A(f"""
v_lshrrev_b32 v{t}, 4, v0
v_lshlrev_b32 v{t+1}, 2, v{t}
v_mul_u32_u24 v{t}, 9216, v{t}
v_and_b32 v{t+2}, 15, v0
v_xor_b32 v{t+2}, v{t+2}, v{t+1}
v_lshl_add_u32 v{gDW}, v{t+2}, 4, v{t}
s_mul_i32 s{sXo}, s{sW}, {16*1152}
s_mul_i32 s{sT}, s{sA}, 384
s_add_u32 s{sXo}, s{sXo}, s{sT}
s_mul_i32 s{sWo}, s{sW}, {16*9216}
s_lshl_b32 s{sT}, s{sB}, 8
s_add_u32 s{sWo}, s{sWo}, s{sT}
s_and_b32 s{sT}, s{sW}, 1
s_mul_i32 s{sT}, s{sT}, 12
""")
    w_strided_addr(A,gAXc,3,384,sT,"rhi",t)
    A(f"s_lshr_b32 s{sT}, s{sW}, 1\ns_lshl_b32 s{sT}, s{sT}, 3")
    w_strided_addr(A,gAWc,2,256,sT,"r2",t)
    def dma(A,part):
        if part=='x':
            for j in range(6):
                A(f"s_mul_i32 s{sT+2}, s{sW}, 6144\ns_add_u32 s{sT+2}, s{sT+2}, s{sWr}\ns_add_u32 m0, s{sT+2}, {j*1024}")
                A(f"s_add_u32 s{sT+3}, s{sXo}, {(j//3)*8*1152}")
                A(f"buffer_load_dwordx4 v{gDX+(j%3)}, s[{sXS}:{sXS+3}], s{sT+3} offen sc1 lds")
            A(f"s_add_u32 s{sXo}, s{sXo}, {64*1152}")
        else:
            for j in range(4):
                A(f"s_lshl_b32 s{sT+2}, s{sW}, 12\ns_add_u32 s{sT+2}, s{sT+2}, s{sWr}\ns_add_u32 m0, s{sT+2}, {24576+j*1024}")
                A(f"s_add_u32 s{sT+3}, s{sWo}, {j*4*9216}")
                A(f"buffer_load_dwordx4 v{gDW}, s[{sWSRC}:{sWSRC+3}], s{sT+3} offen lds")
            A(f"s_add_u32 s{sWo}, s{sWo}, {64*9216}")
    G.dma=dma
    G.setaddr=lambda A: setaddr_generic(A,3,2,G.XB)
    def reads(A,ks,buf):
        for xt in range(3):
            for h in range(2):
                A(f"ds_read_b64_tr_b16 {vr(G.fX+buf*12+4*xt+2*h,2)}, v{gAX+xt} offset:{(16*ks+4*h)*384}")
        for wt in range(2):
            for h in range(2):
                A(f"ds_read_b64_tr_b16 {vr(G.fW+buf*8+4*wt+2*h,2)}, v{gAW+wt} offset:{(16*ks+4*h)*256}")
    G.reads=reads
    gemm_mainloop(A,G,"g2")
    srd_from_karg(A,sXS,KA_B1,4608*2)
    A(f"""
s_lshl_b32 s{sT}, s{sB}, 7
s_lshr_b32 s{sT+1}, s{sW}, 1
s_lshl_b32 s{sT+1}, s{sT+1}, 6
s_add_u32 s{sA+3}, s{sT}, s{sT+1}
s_lshl_b32 s{sT}, s{sA+3}, 1
v_lshrrev_b32 v{t}, 5, v0
v_lshlrev_b32 v{t}, 3, v{t}
""")
    Bv=gFW
    for wt in range(2):
        for m in range(4):
            A(f"buffer_load_dwordx2 {vr(Bv+2*(4*wt+m),2)}, v{t}, s[{sXS}:{sXS+3}], s{sT} offen offset:{(32*wt+8*m)*2}")
    A("s_waitcnt vmcnt(0)")
    Bf=gFX
    for i in range(16):
        A(f"v_lshlrev_b32 v{Bf+2*i}, 16, v{Bv+i}\nv_and_b32 v{Bf+2*i+1}, 0xffff0000, v{Bv+i}")
    A(f"""
s_lshr_b32 s{sT}, s{sD}, 3
s_mul_i32 s{sOut}, s{sT}, {576*16}
s_mul_i32 s{sT}, s{sA}, {192*16}
s_add_u32 s{sOut}, s{sOut}, s{sT}
s_and_b32 s{sT}, s{sW}, 1
s_mul_i32 s{sT}, s{sT}, {96*16}
s_add_u32 s{sOut}, s{sOut}, s{sT}
s_add_u32 s{sOut}, s{sOut}, {WS_U}
v_and_b32 v{t}, 31, v0
v_lshlrev_b32 v{t}, 4, v{t}
v_lshrrev_b32 v{t+1}, 5, v0
v_mul_u32_u24 v{t+1}, {576*16}, v{t+1}
v_add_u32 v{t}, v{t}, v{t+1}
s_mov_b32 s{sT+4}, {hex(fbits(0.044715))}
s_mov_b32 s{sT+5}, {hex(fbits(-2.0*math.sqrt(2.0/math.pi)*math.log2(math.e)))}
""")
    x,y=t+2,t+3
    n=0
    for wt in range(2):
        for xt in range(3):
            a=G.acc+16*(wt*3+xt)
            for i in range(16):
                A(f"v_add_f32 v{a+i}, v{a+i}, v{Bf+16*wt+i}")
                A(f"v_mul_f32 v{x}, v{a+i}, v{a+i}")
                A(f"v_mul_f32 v{x}, s{sT+4}, v{x}")
                A(f"v_fma_f32 v{x}, v{x}, v{a+i}, v{a+i}")
                A(f"v_mul_f32 v{x}, s{sT+5}, v{x}")
                A(f"v_exp_f32 v{x}, v{x}")
                A(f"v_add_f32 v{x}, 1.0, v{x}")
                A(f"v_rcp_f32 v{x}, v{x}")
                A(f"v_mul_f32 v{a+i}, v{a+i}, v{x}")
            for j in range(2):
                d=gFW+4*(n%8); n+=1
                pack_swap(A,a,j,d)
                A(f"s_add_u32 s{sT}, s{sOut}, {((32*wt+16*j)//8)*576*16+xt*32*16}")
                A(f"buffer_store_dwordx4 {vr(d,4)}, v{t}, s[{sWS}:{sWS+3}], s{sT} offen {ST}")
    A("s_waitcnt vmcnt(0)")

def emit_g3(A,dep=None):
    G=Gemm(); G.nXt=3; G.nWt=2; G.XB=24576; G.WB=16384; G.nst=18; G.D=10; G.DX=6; G.dep=dep; G.fX=gFX; G.fW=gFW; G.acc=gACC; G.orient="XW"
    t=gT
    srd_from_ws(A,sXS,WS_U,576*576*16)
    srd_from_karg(A,sWSRC,KA_W2,4608*4096)
    A(f"""
v_lshrrev_b32 v{t}, 3, v0
v_lshlrev_b32 v{t}, 4, v{t}
v_and_b32 v{t+1}, 7, v0
v_lshrrev_b32 v{t+2}, 4, v0
v_xor_b32 v{t+3}, v{t+1}, v{t+2}
v_mul_u32_u24 v{t+4}, {576*16}, v{t+3}
v_add_u32 v{gDX}, v{t+4}, v{t}
v_xor_b32 v{t+3}, 4, v{t+3}
v_mul_u32_u24 v{t+4}, {576*16}, v{t+3}
v_add_u32 v{gDX+1}, v{t+4}, v{t}
v_lshrrev_b32 v{t}, 4, v0
v_lshlrev_b32 v{t+1}, 2, v{t}
v_lshlrev_b32 v{t}, 12, v{t}
v_and_b32 v{t+2}, 15, v0
v_xor_b32 v{t+2}, v{t+2}, v{t+1}
v_lshl_add_u32 v{gDW}, v{t+2}, 4, v{t}
s_mul_i32 s{sXo}, s{sC}, {144*576*16}
s_mul_i32 s{sT}, s{sA}, {192*16}
s_add_u32 s{sXo}, s{sXo}, s{sT}
s_mul_i32 s{sT}, s{sW}, {48*16}
s_add_u32 s{sXo}, s{sXo}, s{sT}
s_mul_i32 s{sWo}, s{sC}, {1152*4096}
s_lshl_b32 s{sT}, s{sW}, 16
s_add_u32 s{sWo}, s{sWo}, s{sT}
s_lshl_b32 s{sT}, s{sB}, 8
s_add_u32 s{sWo}, s{sWo}, s{sT}
s_and_b32 s{sT}, s{sW}, 1
s_mul_i32 s{sT}, s{sT}, 96
""")
    x_contig_addr(A,gAXc,sT,t)
    A(f"s_lshr_b32 s{sT}, s{sW}, 1\ns_lshl_b32 s{sT}, s{sT}, 3")
    w_strided_addr(A,gAWc,2,256,sT,"r2",t)
    def dma(A,part):
        if part=='x':
            for j in range(6):
                A(f"s_mul_i32 s{sT+2}, s{sW}, 6144\ns_add_u32 s{sT+2}, s{sT+2}, s{sWr}\ns_add_u32 m0, s{sT+2}, {j*1024}")
                A(f"s_add_u32 s{sT+3}, s{sXo}, {j*8*16}")
                A(f"buffer_load_dwordx4 v{gDX+(j%2)}, s[{sXS}:{sXS+3}], s{sT+3} offen sc1 lds")
            A(f"s_add_u32 s{sXo}, s{sXo}, {8*576*16}")
        else:
            for j in range(4):
                A(f"s_lshl_b32 s{sT+2}, s{sW}, 12\ns_add_u32 s{sT+2}, s{sT+2}, s{sWr}\ns_add_u32 m0, s{sT+2}, {24576+j*1024}")
                A(f"s_add_u32 s{sT+3}, s{sWo}, {j*4*4096}")
                A(f"buffer_load_dwordx4 v{gDW}, s[{sWSRC}:{sWSRC+3}], s{sT+3} offen lds")
            A(f"s_add_u32 s{sWo}, s{sWo}, {64*4096}")
    G.dma=dma
    G.setaddr=lambda A: setaddr_generic(A,4,2,G.XB)
    def reads(A,ks,buf):
        for xt in range(3):
            A(f"ds_read_b128 {vr(G.fX+buf*12+4*xt,4)}, v{gAX+ks} offset:{xt*4096}")
        for wt in range(2):
            for h in range(2):
                A(f"ds_read_b64_tr_b16 {vr(G.fW+buf*8+4*wt+2*h,2)}, v{gAW+wt} offset:{(16*ks+4*h)*256}")
    G.reads=reads
    gemm_mainloop(A,G,"g3")
    srd_from_karg(A,sXS,KA_B2,2048*2)
    A(f"""
s_lshl_b32 s{sT}, s{sB}, 7
s_lshr_b32 s{sT+1}, s{sW}, 1
s_lshl_b32 s{sT+1}, s{sT+1}, 6
s_add_u32 s{sD}, s{sT}, s{sT+1}
s_lshl_b32 s{sT}, s{sD}, 1
v_and_b32 v{t}, 31, v0
v_lshlrev_b32 v{t}, 1, v{t}
buffer_load_ushort v{t+4}, v{t}, s[{sXS}:{sXS+3}], s{sT} offen
buffer_load_ushort v{t+5}, v{t}, s[{sXS}:{sXS+3}], s{sT} offen offset:64
s_lshr_b32 s{sT}, s{sD}, 4
s_mul_i32 s{sOut}, s{sT}, {36*1024}
s_mul_i32 s{sT}, s{sA}, {12*1024}
s_add_u32 s{sOut}, s{sOut}, s{sT}
s_and_b32 s{sT}, s{sW}, 1
s_mul_i32 s{sT}, s{sT}, {6*1024}
s_add_u32 s{sOut}, s{sOut}, s{sT}
s_add_u32 s{sT}, s{sC}, 8
s_mul_i32 s{sT}, s{sT}, {P_SLAB}
s_add_u32 s{sOut}, s{sOut}, s{sT}
s_add_u32 s{sOut}, s{sOut}, {WS_P}
v_and_b32 v{t}, 15, v0
v_lshlrev_b32 v{t}, 4, v{t}
v_lshrrev_b32 v{t+1}, 5, v0
v_lshl_add_u32 v{t}, v{t+1}, 8, v{t}
v_bfe_u32 v{t+1}, v0, 4, 1
v_mul_u32_u24 v{t+1}, {36*1024}, v{t+1}
v_add_u32 v{t}, v{t}, v{t+1}
s_cmp_eq_u32 s{sC}, 0
s_cselect_b32 s{sT+6}, -1, 0
s_waitcnt vmcnt(0)
v_lshlrev_b32 v{t+4}, 16, v{t+4}
v_lshlrev_b32 v{t+5}, 16, v{t+5}
v_and_b32 v{t+4}, s{sT+6}, v{t+4}
v_and_b32 v{t+5}, s{sT+6}, v{t+5}
""")
    for wt in range(2):
        for xt in range(3):
            a=G.acc+16*(wt*3+xt)
            for i in range(16): A(f"v_add_f32 v{a+i}, v{a+i}, v{t+4+wt}")
            for m in range(4):
                A(f"s_add_u32 s{sT}, s{sOut}, {wt*2*36*1024+(2*xt+(m>>1))*1024+(m&1)*512}")
                A(f"buffer_store_dwordx4 {vr(a+4*m,4)}, v{t}, s[{sWS}:{sWS+3}], s{sT} offen {ST}")
    A("s_waitcnt vmcnt(0)")

def wg_wait_cnt(A, off_sgpr_or_const, target, label="L_abortw"):
    done=A.uid("L_wd"); lp=A.uid("L_wp")
    A(f"s_cmp_lg_u32 s{sW}, 0\ns_cbranch_scc1 {done}")
    if isinstance(off_sgpr_or_const,int): A(f"s_mov_b32 s{sP}, {off_sgpr_or_const}")
    else: A(f"s_mov_b32 s{sP}, {off_sgpr_or_const}")
    A(f"s_mov_b32 s{sP+1}, 0\n{lp}:")
    A(f"buffer_load_dword v1, off, s[{sWS}:{sWS+3}], s{sP} sc1\ns_waitcnt vmcnt(0)\nv_readfirstlane_b32 s{sP+2}, v1")
    A(f"s_cmp_ge_u32 s{sP+2}, {target}\ns_cbranch_scc1 {done}")
    A(f"s_add_u32 s{sP+1}, s{sP+1}, 1\ns_cmp_gt_u32 s{sP+1}, 4000000\ns_cbranch_scc1 {label}\ns_sleep 1\ns_branch {lp}")
    A(f"{done}:\ns_barrier")
def wg_signal(A, off_expr):
    done=A.uid("L_sg")
    A(f"s_barrier\ns_cmp_lg_u32 s{sW}, 0\ns_cbranch_scc1 {done}")
    A(f"s_mov_b32 s{sP}, {off_expr}\nv_mov_b32 v1, 1\ns_mov_b64 exec, 1\nbuffer_atomic_add v1, off, s[{sWS}:{sWS+3}], s{sP}\ns_mov_b64 exec, -1")
    A(f"{done}:")
def wave_signal(A, off_expr):
    A(f"s_mov_b32 s{sP}, {off_expr}\nv_mov_b32 v1, 1\ns_mov_b64 exec, 1\nbuffer_atomic_add v1, off, s[{sWS}:{sWS+3}], s{sP}\ns_mov_b64 exec, -1")

def wg_wait_multi(A, base_expr, n, target_expr, label="L_abortw"):
    done=A.uid("L_wd"); lp=A.uid("L_wp")
    A(f"s_cmp_lg_u32 s{sW}, 0\ns_cbranch_scc1 {done}")
    A(f"s_mov_b32 s{sP}, {base_expr}\ns_mov_b32 s{sP+3}, {target_expr}\ns_mov_b32 s{sP+1}, 0")
    A(f"v_min_u32 v1, {n-1}, v0\nv_lshlrev_b32 v1, 7, v1\n{lp}:")
    A(f"buffer_load_dword v250, v1, s[{sWS}:{sWS+3}], s{sP} offen sc1\ns_waitcnt vmcnt(0)")
    A(f"v_cmp_gt_u32 vcc, s{sP+3}, v250\ns_cbranch_vccz {done}")
    A(f"s_add_u32 s{sP+1}, s{sP+1}, 1\ns_cmp_gt_u32 s{sP+1}, 4000000\ns_cbranch_scc1 {label}\ns_sleep 1\ns_branch {lp}")
    A(f"{done}:\ns_barrier")
```

```python
import os
import sys, os; sys.path.insert(0,'gen')
from asmlib import *
from layout import *
import role, chain3 as chain, workers as Wk, p4
NAME="parallel_sum__memory_aug_recurrent_mem_tr__mixer_token_mlp__prompt"
sT=Wk.sT; sA,sB,sC,sD=Wk.sA,Wk.sB,Wk.sC,Wk.sD; sW=Wk.sW; sRank=Wk.sRank; sWS=Wk.sWS
sTask=Wk.sTask
sPrev=47; sSeg=48; sKc=49
NW=224; NG=7
def build(chopt=""):
    for kv in chopt.split(";"):
        if "=" in kv:
            k,v=kv.split("="); setattr(chain.OPT,k,eval(v))
    chain.OPT.fused=True
    if os.environ.get("PROF","0")=="1": chain.OPT.steplog=True
    A=Asm()
    prof=os.environ.get("PROF","0") in ("1","2")
    if prof: A("s_memrealtime s[94:95]")
    role.emit_entry(A)
    A(f"s_cmp_ge_u32 s5, 32\ns_cbranch_scc1 L_exit\ns_cmp_eq_u32 s4, 0\ns_cbranch_scc0 L_work\ns_mov_b32 s{chain.sH}, s5")
    chain.emit_chain(A,nsteps=64,stamps=("total" if os.environ.get("PROF","0")=="2" else False))
    A("s_endpgm\nL_work:")
    A(f"s_sub_u32 s{sRank}, s4, 1\ns_lshl_b32 s{sRank}, s{sRank}, 5\ns_add_u32 s{sRank}, s{sRank}, s5")
    Wk.emit_worker_setup(A)
    def wwarm(A):
        A(f"""
s_mul_i32 s{sT+4}, s{sRank}, 9363
s_lshr_b32 s{sT+4}, s{sT+4}, 16
s_mul_i32 s{sT+5}, s{sT+4}, 7
s_sub_u32 s{sT+5}, s{sRank}, s{sT+5}
s_lshr_b32 s{sT+6}, s{sT+4}, 4
s_lshl_b32 s{sT+6}, s{sT+6}, 3
s_add_u32 s{sT+6}, s{sT+6}, {KA_WK}
s_load_dwordx2 s[{Wk.sWSRC}:{Wk.sWSRC+1}], s[0:1], s{sT+6}
s_mov_b32 s{Wk.sWSRC+2}, {576*8192}
s_and_b32 s{sT+4}, s{sT+4}, 15
s_lshl_b32 s{sT+4}, s{sT+4}, 9
s_mul_i32 s{sT+5}, s{sT+5}, 660
s_lshl_b32 s{sT+6}, s{sW}, 6
s_add_u32 s{sT+5}, s{sT+5}, s{sT+6}
v_add_u32 v100, s{sT+5}, v0
s_waitcnt lgkmcnt(0)
""")
        for k in range(3):
            A(f"v_lshrrev_b32 v101, 3, v100\nv_lshlrev_b32 v101, 13, v101\nv_and_b32 v102, 7, v100\nv_lshl_add_u32 v101, v102, 6, v101")
            A(f"buffer_load_dword v103, v101, s[{Wk.sWSRC}:{Wk.sWSRC+3}], s{sT+4} offen\nv_add_u32 v100, 256, v100")
    Wk.emit_ln(A,NW,fused=True)
    if prof: A("s_memrealtime s[70:71]")
    A(f"s_mov_b32 s{sTask}, s{sRank}\ns_branch L_dispatch")
    A("L_next:")
    A(f"""
s_barrier
s_cmp_lg_u32 s{sW}, 0
s_cbranch_scc1 L_tk2
s_mov_b32 s60, {cnt(C_QUEUE)}
v_mov_b32 v1, 1
s_mov_b64 exec, 1
buffer_atomic_add v1, off, s[{sWS}:{sWS+3}], s60 sc0
s_waitcnt vmcnt(0)
v_mov_b32 v2, 160000
ds_write_b32 v2, v1
s_waitcnt lgkmcnt(0)
s_mov_b64 exec, -1
L_tk2:
s_barrier
v_mov_b32 v2, 160000
ds_read_b32 v1, v2
s_waitcnt lgkmcnt(0)
v_readfirstlane_b32 s{sTask}, v1
s_add_u32 s{sTask}, s{sTask}, {NW}
L_dispatch:
s_cmp_ge_u32 s{sTask}, 1068
s_cbranch_scc1 L_p4
s_cmp_lt_u32 s{sTask}, 512
s_cbranch_scc1 L_t_kv
s_cmp_lt_u32 s{sTask}, 620
s_cbranch_scc1 L_t_g2
s_cmp_lt_u32 s{sTask}, 876
s_cbranch_scc1 L_t_q
s_branch L_t_g3
L_t_q:
s_sub_u32 s{sT}, s{sTask}, 620
s_mov_b32 s{sA}, 0
s_lshr_b32 s{sB}, s{sT}, 4
s_and_b32 s{sC}, s{sT}, 15
s_branch L_t_g1
L_t_kv:
s_cmp_lt_u32 s{sTask}, 224
s_cbranch_scc0 L_t_kv2
s_mul_i32 s{sT}, s{sTask}, 9363
s_lshr_b32 s{sT}, s{sT}, 16
s_mul_i32 s{sT+1}, s{sT}, 7
s_sub_u32 s{sB}, s{sTask}, s{sT+1}
s_lshr_b32 s{sA}, s{sT}, 4
s_add_u32 s{sA}, s{sA}, 1
s_and_b32 s{sC}, s{sT}, 15
s_branch L_t_g1
L_t_kv2:
s_lshr_b32 s{sB}, s{sTask}, 5
s_bfe_u32 s{sA}, s{sTask}, 0x10004
s_add_u32 s{sA}, s{sA}, 1
s_and_b32 s{sC}, s{sTask}, 15
L_t_g1:
""")
    def dep1(A):
        A(f"s_lshl_b32 s76, s{sB}, 7\ns_add_u32 s76, s76, {cnt(C_LN)}")
        Wk.wg_wait_cnt(A,"s76",128)
        if prof:
            l=A.uid("L_pf"); A(f"s_cmp_ge_u32 s{sTask}, {NW}\ns_cbranch_scc1 {l}\ns_memrealtime s[78:79]\n{l}:")
    Wk.emit_g1(A,dep1)
    if prof:
        l=A.uid("L_pf"); A(f"s_cmp_ge_u32 s{sTask}, {NW}\ns_cbranch_scc1 {l}\ns_memrealtime s[80:81]\n{l}:")
    A(f"s_cmp_eq_u32 s{sA}, 0\ns_mov_b32 s{sT}, {cnt(C_KV)}\ns_cselect_b32 s{sT}, {cnt(C_Q)}, s{sT}\ns_lshl_b32 s{sT+1}, s{sB}, 7\ns_add_u32 s{sT}, s{sT}, s{sT+1}")
    Wk.wg_signal(A,f"s{sT}")
    A("s_branch L_next\nL_t_g2:")
    A(f"s_sub_u32 s{sB}, s{sTask}, 512\ns_mul_i32 s{sA}, s{sB}, 1821\ns_lshr_b32 s{sA}, s{sA}, 16\ns_mul_i32 s{sT}, s{sA}, 36\ns_sub_u32 s{sB}, s{sB}, s{sT}")
    Wk.emit_g2(A,lambda A: Wk.wg_wait_multi(A,cnt(C_LN),16,128))
    A(f"s_mul_i32 s{sT}, s{sB}, 7282\ns_lshr_b32 s{sT}, s{sT}, 16\ns_lshl_b32 s{sT+1}, s{sA}, 2\ns_add_u32 s{sT}, s{sT}, s{sT+1}\ns_lshl_b32 s{sT}, s{sT}, 7\ns_add_u32 s{sT}, s{sT}, {cnt(C_U)}")
    for x in range(36): assert (x*7282)>>16==x//9
    Wk.wg_signal(A,f"s{sT}")
    A("s_branch L_next\nL_t_g3:")
    A(f"s_sub_u32 s{sT}, s{sTask}, 876\ns_and_b32 s{sC}, s{sT}, 3\ns_bfe_u32 s{sB}, s{sT}, 0x40002\ns_lshr_b32 s{sA}, s{sT}, 6")
    def dep3(A):
        A(f"s_lshl_b32 s76, s{sA}, 2\ns_add_u32 s76, s76, s{sC}\ns_lshl_b32 s76, s76, 7\ns_add_u32 s76, s76, {cnt(C_U)}")
        Wk.wg_wait_cnt(A,"s76",9)
    Wk.emit_g3(A,dep3)
    A(f"s_lshl_b32 s{sT}, s{sB}, 7\ns_add_u32 s{sT}, s{sT}, {cnt(C_Y)}")
    Wk.wg_signal(A,f"s{sT}")
    A("s_branch L_next")
    A("L_p4:")
    if prof: A("s_memrealtime s[72:73]")
    A(f"s_and_b32 s{sA}, s{sRank}, 7\ns_bfe_u32 s{sB}, s{sRank}, 0x20003\ns_lshr_b32 s{sSeg}, s{sRank}, 5\ns_mov_b32 s{sPrev}, -1")
    p4.emit_p4_setup(A)
    Wk.srd_from_karg(A,Wk.sXS,KA_X,2048*1152); Wk.srd_from_karg(A,Wk.sWSRC,KA_OUT,2048*1152)
    Wk.wg_wait_multi(A,cnt(C_Q),16,16)
    Wk.wg_wait_multi(A,cnt(C_KV),16,32)
    Wk.wg_wait_multi(A,cnt(C_Y),16,12)
    def combine():
        skip=A.uid("L_cs")
        A(f"s_cmp_lt_i32 s{sPrev}, 0\ns_cbranch_scc1 {skip}")
        A(f"s_lshl_b32 s{sT}, s{sPrev}, 7\ns_add_u32 s{sT}, s{sT}, {cnt(C_SEG)}")
        Wk.wg_wait_cnt(A,f"s{sT}",32)
        A(f"s_lshl_b32 s{sT+8}, s{sA}, 2\ns_add_u32 s{sT+8}, s{sT+8}, s{sW}\ns_cmp_ge_u32 s{sT+8}, 18\ns_cbranch_scc1 {skip}")
        A(f"s_cmp_ge_u32 s{sT+8}, 9\ns_cselect_b32 s{sT+9}, 1, 0\ns_mul_i32 s{sT+10}, s{sT+9}, 9\ns_sub_u32 s{sT+8}, s{sT+8}, s{sT+10}")
        A(f"s_lshl_b32 s{sC}, s{sPrev}, 1\ns_add_u32 s{sC}, s{sC}, s{sT+9}\ns_mul_i32 s{sD}, s{sB}, 9\ns_add_u32 s{sD}, s{sD}, s{sT+8}")
        p4.emit_combine_tile(A)
        A(f"{skip}:")
    A("L_p4loop:")
    combine()
    A(f"s_mov_b32 s{sC}, s{sSeg}")
    def between(A):
        A(f"s_lshl_b32 s68, s{sA}, 9\ns_add_u32 s68, s68, {cnt(C_PROG)}\ns_add_u32 s69, s{sSeg}, 1")
        Wk.wg_wait_multi(A,"s68",4,"s69")
    p4.emit_p4_segment(A,0,between)
    A("s_waitcnt vmcnt(0)")
    A(f"s_lshl_b32 s{sT}, s{sSeg}, 7\ns_add_u32 s{sT}, s{sT}, {cnt(C_SEG)}")
    Wk.wg_signal(A,f"s{sT}")
    A(f"s_mov_b32 s{sPrev}, s{sSeg}\ns_add_u32 s{sSeg}, s{sSeg}, {NG}\ns_cmp_lt_u32 s{sSeg}, 64\ns_nop 7\ns_cbranch_scc1 L_p4loop")
    combine()
    A("L_abortw:\ns_waitcnt vmcnt(0)")
    if prof:
        A(f"""s_memrealtime s[74:75]
s_load_dwordx2 s[6:7], s[0:1], {KA_WS}
s_waitcnt lgkmcnt(0)
s_add_u32 s6, s6, {WS_STAMP+0x10000}
s_addc_u32 s7, s7, 0
s_lshl_b32 s8, s{sRank}, 4
v_mov_b32 v1, s8
v_mov_b32 v2, s94
v_mov_b32 v3, s70
v_mov_b32 v4, s72
v_mov_b32 v5, s74
global_store_dwordx4 v1, v[2:5], s[6:7]
v_mov_b32 v6, s78
v_mov_b32 v7, s80
global_store_dwordx2 v1, v[6:7], s[6:7] offset:4000
s_waitcnt vmcnt(0)""")
    A("L_exit:\ns_endpgm")
    lines=fix_hazards(A.lines,True)
    if os.environ.get('ALIGN','3')!='0': lines=align_runs(lines,int(os.environ.get('ALIGN','3')),0,True)
    hdr=open('cdna_kernels/'+NAME+'.s.ref').read().split("; Override")[0]
    name=NAME+"_kernel"
    t=hdr+f"; @launch kernel={name} grid=(256,1,1) block=(256,1,1) lds=163840\n"
    t+=f'.amdgcn_target "amdgcn-amd-amdhsa--gfx950"\n.text\n.globl {name}\n.p2align 8\n.type {name},@function\n{name}:\n'
    t+="\n".join(lines)+"\n"
    t+=f""".section .rodata,"a"
.p2align 6
.amdhsa_kernel {name}
  .amdhsa_next_free_vgpr 512
  .amdhsa_next_free_sgpr 102
  .amdhsa_accum_offset 256
  .amdhsa_group_segment_fixed_size 0
  .amdhsa_kernarg_size 120
  .amdhsa_user_sgpr_count 2
  .amdhsa_user_sgpr_kernarg_segment_ptr 1
  .amdhsa_system_sgpr_workgroup_id_x 1
.end_amdhsa_kernel
"""
    return t
if __name__=="__main__":
    opt=os.environ.get("CHOPT","nred=2;red_gap=40;npoll=3;poll_gap=25;d_gat=60;d_red=[0,5,0,30,30];d_g1=[30,25];red_early=False;warmk=[7,8,9,10];kvmode='spread';ki=[0,1,3];prewarm=True;codewarm=3")
    open(sys.argv[1],"w").write(build(opt))
```

```python
from asmlib import *
from layout import *
import struct, math
def fbits(x): return struct.unpack("<I",struct.pack("<f",x))[0]

vLane=0; vL16M=1; vTR=2; vIdx=3; vWo=4
vH1st=7; vRed=8; vPub=9; vKx=10; vVx=11; vKm=12; vVm=13; vQw=14; vTag=15
vSel=16
vK=20
vV=36
aQ=44; aK=48; aV=52
vA=56
vT=72
def Wq(s): return f"a[{8*s}:{8*s+7}]"
def Wk(s):
    if s<14: return f"a[{144+8*s}:{144+8*s+7}]"
    return f"v[{80+8*(s-14)}:{80+8*(s-14)+7}]"
def Wv(s): return f"v[{112+8*s}:{112+8*s+7}]"
def Wreg(mat,s,q):
    if mat==0: return f"a[{8*s+2*q}:{8*s+2*q+1}]"
    if mat==1:
        if s<14: return f"a[{144+8*s+2*q}:{144+8*s+2*q+1}]"
        return f"v[{80+8*(s-14)+2*q}:{80+8*(s-14)+2*q+1}]"
    return f"v[{112+8*s+2*q}:{112+8*s+2*q+1}]"
def vr(a,n): return f"v[{a}:{a+n-1}]"

sH=10; sW=11; sWS=12; sWT=16
sStep=20
sKXo=21; sVTo=22; sKMo=23; sVMo=24; sH2pub=25; sH2gat=26; sH2rst=27; sH1=28; sH2=29
sTask=30; sHasTask=31; sTagT=32
sTmp=33
sDbg=40; sKarg=42
sRetry=44; sRetry2=45
sMaskF=46
sC=47
sMaskLo=48; sMaskPub=50; sMaskG=52
sWarmK=54; sWarmV=55
sT0=56
WSR=f"s[{sWS}:{sWS+3}]"
QOFF=L_QT-L_MEMT; KOFF=L_KT-L_MEMT; SOFF=L_ST-L_MEMT

class Opt:
    d_red=[0,0,0,0,0]
    d_gat=0
    warm=True
    pmode=0
    d_g1m=120
    prewarm=False
    codewarm=0
    commwave=False
    d_g2=[70,10]
    pd=2
    fused=False
    gmode='split'
    g1wave=2
    kvmode='burst'
    spec1=False
    hs=False
    warmk=[7,7,7,7]
    kvx=3
    warmflag=''
    warmdist=2
    fixkv=False
    fixkm=False
    kmflag='sc1'
    steplog=False
    nred=2
    red_gap=24
    ki=[0,2,6]
    d_g1=[80,40]
    npoll=3
    poll_gap=16
    red_early=True
    clk='s_memtime'
OPT=Opt()
def KVS(): return 8192 if OPT.hs else 262144
def KMS(): return 2048 if OPT.hs else 65536

def emit_setup(A, stamps):
    A(f"""
s_mov_b32 s{sKarg}, s0
s_mov_b32 s{sKarg+1}, s1
s_load_dwordx2 s[{sDbg}:{sDbg+1}], s[0:1], {KA_DBG}
s_load_dwordx2 s[{sWS}:{sWS+1}], s[0:1], {KA_WS}
v_lshrrev_b32 v{vT}, 6, v0
v_and_b32 v{vLane}, 63, v0
v_readfirstlane_b32 s{sW}, v{vT}
s_mov_b32 s{sWS+2}, {WS_SIZE}
s_mov_b32 s{sWS+3}, 0x20000
s_mov_b32 s{sWT+3}, 0x20000
s_mov_b32 s{sH1}, {WS_H1}
s_mov_b32 s{sH2}, {WS_H2}
s_mov_b32 s{sMaskLo}, 0x00ff00ff
s_mov_b32 s{sMaskLo+1}, 0x00ff00ff
s_mov_b32 s{sMaskPub}, 0x00ff00ff
s_mov_b32 s{sMaskPub+1}, 0
s_mov_b32 s{sMaskG}, -1
s_mov_b32 s{sMaskG+1}, 0
s_mov_b32 s{sRetry}, 0
s_mov_b32 s{sRetry2}, 0
s_mov_b32 s{sMaskF}, 0xfffefffe
s_mov_b32 s{sC}, {hex(fbits(128**-0.5*math.log2(math.e)))}
""")
    t0,t1,t2,t3=vT,vT+1,vT+2,vT+3
    if stamps: A("s_memtime s[88:89]")
    if OPT.fused:
        A(f"""
s_cmp_eq_u32 s{sH}, 0
s_cbranch_scc0 L_noclr
s_waitcnt lgkmcnt(0)
v_lshlrev_b32 v{vA}, 4, v{vLane}
v_mov_b32 v{vA+4}, 0
v_mov_b32 v{vA+5}, 0
v_mov_b32 v{vA+6}, 0
v_mov_b32 v{vA+7}, 0
s_mul_i32 s{sTmp}, s{sW}, 6144
s_add_u32 s{sTmp}, s{sTmp}, {WS_CNT}
""")
        for j in range(6):
            A(f"buffer_store_dwordx4 {vr(vA+4,4)}, v{vA}, {WSR}, s{sTmp} offen sc1\ns_add_u32 s{sTmp}, s{sTmp}, 1024")
        A(f"""
s_waitcnt vmcnt(0)
s_barrier
s_cmp_eq_u32 s{sW}, 0
s_cbranch_scc0 L_noclr
v_mov_b32 v{vA}, {DBG_INIT}
v_mov_b32 v{vA+1}, 1
s_mov_b64 exec, 1
global_store_dword v{vA}, v{vA+1}, s[{sDbg}:{sDbg+1}] sc1
s_mov_b64 exec, -1
L_noclr:
""")
    A(f"""
v_lshlrev_b32 v{vL16M}, 4, v{vLane}
v_add_u32 v{vL16M}, {L_MEMT}, v{vL16M}
v_lshrrev_b32 v{t0}, 4, v{vLane}
v_lshlrev_b32 v{t0}, 7, v{t0}
v_bfe_u32 v{t1}, v{vLane}, 2, 2
v_lshl_add_u32 v{t0}, v{t1}, 4, v{t0}
v_and_b32 v{t1}, 1, v{vLane}
v_lshl_add_u32 v{t0}, v{t1}, 3, v{t0}
v_add_u32 v{vTR}, {L_MEMT}, v{t0}
v_and_b32 v{t0}, 8, v{vLane}
v_cmp_ne_u32 vcc, 0, v{t0}
v_mov_b32 v{t0}, 0x4444
v_mov_b32 v{t1}, 0xeeee
v_cndmask_b32 v{vIdx}, v{t0}, v{t1}, vcc
""")
    A(f"""
v_lshlrev_b32 v{vWo}, 4, v{vLane}
v_add_u32 v{vWo+1}, 49152, v{vWo}
v_add_u32 v{vWo+2}, 98304, v{vWo}
""")
    A(f"""
v_bfe_u32 v{t0}, v{vLane}, 5, 1
v_lshlrev_b32 v{t0}, 1, v{t0}
v_bfe_u32 v{t1}, v{vLane}, 3, 1
v_add_u32 v{t0}, v{t0}, v{t1}
v_lshlrev_b32 v{t0}, 12, v{t0}
v_and_b32 v{t1}, 7, v{vLane}
v_lshl_add_u32 v{t0}, v{t1}, 4, v{t0}
v_bfe_u32 v{t1}, v{vLane}, 4, 1
v_lshl_add_u32 v{t0}, v{t1}, 3, v{t0}
s_lshl_b32 s{sTmp+1}, s{sH}, 7
v_add_u32 v{vH1st}, s{sTmp+1}, v{t0}
""")
    A(f"""
s_and_b32 s{sTmp}, s{sH}, 1
s_sub_u32 s{sTmp+1}, s{sW}, 2
s_lshl_b32 s{sTmp+1}, s{sTmp+1}, 1
s_add_u32 s{sTmp}, s{sTmp}, s{sTmp+1}
s_lshl_b32 s{sTmp}, s{sTmp}, 4
s_lshr_b32 s{sTmp+1}, s{sH}, 1
s_add_u32 s{sTask}, s{sTmp}, s{sTmp+1}
s_mov_b32 s{sHasTask}, 1
s_cmp_ge_u32 s{sW}, 2
s_cbranch_scc1 L_task_done
s_lshr_b32 s{sTask}, s{sH}, 2
s_add_u32 s{sTask}, s{sTask}, 64
s_and_b32 s{sTmp}, s{sH}, 3
s_cmp_eq_u32 s{sTmp}, 0
s_cselect_b32 s{sHasTask}, 1, 0
s_cmp_eq_u32 s{sW}, 1
s_cselect_b32 s{sHasTask}, s{sHasTask}, 0
s_cmp_eq_u32 s{sHasTask}, 1
s_cselect_b32 s{sTask}, s{sTask}, 0
L_task_done:
s_lshl_b32 s{sTmp}, s{sTask}, 12
v_lshlrev_b32 v{t0}, 4, v{vLane}
v_add_u32 v{vRed}, s{sTmp}, v{t0}
s_lshl_b32 s{sTmp}, s{sTask}, 7
v_and_b32 v{t0}, 7, v{vLane}
v_lshlrev_b32 v{t0}, 4, v{t0}
v_lshrrev_b32 v{t1}, 4, v{vLane}
v_lshl_add_u32 v{t0}, v{t1}, 3, v{t0}
v_add_u32 v{vPub}, s{sTmp}, v{t0}
v_and_b32 v{t0}, 15, v{vLane}
s_add_u32 s{sTmp}, s{sW}, 3
s_and_b32 s{sTmp}, s{sTmp}, 1
s_lshl_b32 s{sTmp}, s{sTmp}, 4
v_add_u32 v{t0}, s{sTmp}, v{t0}
v_lshlrev_b32 v{t0}, 4, v{t0}
v_lshrrev_b32 v{t1}, 4, v{vLane}
v_lshl_add_u32 v{t0}, v{t1}, 9, v{t0}
s_lshl_b32 s{sTmp}, s{sH}, {19 if OPT.hs else 13}
v_add_u32 v{vKx}, s{sTmp}, v{t0}
v_and_b32 v{t0}, 15, v{vLane}
v_lshlrev_b32 v{t0}, 4, v{t0}
v_lshl_add_u32 v{t0}, v{t1}, 11, v{t0}
s_lshl_b32 s{sTmp}, s{sH}, {19 if OPT.hs else 13}
s_lshl_b32 s{sTmp+1}, s{sW}, 9
s_add_u32 s{sTmp}, s{sTmp}, s{sTmp+1}
v_add_u32 v{vVx}, s{sTmp}, v{t0}
v_and_b32 v{t0}, 7, v{vLane}
v_lshlrev_b32 v{t0}, 8, v{t0}
v_lshl_add_u32 v{vKm}, v{t1}, 4, v{t0}
v_and_b32 v{t0}, 15, v{vLane}
v_bfe_u32 v{t1}, v{vLane}, 5, 1
v_lshl_add_u32 v{t0}, v{t1}, 4, v{t0}
s_lshl_b32 s{sTmp}, s{sW}, 5
v_add_u32 v{t0}, s{sTmp}, v{t0}
v_lshlrev_b32 v{t0}, 4, v{t0}
v_bfe_u32 v{t1}, v{vLane}, 4, 1
v_lshl_add_u32 v{vVm}, v{t1}, 3, v{t0}
v_add_u32 v{vQw}, {L_QT}, v{vVm}
""")
    A(f"v_and_b32 v{t0}, 7, v{vLane}")
    for j in range(4):
        A(f"""
v_mov_b32 v{vSel+j}, 0
v_cmp_eq_u32 vcc, {2*j}, v{t0}
v_mov_b32 v{t1}, 0x3f80
v_cndmask_b32 v{vSel+j}, v{vSel+j}, v{t1}, vcc
v_cmp_eq_u32 vcc, {2*j+1}, v{t0}
v_mov_b32 v{t1}, 0x3f800000
v_cndmask_b32 v{vSel+j}, v{vSel+j}, v{t1}, vcc
""")
    A("s_waitcnt lgkmcnt(0)")
    vW0,vW1,vWoD=vA+4,vA+5,vA+6
    A(f"""
v_lshrrev_b32 v{t0}, 4, v{vLane}
v_and_b32 v{t1}, 1, v{t0}
v_lshlrev_b32 v{t1}, 2, v{t1}
v_and_b32 v{t2}, 15, v{vLane}
v_xor_b32 v{t2}, v{t2}, v{t1}
v_lshlrev_b32 v{t0}, 13, v{t0}
s_lshl_b32 s{sTmp}, s{sH}, 8
s_lshl_b32 s{sTmp+1}, s{sW}, 17
s_add_u32 s{sTmp}, s{sTmp}, s{sTmp+1}
v_add_u32 v{t0}, s{sTmp}, v{t0}
v_lshl_add_u32 v{vW0}, v{t2}, 4, v{t0}
v_xor_b32 v{t2}, 8, v{t2}
v_lshl_add_u32 v{vW1}, v{t2}, 4, v{t0}
""")
    def dma_chunk(c):
        slot=c%9
        if c<27:
            r0=64*(c%9)
            for j in range(4):
                A(f"s_lshl_b32 s{sTmp}, s{sW}, 12\ns_add_u32 m0, s{sTmp}, {slot*16384+j*1024}")
                A(f"s_mov_b32 s{sTmp+1}, {(r0+4*j)*8192}")
                A(f"buffer_load_dwordx4 v{vW0 if j%2==0 else vW1}, s[{sWT}:{sWT+3}], s{sTmp+1} offen lds")
        else:
            cc=c-27
            for j in range(4):
                A(f"s_lshl_b32 s{sTmp}, s{sW}, 2\ns_add_u32 s{sTmp}, s{sTmp}, {16*cc+j}\ns_lshl_b32 s{sTmp}, s{sTmp}, 6")
                A(f"v_add_u32 v{t0}, s{sTmp}, v{vLane}")
                A(f"v_mul_u32_u24 v{t1}, 58255, v{t0}\nv_lshrrev_b32 v{t1}, 26, v{t1}\nv_and_b32 v{t1}, 1, v{t1}\nv_lshlrev_b32 v{t1}, 2, v{t1}\nv_xor_b32 v{t0}, v{t0}, v{t1}\nv_lshlrev_b32 v{vWoD}, 4, v{t0}")
                A(f"s_lshl_b32 s{sTmp}, s{sW}, 12\ns_add_u32 m0, s{sTmp}, {slot*16384+j*1024}")
                A(f"buffer_load_dwordx4 v{vWoD}, s[{sWT}:{sWT+3}], 0 offen lds")
    def set_wsrd(c):
        if c in (0,9,18):
            A(f"s_load_dwordx2 s[{sWT}:{sWT+1}], s[{sKarg}:{sKarg+1}], {[KA_WQ,KA_WK,KA_WV][c//9]}\ns_mov_b32 s{sWT+2}, {576*8192}\ns_waitcnt lgkmcnt(0)")
        if c==27:
            A(f"s_load_dwordx2 s[{sWT}:{sWT+1}], s[{sKarg}:{sKarg+1}], {KA_WO}\ns_waitcnt lgkmcnt(0)")
            A(f"s_mul_i32 s{sTmp}, s{sH}, 147456\ns_add_u32 s{sWT}, s{sWT}, s{sTmp}\ns_addc_u32 s{sWT+1}, s{sWT+1}, 0\ns_mov_b32 s{sWT+2}, 147456")
    vWr=vA+7
    A(f"""
v_lshrrev_b32 v{t0}, 4, v{vLane}
v_bfe_u32 v{t1}, v{vLane}, 2, 1
v_lshl_add_u32 v{t2}, v{t0}, 2, v{t1}
v_lshlrev_b32 v{t2}, 8, v{t2}
v_and_b32 v{t0}, 1, v{t0}
v_lshl_add_u32 v{t0}, v{t0}, 1, v{t1}
v_lshlrev_b32 v{t0}, 2, v{t0}
v_bfe_u32 v{t1}, v{vLane}, 3, 1
v_lshlrev_b32 v{t1}, 1, v{t1}
v_bfe_u32 v{t3}, v{vLane}, 1, 1
v_add_u32 v{t1}, v{t1}, v{t3}
s_lshl_b32 s{sTmp}, s{sW}, 2
v_add_u32 v{t1}, s{sTmp}, v{t1}
v_xor_b32 v{t1}, v{t1}, v{t0}
v_lshl_add_u32 v{t2}, v{t1}, 4, v{t2}
v_and_b32 v{t3}, 1, v{vLane}
v_lshl_add_u32 v{vWr}, v{t3}, 3, v{t2}
v_add_u32 v{vWr+1}, 65536, v{vWr}
v_add_u32 v{vWr+2}, 131072, v{vWr}
""")
    A(f"""
s_load_dwordx2 s[60:61], s[{sKarg}:{sKarg+1}], {KA_MEM0}
s_mov_b32 s62, 9216
s_mov_b32 s63, 0x20000
v_lshrrev_b32 v{vA}, 4, v{vLane}
v_and_b32 v{vA}, 1, v{vA}
v_mul_u32_u24 v{vA}, {4*1152}, v{vA}
v_and_b32 v{vA+1}, 7, v{vLane}
v_lshl_add_u32 v{vA}, v{vA+1}, 1, v{vA}
s_lshl_b32 s{sTmp}, s{sTask}, 4
s_waitcnt lgkmcnt(0)
""")
    for r in range(4):
        A(f"buffer_load_ushort v{vK+r}, v{vA}, s[60:63], s{sTmp} offen offset:{r*1152}")
    A(f"v_mov_b32 v{vT+4}, 0\nv_mov_b32 v{vT+5}, 0\nv_mov_b32 v{vT+6}, -1\nv_mov_b32 v{vT+7}, -1")
    A(f"s_lshl_b32 s{sTmp+2}, s{sW}, 14\ns_add_u32 s{sTmp+2}, s{sTmp+2}, s{sH1}")
    for r in range(4):
        A(f"s_add_u32 s{sTmp}, s{sTmp+2}, {r*65536}")
        A(f"buffer_store_dwordx2 {vr(vT+4,2)}, v{vH1st}, {WSR}, s{sTmp} offen")
    A(f"s_cmp_lt_u32 s{sW}, 2\ns_cbranch_scc0 L_clr1_skip")
    A(f"s_add_u32 s{sTmp}, s{sTmp+2}, {4*65536}")
    A(f"buffer_store_dwordx2 {vr(vT+4,2)}, v{vH1st}, {WSR}, s{sTmp} offen")
    A("L_clr1_skip:")
    A(f"s_cmp_eq_u32 s{sHasTask}, 1\ns_cbranch_scc0 L_clr2_skip")
    A(f"s_mov_b64 exec, s[{sMaskPub}:{sMaskPub+1}]")
    for sl in range(1,4):
        A(f"s_add_u32 s{sTmp}, s{sH2}, {sl*16384}")
        A(f"buffer_store_dwordx2 {vr(vT+6,2)}, v{vPub}, {WSR}, s{sTmp} offen")
    A("s_waitcnt vmcnt(0)")
    A(f"v_lshl_or_b32 v{vK}, v{vK+1}, 16, v{vK}\nv_lshl_or_b32 v{vK+1}, v{vK+3}, 16, v{vK+2}\nv_min_u32 v{vK}, -2, v{vK}")
    A(f"buffer_store_dwordx2 {vr(vK,2)}, v{vPub}, {WSR}, s{sH2} offen")
    A("s_mov_b64 exec, -1\nL_clr2_skip:")
    if OPT.codewarm:
        A(f"""
s_getpc_b64 s[64:65]
L_pcref:
s_add_u32 s64, s64, L_code_begin-L_pcref
s_addc_u32 s65, s65, 0
v_lshlrev_b32 v{vT+7}, 6, v{vLane}
s_lshl_b32 s{sTmp}, s{sW}, 12
v_add_u32 v{vT+7}, s{sTmp}, v{vT+7}
""")
        for j in range(OPT.codewarm):
            A(f"global_load_dword v{vA+1}, v{vT+7}, s[64:65]\nv_add_u32 v{vT+7}, 16384, v{vT+7}")
    DEPTH=8
    set_wsrd(0)
    for c in range(DEPTH): dma_chunk(c)
    A(f"s_waitcnt vmcnt({DEPTH*4})")
    A(f"""
s_waitcnt lgkmcnt(0)
s_barrier
s_cmp_eq_u32 s{sW}, 0
s_cbranch_scc0 L_cb_skip
v_mov_b32 v{vT}, 64
v_mov_b32 v{vT+1}, 1
s_mov_b64 exec, 1
global_atomic_add v{vT}, v{vT+1}, s[{sDbg}:{sDbg+1}]
s_mov_b64 exec, -1
L_cb_skip:
""")
    if stamps: A("s_memtime s[90:91]")
    for c in range(27):
        nxt=c+DEPTH
        A(f"s_waitcnt vmcnt({(DEPTH-1)*4 - (1 if c<8 else 0)})" if False else f"s_waitcnt vmcnt({(DEPTH-1)*4})")
        A("s_barrier")
        if nxt<36:
            set_wsrd(nxt); dma_chunk(nxt)
        mat=c//9; slot=c%9
        for ks in range(2):
            s=2*(c%9)+ks
            for q in range(4):
                off=slot*16384+ks*8192+(2*(q&1)+16*(q>>1))*256
                base=vWr+off//65536; off%=65536
                A(f"ds_read_b64_tr_b16 {Wreg(mat,s,q)}, v{base} offset:{off}")
        A("s_waitcnt lgkmcnt(0)")
        A("s_barrier")
    dma_chunk(35)
    A("s_waitcnt vmcnt(0)\ns_barrier")
    vC=vA+10
    A(f"""
v_bfe_u32 v{t0}, v{vLane}, 4, 1
v_bfe_u32 v{t1}, v{vLane}, 5, 1
v_lshlrev_b32 v{t2}, 4, v{t0}
v_lshl_add_u32 v{t2}, v{t1}, 2, v{t2}
v_bfe_u32 v{t3}, v{vLane}, 2, 1
v_add_u32 v{t2}, v{t2}, v{t3}
v_mul_u32_u24 v{t2}, 1152, v{t2}
v_xor_b32 v{t0}, s{sW}, v{t0}
v_lshl_add_u32 v{t2}, v{t0}, 6, v{t2}
v_bfe_u32 v{t3}, v{vLane}, 3, 1
v_lshl_add_u32 v{t2}, v{t3}, 5, v{t2}
v_and_b32 v{t3}, 3, v{vLane}
v_lshl_add_u32 v{vC}, v{t3}, 3, v{t2}
v_add_u32 v{vC+1}, 73728, v{vC}
s_lshl_b32 s{sTmp}, s{sW}, 11
v_add_u32 v{vC+2}, s{sTmp}, v{vWo}
v_add_u32 v{vC+3}, s{sTmp}, v{vWo+1}
v_add_u32 v{vC+4}, s{sTmp}, v{vWo+2}
""")
    for s in range(4):
        base=vC if s<2 else vC+1
        lab=A.uid("L_cv"); lab2=A.uid("L_cw")
        for r in range(5):
            if r==4: A(f"s_cmp_lt_u32 s{sW}, 2\ns_cbranch_scc0 {lab}")
            for q in range(4):
                off=(s%2)*36864+(2*(q&1)+8*(q>>1))*1152+r*256
                A(f"ds_read_b64_tr_b16 {vr(vK-0+8*r+2*q,2)}, v{base} offset:{off}")
            if r%2==1: A("s_waitcnt lgkmcnt(0)")
        A(f"{lab}:\ns_waitcnt lgkmcnt(0)\ns_barrier")
        for r in range(5):
            if r==4: A(f"s_cmp_lt_u32 s{sW}, 2\ns_cbranch_scc0 {lab2}")
            for half in range(2):
                off=s*36864+r*8192+half*1024
                A(f"ds_write_b128 v{vC+2+off//49152}, {vr(vK+8*r+4*half,4)} offset:{off%49152}")
        A(f"{lab2}:\ns_waitcnt lgkmcnt(0)\ns_barrier")
    if stamps: A("s_memtime s[92:93]")
    A(f"""
s_cmp_eq_u32 s{sW}, 0
s_cbranch_scc0 L_cb_wait
v_mov_b32 v{vT}, 64
s_mov_b32 s{sTmp}, 0
L_cb_poll:
global_load_dword v{vT+2}, v{vT}, s[{sDbg}:{sDbg+1}] sc1
s_waitcnt vmcnt(0)
v_readfirstlane_b32 s{sTmp+1}, v{vT+2}
s_add_u32 s{sTmp}, s{sTmp}, 1
s_cmp_gt_u32 s{sTmp}, 2000000
s_cbranch_scc1 L_abort
s_cmp_ge_u32 s{sTmp+1}, 32
s_cbranch_scc0 L_cb_poll
""")
    if OPT.fused and stamps: A("s_memtime s[90:91]")
    if OPT.fused:
        A(f"""
s_mov_b32 s{sTmp+2}, {cnt(C_KV)}
L_kv_poll:
buffer_load_dword v{vT+2}, off, {WSR}, s{sTmp+2} sc1
s_waitcnt vmcnt(0)
v_readfirstlane_b32 s{sTmp+1}, v{vT+2}
s_add_u32 s{sTmp}, s{sTmp}, 1
s_cmp_gt_u32 s{sTmp}, 4000000
s_cbranch_scc1 L_abort
s_sleep 1
s_cmp_ge_u32 s{sTmp+1}, 64
s_cbranch_scc0 L_kv_poll
""")
    A(f"""
L_cb_wait:
s_barrier
""")
    if OPT.fused:
        A(f"s_cmp_eq_u32 s{sW}, 3\ns_cbranch_scc0 L_nf\nv_mov_b32 v10, 64\nL_nf:")
    if OPT.prewarm:
        A(f"v_lshlrev_b32 v{vT+7}, 2, v{vL16M}\ns_lshl_b32 s{sTmp}, s{sH}, 13\ns_lshl_b32 s{sTmp+1}, s{sW}, 12\ns_and_b32 s{sTmp+1}, s{sTmp+1}, 4096\ns_add_u32 s{sTmp}, s{sTmp}, s{sTmp+1}")
        A(f"s_cmp_lt_u32 s{sW}, 2\ns_mov_b32 s{sTmp+2}, {WS_VT-L_MEMT*4}\ns_cselect_b32 s{sTmp+2}, {WS_KX-L_MEMT*4}, s{sTmp+2}\ns_add_u32 s{sTmp}, s{sTmp}, s{sTmp+2}")
        for sg in range(2):
            A(f"buffer_load_dword v0, v{vT+7}, {WSR}, s{sTmp} offen\ns_add_u32 s{sTmp}, s{sTmp}, 262144")
        A("s_waitcnt vmcnt(0)")

PAIRS=[[0,4,8,12,16],[1,5,9,13,17],[2,6,10],[3,7,11,15,14]]
PAIRS_C=[[0,3,6,9,12,15],[1,4,7,10,13,16],[],[2,5,8,11,14,17]]
PAIRS_D=[[0,4,8,10,14,17],[1,5,9,12,15],[2,6],[3,7,11,13,16]]
PAIRS_E=[[0,4,8,12,16],[1,5,9,13,17],[2,6],[3,7,10,11,14,15]]
def pairs(w): return PAIRS_C[w] if OPT.commwave==True else {0:PAIRS,1:PAIRS_D,2:PAIRS_E}[OPT.pmode][w]
def wo_addr(P, s, half):
    off=s*36864+P*2048+half*1024
    return vWo+off//49152, off%49152

class Cnt:
    def __init__(self,A,name,maxn): self.A=A; self.q=[]; self.name=name; self.maxn=maxn
    def add(self,tag,n=1):
        self.q+= [tag]*n
        assert len(self.q)<=self.maxn, (self.name,self.q)
    def wait(self,tag):
        if tag not in self.q: return
        idx=max(i for i,x in enumerate(self.q) if x==tag)
        self.A(f"s_waitcnt {self.name}({len(self.q)-idx-1})"); del self.q[:idx+1]
    def drain(self):
        self.A(f"s_waitcnt {self.name}(0)"); self.q=[]
    def clear(self): self.q=[]

class Stream:
    def __init__(self, A, w, red_round, nsteps, stamps, stamp_step, sid):
        self.A=A; self.w=w; self.rr=red_round; self.nsteps=nsteps; self.stamps=stamps; self.sid=sid
        self.nst=0; self.names=[]
        self.L=Cnt(A,"lgkmcnt",15); self.V=Cnt(A,"vmcnt",63)
        self.ool=[]
    def stamp(self,name=""):
        if self.stamps==True:
            self.A(f"{OPT.clk} s[{sT0+2*self.nst}:{sT0+2*self.nst+1}]"); self.names.append(name); self.nst+=1
            assert self.nst<=16
    def delay(self,d):
        while d>0: self.A(f"s_nop {min(d,16)-1}"); d-=16
    def trr1(self,dst,off,tag):
        self.A(f"ds_read_b64_tr_b16 {vr(dst,2)}, v{vTR} offset:{off}"); self.L.add(tag)
    def trr(self,dst,off,tag):
        self.trr1(dst,off,tag); self.trr1(dst+2,off+64,tag)
    def gat_issue(self,r,b,tag=None):
        A=self.A
        A(f"s_add_u32 s{sTmp}, s{sH2gat}, {r*2048}")
        A(f"buffer_load_dwordx4 {vr(b,4)}, v{vL16M}, {WSR}, s{sTmp} offen sc1")
        if r<4: A(f"buffer_load_dwordx4 {vr(b+4,4)}, v{vL16M}, {WSR}, s{sTmp} offen offset:1024 sc1")
        if tag: self.V.add(tag,2 if r<4 else 1)
    def gat_check_parts(self,r,b):
        A=self.A
        rt=A.uid("L_grt"); back=A.uid("L_gbk")
        t=vT+6
        g=[]
        g.append(lambda: self.V.wait(("g",r)))
        if r<4:
            g.append(lambda: A(f"v_max3_u32 v{t}, v{b}, v{b+2}, v{b+4}"))
            g.append(lambda: A(f"v_max_u32 v{t}, v{t}, v{b+6}"))
        else:
            g.append(lambda: A(f"v_max_u32 v{t}, v{b}, v{b+2}"))
        g.append(lambda: A(f"v_cmp_eq_u32 vcc, -1, v{t}"))
        def wr():
            A(f"ds_write_b128 v{vL16M}, {vr(b,4)} offset:{r*2048}"); self.L.add(("gw",r))
        def wr2():
            if r<4: A(f"ds_write_b128 v{vL16M}, {vr(b+4,4)} offset:{r*2048+1024}"); self.L.add(("gw",r))
        g.append(wr); g.append(wr2)
        g.append(lambda: A(f"s_cbranch_vccnz {rt}\n{back}:"))
        def ool():
            lp=A.uid("L_glp")
            A(f"{rt}:\n{lp}:\ns_add_u32 s{sRetry2}, s{sRetry2}, 1\ns_cmp_gt_u32 s{sRetry2}, 1000000\ns_cbranch_scc1 L_abort\ns_waitcnt lgkmcnt(0)")
            self.gat_issue(r,b)
            A("s_waitcnt vmcnt(0)")
            if r<4: A(f"v_max3_u32 v{t}, v{b}, v{b+2}, v{b+4}\nv_max_u32 v{t}, v{t}, v{b+6}")
            else: A(f"v_max_u32 v{t}, v{b}, v{b+2}")
            A(f"v_cmp_eq_u32 vcc, -1, v{t}\ns_cbranch_vccnz {lp}")
            A(f"ds_write_b128 v{vL16M}, {vr(b,4)} offset:{r*2048}")
            if r<4: A(f"ds_write_b128 v{vL16M}, {vr(b+4,4)} offset:{r*2048+1024}")
            A(f"s_waitcnt lgkmcnt(0)\ns_branch {back}")
        self.ool.append(ool)
        return g
    def gat_poll(self,r):
        A=self.A
        sets=[vK,vK+8,vV][:OPT.npoll]; NS=len(sets)
        A(f"s_add_u32 s{sTmp+4}, s{sH2gat}, {r*2048}")
        def iss(b):
            A(f"buffer_load_dwordx4 {vr(b,4)}, v{vL16M}, {WSR}, s{sTmp+4} offen sc1")
            A(f"buffer_load_dwordx4 {vr(b+4,4)}, v{vL16M}, {WSR}, s{sTmp+4} offen offset:1024 sc1")
        for i,b in enumerate(sets):
            iss(b)
            if i<NS-1: self.delay(OPT.poll_gap)
        lp=A.uid("L_g0p"); done=A.uid("L_g0d"); oks=[A.uid("L_g0k") for _ in sets]
        A(f"{lp}:")
        for i,b in enumerate(sets):
            A(f"s_waitcnt vmcnt({2*(NS-1)})")
            A(f"v_max3_u32 v{vT+6}, v{b}, v{b+2}, v{b+4}\nv_max_u32 v{vT+6}, v{vT+6}, v{b+6}")
            A(f"v_cmp_eq_u32 vcc, -1, v{vT+6}\ns_cbranch_vccz {oks[i]}")
            iss(b)
        A(f"s_add_u32 s{sRetry2}, s{sRetry2}, 1\ns_cmp_gt_u32 s{sRetry2}, 1000000\ns_cbranch_scc1 L_abort\ns_branch {lp}")
        for i,b in enumerate(sets):
            A(f"{oks[i]}:")
            A(f"ds_write_b128 v{vL16M}, {vr(b,4)} offset:{r*2048}\nds_write_b128 v{vL16M}, {vr(b+4,4)} offset:{r*2048+1024}")
            if i<NS-1: A(f"s_branch {done}")
        A(f"{done}:\ns_waitcnt lgkmcnt(0)")
        self.L.clear()
    def gat_poll01(self):
        A=self.A
        sets=[vK,vA][:OPT.npoll]; NS=len(sets)
        def iss(b):
            A(f"buffer_load_dwordx4 {vr(b,4)}, v{vL16M}, {WSR}, s{sH2gat} offen sc1")
            A(f"buffer_load_dwordx4 {vr(b+4,4)}, v{vL16M}, {WSR}, s{sH2gat} offen offset:1024 sc1")
            A(f"buffer_load_dwordx4 {vr(b+8,4)}, v{vL16M}, {WSR}, s{sH2gat} offen offset:2048 sc1")
            A(f"buffer_load_dwordx4 {vr(b+12,4)}, v{vL16M}, {WSR}, s{sH2gat} offen offset:3072 sc1")
        for i,b in enumerate(sets):
            iss(b)
            if i<NS-1: self.delay(OPT.poll_gap)
        lp=A.uid("L_g0p"); done=A.uid("L_g0d"); oks=[A.uid("L_g0k") for _ in sets]
        A(f"{lp}:")
        for i,b in enumerate(sets):
            A(f"s_waitcnt vmcnt({4*(NS-1)})")
            A(f"v_max3_u32 v{vT+6}, v{b}, v{b+2}, v{b+4}\nv_max3_u32 v{vT+7}, v{b+6}, v{b+8}, v{b+10}\nv_max3_u32 v{vT+6}, v{vT+6}, v{b+12}, v{b+14}\nv_max_u32 v{vT+6}, v{vT+6}, v{vT+7}")
            A(f"v_cmp_eq_u32 vcc, -1, v{vT+6}\ns_cbranch_vccz {oks[i]}")
            iss(b)
        A(f"s_add_u32 s{sRetry2}, s{sRetry2}, 1\ns_cmp_gt_u32 s{sRetry2}, 1000000\ns_cbranch_scc1 L_abort\ns_branch {lp}")
        for i,b in enumerate(sets):
            A(f"{oks[i]}:")
            for j in range(4): A(f"ds_write_b128 v{vL16M}, {vr(b+4*j,4)} offset:{j*1024}")
            if i<NS-1: A(f"s_branch {done}")
        A(f"{done}:\ns_waitcnt vmcnt(0) lgkmcnt(0)")
        self.L.clear()
    def red_iss(self,b,second=False):
        if second: self.A(f"s_add_u32 s{sTmp+5}, s{sH1}, {32*4096}")
        for k in range(4):
            self.A(f"buffer_load_dwordx4 {vr(b+4*k,4)}, v{vRed}, {WSR}, s{sTmp+5 if second else sH1} offen offset:{k*1024} sc1")
    def red_poll(self,pre_issued=False,younger=0,second=False):
        A=self.A
        sets=[vK,vA][:OPT.nred]; NS=len(sets)
        iss=lambda b: self.red_iss(b,second)
        for i,b in enumerate(sets):
            if not (i==0 and pre_issued): iss(b)
            if i<NS-1: self.delay(OPT.red_gap)
        lp=A.uid("L_rp"); done=A.uid("L_rd")
        oks={}
        def check(b,cnt):
            A(f"s_waitcnt vmcnt({cnt})")
            A(f"""
v_xor_b32 v{vT+6}, v{b}, v{vTag}
v_bitop3_b32 v{vT+6}, v{vT+6}, v{b+4}, v{vTag} bitop3:0xf6
v_bitop3_b32 v{vT+6}, v{vT+6}, v{b+8}, v{vTag} bitop3:0xf6
v_bitop3_b32 v{vT+6}, v{vT+6}, v{b+12}, v{vTag} bitop3:0xf6
""")
            if OPT.spec1: A(f"v_mfma_f32_16x16x32_bf16 {vr(aV,4)}, {vr(vSel,4)}, {vr(b,4)}, 0")
            A(f"""
v_and_b32 v{vT+6}, 0x10001, v{vT+6}
v_cmp_ne_u32 vcc, 0, v{vT+6}
s_cbranch_vccz {oks.setdefault(b,A.uid("L_rk"))}
""")
            iss(b)
        check(sets[0],4*(NS-1)+(younger if pre_issued else 0))
        order=sets[1:]+sets[:1]
        A(f"{lp}:")
        for b in order: check(b,4*(NS-1))
        A(f"s_add_u32 s{sRetry}, s{sRetry}, 1\ns_cmp_gt_u32 s{sRetry}, 1000000\ns_cbranch_scc1 L_abort\ns_branch {lp}")
        for n_,b in enumerate(sets):
            A(f"{oks[b]}:")
            for k in range(4):
                A(f"v_mfma_f32_16x16x32_bf16 {vr(aV,4)}, {vr(vSel,4)}, {vr(b+4*k,4)}, {'0' if k==0 else vr(aV,4)}")
            if n_<len(sets)-1: A(f"s_branch {done}")
        A(f"{done}:")
        for r in range(4):
            A(f"v_add_f32_dpp v{aV+r}, v{aV+r}, v{aV+r} row_ror:8 row_mask:0xf bank_mask:0xf")
        A(f"""
v_cvt_pk_bf16_f32 v{vT+4}, v{aV}, v{aV+1}
v_cvt_pk_bf16_f32 v{vT+5}, v{aV+2}, v{aV+3}
s_mov_b64 exec, s[{sMaskPub}:{sMaskPub+1}]
v_min_u32 v{vT+4}, -2, v{vT+4}
""")
        if second: A(f"s_add_u32 s{sTmp+5}, s{sH2pub}, 4096\ns_add_u32 s{sTmp+6}, s{sH2rst}, 4096")
        A(f"""
buffer_store_dwordx2 {vr(vT+4,2)}, v{vPub}, {WSR}, s{sTmp+5 if second else sH2pub} offen
v_mov_b32 v{vT+6}, -1
v_mov_b32 v{vT+7}, -1
buffer_store_dwordx2 {vr(vT+6,2)}, v{vPub}, {WSR}, s{sTmp+6 if second else sH2rst} offen
s_mov_b64 exec, -1
""")
    def kx_loads(self):
        A=self.A
        A(f"s_add_u32 s{sTmp+1}, s{sKXo}, 4096")
        for s in range(4):
            A(f"buffer_load_dwordx4 {vr(vK+4*s,4)}, v{vKx}, {WSR}, s{sKXo if s<2 else sTmp+1} offen offset:{(s%2)*2048} sc1")
        self.V.add(("kx",0),4)
    def kx1(self,s_):
        A=self.A
        if s_>=2: A(f"s_add_u32 s{sTmp+1}, s{sKXo}, 4096")
        A(f"buffer_load_dwordx4 {vr(vK+4*s_,4)}, v{vKx}, {WSR}, s{sKXo if s_<2 else sTmp+1} offen offset:{(s_%2)*2048} sc1")
        self.V.add(("kx",0))
    def vx1(self,t):
        self.A(f"buffer_load_dwordx4 {vr(vV+4*t,4)}, v{vVx}, {WSR}, s{sVTo} offen offset:{t*256} sc1")
        self.V.add(("vx",0))
    def vx_loads(self):
        for t in range(2):
            self.A(f"buffer_load_dwordx4 {vr(vV+4*t,4)}, v{vVx}, {WSR}, s{sVTo} offen offset:{t*256} sc1")
        self.V.add(("vx",0),2)
    def warm1(self,i):
        A=self.A
        sb=sWarmK if i<2 else sWarmV
        A(f"v_lshlrev_b32 v{vT+7}, 2, v{vL16M}")
        A(f"s_add_u32 s{sTmp+1}, s{sb}, {4096*(i%2)}\nbuffer_load_dword v0, v{vT+7}, {WSR}, s{sTmp+1} offen {OPT.warmflag}")
        self.V.add(("warm",i))
    def zero_acc(self):
        for r in range(4): self.A(f"v_mov_b32 v{aQ+r}, 0\nv_mov_b32 v{aK+r}, 0\nv_mov_b32 v{aV+r}, 0")

    def body(self):
        A=self.A; w=self.w; sid=self.sid; L=self.L; V=self.V
        A(f"L_step_{sid}:")
        self.stamp("top")
        V.q=[]
        if OPT.steplog and w==1:
            A(f"s_memrealtime s[88:89]\ns_waitcnt lgkmcnt(0)\nv_mov_b32 v{vT}, s88\nv_mov_b32 v{vT+1}, s90\nv_mov_b32 v{vT+2}, s92\nv_mov_b32 v{vT+3}, s98\ns_lshl_b32 s{sTmp}, s{sH}, 10\ns_lshl_b32 s{sTmp+1}, s{sStep}, 4\ns_add_u32 s{sTmp}, s{sTmp}, s{sTmp+1}\ns_add_u32 s{sTmp}, s{sTmp}, {WS_STAMP+0x20000}\nv_mov_b32 v{vT+6}, 0\nbuffer_store_dwordx4 {vr(vT,4)}, v{vT+6}, {WSR}, s{sTmp} offen\ns_nop 3")
            V.add(("dbg",0))
        L.q=[]
        smf=lambda acc,b,wt: A(f"v_smfmac_f32_16x16x64_bf16 {vr(acc,4)}, {vr(b,4)}, {wt}, v{vIdx}")
        abuf=lambda k: vA+4*(k%4)
        PD=OPT.pd
        for k in range(PD): self.trr(abuf(k),k*512,("a",k))
        side={k:[[],[],[]] for k in range(18)}
        def guarded(fn_list):
            return fn_list
        grounds={3:(2,vK),0:(3,vK),1:(4,vT),2:(None,None)}
        gr,gb=grounds[w]
        skip=[None]
        def begin_skip():
            lab=A.uid("L_fs"); skip[0]=lab
            A(f"s_cmp_eq_u32 s{sStep}, 0\ns_cbranch_scc1 {lab}")
        def end_skip():
            A(f"{skip[0]}:")
        if gr is not None:
            parts=self.gat_check_parts(gr,gb)
            kc=4*(gr-1)-(OPT.pd-2)
            ki={2:OPT.ki[0],3:OPT.ki[1],4:OPT.ki[2]}[gr]
            if ki>=0: side[ki][2]+= [lambda: self.gat_issue(gr,gb,("g",gr))]
            else: V.add(("g",gr),2 if gr<4 else 1)
            nv=len(parts)-4
            side[kc][0]+= parts[:2]
            side[kc][1]+= parts[2:nv+1]
            side[kc][2]+= parts[nv+1:]
        if OPT.kvmode=="spread":
            if w in (1,2):
                for i in range(4): side[i][1]+= [lambda i=i: self.kx1(i)]
                for t in range(2): side[4+t][1]+= [lambda t=t: self.vx1(t)]
            if w==3:
                for t in range(2): side[1+t][1]+= [lambda t=t: self.vx1(t)]
            if w==0:
                for t in range(2): side[t][1]+= [lambda t=t: self.vx1(t)]
        else:
            if w==1: side[0][2]+= [self.kx_loads]; side[3][2]+= [self.vx_loads]
            if w==2: side[0][2]+= [self.kx_loads]; side[2][2]+= [self.vx_loads]
            if w==3: side[3][2]+= [self.vx_loads]
            if w==0: side[0][2]+= [self.vx_loads]
        if w==3 and OPT.warm:
            if OPT.fused:
                def kvcheck():
                    rt=A.uid("L_kvr"); back=A.uid("L_kvb")
                    A(f"v_readfirstlane_b32 s{sTmp+1}, v10\ns_cmp_ge_u32 s{sTmp+1}, 64\ns_cbranch_scc0 {rt}\n{back}:")
                    def ool():
                        lp=A.uid("L_kvl")
                        A(f"{rt}:\ns_add_u32 s{sTmp+2}, s{sStep}, 2\ns_min_u32 s{sTmp+2}, s{sTmp+2}, 63\ns_lshr_b32 s{sTmp+2}, s{sTmp+2}, 2\ns_lshl_b32 s{sTmp+2}, s{sTmp+2}, 7\ns_add_u32 s{sTmp+2}, s{sTmp+2}, {cnt(C_KV)}\n{lp}:")
                        A(f"buffer_load_dword v10, off, {WSR}, s{sTmp+2} sc1\ns_waitcnt vmcnt(0)\nv_readfirstlane_b32 s{sTmp+1}, v10\ns_add_u32 s{sRetry2}, s{sRetry2}, 1\ns_cmp_gt_u32 s{sRetry2}, 4000000\ns_cbranch_scc1 L_abort\ns_sleep 1\ns_cmp_ge_u32 s{sTmp+1}, 64\ns_cbranch_scc0 {lp}\ns_branch {back}")
                    self.ool.append(ool)
                side[min(OPT.warmk)][2]+= [kvcheck]
            for i,kk in enumerate(OPT.warmk):
                if kk is not None and kk<18: side[kk][2]+= [lambda i=i: self.warm1(i)]
            if OPT.fused:
                def kvload():
                    A(f"s_add_u32 s{sTmp+2}, s{sStep}, 3\ns_min_u32 s{sTmp+2}, s{sTmp+2}, 63\ns_lshr_b32 s{sTmp+2}, s{sTmp+2}, 2\ns_lshl_b32 s{sTmp+2}, s{sTmp+2}, 7\ns_add_u32 s{sTmp+2}, s{sTmp+2}, {cnt(C_KV)}")
                    A(f"buffer_load_dword v10, off, {WSR}, s{sTmp+2} sc1"); V.add(("kvf",0))
                side[max(OPT.warmk)][2]+= [kvload]
        for k in range(18):
            L.wait(("a",k))
            b=abuf(k)
            smf(aQ,b,Wq(k))
            if k+PD<18: self.trr1(abuf(k+PD),(k+PD)*512,("a",k+PD))
            for f in side[k][0]: f()
            smf(aK,b,Wk(k))
            if k+PD<18: self.trr1(abuf(k+PD)+2,(k+PD)*512+64,("a",k+PD))
            for f in side[k][1]: f()
            if k<14: smf(aV,b,Wv(k))
            for f in side[k][2]: f()
            if (k+1+PD)%4==0 and (k+1+PD)//4>=2 and (k+1+PD)//4<=4:
                rnd=(k+1+PD)//4
                if rnd==gr: L.wait(("gw",rnd)) if (("gw",rnd) in L.q) else None
                A("s_barrier")
                if rnd==4 and w==1 and OPT.fused:
                    A(f"v_mov_b32 v{vT+5}, s{sStep}\ns_lshl_b32 s{sTmp+1}, s{sH}, 7\ns_add_u32 s{sTmp+1}, s{sTmp+1}, {cnt(C_PROG)}\ns_mov_b64 exec, 1\nbuffer_store_dword v{vT+5}, off, {WSR}, s{sTmp+1} sc1\ns_mov_b64 exec, -1")
                    V.add(("prog",0))
                if rnd in (2,4): self.stamp(f"qkB{rnd}")
        self.stamp("qkend")
        smf(aV,abuf(14),Wv(14))
        A(f"v_cvt_pk_bf16_f32 v{vT}, v{aQ}, v{aQ+1}\nv_cvt_pk_bf16_f32 v{vT+1}, v{aQ+2}, v{aQ+3}")
        A(f"ds_write_b64 v{vQw}, {vr(vT,2)}")
        smf(aV,abuf(15),Wv(15))
        A(f"v_cvt_pk_bf16_f32 v{vT+2}, v{aK}, v{aK+1}\nv_cvt_pk_bf16_f32 v{vT+3}, v{aK+2}, v{aK+3}")
        A(f"ds_write_b64 v{vQw}, {vr(vT+2,2)} offset:2048")
        smf(aV,abuf(16),Wv(16)); smf(aV,abuf(17),Wv(17))
        L.drain()
        A("s_barrier")
        last=f"L_last_{sid}"
        self.stamp("B6")
        if OPT.steplog and w==1: A("s_memrealtime s[90:91]")
        if w==3 and OPT.warm:
            for i,kk in enumerate(OPT.warmk):
                if kk==20: self.warm1(i)
        if w<3:
            if w==0:
                for s in range(3):
                    self.trr(vK+4*s,KOFF+s*512,("k",s)); self.trr(vA+4*s,QOFF+s*512,("q",s))
                A(f"s_cmp_eq_u32 s{sStep}, {self.nsteps-1}\ns_cbranch_scc1 {last}")
                L.wait(("q",0))
                self.trr(vK+12,KOFF+3*512,("k",3)); self.trr(vA+12,QOFF+3*512,("q",3))
                for s in range(4):
                    L.wait(("q",s))
                    A(f"v_mfma_f32_16x16x32_bf16 {vr(vT,4)}, {vr(vK+4*s,4)}, {vr(vA+4*s,4)}, {'0' if s==0 else vr(vT,4)}")
            else:
                for s in range(4): self.trr(vA+4*s,QOFF+s*512,("q",s))
                A(f"s_cmp_eq_u32 s{sStep}, {self.nsteps-1}\ns_cbranch_scc1 {last}")
                V.wait(("kx",0))
                for s in range(4):
                    L.wait(("q",s))
                    A(f"v_mfma_f32_16x16x32_bf16 {vr(vT,4)}, {vr(vK+4*s,4)}, {vr(vA+4*s,4)}, {'0' if s==0 else vr(vT,4)}")
            self.stamp("Smf")
            A(f"v_cvt_pk_bf16_f32 v{aV}, v{aV}, v{aV+1}\nv_cvt_pk_bf16_f32 v{aV+1}, v{aV+2}, v{aV+3}")
            A(f"buffer_store_dwordx2 {vr(aV,2)}, v{vVm}, {WSR}, s{sVMo} offen {OPT.kmflag}"); V.add(("vm",0))
        else:
            A(f"s_cmp_eq_u32 s{sStep}, {self.nsteps-1}\ns_cbranch_scc1 {last}")
            self.stamp("Smf")
            A(f"v_cvt_pk_bf16_f32 v{aV}, v{aV}, v{aV+1}\nv_cvt_pk_bf16_f32 v{aV+1}, v{aV+2}, v{aV+3}")
            A(f"buffer_store_dwordx2 {vr(aV,2)}, v{vVm}, {WSR}, s{sVMo} offen {OPT.kmflag}"); V.add(("vm",0))
        prep=f"""
s_add_u32 s{sTagT}, s{sStep}, 1
s_and_b32 s{sTmp}, s{sTagT}, 1
s_bfe_u32 s{sTmp+1}, s{sTagT}, 0x10001
s_lshl_b32 s{sTmp+1}, s{sTmp+1}, 16
s_or_b32 s{sTmp+2}, s{sTmp}, s{sTmp+1}
s_and_b32 s{sTmp}, s{sTagT}, 3
s_lshl_b32 s{sTmp}, s{sTmp}, 14
s_add_u32 s{sH2pub}, s{sTmp}, s{sH2}
s_sub_u32 s{sH2gat}, s{sH2pub}, {L_MEMT}
s_add_u32 s{sTmp}, s{sStep}, 3
s_and_b32 s{sTmp}, s{sTmp}, 3
s_lshl_b32 s{sTmp}, s{sTmp}, 14
s_add_u32 s{sH2rst}, s{sTmp}, s{sH2}
"""
        if w<3:
            A(f"ds_write_b128 v{vL16M}, {vr(vT,4)} offset:{SOFF+w*1024}"); L.add(("st",0))
            A(prep)
            if w==0:
                A(f"s_mov_b64 exec, s[{sMaskLo}:{sMaskLo+1}]")
                for s in range(4):
                    A(f"buffer_store_dwordx4 {vr(vK+4*s,4)}, v{vKm}, {WSR}, s{sKMo} offen offset:{s*64} {OPT.kmflag}")
                A("s_mov_b64 exec, -1"); V.add(("km",0),4)
            L.drain()
        else:
            A(prep)
        A("s_barrier")
        self.stamp("B7")
        if w==3 and OPT.warm:
            for i,kk in enumerate(OPT.warmk):
                if kk==21: self.warm1(i)
        S=vA
        for t in (1,2,0):
            A(f"ds_read_b128 {vr(S+4*t,4)}, v{vL16M} offset:{SOFF+t*1024}"); L.add(("s",t))
        A(f"v_mov_b32 v{vTag}, s{sTmp+2}")
        prs=pairs(w)
        seq=[(j,P,s) for j,P in enumerate(prs) for s in range(4)]
        n=len(seq)
        m,mt=vT,vT+1
        L.wait(("s",2))
        A(f"v_max3_f32 v{m}, v{S+4}, v{S+5}, v{S+6}\nv_max3_f32 v{mt}, v{S+7}, v{S+8}, v{S+9}\nv_max3_f32 v{m}, v{m}, v{S+10}, v{S+11}")
        L.wait(("s",0))
        self.stamp("Srd")
        A(f"""
v_max3_f32 v{mt}, v{mt}, v{S}, v{S+1}
v_max3_f32 v{m}, v{m}, v{S+2}, v{S+3}
v_max_f32 v{m}, v{m}, v{mt}
v_mov_b32 v{mt}, v{m}
v_permlane32_swap_b32 v{m}, v{mt}
v_max_f32 v{m}, v{m}, v{mt}
v_mov_b32 v{mt}, v{m}
v_permlane16_swap_b32 v{m}, v{mt}
v_max_f32 v{m}, v{m}, v{mt}
v_mul_f32 v{mt}, s{sC}, v{m}
""")
        P=vK
        for i in range(4,12): A(f"v_fma_f32 v{S+i}, v{S+i}, s{sC}, -v{mt}")
        for i in range(4,12):
            A(f"v_exp_f32 v{S+i}, v{S+i}")
            if i in (6,8,10): A(f"v_cvt_pk_bf16_f32 v{P+(i-6)//2}, v{S+i-2}, v{S+i-1}")
        for i in range(4): A(f"v_fma_f32 v{S+i}, v{S+i}, s{sC}, -v{mt}")
        A(f"v_cvt_pk_bf16_f32 v{P+3}, v{S+10}, v{S+11}")
        self.stamp("exp")
        V.wait(("vx",0))
        A(f"v_mfma_f32_16x16x32_bf16 {vr(aQ,4)}, {vr(vV,4)}, {vr(P,4)}, 0")
        A(f"v_mfma_f32_16x16x32_bf16 {vr(aK,4)}, {vr(vV+4,4)}, {vr(P,4)}, 0")
        for i in range(4): A(f"v_exp_f32 v{S+i}, v{S+i}")
        l,lt=vT+2,vT+3
        A(f"""
v_add_f32 v{l}, v{S+4}, v{S+5}
v_add_f32 v{lt}, v{S+6}, v{S+7}
v_cvt_pk_bf16_f32 v{P+4}, v{S}, v{S+1}
v_cvt_pk_bf16_f32 v{P+5}, v{S+2}, v{S+3}
v_cndmask_b32 v{P+6}, 0, v{P+4}, s[{sMaskG}:{sMaskG+1}]
v_cndmask_b32 v{P+7}, 0, v{P+5}, s[{sMaskG}:{sMaskG+1}]
v_cndmask_b32 v{P+8}, v{P+4}, 0, s[{sMaskG}:{sMaskG+1}]
v_cndmask_b32 v{P+9}, v{P+5}, 0, s[{sMaskG}:{sMaskG+1}]
v_mfma_f32_16x16x16_bf16 {vr(aQ,4)}, {vr(aV,2)}, {vr(P+6,2)}, {vr(aQ,4)}
v_mfma_f32_16x16x16_bf16 {vr(aK,4)}, {vr(aV,2)}, {vr(P+8,2)}, {vr(aK,4)}
v_add_f32 v{l}, v{l}, v{S+8}
v_add_f32 v{lt}, v{lt}, v{S+9}
v_add_f32 v{l}, v{l}, v{S+10}
v_add_f32 v{lt}, v{lt}, v{S+11}
v_add_f32 v{mt}, v{S}, v{S+1}
v_add_f32 v{m}, v{S+2}, v{S+3}
v_add_f32 v{l}, v{l}, v{lt}
v_add_f32 v{mt}, v{mt}, v{m}
v_fma_f32 v{l}, v{mt}, 0.5, v{l}
v_mov_b32 v{lt}, v{l}
v_permlane32_swap_b32 v{l}, v{lt}
v_add_f32 v{l}, v{l}, v{lt}
v_mov_b32 v{lt}, v{l}
v_permlane16_swap_b32 v{l}, v{lt}
v_add_f32 v{l}, v{l}, v{lt}
v_rcp_f32 v{l}, v{l}
""")
        Bst=[vA,vA+8,vK]
        def wo_rd(i,half=None):
            j,Pp,s=seq[i]
            for hf in ((0,1) if half is None else (half,)):
                b,off=wo_addr(Pp,s,hf)
                A(f"ds_read_b128 {vr(Bst[i%3]+4*hf,4)}, v{b} offset:{off}"); L.add(("w",i))
        if n>0: wo_rd(0); wo_rd(1)
        for r in range(0,4,2):
            A(f"v_pk_mul_f32 {vr(aQ+r,2)}, {vr(aQ+r,2)}, {vr(l,2)} op_sel_hi:[1,0]")
            A(f"v_pk_mul_f32 {vr(aK+r,2)}, {vr(aK+r,2)}, {vr(l,2)} op_sel_hi:[1,0]")
        oA=[vV,vV+4,vK+8,vK+12]
        A(f"""
v_cvt_pk_bf16_f32 v{vT+4}, v{aQ}, v{aQ+1}
v_cvt_pk_bf16_f32 v{vT+5}, v{aQ+2}, v{aQ+3}
v_cvt_pk_bf16_f32 v{vT+6}, v{aK}, v{aK+1}
v_cvt_pk_bf16_f32 v{vT+7}, v{aK+2}, v{aK+3}
ds_write_b128 v{vL16M}, {vr(vT+4,4)} offset:{QOFF+w*1024}
""")
        L.add(("ow",0))
        self.stamp("owr")
        for r in range(4): A(f"v_mov_b32 v{aQ+r}, 0")
        for r in range(4): A(f"v_mov_b32 v{aK+r}, 0")
        L.drain()
        A("s_barrier")
        self.stamp("B8")
        if OPT.steplog and w==1: A("s_memrealtime s[92:93]")
        if n>0:
            for s in range(4):
                A(f"ds_read_b128 {vr(oA[s],4)}, v{vL16M} offset:{QOFF+s*1024}"); L.add(("o",s))
            wo_rd(2)
        def epi_parts(j):
            acc=aQ if j%2==0 else aK
            e=vT+2*(j%2)
            def st():
                A(f"s_add_u32 s{sTmp+3}, s{sH1}, {prs[j]*16384}")
                A(f"buffer_store_dwordx2 {vr(e,2)}, v{vH1st}, {WSR}, s{sTmp+3} offen"); V.add(("h1",j))
            return [lambda: A(f"v_cvt_pk_bf16_f32 v{e}, v{acc}, v{acc+1}"),
                    lambda: A(f"v_cvt_pk_bf16_f32 v{e+1}, v{acc+2}, v{acc+3}"),
                    lambda: A(f"v_and_or_b32 v{e}, v{e}, s{sMaskF}, v{vTag}"), st]
        for i,(j,Pp,s) in enumerate(seq):
            acc=aQ if j%2==0 else aK
            if j==0: L.wait(("o",s))
            L.wait(("w",i))
            A(f"v_smfmac_f32_16x16x64_bf16 {vr(acc,4)}, {vr(oA[s],4)}, {vr(Bst[i%3],8)}, v{vIdx}")
            if i+3<n: wo_rd(i+3)
            if j>0 and s==0:
                for f in epi_parts(j-1)[:2]: f()
            if j>0 and s==1:
                for f in epi_parts(j-1)[2:]: f()
            if s>=2 and j>=1 and j+1<len(prs):
                nacc=aQ if (j+1)%2==0 else aK
                for k_ in (0,1) if s==2 else (2,3): A(f"v_mov_b32 v{nacc+k_}, 0")
        early = self.rr is not None and w>=2 and OPT.red_early and not OPT.commwave
        if early:
            self.delay(OPT.d_red[self.rr])
            self.red_iss(vK)
        if n>0:
            for f in epi_parts(len(prs)-1): f()
        self.stamp("opend")
        if OPT.steplog and w==1: A("s_memrealtime s[98:99]")
        if self.rr is not None:
            lab=A.uid("L_nt")
            if w==1: A(f"s_cmp_eq_u32 s{sHasTask}, 1\ns_cbranch_scc0 {lab}")
            if early: self.red_poll(True,1)
            else:
                self.delay(OPT.d_red[self.rr])
                self.red_poll()
            if OPT.commwave and w==2:
                self.delay(OPT.d_red[self.rr+2])
                self.red_poll(second=True)
            A("s_waitcnt vmcnt(2)")
            A(f"{lab}:")
        self.stamp("redend")
        A(f"L_pre_{sid}:")
        self.zero_acc()
        A(f"""
s_add_u32 s{sStep}, s{sStep}, 1
s_add_u32 s{sKXo}, s{sKXo}, {0 if OPT.fixkv else KVS()}
s_add_u32 s{sVTo}, s{sVTo}, {0 if OPT.fixkv else KVS()}
s_add_u32 s{sKMo}, s{sKMo}, {0 if OPT.fixkm else KMS()}
s_add_u32 s{sVMo}, s{sVMo}, {0 if OPT.fixkm else KMS()}
s_add_u32 s{sTmp}, s{sStep}, {OPT.warmdist}
s_min_u32 s{sTmp}, s{sTmp}, 63
s_lshl_b32 s{sTmp}, s{sTmp}, {13 if OPT.hs else 18}
s_lshl_b32 s{sTmp+1}, s{sH}, {19 if OPT.hs else 13}
s_add_u32 s{sTmp}, s{sTmp}, s{sTmp+1}
s_add_u32 s{sWarmK}, s{sTmp}, {WS_KX-L_MEMT*4}
s_add_u32 s{sWarmV}, s{sTmp}, {WS_VT-L_MEMT*4}
""")
        if OPT.gmode=="joint":
            if w==0:
                self.delay(OPT.d_gat)
                self.gat_poll01()
        else:
            if w==0:
                self.delay(OPT.d_gat)
                self.gat_poll(0)
            if OPT.g1wave=="mix":
                if w==1:
                    l=A.uid("L_g1s")
                    A(f"s_cmp_eq_u32 s{sHasTask}, 1\ns_cbranch_scc1 {l}")
                    self.delay(OPT.d_g1m); self.gat_poll(1)
                    A(f"{l}:")
                if w==2:
                    l=A.uid("L_g1s")
                    A(f"s_and_b32 s{sTmp}, s{sH}, 3\ns_cmp_eq_u32 s{sTmp}, 0\ns_cbranch_scc0 {l}")
                    self.delay(OPT.d_g1[self.rr%2]); self.gat_poll(1)
                    A(f"{l}:")
            elif w==OPT.g1wave:
                self.delay(OPT.d_g1[self.rr%2] if self.rr is not None else OPT.d_g1[0])
                self.gat_poll(1)
        if w==3 and OPT.ki[0]<0:
            self.delay(OPT.d_g2[(self.rr or 0)%2])
            self.gat_issue(2,vK)
        self.stamp("gat0")
        A(f"s_barrier\ns_branch L_step_{sid}\n{last}:")
        A(f"v_cvt_pk_bf16_f32 v{aV}, v{aV}, v{aV+1}\nv_cvt_pk_bf16_f32 v{aV+1}, v{aV+2}, v{aV+3}")
        A(f"buffer_store_dwordx2 {vr(aV,2)}, v{vVm}, {WSR}, s{sVMo} offen {OPT.kmflag}")
        if w==0:
            A(f"ds_read_b64_tr_b16 {vr(vK+12,2)}, v{vTR} offset:{KOFF+3*512}\nds_read_b64_tr_b16 {vr(vK+14,2)}, v{vTR} offset:{KOFF+3*512+64}")
            A("s_waitcnt lgkmcnt(0)")
            A(f"s_mov_b64 exec, s[{sMaskLo}:{sMaskLo+1}]")
            for s in range(4):
                A(f"buffer_store_dwordx4 {vr(vK+4*s,4)}, v{vKm}, {WSR}, s{sKMo} offen offset:{s*64} {OPT.kmflag}")
            A("s_mov_b64 exec, -1")
        if OPT.fused:
            A("s_waitcnt vmcnt(0)\ns_barrier")
            if w==1:
                A(f"v_mov_b32 v{vT+5}, 64\ns_lshl_b32 s{sTmp+1}, s{sH}, 7\ns_add_u32 s{sTmp+1}, s{sTmp+1}, {cnt(C_PROG)}\ns_mov_b64 exec, 1\nbuffer_store_dword v{vT+5}, off, {WSR}, s{sTmp+1} sc1\ns_mov_b64 exec, -1")
        A("s_branch L_finish")
        for f in self.ool: f()

def emit_chain(A, nsteps=64, stamps=False, standalone=True, stamp_step=20):
    emit_setup(A, stamps)
    A(f"s_mov_b32 s{sStep}, -1")
    A(f"s_mov_b32 s{sKXo}, {WS_KX-(0 if OPT.fixkv else KVS())}\ns_mov_b32 s{sVTo}, {WS_VT-(0 if OPT.fixkv else KVS())}")
    A(f"s_lshl_b32 s{sTmp}, s{sH}, {17 if OPT.hs else 11}\ns_add_u32 s{sKMo}, s{sTmp}, {WS_KM-(0 if OPT.fixkm else KMS())}\ns_add_u32 s{sVMo}, s{sTmp}, {WS_VM-(0 if OPT.fixkm else KMS())}")
    A(f"s_sub_u32 s{sH2gat}, s{sH2}, {L_MEMT}")
    A(f"s_lshl_b32 s{sTmp+1}, s{sH}, {19 if OPT.hs else 13}\ns_add_u32 s{sTmp}, s{sTmp+1}, {2*KVS()}\ns_add_u32 s{sWarmK}, s{sTmp}, {WS_KX-L_MEMT*4}\ns_add_u32 s{sWarmV}, s{sTmp}, {WS_VT-L_MEMT*4}")
    if stamps: A(f"s_memtime s[94:95]\ns_waitcnt lgkmcnt(0)")
    variants=[("w0",0,None),("w1",1,4),("w2e",2,0),("w2o",2,1),("w3e",3,2),("w3o",3,3)]
    if OPT.commwave: variants=[("w0",0,None),("w1",1,4),("w2e",2,0),("w2o",2,1),("w3e",3,None)]
    A(f"""
s_cmp_eq_u32 s{sW}, 0
s_cbranch_scc1 L_pre_w0
s_cmp_eq_u32 s{sW}, 1
s_cbranch_scc1 L_pre_w1
s_and_b32 s{sTmp}, s{sH}, 1
s_lshl_b32 s{sTmp+1}, s{sW}, 1
s_add_u32 s{sTmp}, s{sTmp}, s{sTmp+1}
s_cmp_eq_u32 s{sTmp}, 4
s_cbranch_scc1 L_pre_w2e
s_cmp_eq_u32 s{sTmp}, 5
s_cbranch_scc1 L_pre_w2o
s_cmp_eq_u32 s{sTmp}, 6
s_cbranch_scc1 L_pre_w3e
s_branch {"L_pre_w3e" if OPT.commwave else "L_pre_w3o"}
""")
    A("L_code_begin:")
    nst=0
    for sid,w,rr in variants:
        st=Stream(A,w,rr,nsteps,stamps,stamp_step,sid); st.body(); nst=st.nst
    A("L_finish:")
    if stamps:
        A(f"s_memtime s[96:97]\ns_waitcnt vmcnt(0) lgkmcnt(0)\ns_sub_u32 s96, s96, s94")
        A(f"s_lshl_b32 s{sTmp}, s{sH}, 2\ns_add_u32 s{sTmp}, s{sTmp}, s{sW}\ns_lshl_b32 s{sTmp}, s{sTmp}, 7\ns_add_u32 s{sTmp}, s{sTmp}, {WS_STAMP}")
        A(f"v_mov_b32 v{vK}, s96\nv_mov_b32 v{vK+1}, s{sRetry}\nv_mov_b32 v{vK+2}, s{sRetry2}")
        A(f"s_sub_u32 s90, s90, s88\ns_sub_u32 s92, s92, s88\ns_sub_u32 s94, s94, s88\nv_mov_b32 v{vK+3}, s90\nv_mov_b32 v{vK+4}, s92\nv_mov_b32 v{vK+5}, s94\nv_mov_b32 v{vK+6}, 0\nv_mov_b32 v{vK+7}, 0")
        for i in range(16):
            A(f"v_mov_b32 v{vK+8+i}, s{sT0+2*i}")
        A(f"v_mov_b32 v{vT}, 0\ns_mov_b64 exec, 1")
        for j in range(6):
            A(f"buffer_store_dwordx4 {vr(vK+4*j,4)}, v{vT}, {WSR}, s{sTmp} offen offset:{16*j}")
        A("s_mov_b64 exec, -1")
        global STAMP_NAMES
        STAMP_NAMES=st.names
        print("stamps:",st.names)
    A("L_abort:\ns_waitcnt vmcnt(0)")
OPT.red_lag=1
```

```python
from asmlib import *
from layout import *
import struct, math
def fbits(x): return struct.unpack("<I",struct.pack("<f",x))[0]
def vr(a,n): return f"v[{a}:{a+n-1}]" if n>1 else f"v{a}"

sRank=10; sW=11; sWS=12; sXS=16; sWSRC=20
sT=24
sXo=36; sWo=37; sRd=38; sWr=39; sIt=40; sOut=41; sTask=42; sA=43; sB=44; sC=45; sD=46
sKarg=0
ST="sc1"
sP=60

def emit_worker_setup(A):
    A(f"""
s_load_dwordx2 s[{sWS}:{sWS+1}], s[0:1], {KA_WS}
v_lshrrev_b32 v1, 6, v0
v_and_b32 v0, 63, v0
v_readfirstlane_b32 s{sW}, v1
s_mov_b32 s{sWS+2}, {WS_SIZE}
s_mov_b32 s{sWS+3}, 0x20000
s_mov_b32 s{sXS+3}, 0x20000
s_mov_b32 s{sWSRC+3}, 0x20000
s_waitcnt lgkmcnt(0)
""")

def srd_from_karg(A, s, off, nbytes):
    A(f"s_load_dwordx2 s[{s}:{s+1}], s[0:1], {off}\ns_mov_b32 s{s+2}, {nbytes}\ns_waitcnt lgkmcnt(0)")
def srd_from_ws(A, s, off, nbytes):
    A(f"s_add_u32 s{s}, s{sWS}, {off}\ns_addc_u32 s{s+1}, s{sWS+1}, 0\ns_mov_b32 s{s+2}, {nbytes}")

def wave_allsum(A, v, t):
    for r in (8,4,2,1):
        A(f"v_add_f32_dpp v{v}, v{v}, v{v} row_ror:{r} row_mask:0xf bank_mask:0xf")
    A(f"v_mov_b32 v{t}, v{v}\nv_permlane16_swap_b32 v{v}, v{t}\nv_add_f32 v{v}, v{v}, v{t}")
    A(f"v_mov_b32 v{t}, v{v}\nv_permlane32_swap_b32 v{v}, v{t}\nv_add_f32 v{v}, v{v}, v{t}")
def rne_bf16(A, v):
    A(f"v_cvt_pk_bf16_f32 v{v}, v{v}, v{v}\nv_and_b32 v{v}, 0xffff0000, v{v}")
def ln_core(A, X, tmp, vMask):
    s,t,m,d=tmp,tmp+1,tmp+2,tmp+3
    A(f"v_add_f32 v{s}, v{X}, v{X+1}")
    for i in range(2,10): A(f"v_add_f32 v{s}, v{s}, v{X+i}")
    wave_allsum(A,s,t)
    A(f"v_mul_f32 v{s}, {hex(fbits(1.0/576))}, v{s}")
    A(f"v_sub_f32 v{d}, v{X}, v{s}\nv_mul_f32 v{m}, v{d}, v{d}")
    for i in range(1,8): A(f"v_sub_f32 v{d}, v{X+i}, v{s}\nv_fmac_f32 v{m}, v{d}, v{d}")
    for i in (8,9): A(f"v_sub_f32 v{d}, v{X+i}, v{s}\nv_mul_f32 v{d}, v{d}, v{vMask}\nv_fmac_f32 v{m}, v{d}, v{d}")
    wave_allsum(A,m,t)
    A(f"v_mul_f32 v{m}, {hex(fbits(1.0/576))}, v{m}")
    rne_bf16(A,m); rne_bf16(A,s)
    A(f"v_add_f32 v{m}, {hex(fbits(1e-5))}, v{m}"); rne_bf16(A,m)
    A(f"v_sqrt_f32 v{m}, v{m}"); rne_bf16(A,m)
    A(f"v_rcp_f32 v{m}, v{m}")
    for i in range(0,10,2):
        A(f"v_sub_f32 v{X+i}, v{X+i}, v{s}\nv_sub_f32 v{X+i+1}, v{X+i+1}, v{s}")
        A(f"v_cvt_pk_bf16_f32 v{d}, v{X+i}, v{X+i+1}")
        A(f"v_lshlrev_b32 v{X+i}, 16, v{d}\nv_and_b32 v{X+i+1}, 0xffff0000, v{d}")
        A(f"v_mul_f32 v{X+i}, v{X+i}, v{m}\nv_mul_f32 v{X+i+1}, v{X+i+1}, v{m}")
        A(f"v_cvt_pk_bf16_f32 v{d}, v{X+i}, v{X+i+1}")
        A(f"v_mov_b32 v{tmp+4+i//2}, v{d}")
        A(f"v_lshlrev_b32 v{X+i}, 16, v{d}\nv_and_b32 v{X+i+1}, 0xffff0000, v{d}")
    A(f"v_mul_f32 v{X+8}, v{X+8}, v{vMask}\nv_mul_f32 v{X+9}, v{X+9}, v{vMask}")

def emit_ln(A, NW, fused=False, after_loads=None):
    nrow=(2048+NW*4-1)//(NW*4)
    srd_from_karg(A,sXS,KA_X,2048*1152)
    vO,vO2,vMask=2,3,4
    L=8
    A(f"""
v_lshlrev_b32 v{vO}, 4, v0
v_lshlrev_b32 v{vO2}, 2, v0
v_add_u32 v{vO2}, 1024, v{vO2}
v_mov_b32 v5, 0x7ff00000
v_cmp_gt_u32 vcc, 32, v0
v_cndmask_b32 v{vO2}, v5, v{vO2}, vcc
v_cndmask_b32 v{vMask}, 0, 1.0, vcc
s_lshl_b32 s{sA}, s{sRank}, 2
s_add_u32 s{sA}, s{sA}, s{sW}
""")
    for k in range(nrow):
        A(f"s_add_u32 s{sT}, s{sA}, {k*NW*4}\ns_mul_i32 s{sT}, s{sT}, 1152")
        A(f"buffer_load_dwordx4 {vr(L+8*k,4)}, v{vO}, s[{sXS}:{sXS+3}], s{sT} offen")
        A(f"buffer_load_dword v{L+8*k+4}, v{vO2}, s[{sXS}:{sXS+3}], s{sT} offen")
    if after_loads is not None: after_loads(A)
    X=40; tmp=52
    if fused:
        A(f"s_load_dwordx2 s[{sP+4}:{sP+5}], s[0:1], {KA_DBG}\ns_waitcnt lgkmcnt(0)\nv_mov_b32 v6, {DBG_INIT}")
    A(f"s_waitcnt vmcnt({3 if after_loads is not None else 0})")
    def signal_row(k):
        lab=A.uid("L_lns")
        A(f"s_add_u32 s{sT}, s{sA}, {k*NW*4}\ns_cmp_ge_u32 s{sT}, 2048\ns_cbranch_scc1 {lab}")
        A(f"s_lshr_b32 s{sT}, s{sT}, 7\ns_lshl_b32 s{sT}, s{sT}, 7\ns_add_u32 s{sT}, s{sT}, {cnt(C_LN)}")
        wave_signal(A,f"s{sT}")
        A(f"{lab}:")
    for k in range(nrow):
        lab=A.uid("L_ln")
        A(f"s_add_u32 s{sT}, s{sA}, {k*NW*4}\ns_cmp_ge_u32 s{sT}, 2048\ns_cbranch_scc1 {lab}")
        A(f"s_mul_i32 s{sT}, s{sT}, 1152")
        for i in range(5):
            A(f"v_lshlrev_b32 v{X+2*i}, 16, v{L+8*k+i}\nv_and_b32 v{X+2*i+1}, 0xffff0000, v{L+8*k+i}")
        for which,off in ((0,WS_XN),(1,WS_HH)):
            ln_core(A,X,tmp,vMask)
            A(f"s_add_u32 s{sT+1}, s{sT}, {off}")
            o=64+16*k+8*which
            for i in range(5): A(f"v_mov_b32 v{o+i}, v{tmp+4+i}")
            A(f"buffer_store_dwordx4 {vr(o,4)}, v{vO}, s[{sWS}:{sWS+3}], s{sT+1} offen {ST}")
            A(f"buffer_store_dword v{o+4}, v{vO2}, s[{sWS}:{sWS+3}], s{sT+1} offen {ST}")
        A(f"{lab}:")
        if fused and k==0:
            lp=A.uid("L_ini"); ok=A.uid("L_iok")
            A(f"s_mov_b32 s{sP+1}, 0\n{lp}:")
            A(f"global_load_dword v1, v6, s[{sP+4}:{sP+5}] sc1\ns_waitcnt vmcnt(0)\nv_readfirstlane_b32 s{sP+2}, v1")
            A(f"s_cmp_eq_u32 s{sP+2}, 1\ns_cbranch_scc1 {ok}\ns_add_u32 s{sP+1}, s{sP+1}, 1\ns_cmp_gt_u32 s{sP+1}, 4000000\ns_cbranch_scc1 L_abortw\ns_sleep 2\ns_branch {lp}\n{ok}:")
            signal_row(0)
    A("s_waitcnt vmcnt(0)")
    if fused:
        for k in range(1,nrow): signal_row(k)

class Gemm:
    pass

PROFHOOK=None
class _Rec:
    def __init__(s): s.lines=[]
    def __call__(s,t):
        for l in t.split("\n"):
            l=l.strip()
            if l: s.lines.append(l)
def dma_pieces(G):
    R=_Rec(); G.dma(R,"x"); G.dma(R,"w")
    pieces=[]; cur=[]
    for l in R.lines:
        cur.append(l)
        if l.startswith("buffer_load"): pieces.append(cur); cur=[]
    if cur: pieces[-1]=pieces[-1]+cur
    return pieces

def gemm_mainloop(A, G, tag):
    SB=G.XB+G.WB
    def mf_list(buf,first):
        out=[]
        for wt in range(G.nWt):
            for xt in range(G.nXt):
                acc=vr(G.acc+16*(wt*G.nXt+xt),16)
                fx=vr(G.fX+buf*4*G.nXt+4*xt,4); fw=vr(G.fW+buf*4*G.nWt+4*wt,4)
                a,b=(fw,fx) if G.orient=="WX" else (fx,fw)
                out.append(f"v_mfma_f32_32x32x16_bf16 {acc}, {a}, {b}, {'0' if first else acc}")
        return out
    def adv(s):
        A(f"s_add_u32 s{s}, s{s}, {SB}\ns_cmp_eq_u32 s{s}, {3*SB}\ns_cselect_b32 s{s}, 0, s{s}")
    A("s_barrier")
    A(f"s_mov_b32 s{sWr}, 0\ns_mov_b32 s{sRd}, 0")
    G.dma(A,"w")
    if getattr(G,"dep",None) is not None: G.dep(A)
    G.dma(A,"x"); adv(sWr)
    for i in range(2):
        G.dma(A,"x"); G.dma(A,"w"); adv(sWr)
    nextra=0
    if getattr(G,"warm",None) is not None: nextra=G.warm(A)
    A(f"s_waitcnt vmcnt({2*G.D+nextra})\ns_barrier")
    if PROFHOOK and tag.startswith("g1"): PROFHOOK(A,82)
    G.setaddr(A)
    G.reads(A,0,0)
    def body(first,dma,trans):
        pcs=dma_pieces(G) if dma else []
        per=(len(pcs)+3)//4
        for ks in range(4):
            A("s_waitcnt lgkmcnt(0)")
            if ks<3: G.reads(A,ks+1,(ks+1)%2)
            elif trans is not None:
                A(f"s_waitcnt vmcnt({trans})\ns_barrier")
                adv(sRd); G.setaddr(A); G.reads(A,0,0)
            m=mf_list(ks%2, first and ks==0)
            mine=pcs[ks*per:(ks+1)*per] if ks<3 else pcs[3*per:]
            for n,x in enumerate(m):
                A(x)
                if ks<3 and n<len(mine):
                    for l in mine[n]: A(l)
        if dma: adv(sWr)
    def body2(first,dma,trans):
        pcs=dma_pieces(G) if dma else []
        per=(len(pcs)+2)//3
        for ks in range(4):
            A("s_waitcnt lgkmcnt(0)")
            if ks<3: G.reads(A,ks+1,(ks+1)%2)
            elif trans is not None:
                A(f"s_waitcnt vmcnt({trans})\ns_barrier")
                adv(sRd); G.setaddr(A); G.reads(A,0,0)
            m=mf_list(ks%2, first and ks==0)
            mine=pcs[ks*per:(ks+1)*per] if ks<3 else []
            for n,x in enumerate(m):
                A(x)
                if n<len(mine):
                    for l in mine[n]: A(l)
            assert len(mine)<=len(m)
        if dma: adv(sWr)
    body2(True,False,G.D+nextra)
    A(f"s_mov_b32 s{sIt}, 1")
    lp=A.uid("L_gl")
    A(f"{lp}:")
    body2(False,True,G.D)
    A(f"s_add_u32 s{sIt}, s{sIt}, 1\ns_cmp_lt_u32 s{sIt}, {G.nst-2}\ns_cbranch_scc1 {lp}")
    body2(False,False,0)
    body2(False,False,None)
    A("s_nop 15")
    if PROFHOOK and tag.startswith("g1"): PROFHOOK(A,84)

def lane_consts(A, t):
    A(f"""
v_bfe_u32 v{t}, v0, 4, 1
v_bfe_u32 v{t+1}, v0, 5, 1
v_bfe_u32 v{t+2}, v0, 2, 2
v_and_b32 v{t+3}, 3, v0
""")

def w_strided_addr(A, dst, n, rowbytes, unit0_sgpr, xorshift_mode, t):
    lane_consts(A,t)
    A(f"""
v_lshl_add_u32 v{t+4}, v{t+1}, 3, v{t+2}
v_mul_u32_u24 v{t+4}, {rowbytes}, v{t+4}
v_and_b32 v{t+5}, 1, v{t+3}
v_lshl_add_u32 v{t+4}, v{t+5}, 3, v{t+4}
v_lshrrev_b32 v{t+5}, 1, v{t+3}
v_lshl_add_u32 v{t+5}, v{t}, 1, v{t+5}
v_add_u32 v{t+5}, s{unit0_sgpr}, v{t+5}
""")
    if xorshift_mode=="r2": A(f"v_lshlrev_b32 v{t+6}, 2, v{t+2}")
    else: A(f"v_lshrrev_b32 v{t+6}, 1, v{t+2}\nv_lshlrev_b32 v{t+6}, 2, v{t+6}")
    for i in range(n):
        A(f"v_add_u32 v{t+7}, {4*i}, v{t+5}\nv_xor_b32 v{t+7}, v{t+7}, v{t+6}\nv_lshl_add_u32 v{dst+i}, v{t+7}, 4, v{t+4}")

def x_contig_addr(A, dst, row0_sgpr, t):
    A(f"""
v_and_b32 v{t}, 31, v0
v_add_u32 v{t}, s{row0_sgpr}, v{t}
v_lshrrev_b32 v{t+1}, 5, v0
v_bfe_u32 v{t+2}, v{t}, 1, 3
v_lshlrev_b32 v{t}, 7, v{t}
""")
    for ks in range(4):
        A(f"v_add_u32 v{t+3}, {2*ks}, v{t+1}\nv_xor_b32 v{t+3}, v{t+3}, v{t+2}\nv_lshl_add_u32 v{dst+ks}, v{t+3}, 4, v{t}")

gDX=2
gDW=5
gAXc=8
gAWc=12
gAX=16; gAW=20
gT=24
gFX=32; gFW=64
gACC=128

def setaddr_generic(A,nX,nW,XB):
    for i in range(nX): A(f"v_add_u32 v{gAX+i}, s{sRd}, v{gAXc+i}")
    A(f"s_add_u32 s{sT+1}, s{sRd}, {XB}")
    for i in range(nW): A(f"v_add_u32 v{gAW+i}, s{sT+1}, v{gAWc+i}")

def pack_swap(A, acc, j, d):
    a=acc+8*j
    A(f"""
v_cvt_pk_bf16_f32 v{d}, v{a}, v{a+1}
v_cvt_pk_bf16_f32 v{d+1}, v{a+2}, v{a+3}
v_cvt_pk_bf16_f32 v{d+2}, v{a+4}, v{a+5}
v_cvt_pk_bf16_f32 v{d+3}, v{a+6}, v{a+7}
v_permlane32_swap_b32 v{d}, v{d+2}
v_permlane32_swap_b32 v{d+1}, v{d+3}
""")

def emit_g1(A,dep=None,warmx=False):
    G=Gemm(); G.nXt=2; G.nWt=4; G.XB=16384; G.WB=32768; G.nst=9; G.D=12; G.DX=4; G.dep=dep; G.fX=gFX; G.fW=gFW; G.acc=gACC
    t=gT
    srd_from_ws(A,sXS,WS_XN,2048*1152)
    A(f"s_lshl_b32 s{sT}, s{sA}, 3\ns_add_u32 s{sT}, s{sT}, {KA_WQ}\ns_load_dwordx2 s[{sWSRC}:{sWSRC+1}], s[0:1], s{sT}\ns_mov_b32 s{sWSRC+2}, {576*8192}")
    A(f"""
v_lshrrev_b32 v{t}, 3, v0
v_mul_u32_u24 v{t}, 1152, v{t}
v_and_b32 v{t+1}, 7, v0
v_lshrrev_b32 v{t+2}, 4, v0
v_xor_b32 v{t+3}, v{t+1}, v{t+2}
v_lshl_add_u32 v{gDX}, v{t+3}, 4, v{t}
v_xor_b32 v{t+3}, 4, v{t+3}
v_lshl_add_u32 v{gDX+1}, v{t+3}, 4, v{t}
v_lshrrev_b32 v{t}, 5, v0
v_lshlrev_b32 v{t+1}, 2, v{t}
v_lshlrev_b32 v{t}, 13, v{t}
v_and_b32 v{t+2}, 31, v0
v_xor_b32 v{t+3}, v{t+2}, v{t+1}
v_lshl_add_u32 v{gDW}, v{t+3}, 4, v{t}
v_xor_b32 v{t+3}, 8, v{t+3}
v_lshl_add_u32 v{gDW+1}, v{t+3}, 4, v{t}
""")
    A(f"""
s_lshl_b32 s{sT}, s{sB}, 7
s_lshl_b32 s{sT+1}, s{sW}, 5
s_add_u32 s{sT}, s{sT}, s{sT+1}
s_mul_i32 s{sXo}, s{sT}, 1152
s_lshl_b32 s{sWo}, s{sW}, 17
s_lshl_b32 s{sT}, s{sC}, 9
s_add_u32 s{sWo}, s{sWo}, s{sT}
""")
    A(f"s_and_b32 s{sT}, s{sW}, 1\ns_lshl_b32 s{sT}, s{sT}, 6")
    x_contig_addr(A,gAXc,sT,t)
    A(f"s_lshr_b32 s{sT}, s{sW}, 1\ns_lshl_b32 s{sT}, s{sT}, 4")
    w_strided_addr(A,gAWc,4,512,sT,"r2",t)
    def dma(A,part):
        if part=='x':
            for j in range(4):
                A(f"s_lshl_b32 s{sT+2}, s{sW}, 12\ns_add_u32 s{sT+2}, s{sT+2}, s{sWr}\ns_add_u32 m0, s{sT+2}, {j*1024}")
                A(f"s_add_u32 s{sT+3}, s{sXo}, {j*8*1152}")
                A(f"buffer_load_dwordx4 v{gDX+(j%2)}, s[{sXS}:{sXS+3}], s{sT+3} offen sc1 lds")
            A(f"s_add_u32 s{sXo}, s{sXo}, 128")
        else:
            for j in range(8):
                A(f"s_lshl_b32 s{sT+2}, s{sW}, 13\ns_add_u32 s{sT+2}, s{sT+2}, s{sWr}\ns_add_u32 m0, s{sT+2}, {16384+j*1024}")
                A(f"s_add_u32 s{sT+3}, s{sWo}, {j*2*8192}")
                A(f"buffer_load_dwordx4 v{gDW+(j%2)}, s[{sWSRC}:{sWSRC+3}], s{sT+3} offen lds")
            A(f"s_add_u32 s{sWo}, s{sWo}, {64*8192}")
    G.dma=dma
    def warm(A):
        A(f"""
s_lshl_b32 s{sT+4}, s{sW}, 6
v_add_u32 v{t+6}, s{sT+4}, v0
s_lshl_b32 s{sT+4}, s{sB}, 7
s_mul_i32 s{sT+4}, s{sT+4}, 1152
s_add_u32 s{sT+4}, s{sT+4}, 384
v_lshrrev_b32 v{t+7}, 1, v{t+6}
v_mul_u32_u24 v{t+7}, 1152, v{t+7}
v_and_b32 v{t+6}, 1, v{t+6}
v_mul_u32_u24 v{t+6}, 384, v{t+6}
v_add_u32 v{t+7}, v{t+7}, v{t+6}
""")
        for j in range(6):
            A(f"buffer_load_dword v125, v{t+7}, s[{sXS}:{sXS+3}], s{sT+4} offen offset:{j*64}")
        return 6
    G.warm=warm if warmx else None
    G.setaddr=lambda A: setaddr_generic(A,4,4,G.XB)
    def reads(A,ks,buf):
        for xt in range(2):
            A(f"ds_read_b128 {vr(G.fX+buf*8+4*xt,4)}, v{gAX+ks} offset:{xt*4096}")
        for wt in range(4):
            for h in range(2):
                A(f"ds_read_b64_tr_b16 {vr(G.fW+buf*16+4*wt+2*h,2)}, v{gAW+wt} offset:{(16*ks+4*h)*512}")
    G.reads=reads
    A("s_waitcnt lgkmcnt(0)")
    lv=A.uid("L_g1v"); le=A.uid("L_g1e")
    A(f"s_cmp_eq_u32 s{sA}, 2\ns_cbranch_scc1 {lv}")
    G.orient="WX"
    gemm_mainloop(A,G,"g1k")
    A(f"""
s_cmp_eq_u32 s{sA}, 0
s_mov_b32 s{sOut}, {WS_KX}
s_cselect_b32 s{sOut}, {WS_QX}, s{sOut}
s_and_b32 s{sT}, s{sW}, 1
s_lshl_b32 s{sT}, s{sT}, 1
s_lshl_b32 s{sT+1}, s{sB}, 2
s_add_u32 s{sT}, s{sT}, s{sT+1}
s_lshl_b32 s{sT}, s{sT}, 18
s_add_u32 s{sOut}, s{sOut}, s{sT}
s_lshl_b32 s{sT}, s{sC}, 1
s_lshr_b32 s{sT+1}, s{sW}, 1
s_add_u32 s{sT}, s{sT}, s{sT+1}
s_lshl_b32 s{sT}, s{sT}, 13
s_add_u32 s{sOut}, s{sOut}, s{sT}
v_and_b32 v{t}, 31, v0
v_lshlrev_b32 v{t}, 4, v{t}
v_lshrrev_b32 v{t+1}, 5, v0
v_lshl_add_u32 v{t}, v{t+1}, 9, v{t}
""")
    n=0
    for xt in range(2):
        for wt in range(4):
            for j in range(2):
                d=gFX+4*(n%8); n+=1
                pack_swap(A,G.acc+16*(wt*2+xt),j,d)
                A(f"s_add_u32 s{sT}, s{sOut}, {xt*262144+(4*wt+2*j)*512}")
                A(f"buffer_store_dwordx4 {vr(d,4)}, v{t}, s[{sWS}:{sWS+3}], s{sT} offen {ST}")
    A(f"s_branch {le}")
    A(f"{lv}:")
    G.orient="XW"
    gemm_mainloop(A,G,"g1v")
    A(f"""
s_and_b32 s{sT}, s{sW}, 1
s_lshl_b32 s{sT}, s{sT}, 1
s_lshl_b32 s{sT+1}, s{sB}, 2
s_add_u32 s{sT}, s{sT}, s{sT+1}
s_lshl_b32 s{sT}, s{sT}, 18
s_add_u32 s{sOut}, s{sT}, {WS_VT}
s_lshl_b32 s{sT}, s{sC}, 1
s_lshr_b32 s{sT+1}, s{sW}, 1
s_add_u32 s{sT}, s{sT}, s{sT+1}
s_lshl_b32 s{sT}, s{sT}, 13
s_add_u32 s{sOut}, s{sOut}, s{sT}
v_and_b32 v{t}, 31, v0
v_lshlrev_b32 v{t}, 4, v{t}
v_lshrrev_b32 v{t+1}, 5, v0
v_lshl_add_u32 v{t}, v{t+1}, 11, v{t}
""")
    n=0
    for xt in range(2):
        for wt in range(4):
            a=G.acc+16*(wt*2+xt)
            for j in range(2):
                d=gFX+4*(n%8); n+=1
                A(f"""
v_cvt_pk_bf16_f32 v{d}, v{a+4*j}, v{a+4*j+1}
v_cvt_pk_bf16_f32 v{d+1}, v{a+4*j+2}, v{a+4*j+3}
v_cvt_pk_bf16_f32 v{d+2}, v{a+8+4*j}, v{a+8+4*j+1}
v_cvt_pk_bf16_f32 v{d+3}, v{a+8+4*j+2}, v{a+8+4*j+3}
s_add_u32 s{sT}, s{sOut}, {xt*262144+j*4096+wt*512}
buffer_store_dwordx4 {vr(d,4)}, v{t}, s[{sWS}:{sWS+3}], s{sT} offen {ST}
""")
    A(f"{le}:")
    A("s_waitcnt vmcnt(0)")

def emit_g1h(A,dep=None,warmx=False):
    G=Gemm(); G.nXt=2; G.nWt=2; G.XB=16384; G.WB=16384; G.nst=9; G.D=8; G.DX=4; G.dep=dep; G.fX=gFX; G.fW=gFW; G.acc=gACC
    t=gT
    srd_from_ws(A,sXS,WS_XN,2048*1152)
    A(f"s_lshl_b32 s{sT}, s{sA}, 3\ns_add_u32 s{sT}, s{sT}, {KA_WQ}\ns_load_dwordx2 s[{sWSRC}:{sWSRC+1}], s[0:1], s{sT}\ns_mov_b32 s{sWSRC+2}, {576*8192}")
    A(f"""
v_lshrrev_b32 v{t}, 3, v0
v_mul_u32_u24 v{t}, 1152, v{t}
v_and_b32 v{t+1}, 7, v0
v_lshrrev_b32 v{t+2}, 4, v0
v_xor_b32 v{t+3}, v{t+1}, v{t+2}
v_lshl_add_u32 v{gDX}, v{t+3}, 4, v{t}
v_xor_b32 v{t+3}, 4, v{t+3}
v_lshl_add_u32 v{gDX+1}, v{t+3}, 4, v{t}
v_lshrrev_b32 v{t}, 4, v0
v_lshlrev_b32 v{t+1}, 2, v{t}
v_lshlrev_b32 v{t}, 13, v{t}
v_and_b32 v{t+2}, 15, v0
v_xor_b32 v{t+2}, v{t+2}, v{t+1}
v_lshl_add_u32 v{gDW}, v{t+2}, 4, v{t}
""")
    A(f"""
s_lshl_b32 s{sT}, s{sB}, 7
s_lshl_b32 s{sT+1}, s{sW}, 5
s_add_u32 s{sT}, s{sT}, s{sT+1}
s_mul_i32 s{sXo}, s{sT}, 1152
s_lshl_b32 s{sWo}, s{sW}, 17
s_lshl_b32 s{sT}, s{sC}, 8
s_add_u32 s{sWo}, s{sWo}, s{sT}
""")
    A(f"s_and_b32 s{sT}, s{sW}, 1\ns_lshl_b32 s{sT}, s{sT}, 6")
    x_contig_addr(A,gAXc,sT,t)
    A(f"s_lshr_b32 s{sT}, s{sW}, 1\ns_lshl_b32 s{sT}, s{sT}, 3")
    w_strided_addr(A,gAWc,2,256,sT,"r2",t)
    def dma(A,part):
        if part=='x':
            for j in range(4):
                A(f"s_lshl_b32 s{sT+2}, s{sW}, 12\ns_add_u32 s{sT+2}, s{sT+2}, s{sWr}\ns_add_u32 m0, s{sT+2}, {j*1024}")
                A(f"s_add_u32 s{sT+3}, s{sXo}, {j*8*1152}")
                A(f"buffer_load_dwordx4 v{gDX+(j%2)}, s[{sXS}:{sXS+3}], s{sT+3} offen sc1 lds")
            A(f"s_add_u32 s{sXo}, s{sXo}, 128")
        else:
            for j in range(4):
                A(f"s_lshl_b32 s{sT+2}, s{sW}, 12\ns_add_u32 s{sT+2}, s{sT+2}, s{sWr}\ns_add_u32 m0, s{sT+2}, {16384+j*1024}")
                A(f"s_add_u32 s{sT+3}, s{sWo}, {j*4*8192}")
                A(f"buffer_load_dwordx4 v{gDW}, s[{sWSRC}:{sWSRC+3}], s{sT+3} offen lds")
            A(f"s_add_u32 s{sWo}, s{sWo}, {64*8192}")
    G.dma=dma
    def warm(A):
        A(f"""
s_lshl_b32 s{sT+4}, s{sW}, 6
v_add_u32 v{t+6}, s{sT+4}, v0
s_lshl_b32 s{sT+4}, s{sB}, 7
s_mul_i32 s{sT+4}, s{sT+4}, 1152
s_add_u32 s{sT+4}, s{sT+4}, 384
v_lshrrev_b32 v{t+7}, 1, v{t+6}
v_mul_u32_u24 v{t+7}, 1152, v{t+7}
v_and_b32 v{t+6}, 1, v{t+6}
v_mul_u32_u24 v{t+6}, 384, v{t+6}
v_add_u32 v{t+7}, v{t+7}, v{t+6}
""")
        for j in range(6):
            A(f"buffer_load_dword v125, v{t+7}, s[{sXS}:{sXS+3}], s{sT+4} offen offset:{j*64}")
        return 6
    G.warm=warm if warmx else None
    G.setaddr=lambda A: setaddr_generic(A,4,2,G.XB)
    def reads(A,ks,buf):
        for xt in range(2):
            A(f"ds_read_b128 {vr(G.fX+buf*8+4*xt,4)}, v{gAX+ks} offset:{xt*4096}")
        for wt in range(2):
            for h in range(2):
                A(f"ds_read_b64_tr_b16 {vr(G.fW+buf*8+4*wt+2*h,2)}, v{gAW+wt} offset:{(16*ks+4*h)*256}")
    G.reads=reads
    A("s_waitcnt lgkmcnt(0)")
    lv=A.uid("L_h1v"); le=A.uid("L_h1e")
    A(f"s_cmp_eq_u32 s{sA}, 2\ns_cbranch_scc1 {lv}")
    G.orient="WX"
    gemm_mainloop(A,G,"h1k")
    A(f"""
s_cmp_eq_u32 s{sA}, 0
s_mov_b32 s{sOut}, {WS_KX}
s_cselect_b32 s{sOut}, {WS_QX}, s{sOut}
s_and_b32 s{sT}, s{sW}, 1
s_lshl_b32 s{sT}, s{sT}, 1
s_lshl_b32 s{sT+1}, s{sB}, 2
s_add_u32 s{sT}, s{sT}, s{sT+1}
s_lshl_b32 s{sT}, s{sT}, 18
s_add_u32 s{sOut}, s{sOut}, s{sT}
s_lshl_b32 s{sT}, s{sC}, 13
s_add_u32 s{sOut}, s{sOut}, s{sT}
s_lshr_b32 s{sT+1}, s{sW}, 1
s_lshl_b32 s{sT+1}, s{sT+1}, 12
s_add_u32 s{sOut}, s{sOut}, s{sT+1}
v_and_b32 v{t}, 31, v0
v_lshlrev_b32 v{t}, 4, v{t}
v_lshrrev_b32 v{t+1}, 5, v0
v_lshl_add_u32 v{t}, v{t+1}, 9, v{t}
""")
    n=0
    for xt in range(2):
        for wt in range(2):
            for j in range(2):
                d=gFX+4*(n%8); n+=1
                pack_swap(A,G.acc+16*(wt*2+xt),j,d)
                A(f"s_add_u32 s{sT}, s{sOut}, {xt*262144+(4*wt+2*j)*512}")
                A(f"buffer_store_dwordx4 {vr(d,4)}, v{t}, s[{sWS}:{sWS+3}], s{sT} offen {ST}")
    A(f"s_branch {le}")
    A(f"{lv}:")
    G.orient="XW"
    gemm_mainloop(A,G,"h1v")
    A(f"""
s_and_b32 s{sT}, s{sW}, 1
s_lshl_b32 s{sT}, s{sT}, 1
s_lshl_b32 s{sT+1}, s{sB}, 2
s_add_u32 s{sT}, s{sT}, s{sT+1}
s_lshl_b32 s{sT}, s{sT}, 18
s_add_u32 s{sOut}, s{sT}, {WS_VT}
s_lshl_b32 s{sT}, s{sC}, 13
s_add_u32 s{sOut}, s{sOut}, s{sT}
s_lshr_b32 s{sT+1}, s{sW}, 1
s_lshl_b32 s{sT+1}, s{sT+1}, 10
s_add_u32 s{sOut}, s{sOut}, s{sT+1}
v_and_b32 v{t}, 31, v0
v_lshlrev_b32 v{t}, 4, v{t}
v_lshrrev_b32 v{t+1}, 5, v0
v_lshl_add_u32 v{t}, v{t+1}, 11, v{t}
""")
    n=0
    for xt in range(2):
        for wt in range(2):
            a=G.acc+16*(wt*2+xt)
            for j in range(2):
                d=gFX+4*(n%8); n+=1
                A(f"""
v_cvt_pk_bf16_f32 v{d}, v{a+4*j}, v{a+4*j+1}
v_cvt_pk_bf16_f32 v{d+1}, v{a+4*j+2}, v{a+4*j+3}
v_cvt_pk_bf16_f32 v{d+2}, v{a+8+4*j}, v{a+8+4*j+1}
v_cvt_pk_bf16_f32 v{d+3}, v{a+8+4*j+2}, v{a+8+4*j+3}
s_add_u32 s{sT}, s{sOut}, {xt*262144+j*4096+wt*512}
buffer_store_dwordx4 {vr(d,4)}, v{t}, s[{sWS}:{sWS+3}], s{sT} offen {ST}
""")
    A(f"{le}:")
    A("s_waitcnt vmcnt(0)")

def emit_g2(A,dep=None):
    G=Gemm(); G.nXt=3; G.nWt=2; G.XB=24576; G.WB=16384; G.nst=32; G.D=10; G.DX=6; G.dep=dep; G.fX=gFX; G.fW=gFW; G.acc=gACC; G.orient="WX"
    t=gT
    srd_from_ws(A,sXS,WS_HH,2048*1152)
    srd_from_karg(A,sWSRC,KA_W1,2048*9216)
    for v in range(3):
        A(f"""
v_add_u32 v{t}, {64*v}, v0
v_mul_u32_u24 v{t+1}, 2731, v{t}
v_lshrrev_b32 v{t+1}, 16, v{t+1}
v_mul_u32_u24 v{t+2}, 24, v{t+1}
v_sub_u32 v{t+2}, v{t}, v{t+2}
v_bfe_u32 v{t+3}, v{t+1}, 1, 1
v_lshlrev_b32 v{t+3}, 2, v{t+3}
v_xor_b32 v{t+2}, v{t+2}, v{t+3}
v_mul_u32_u24 v{t+1}, 1152, v{t+1}
v_lshl_add_u32 v{gDX+v}, v{t+2}, 4, v{t+1}
""")
    for U in range(192): assert (U*2731)>>16==U//24
    A(f"""
v_lshrrev_b32 v{t}, 4, v0
v_lshlrev_b32 v{t+1}, 2, v{t}
v_mul_u32_u24 v{t}, 9216, v{t}
v_and_b32 v{t+2}, 15, v0
v_xor_b32 v{t+2}, v{t+2}, v{t+1}
v_lshl_add_u32 v{gDW}, v{t+2}, 4, v{t}
s_mul_i32 s{sXo}, s{sW}, {16*1152}
s_mul_i32 s{sT}, s{sA}, 384
s_add_u32 s{sXo}, s{sXo}, s{sT}
s_mul_i32 s{sWo}, s{sW}, {16*9216}
s_lshl_b32 s{sT}, s{sB}, 8
s_add_u32 s{sWo}, s{sWo}, s{sT}
s_and_b32 s{sT}, s{sW}, 1
s_mul_i32 s{sT}, s{sT}, 12
""")
    w_strided_addr(A,gAXc,3,384,sT,"rhi",t)
    A(f"s_lshr_b32 s{sT}, s{sW}, 1\ns_lshl_b32 s{sT}, s{sT}, 3")
    w_strided_addr(A,gAWc,2,256,sT,"r2",t)
    def dma(A,part):
        if part=='x':
            for j in range(6):
                A(f"s_mul_i32 s{sT+2}, s{sW}, 6144\ns_add_u32 s{sT+2}, s{sT+2}, s{sWr}\ns_add_u32 m0, s{sT+2}, {j*1024}")
                A(f"s_add_u32 s{sT+3}, s{sXo}, {(j//3)*8*1152}")
                A(f"buffer_load_dwordx4 v{gDX+(j%3)}, s[{sXS}:{sXS+3}], s{sT+3} offen sc1 lds")
            A(f"s_add_u32 s{sXo}, s{sXo}, {64*1152}")
        else:
            for j in range(4):
                A(f"s_lshl_b32 s{sT+2}, s{sW}, 12\ns_add_u32 s{sT+2}, s{sT+2}, s{sWr}\ns_add_u32 m0, s{sT+2}, {24576+j*1024}")
                A(f"s_add_u32 s{sT+3}, s{sWo}, {j*4*9216}")
                A(f"buffer_load_dwordx4 v{gDW}, s[{sWSRC}:{sWSRC+3}], s{sT+3} offen lds")
            A(f"s_add_u32 s{sWo}, s{sWo}, {64*9216}")
    G.dma=dma
    G.setaddr=lambda A: setaddr_generic(A,3,2,G.XB)
    def reads(A,ks,buf):
        for xt in range(3):
            for h in range(2):
                A(f"ds_read_b64_tr_b16 {vr(G.fX+buf*12+4*xt+2*h,2)}, v{gAX+xt} offset:{(16*ks+4*h)*384}")
        for wt in range(2):
            for h in range(2):
                A(f"ds_read_b64_tr_b16 {vr(G.fW+buf*8+4*wt+2*h,2)}, v{gAW+wt} offset:{(16*ks+4*h)*256}")
    G.reads=reads
    gemm_mainloop(A,G,"g2")
    srd_from_karg(A,sXS,KA_B1,4608*2)
    A(f"""
s_lshl_b32 s{sT}, s{sB}, 7
s_lshr_b32 s{sT+1}, s{sW}, 1
s_lshl_b32 s{sT+1}, s{sT+1}, 6
s_add_u32 s{sA+3}, s{sT}, s{sT+1}
s_lshl_b32 s{sT}, s{sA+3}, 1
v_lshrrev_b32 v{t}, 5, v0
v_lshlrev_b32 v{t}, 3, v{t}
""")
    Bv=gFW
    for wt in range(2):
        for m in range(4):
            A(f"buffer_load_dwordx2 {vr(Bv+2*(4*wt+m),2)}, v{t}, s[{sXS}:{sXS+3}], s{sT} offen offset:{(32*wt+8*m)*2}")
    A("s_waitcnt vmcnt(0)")
    Bf=gFX
    for i in range(16):
        A(f"v_lshlrev_b32 v{Bf+2*i}, 16, v{Bv+i}\nv_and_b32 v{Bf+2*i+1}, 0xffff0000, v{Bv+i}")
    A(f"""
s_lshr_b32 s{sT}, s{sD}, 3
s_mul_i32 s{sOut}, s{sT}, {576*16}
s_mul_i32 s{sT}, s{sA}, {192*16}
s_add_u32 s{sOut}, s{sOut}, s{sT}
s_and_b32 s{sT}, s{sW}, 1
s_mul_i32 s{sT}, s{sT}, {96*16}
s_add_u32 s{sOut}, s{sOut}, s{sT}
s_add_u32 s{sOut}, s{sOut}, {WS_U}
v_and_b32 v{t}, 31, v0
v_lshlrev_b32 v{t}, 4, v{t}
v_lshrrev_b32 v{t+1}, 5, v0
v_mul_u32_u24 v{t+1}, {576*16}, v{t+1}
v_add_u32 v{t}, v{t}, v{t+1}
s_mov_b32 s{sT+4}, {hex(fbits(0.044715))}
s_mov_b32 s{sT+5}, {hex(fbits(-2.0*math.sqrt(2.0/math.pi)*math.log2(math.e)))}
""")
    x,y=t+2,t+3
    n=0
    for wt in range(2):
        for xt in range(3):
            a=G.acc+16*(wt*3+xt)
            for i in range(16):
                A(f"v_add_f32 v{a+i}, v{a+i}, v{Bf+16*wt+i}")
                A(f"v_mul_f32 v{x}, v{a+i}, v{a+i}")
                A(f"v_mul_f32 v{x}, s{sT+4}, v{x}")
                A(f"v_fma_f32 v{x}, v{x}, v{a+i}, v{a+i}")
                A(f"v_mul_f32 v{x}, s{sT+5}, v{x}")
                A(f"v_exp_f32 v{x}, v{x}")
                A(f"v_add_f32 v{x}, 1.0, v{x}")
                A(f"v_rcp_f32 v{x}, v{x}")
                A(f"v_mul_f32 v{a+i}, v{a+i}, v{x}")
            for j in range(2):
                d=gFW+4*(n%8); n+=1
                pack_swap(A,a,j,d)
                A(f"s_add_u32 s{sT}, s{sOut}, {((32*wt+16*j)//8)*576*16+xt*32*16}")
                A(f"buffer_store_dwordx4 {vr(d,4)}, v{t}, s[{sWS}:{sWS+3}], s{sT} offen {ST}")
    A("s_waitcnt vmcnt(0)")

def emit_g3(A,dep=None):
    G=Gemm(); G.nXt=3; G.nWt=2; G.XB=24576; G.WB=16384; G.nst=18; G.D=10; G.DX=6; G.dep=dep; G.fX=gFX; G.fW=gFW; G.acc=gACC; G.orient="XW"
    t=gT
    srd_from_ws(A,sXS,WS_U,576*576*16)
    srd_from_karg(A,sWSRC,KA_W2,4608*4096)
    A(f"""
v_lshrrev_b32 v{t}, 3, v0
v_lshlrev_b32 v{t}, 4, v{t}
v_and_b32 v{t+1}, 7, v0
v_lshrrev_b32 v{t+2}, 4, v0
v_xor_b32 v{t+3}, v{t+1}, v{t+2}
v_mul_u32_u24 v{t+4}, {576*16}, v{t+3}
v_add_u32 v{gDX}, v{t+4}, v{t}
v_xor_b32 v{t+3}, 4, v{t+3}
v_mul_u32_u24 v{t+4}, {576*16}, v{t+3}
v_add_u32 v{gDX+1}, v{t+4}, v{t}
v_lshrrev_b32 v{t}, 4, v0
v_lshlrev_b32 v{t+1}, 2, v{t}
v_lshlrev_b32 v{t}, 12, v{t}
v_and_b32 v{t+2}, 15, v0
v_xor_b32 v{t+2}, v{t+2}, v{t+1}
v_lshl_add_u32 v{gDW}, v{t+2}, 4, v{t}
s_mul_i32 s{sXo}, s{sC}, {144*576*16}
s_mul_i32 s{sT}, s{sA}, {192*16}
s_add_u32 s{sXo}, s{sXo}, s{sT}
s_mul_i32 s{sT}, s{sW}, {48*16}
s_add_u32 s{sXo}, s{sXo}, s{sT}
s_mul_i32 s{sWo}, s{sC}, {1152*4096}
s_lshl_b32 s{sT}, s{sW}, 16
s_add_u32 s{sWo}, s{sWo}, s{sT}
s_lshl_b32 s{sT}, s{sB}, 8
s_add_u32 s{sWo}, s{sWo}, s{sT}
s_and_b32 s{sT}, s{sW}, 1
s_mul_i32 s{sT}, s{sT}, 96
""")
    x_contig_addr(A,gAXc,sT,t)
    A(f"s_lshr_b32 s{sT}, s{sW}, 1\ns_lshl_b32 s{sT}, s{sT}, 3")
    w_strided_addr(A,gAWc,2,256,sT,"r2",t)
    def dma(A,part):
        if part=='x':
            for j in range(6):
                A(f"s_mul_i32 s{sT+2}, s{sW}, 6144\ns_add_u32 s{sT+2}, s{sT+2}, s{sWr}\ns_add_u32 m0, s{sT+2}, {j*1024}")
                A(f"s_add_u32 s{sT+3}, s{sXo}, {j*8*16}")
                A(f"buffer_load_dwordx4 v{gDX+(j%2)}, s[{sXS}:{sXS+3}], s{sT+3} offen sc1 lds")
            A(f"s_add_u32 s{sXo}, s{sXo}, {8*576*16}")
        else:
            for j in range(4):
                A(f"s_lshl_b32 s{sT+2}, s{sW}, 12\ns_add_u32 s{sT+2}, s{sT+2}, s{sWr}\ns_add_u32 m0, s{sT+2}, {24576+j*1024}")
                A(f"s_add_u32 s{sT+3}, s{sWo}, {j*4*4096}")
                A(f"buffer_load_dwordx4 v{gDW}, s[{sWSRC}:{sWSRC+3}], s{sT+3} offen lds")
            A(f"s_add_u32 s{sWo}, s{sWo}, {64*4096}")
    G.dma=dma
    G.setaddr=lambda A: setaddr_generic(A,4,2,G.XB)
    def reads(A,ks,buf):
        for xt in range(3):
            A(f"ds_read_b128 {vr(G.fX+buf*12+4*xt,4)}, v{gAX+ks} offset:{xt*4096}")
        for wt in range(2):
            for h in range(2):
                A(f"ds_read_b64_tr_b16 {vr(G.fW+buf*8+4*wt+2*h,2)}, v{gAW+wt} offset:{(16*ks+4*h)*256}")
    G.reads=reads
    gemm_mainloop(A,G,"g3")
    srd_from_karg(A,sXS,KA_B2,2048*2)
    A(f"""
s_lshl_b32 s{sT}, s{sB}, 7
s_lshr_b32 s{sT+1}, s{sW}, 1
s_lshl_b32 s{sT+1}, s{sT+1}, 6
s_add_u32 s{sD}, s{sT}, s{sT+1}
s_lshl_b32 s{sT}, s{sD}, 1
v_and_b32 v{t}, 31, v0
v_lshlrev_b32 v{t}, 1, v{t}
buffer_load_ushort v{t+4}, v{t}, s[{sXS}:{sXS+3}], s{sT} offen
buffer_load_ushort v{t+5}, v{t}, s[{sXS}:{sXS+3}], s{sT} offen offset:64
s_lshr_b32 s{sT}, s{sD}, 4
s_mul_i32 s{sOut}, s{sT}, {36*1024}
s_mul_i32 s{sT}, s{sA}, {12*1024}
s_add_u32 s{sOut}, s{sOut}, s{sT}
s_and_b32 s{sT}, s{sW}, 1
s_mul_i32 s{sT}, s{sT}, {6*1024}
s_add_u32 s{sOut}, s{sOut}, s{sT}
s_add_u32 s{sT}, s{sC}, 8
s_mul_i32 s{sT}, s{sT}, {P_SLAB}
s_add_u32 s{sOut}, s{sOut}, s{sT}
s_add_u32 s{sOut}, s{sOut}, {WS_P}
v_and_b32 v{t}, 15, v0
v_lshlrev_b32 v{t}, 4, v{t}
v_lshrrev_b32 v{t+1}, 5, v0
v_lshl_add_u32 v{t}, v{t+1}, 8, v{t}
v_bfe_u32 v{t+1}, v0, 4, 1
v_mul_u32_u24 v{t+1}, {36*1024}, v{t+1}
v_add_u32 v{t}, v{t}, v{t+1}
s_cmp_eq_u32 s{sC}, 0
s_cselect_b32 s{sT+6}, -1, 0
s_waitcnt vmcnt(0)
v_lshlrev_b32 v{t+4}, 16, v{t+4}
v_lshlrev_b32 v{t+5}, 16, v{t+5}
v_and_b32 v{t+4}, s{sT+6}, v{t+4}
v_and_b32 v{t+5}, s{sT+6}, v{t+5}
""")
    for wt in range(2):
        for xt in range(3):
            a=G.acc+16*(wt*3+xt)
            for i in range(16): A(f"v_add_f32 v{a+i}, v{a+i}, v{t+4+wt}")
            for m in range(4):
                A(f"s_add_u32 s{sT}, s{sOut}, {wt*2*36*1024+(2*xt+(m>>1))*1024+(m&1)*512}")
                A(f"buffer_store_dwordx4 {vr(a+4*m,4)}, v{t}, s[{sWS}:{sWS+3}], s{sT} offen {ST}")
    A("s_waitcnt vmcnt(0)")

def wg_wait_cnt(A, off_sgpr_or_const, target, label="L_abortw"):
    done=A.uid("L_wd"); lp=A.uid("L_wp")
    A(f"s_cmp_lg_u32 s{sW}, 0\ns_cbranch_scc1 {done}")
    if isinstance(off_sgpr_or_const,int): A(f"s_mov_b32 s{sP}, {off_sgpr_or_const}")
    else: A(f"s_mov_b32 s{sP}, {off_sgpr_or_const}")
    A(f"s_mov_b32 s{sP+1}, 0\n{lp}:")
    A(f"buffer_load_dword v1, off, s[{sWS}:{sWS+3}], s{sP} sc1\ns_waitcnt vmcnt(0)\nv_readfirstlane_b32 s{sP+2}, v1")
    A(f"s_cmp_ge_u32 s{sP+2}, {target}\ns_cbranch_scc1 {done}")
    A(f"s_add_u32 s{sP+1}, s{sP+1}, 1\ns_cmp_gt_u32 s{sP+1}, 4000000\ns_cbranch_scc1 {label}\ns_sleep 1\ns_branch {lp}")
    A(f"{done}:\ns_barrier")
def wg_signal(A, off_expr, val=1):
    done=A.uid("L_sg")
    A(f"s_barrier\ns_cmp_lg_u32 s{sW}, 0\ns_cbranch_scc1 {done}")
    A(f"s_mov_b32 s{sP}, {off_expr}\nv_mov_b32 v1, {val}\ns_mov_b64 exec, 1\nbuffer_atomic_add v1, off, s[{sWS}:{sWS+3}], s{sP}\ns_mov_b64 exec, -1")
    A(f"{done}:")
def wave_signal(A, off_expr):
    A(f"s_mov_b32 s{sP}, {off_expr}\nv_mov_b32 v1, 1\ns_mov_b64 exec, 1\nbuffer_atomic_add v1, off, s[{sWS}:{sWS+3}], s{sP}\ns_mov_b64 exec, -1")

def wg_wait_multi(A, base_expr, n, target_expr, label="L_abortw"):
    done=A.uid("L_wd"); lp=A.uid("L_wp")
    A(f"s_cmp_lg_u32 s{sW}, 0\ns_cbranch_scc1 {done}")
    A(f"s_mov_b32 s{sP}, {base_expr}\ns_mov_b32 s{sP+3}, {target_expr}\ns_mov_b32 s{sP+1}, 0")
    A(f"v_min_u32 v1, {n-1}, v0\nv_lshlrev_b32 v1, 7, v1\n{lp}:")
    A(f"buffer_load_dword v250, v1, s[{sWS}:{sWS+3}], s{sP} offen sc1\ns_waitcnt vmcnt(0)")
    A(f"v_cmp_gt_u32 vcc, s{sP+3}, v250\ns_cbranch_vccz {done}")
    A(f"s_add_u32 s{sP+1}, s{sP+1}, 1\ns_cmp_gt_u32 s{sP+1}, 4000000\ns_cbranch_scc1 {label}\ns_sleep 1\ns_branch {lp}")
    A(f"{done}:\ns_barrier")
```

```python
import os
import sys, os; sys.path.insert(0,'gen')
from asmlib import *
from layout import *
import role, chain3 as chain, workers as Wk, p4
NAME="parallel_sum__memory_aug_recurrent_mem_tr__mixer_token_mlp__prompt"
sT=Wk.sT; sA,sB,sC,sD=Wk.sA,Wk.sB,Wk.sC,Wk.sD; sW=Wk.sW; sRank=Wk.sRank; sWS=Wk.sWS
sTask=Wk.sTask
sPrev=47; sSeg=48; sKc=49
NW=224; NG=7
def build(chopt=""):
    for kv in chopt.split(";"):
        if "=" in kv:
            k,v=kv.split("="); setattr(chain.OPT,k,eval(v))
    chain.OPT.fused=True
    if os.environ.get("PROF","0")=="1": chain.OPT.steplog=True
    A=Asm()
    prof=os.environ.get("PROF","0") in ("1","2")
    if prof: A("s_memrealtime s[94:95]")
    if prof:
        def hook(A,r):
            l=A.uid("L_pf"); A(f"s_cmp_ge_u32 s{sTask}, {NW}\ns_cbranch_scc1 {l}\ns_memrealtime s[{r}:{r+1}]\n{l}:")
        Wk.PROFHOOK=hook
    role.emit_entry(A)
    A(f"s_cmp_ge_u32 s5, 32\ns_cbranch_scc1 L_exit\ns_cmp_eq_u32 s4, 0\ns_cbranch_scc0 L_work\ns_mov_b32 s{chain.sH}, s5")
    chain.emit_chain(A,nsteps=64,stamps=("total" if os.environ.get("PROF","0")=="2" else False))
    A("s_endpgm\nL_work:")
    A(f"s_sub_u32 s{sRank}, s4, 1\ns_lshl_b32 s{sRank}, s{sRank}, 5\ns_add_u32 s{sRank}, s{sRank}, s5")
    Wk.emit_worker_setup(A)
    def wwarm(A):
        A(f"""
s_mul_i32 s{sT+4}, s{sRank}, 9363
s_lshr_b32 s{sT+4}, s{sT+4}, 16
s_mul_i32 s{sT+5}, s{sT+4}, 7
s_sub_u32 s{sT+5}, s{sRank}, s{sT+5}
s_lshr_b32 s{sT+6}, s{sT+4}, 4
s_lshl_b32 s{sT+6}, s{sT+6}, 3
s_add_u32 s{sT+6}, s{sT+6}, {KA_WK}
s_load_dwordx2 s[{Wk.sWSRC}:{Wk.sWSRC+1}], s[0:1], s{sT+6}
s_mov_b32 s{Wk.sWSRC+2}, {576*8192}
s_and_b32 s{sT+4}, s{sT+4}, 15
s_lshl_b32 s{sT+4}, s{sT+4}, 9
s_mul_i32 s{sT+5}, s{sT+5}, 660
s_lshl_b32 s{sT+6}, s{sW}, 6
s_add_u32 s{sT+5}, s{sT+5}, s{sT+6}
v_add_u32 v100, s{sT+5}, v0
s_waitcnt lgkmcnt(0)
""")
        for k in range(3):
            A(f"v_lshrrev_b32 v101, 3, v100\nv_lshlrev_b32 v101, 13, v101\nv_and_b32 v102, 7, v100\nv_lshl_add_u32 v101, v102, 6, v101")
            A(f"buffer_load_dword v103, v101, s[{Wk.sWSRC}:{Wk.sWSRC+3}], s{sT+4} offen\nv_add_u32 v100, 256, v100")
    Wk.emit_ln(A,NW,fused=True)
    if prof: A("s_memrealtime s[70:71]")
    A(f"s_mov_b32 s{sTask}, s{sRank}\ns_branch L_dispatch")
    A("L_next:")
    A(f"""
s_barrier
s_cmp_lg_u32 s{sW}, 0
s_cbranch_scc1 L_tk2
s_mov_b32 s60, {cnt(C_QUEUE)}
v_mov_b32 v1, 1
s_mov_b64 exec, 1
buffer_atomic_add v1, off, s[{sWS}:{sWS+3}], s60 sc0
s_waitcnt vmcnt(0)
v_mov_b32 v2, 160000
ds_write_b32 v2, v1
s_waitcnt lgkmcnt(0)
s_mov_b64 exec, -1
L_tk2:
s_barrier
v_mov_b32 v2, 160000
ds_read_b32 v1, v2
s_waitcnt lgkmcnt(0)
v_readfirstlane_b32 s{sTask}, v1
s_add_u32 s{sTask}, s{sTask}, {NW}
L_dispatch:
s_cmp_ge_u32 s{sTask}, 1196
s_cbranch_scc1 L_p4
s_cmp_lt_u32 s{sTask}, 256
s_cbranch_scc1 L_t_h
s_cmp_lt_u32 s{sTask}, 640
s_cbranch_scc1 L_t_kv
s_cmp_lt_u32 s{sTask}, 748
s_cbranch_scc1 L_t_g2
s_cmp_lt_u32 s{sTask}, 1004
s_cbranch_scc1 L_t_q
s_branch L_t_g3
L_t_q:
s_sub_u32 s{sT}, s{sTask}, 748
s_mov_b32 s{sA}, 0
s_lshr_b32 s{sB}, s{sT}, 4
s_and_b32 s{sC}, s{sT}, 15
s_branch L_t_g1
L_t_kv:
s_sub_u32 s{sT}, s{sTask}, 256
s_lshr_b32 s{sB}, s{sT}, 5
s_add_u32 s{sB}, s{sB}, 4
s_bfe_u32 s{sA}, s{sT}, 0x10004
s_add_u32 s{sA}, s{sA}, 1
s_and_b32 s{sC}, s{sT}, 15
L_t_g1:
""")
    def dep1(A):
        A(f"s_lshl_b32 s76, s{sB}, 7\ns_add_u32 s76, s76, {cnt(C_LN)}")
        Wk.wg_wait_cnt(A,"s76",128)
        if prof:
            l=A.uid("L_pf"); A(f"s_cmp_ge_u32 s{sTask}, {NW}\ns_cbranch_scc1 {l}\ns_memrealtime s[78:79]\n{l}:")
    Wk.emit_g1(A,dep1,warmx=False)
    if prof:
        l=A.uid("L_pf"); A(f"s_cmp_ge_u32 s{sTask}, {NW}\ns_cbranch_scc1 {l}\ns_memrealtime s[80:81]\n{l}:")
    A(f"s_cmp_eq_u32 s{sA}, 0\ns_cbranch_scc1 L_sig_q")
    A(f"s_lshl_b32 s{sT}, s{sB}, 7\ns_add_u32 s{sT}, s{sT}, {cnt(C_KV)}")
    Wk.wg_signal(A,f"s{sT}",2)
    A("s_branch L_next\nL_sig_q:")
    A(f"s_lshl_b32 s{sT}, s{sB}, 7\ns_add_u32 s{sT}, s{sT}, {cnt(C_Q)}")
    Wk.wg_signal(A,f"s{sT}",1)
    A("s_branch L_next\nL_t_h:")
    A(f"""
s_cmp_lt_u32 s{sTask}, 192
s_cbranch_scc0 L_t_h2
s_mul_i32 s{sT}, s{sTask}, 21846
s_lshr_b32 s{sT}, s{sT}, 16
s_mul_i32 s{sT+1}, s{sT}, 3
s_sub_u32 s{sB}, s{sTask}, s{sT+1}
s_branch L_t_h3
L_t_h2:
s_mov_b32 s{sB}, 3
s_sub_u32 s{sT}, s{sTask}, 192
L_t_h3:
s_lshr_b32 s{sA}, s{sT}, 5
s_add_u32 s{sA}, s{sA}, 1
s_and_b32 s{sC}, s{sT}, 31
""")
    Wk.emit_g1h(A,dep1)
    A(f"s_lshl_b32 s{sT}, s{sB}, 7\ns_add_u32 s{sT}, s{sT}, {cnt(C_KV)}")
    Wk.wg_signal(A,f"s{sT}",1)
    A("s_branch L_next\nL_t_g2:")
    A(f"s_sub_u32 s{sB}, s{sTask}, 640\ns_mul_i32 s{sA}, s{sB}, 1821\ns_lshr_b32 s{sA}, s{sA}, 16\ns_mul_i32 s{sT}, s{sA}, 36\ns_sub_u32 s{sB}, s{sB}, s{sT}")
    Wk.emit_g2(A,lambda A: Wk.wg_wait_multi(A,cnt(C_LN),16,128))
    A(f"s_mul_i32 s{sT}, s{sB}, 7282\ns_lshr_b32 s{sT}, s{sT}, 16\ns_lshl_b32 s{sT+1}, s{sA}, 2\ns_add_u32 s{sT}, s{sT}, s{sT+1}\ns_lshl_b32 s{sT}, s{sT}, 7\ns_add_u32 s{sT}, s{sT}, {cnt(C_U)}")
    for x in range(36): assert (x*7282)>>16==x//9
    Wk.wg_signal(A,f"s{sT}")
    A("s_branch L_next\nL_t_g3:")
    A(f"s_sub_u32 s{sT}, s{sTask}, 1004\ns_and_b32 s{sC}, s{sT}, 3\ns_bfe_u32 s{sB}, s{sT}, 0x40002\ns_lshr_b32 s{sA}, s{sT}, 6")
    def dep3(A):
        A(f"s_lshl_b32 s76, s{sA}, 2\ns_add_u32 s76, s76, s{sC}\ns_lshl_b32 s76, s76, 7\ns_add_u32 s76, s76, {cnt(C_U)}")
        Wk.wg_wait_cnt(A,"s76",9)
    Wk.emit_g3(A,dep3)
    A(f"s_lshl_b32 s{sT}, s{sB}, 7\ns_add_u32 s{sT}, s{sT}, {cnt(C_Y)}")
    Wk.wg_signal(A,f"s{sT}")
    A("s_branch L_next")
    A("L_p4:")
    if prof: A("s_memrealtime s[72:73]")
    A(f"s_and_b32 s{sA}, s{sRank}, 7\ns_bfe_u32 s{sB}, s{sRank}, 0x20003\ns_lshr_b32 s{sSeg}, s{sRank}, 5\ns_mov_b32 s{sPrev}, -1")
    p4.emit_p4_setup(A)
    Wk.srd_from_karg(A,Wk.sXS,KA_X,2048*1152); Wk.srd_from_karg(A,Wk.sWSRC,KA_OUT,2048*1152)
    Wk.wg_wait_multi(A,cnt(C_Q),16,16)
    Wk.wg_wait_multi(A,cnt(C_KV),16,64)
    Wk.wg_wait_multi(A,cnt(C_Y),16,12)
    def combine():
        skip=A.uid("L_cs")
        A(f"s_cmp_lt_i32 s{sPrev}, 0\ns_cbranch_scc1 {skip}")
        A(f"s_lshl_b32 s{sT}, s{sPrev}, 7\ns_add_u32 s{sT}, s{sT}, {cnt(C_SEG)}")
        Wk.wg_wait_cnt(A,f"s{sT}",32)
        A(f"s_lshl_b32 s{sT+8}, s{sA}, 2\ns_add_u32 s{sT+8}, s{sT+8}, s{sW}\ns_cmp_ge_u32 s{sT+8}, 18\ns_cbranch_scc1 {skip}")
        A(f"s_cmp_ge_u32 s{sT+8}, 9\ns_cselect_b32 s{sT+9}, 1, 0\ns_mul_i32 s{sT+10}, s{sT+9}, 9\ns_sub_u32 s{sT+8}, s{sT+8}, s{sT+10}")
        A(f"s_lshl_b32 s{sC}, s{sPrev}, 1\ns_add_u32 s{sC}, s{sC}, s{sT+9}\ns_mul_i32 s{sD}, s{sB}, 9\ns_add_u32 s{sD}, s{sD}, s{sT+8}")
        p4.emit_combine_tile(A)
        A(f"{skip}:")
    A("L_p4loop:")
    combine()
    A(f"s_mov_b32 s{sC}, s{sSeg}")
    def between(A):
        A(f"s_lshl_b32 s68, s{sA}, 9\ns_add_u32 s68, s68, {cnt(C_PROG)}\ns_add_u32 s69, s{sSeg}, 1")
        Wk.wg_wait_multi(A,"s68",4,"s69")
    p4.emit_p4_segment(A,0,between)
    A("s_waitcnt vmcnt(0)")
    A(f"s_lshl_b32 s{sT}, s{sSeg}, 7\ns_add_u32 s{sT}, s{sT}, {cnt(C_SEG)}")
    Wk.wg_signal(A,f"s{sT}")
    A(f"s_mov_b32 s{sPrev}, s{sSeg}\ns_add_u32 s{sSeg}, s{sSeg}, {NG}\ns_cmp_lt_u32 s{sSeg}, 64\ns_nop 7\ns_cbranch_scc1 L_p4loop")
    combine()
    A("L_abortw:\ns_waitcnt vmcnt(0)")
    if prof:
        A(f"""s_memrealtime s[74:75]
s_load_dwordx2 s[6:7], s[0:1], {KA_WS}
s_waitcnt lgkmcnt(0)
s_add_u32 s6, s6, {WS_STAMP+0x10000}
s_addc_u32 s7, s7, 0
s_lshl_b32 s8, s{sRank}, 4
v_mov_b32 v1, s8
v_mov_b32 v2, s94
v_mov_b32 v3, s70
v_mov_b32 v4, s72
v_mov_b32 v5, s74
global_store_dwordx4 v1, v[2:5], s[6:7]
v_mov_b32 v6, s78
v_mov_b32 v7, s80
v_mov_b32 v8, s82
v_mov_b32 v9, s84
global_store_dwordx4 v1, v[6:9], s[6:7] offset:4000
s_waitcnt vmcnt(0)""")
    A("L_exit:\ns_endpgm")
    lines=fix_hazards(A.lines,True)
    if os.environ.get('ALIGN','3')!='0': lines=align_runs(lines,int(os.environ.get('ALIGN','3')),0,True)
    hdr=open('cdna_kernels/'+NAME+'.s.ref').read().split("; Override")[0]
    name=NAME+"_kernel"
    t=hdr+f"; @launch kernel={name} grid=(256,1,1) block=(256,1,1) lds=163840\n"
    t+=f'.amdgcn_target "amdgcn-amd-amdhsa--gfx950"\n.text\n.globl {name}\n.p2align 8\n.type {name},@function\n{name}:\n'
    t+="\n".join(lines)+"\n"
    t+=f""".section .rodata,"a"
.p2align 6
.amdhsa_kernel {name}
  .amdhsa_next_free_vgpr 512
  .amdhsa_next_free_sgpr 102
  .amdhsa_accum_offset 256
  .amdhsa_group_segment_fixed_size 0
  .amdhsa_kernarg_size 120
  .amdhsa_user_sgpr_count 2
  .amdhsa_user_sgpr_kernarg_segment_ptr 1
  .amdhsa_system_sgpr_workgroup_id_x 1
.end_amdhsa_kernel
"""
    return t
if __name__=="__main__":
    opt=os.environ.get("CHOPT","nred=2;red_gap=40;npoll=3;poll_gap=25;d_gat=60;d_red=[0,5,0,30,30];d_g1=[10,5];red_early=False;warmk=[7,8,9,10];kvmode='spread';ki=[0,1,3];prewarm=True;codewarm=3")
    open(sys.argv[1],"w").write(build(opt))
```

```python
from asmlib import *
from layout import *
import struct, math
def fbits(x): return struct.unpack("<I",struct.pack("<f",x))[0]

vLane=0; vL16M=1; vTR=2; vIdx=3; vWo=4
vH1st=7; vRed=8; vPub=9; vKx=10; vVx=11; vKm=12; vVm=13; vQw=14; vTag=15
vSel=16
vK=20
vV=36
aQ=44; aK=48; aV=52
vA=56
vT=72
def Wq(s): return f"a[{8*s}:{8*s+7}]"
def Wk(s):
    if s<14: return f"a[{144+8*s}:{144+8*s+7}]"
    return f"v[{80+8*(s-14)}:{80+8*(s-14)+7}]"
def Wv(s): return f"v[{112+8*s}:{112+8*s+7}]"
def Wreg(mat,s,q):
    if mat==0: return f"a[{8*s+2*q}:{8*s+2*q+1}]"
    if mat==1:
        if s<14: return f"a[{144+8*s+2*q}:{144+8*s+2*q+1}]"
        return f"v[{80+8*(s-14)+2*q}:{80+8*(s-14)+2*q+1}]"
    return f"v[{112+8*s+2*q}:{112+8*s+2*q+1}]"
def vr(a,n): return f"v[{a}:{a+n-1}]"

sH=10; sW=11; sWS=12; sWT=16
sStep=20
sKXo=21; sVTo=22; sKMo=23; sVMo=24; sH2pub=25; sH2gat=26; sH2rst=27; sH1=28; sH2=29
sTask=30; sHasTask=31; sTagT=32
sTmp=33
sDbg=40; sKarg=42
sRetry=44; sRetry2=45
sMaskF=46
sC=47
sMaskLo=48; sMaskPub=50; sMaskG=52
sWarmK=54; sWarmV=55
sT0=56
WSR=f"s[{sWS}:{sWS+3}]"
QOFF=L_QT-L_MEMT; KOFF=L_KT-L_MEMT; SOFF=L_ST-L_MEMT

class Opt:
    d_red=[0,0,0,0,0]
    d_gat=0
    warm=True
    pmode=0
    d_g1m=120
    prewarm=False
    codewarm=0
    commwave=False
    d_g2=[70,10]
    pd=2
    fused=False
    gmode='split'
    g1wave=2
    kvmode='burst'
    spec1=False
    hs=False
    warmk=[7,7,7,7]
    kvx=3
    warmflag=''
    warmdist=2
    fixkv=False
    fixkm=False
    kmflag='sc1'
    steplog=False
    nred=2
    red_gap=24
    ki=[0,2,6]
    d_g1=[80,40]
    npoll=3
    poll_gap=16
    red_early=True
    clk='s_memtime'
OPT=Opt()
def KVS(): return 8192 if OPT.hs else 262144
def KMS(): return 2048 if OPT.hs else 65536

def emit_setup(A, stamps):
    A(f"""
s_mov_b32 s{sKarg}, s0
s_mov_b32 s{sKarg+1}, s1
s_load_dwordx2 s[{sDbg}:{sDbg+1}], s[0:1], {KA_DBG}
s_load_dwordx2 s[{sWS}:{sWS+1}], s[0:1], {KA_WS}
v_lshrrev_b32 v{vT}, 6, v0
v_and_b32 v{vLane}, 63, v0
v_readfirstlane_b32 s{sW}, v{vT}
s_mov_b32 s{sWS+2}, {WS_SIZE}
s_mov_b32 s{sWS+3}, 0x20000
s_mov_b32 s{sWT+3}, 0x20000
s_mov_b32 s{sH1}, {WS_H1}
s_mov_b32 s{sH2}, {WS_H2}
s_mov_b32 s{sMaskLo}, 0x00ff00ff
s_mov_b32 s{sMaskLo+1}, 0x00ff00ff
s_mov_b32 s{sMaskPub}, 0x00ff00ff
s_mov_b32 s{sMaskPub+1}, 0
s_mov_b32 s{sMaskG}, -1
s_mov_b32 s{sMaskG+1}, 0
s_mov_b32 s{sRetry}, 0
s_mov_b32 s{sRetry2}, 0
s_mov_b32 s{sMaskF}, 0xfffefffe
s_mov_b32 s{sC}, {hex(fbits(128**-0.5*math.log2(math.e)))}
""")
    t0,t1,t2,t3=vT,vT+1,vT+2,vT+3
    if stamps: A("s_memtime s[88:89]")
    if OPT.fused:
        A(f"""
s_cmp_eq_u32 s{sH}, 0
s_cbranch_scc0 L_noclr
s_waitcnt lgkmcnt(0)
v_lshlrev_b32 v{vA}, 4, v{vLane}
v_mov_b32 v{vA+4}, 0
v_mov_b32 v{vA+5}, 0
v_mov_b32 v{vA+6}, 0
v_mov_b32 v{vA+7}, 0
s_mul_i32 s{sTmp}, s{sW}, 6144
s_add_u32 s{sTmp}, s{sTmp}, {WS_CNT}
""")
        for j in range(6):
            A(f"buffer_store_dwordx4 {vr(vA+4,4)}, v{vA}, {WSR}, s{sTmp} offen sc1\ns_add_u32 s{sTmp}, s{sTmp}, 1024")
        A(f"""
s_waitcnt vmcnt(0)
s_barrier
s_cmp_eq_u32 s{sW}, 0
s_cbranch_scc0 L_noclr
v_mov_b32 v{vA}, {DBG_INIT}
v_mov_b32 v{vA+1}, 1
s_mov_b64 exec, 1
global_store_dword v{vA}, v{vA+1}, s[{sDbg}:{sDbg+1}] sc1
s_mov_b64 exec, -1
L_noclr:
""")
    A(f"""
v_lshlrev_b32 v{vL16M}, 4, v{vLane}
v_add_u32 v{vL16M}, {L_MEMT}, v{vL16M}
v_lshrrev_b32 v{t0}, 4, v{vLane}
v_lshlrev_b32 v{t0}, 7, v{t0}
v_bfe_u32 v{t1}, v{vLane}, 2, 2
v_lshl_add_u32 v{t0}, v{t1}, 4, v{t0}
v_and_b32 v{t1}, 1, v{vLane}
v_lshl_add_u32 v{t0}, v{t1}, 3, v{t0}
v_add_u32 v{vTR}, {L_MEMT}, v{t0}
v_and_b32 v{t0}, 8, v{vLane}
v_cmp_ne_u32 vcc, 0, v{t0}
v_mov_b32 v{t0}, 0x4444
v_mov_b32 v{t1}, 0xeeee
v_cndmask_b32 v{vIdx}, v{t0}, v{t1}, vcc
""")
    A(f"""
v_lshlrev_b32 v{vWo}, 4, v{vLane}
v_add_u32 v{vWo+1}, 49152, v{vWo}
v_add_u32 v{vWo+2}, 98304, v{vWo}
""")
    A(f"""
v_bfe_u32 v{t0}, v{vLane}, 5, 1
v_lshlrev_b32 v{t0}, 1, v{t0}
v_bfe_u32 v{t1}, v{vLane}, 3, 1
v_add_u32 v{t0}, v{t0}, v{t1}
v_lshlrev_b32 v{t0}, 12, v{t0}
v_and_b32 v{t1}, 7, v{vLane}
v_lshl_add_u32 v{t0}, v{t1}, 4, v{t0}
v_bfe_u32 v{t1}, v{vLane}, 4, 1
v_lshl_add_u32 v{t0}, v{t1}, 3, v{t0}
s_lshl_b32 s{sTmp+1}, s{sH}, 7
v_add_u32 v{vH1st}, s{sTmp+1}, v{t0}
""")
    A(f"""
s_and_b32 s{sTmp}, s{sH}, 1
s_sub_u32 s{sTmp+1}, s{sW}, 2
s_lshl_b32 s{sTmp+1}, s{sTmp+1}, 1
s_add_u32 s{sTmp}, s{sTmp}, s{sTmp+1}
s_lshl_b32 s{sTmp}, s{sTmp}, 4
s_lshr_b32 s{sTmp+1}, s{sH}, 1
s_add_u32 s{sTask}, s{sTmp}, s{sTmp+1}
s_mov_b32 s{sHasTask}, 1
s_cmp_ge_u32 s{sW}, 2
s_cbranch_scc1 L_task_done
s_lshr_b32 s{sTask}, s{sH}, 2
s_add_u32 s{sTask}, s{sTask}, 64
s_and_b32 s{sTmp}, s{sH}, 3
s_cmp_eq_u32 s{sTmp}, 0
s_cselect_b32 s{sHasTask}, 1, 0
s_cmp_eq_u32 s{sW}, 1
s_cselect_b32 s{sHasTask}, s{sHasTask}, 0
s_cmp_eq_u32 s{sHasTask}, 1
s_cselect_b32 s{sTask}, s{sTask}, 0
L_task_done:
s_lshl_b32 s{sTmp}, s{sTask}, 12
v_lshlrev_b32 v{t0}, 4, v{vLane}
v_add_u32 v{vRed}, s{sTmp}, v{t0}
s_lshl_b32 s{sTmp}, s{sTask}, 7
v_and_b32 v{t0}, 7, v{vLane}
v_lshlrev_b32 v{t0}, 4, v{t0}
v_lshrrev_b32 v{t1}, 4, v{vLane}
v_lshl_add_u32 v{t0}, v{t1}, 3, v{t0}
v_add_u32 v{vPub}, s{sTmp}, v{t0}
v_and_b32 v{t0}, 15, v{vLane}
s_add_u32 s{sTmp}, s{sW}, 3
s_and_b32 s{sTmp}, s{sTmp}, 1
s_lshl_b32 s{sTmp}, s{sTmp}, 4
v_add_u32 v{t0}, s{sTmp}, v{t0}
v_lshlrev_b32 v{t0}, 4, v{t0}
v_lshrrev_b32 v{t1}, 4, v{vLane}
v_lshl_add_u32 v{t0}, v{t1}, 9, v{t0}
s_lshl_b32 s{sTmp}, s{sH}, {19 if OPT.hs else 13}
v_add_u32 v{vKx}, s{sTmp}, v{t0}
v_and_b32 v{t0}, 15, v{vLane}
v_lshlrev_b32 v{t0}, 4, v{t0}
v_lshl_add_u32 v{t0}, v{t1}, 11, v{t0}
s_lshl_b32 s{sTmp}, s{sH}, {19 if OPT.hs else 13}
s_lshl_b32 s{sTmp+1}, s{sW}, 9
s_add_u32 s{sTmp}, s{sTmp}, s{sTmp+1}
v_add_u32 v{vVx}, s{sTmp}, v{t0}
v_and_b32 v{t0}, 7, v{vLane}
v_lshlrev_b32 v{t0}, 8, v{t0}
v_lshl_add_u32 v{vKm}, v{t1}, 4, v{t0}
v_and_b32 v{t0}, 15, v{vLane}
v_bfe_u32 v{t1}, v{vLane}, 5, 1
v_lshl_add_u32 v{t0}, v{t1}, 4, v{t0}
s_lshl_b32 s{sTmp}, s{sW}, 5
v_add_u32 v{t0}, s{sTmp}, v{t0}
v_lshlrev_b32 v{t0}, 4, v{t0}
v_bfe_u32 v{t1}, v{vLane}, 4, 1
v_lshl_add_u32 v{vVm}, v{t1}, 3, v{t0}
v_add_u32 v{vQw}, {L_QT}, v{vVm}
""")
    A(f"v_and_b32 v{t0}, 7, v{vLane}")
    for j in range(4):
        A(f"""
v_mov_b32 v{vSel+j}, 0
v_cmp_eq_u32 vcc, {2*j}, v{t0}
v_mov_b32 v{t1}, 0x3f80
v_cndmask_b32 v{vSel+j}, v{vSel+j}, v{t1}, vcc
v_cmp_eq_u32 vcc, {2*j+1}, v{t0}
v_mov_b32 v{t1}, 0x3f800000
v_cndmask_b32 v{vSel+j}, v{vSel+j}, v{t1}, vcc
""")
    A("s_waitcnt lgkmcnt(0)")
    vW0,vW1,vWoD=vA+4,vA+5,vA+6
    A(f"""
v_lshrrev_b32 v{t0}, 4, v{vLane}
v_and_b32 v{t1}, 1, v{t0}
v_lshlrev_b32 v{t1}, 2, v{t1}
v_and_b32 v{t2}, 15, v{vLane}
v_xor_b32 v{t2}, v{t2}, v{t1}
v_lshlrev_b32 v{t0}, 13, v{t0}
s_lshl_b32 s{sTmp}, s{sH}, 8
s_lshl_b32 s{sTmp+1}, s{sW}, 17
s_add_u32 s{sTmp}, s{sTmp}, s{sTmp+1}
v_add_u32 v{t0}, s{sTmp}, v{t0}
v_lshl_add_u32 v{vW0}, v{t2}, 4, v{t0}
v_xor_b32 v{t2}, 8, v{t2}
v_lshl_add_u32 v{vW1}, v{t2}, 4, v{t0}
""")
    def dma_chunk(c):
        slot=c%9
        if c<27:
            r0=64*(c%9)
            for j in range(4):
                A(f"s_lshl_b32 s{sTmp}, s{sW}, 12\ns_add_u32 m0, s{sTmp}, {slot*16384+j*1024}")
                A(f"s_mov_b32 s{sTmp+1}, {(r0+4*j)*8192}")
                A(f"buffer_load_dwordx4 v{vW0 if j%2==0 else vW1}, s[{sWT}:{sWT+3}], s{sTmp+1} offen lds")
        else:
            cc=c-27
            for j in range(4):
                A(f"s_lshl_b32 s{sTmp}, s{sW}, 2\ns_add_u32 s{sTmp}, s{sTmp}, {16*cc+j}\ns_lshl_b32 s{sTmp}, s{sTmp}, 6")
                A(f"v_add_u32 v{t0}, s{sTmp}, v{vLane}")
                A(f"v_mul_u32_u24 v{t1}, 58255, v{t0}\nv_lshrrev_b32 v{t1}, 26, v{t1}\nv_and_b32 v{t1}, 1, v{t1}\nv_lshlrev_b32 v{t1}, 2, v{t1}\nv_xor_b32 v{t0}, v{t0}, v{t1}\nv_lshlrev_b32 v{vWoD}, 4, v{t0}")
                A(f"s_lshl_b32 s{sTmp}, s{sW}, 12\ns_add_u32 m0, s{sTmp}, {slot*16384+j*1024}")
                A(f"buffer_load_dwordx4 v{vWoD}, s[{sWT}:{sWT+3}], 0 offen lds")
    def set_wsrd(c):
        if c in (0,9,18):
            A(f"s_load_dwordx2 s[{sWT}:{sWT+1}], s[{sKarg}:{sKarg+1}], {[KA_WQ,KA_WK,KA_WV][c//9]}\ns_mov_b32 s{sWT+2}, {576*8192}\ns_waitcnt lgkmcnt(0)")
        if c==27:
            A(f"s_load_dwordx2 s[{sWT}:{sWT+1}], s[{sKarg}:{sKarg+1}], {KA_WO}\ns_waitcnt lgkmcnt(0)")
            A(f"s_mul_i32 s{sTmp}, s{sH}, 147456\ns_add_u32 s{sWT}, s{sWT}, s{sTmp}\ns_addc_u32 s{sWT+1}, s{sWT+1}, 0\ns_mov_b32 s{sWT+2}, 147456")
    vWr=vA+7
    A(f"""
v_lshrrev_b32 v{t0}, 4, v{vLane}
v_bfe_u32 v{t1}, v{vLane}, 2, 1
v_lshl_add_u32 v{t2}, v{t0}, 2, v{t1}
v_lshlrev_b32 v{t2}, 8, v{t2}
v_and_b32 v{t0}, 1, v{t0}
v_lshl_add_u32 v{t0}, v{t0}, 1, v{t1}
v_lshlrev_b32 v{t0}, 2, v{t0}
v_bfe_u32 v{t1}, v{vLane}, 3, 1
v_lshlrev_b32 v{t1}, 1, v{t1}
v_bfe_u32 v{t3}, v{vLane}, 1, 1
v_add_u32 v{t1}, v{t1}, v{t3}
s_lshl_b32 s{sTmp}, s{sW}, 2
v_add_u32 v{t1}, s{sTmp}, v{t1}
v_xor_b32 v{t1}, v{t1}, v{t0}
v_lshl_add_u32 v{t2}, v{t1}, 4, v{t2}
v_and_b32 v{t3}, 1, v{vLane}
v_lshl_add_u32 v{vWr}, v{t3}, 3, v{t2}
v_add_u32 v{vWr+1}, 65536, v{vWr}
v_add_u32 v{vWr+2}, 131072, v{vWr}
""")
    A(f"""
s_load_dwordx2 s[60:61], s[{sKarg}:{sKarg+1}], {KA_MEM0}
s_mov_b32 s62, 9216
s_mov_b32 s63, 0x20000
v_lshrrev_b32 v{vA}, 4, v{vLane}
v_and_b32 v{vA}, 1, v{vA}
v_mul_u32_u24 v{vA}, {4*1152}, v{vA}
v_and_b32 v{vA+1}, 7, v{vLane}
v_lshl_add_u32 v{vA}, v{vA+1}, 1, v{vA}
s_lshl_b32 s{sTmp}, s{sTask}, 4
s_waitcnt lgkmcnt(0)
""")
    for r in range(4):
        A(f"buffer_load_ushort v{vK+r}, v{vA}, s[60:63], s{sTmp} offen offset:{r*1152}")
    A(f"v_mov_b32 v{vT+4}, 0\nv_mov_b32 v{vT+5}, 0\nv_mov_b32 v{vT+6}, -1\nv_mov_b32 v{vT+7}, -1")
    A(f"s_lshl_b32 s{sTmp+2}, s{sW}, 14\ns_add_u32 s{sTmp+2}, s{sTmp+2}, s{sH1}")
    for r in range(4):
        A(f"s_add_u32 s{sTmp}, s{sTmp+2}, {r*65536}")
        A(f"buffer_store_dwordx2 {vr(vT+4,2)}, v{vH1st}, {WSR}, s{sTmp} offen")
    A(f"s_cmp_lt_u32 s{sW}, 2\ns_cbranch_scc0 L_clr1_skip")
    A(f"s_add_u32 s{sTmp}, s{sTmp+2}, {4*65536}")
    A(f"buffer_store_dwordx2 {vr(vT+4,2)}, v{vH1st}, {WSR}, s{sTmp} offen")
    A("L_clr1_skip:")
    A(f"s_cmp_eq_u32 s{sHasTask}, 1\ns_cbranch_scc0 L_clr2_skip")
    A(f"s_mov_b64 exec, s[{sMaskPub}:{sMaskPub+1}]")
    for sl in range(1,4):
        A(f"s_add_u32 s{sTmp}, s{sH2}, {sl*16384}")
        A(f"buffer_store_dwordx2 {vr(vT+6,2)}, v{vPub}, {WSR}, s{sTmp} offen")
    A("s_waitcnt vmcnt(0)")
    A(f"v_lshl_or_b32 v{vK}, v{vK+1}, 16, v{vK}\nv_lshl_or_b32 v{vK+1}, v{vK+3}, 16, v{vK+2}\nv_min_u32 v{vK}, -2, v{vK}")
    A(f"buffer_store_dwordx2 {vr(vK,2)}, v{vPub}, {WSR}, s{sH2} offen")
    A("s_mov_b64 exec, -1\nL_clr2_skip:")
    if OPT.codewarm:
        A(f"""
s_getpc_b64 s[64:65]
L_pcref:
s_add_u32 s64, s64, L_code_begin-L_pcref
s_addc_u32 s65, s65, 0
v_lshlrev_b32 v{vT+7}, 6, v{vLane}
s_lshl_b32 s{sTmp}, s{sW}, 12
v_add_u32 v{vT+7}, s{sTmp}, v{vT+7}
""")
        for j in range(OPT.codewarm):
            A(f"global_load_dword v{vA+1}, v{vT+7}, s[64:65]\nv_add_u32 v{vT+7}, 16384, v{vT+7}")
    DEPTH=8
    set_wsrd(0)
    for c in range(DEPTH): dma_chunk(c)
    A(f"s_waitcnt vmcnt({DEPTH*4})")
    A(f"""
s_waitcnt lgkmcnt(0)
s_barrier
s_cmp_eq_u32 s{sW}, 0
s_cbranch_scc0 L_cb_skip
v_mov_b32 v{vT}, 64
v_mov_b32 v{vT+1}, 1
s_mov_b64 exec, 1
global_atomic_add v{vT}, v{vT+1}, s[{sDbg}:{sDbg+1}]
s_mov_b64 exec, -1
L_cb_skip:
""")
    if stamps: A("s_memtime s[90:91]")
    for c in range(27):
        nxt=c+DEPTH
        A(f"s_waitcnt vmcnt({(DEPTH-1)*4 - (1 if c<8 else 0)})" if False else f"s_waitcnt vmcnt({(DEPTH-1)*4})")
        A("s_barrier")
        if nxt<36:
            set_wsrd(nxt); dma_chunk(nxt)
        mat=c//9; slot=c%9
        for ks in range(2):
            s=2*(c%9)+ks
            for q in range(4):
                off=slot*16384+ks*8192+(2*(q&1)+16*(q>>1))*256
                base=vWr+off//65536; off%=65536
                A(f"ds_read_b64_tr_b16 {Wreg(mat,s,q)}, v{base} offset:{off}")
        A("s_waitcnt lgkmcnt(0)")
        A("s_barrier")
    dma_chunk(35)
    A("s_waitcnt vmcnt(0)\ns_barrier")
    vC=vA+10
    A(f"""
v_bfe_u32 v{t0}, v{vLane}, 4, 1
v_bfe_u32 v{t1}, v{vLane}, 5, 1
v_lshlrev_b32 v{t2}, 4, v{t0}
v_lshl_add_u32 v{t2}, v{t1}, 2, v{t2}
v_bfe_u32 v{t3}, v{vLane}, 2, 1
v_add_u32 v{t2}, v{t2}, v{t3}
v_mul_u32_u24 v{t2}, 1152, v{t2}
v_xor_b32 v{t0}, s{sW}, v{t0}
v_lshl_add_u32 v{t2}, v{t0}, 6, v{t2}
v_bfe_u32 v{t3}, v{vLane}, 3, 1
v_lshl_add_u32 v{t2}, v{t3}, 5, v{t2}
v_and_b32 v{t3}, 3, v{vLane}
v_lshl_add_u32 v{vC}, v{t3}, 3, v{t2}
v_add_u32 v{vC+1}, 73728, v{vC}
s_lshl_b32 s{sTmp}, s{sW}, 11
v_add_u32 v{vC+2}, s{sTmp}, v{vWo}
v_add_u32 v{vC+3}, s{sTmp}, v{vWo+1}
v_add_u32 v{vC+4}, s{sTmp}, v{vWo+2}
""")
    for s in range(4):
        base=vC if s<2 else vC+1
        lab=A.uid("L_cv"); lab2=A.uid("L_cw")
        for r in range(5):
            if r==4: A(f"s_cmp_lt_u32 s{sW}, 2\ns_cbranch_scc0 {lab}")
            for q in range(4):
                off=(s%2)*36864+(2*(q&1)+8*(q>>1))*1152+r*256
                A(f"ds_read_b64_tr_b16 {vr(vK-0+8*r+2*q,2)}, v{base} offset:{off}")
            if r%2==1: A("s_waitcnt lgkmcnt(0)")
        A(f"{lab}:\ns_waitcnt lgkmcnt(0)\ns_barrier")
        for r in range(5):
            if r==4: A(f"s_cmp_lt_u32 s{sW}, 2\ns_cbranch_scc0 {lab2}")
            for half in range(2):
                off=s*36864+r*8192+half*1024
                A(f"ds_write_b128 v{vC+2+off//49152}, {vr(vK+8*r+4*half,4)} offset:{off%49152}")
        A(f"{lab2}:\ns_waitcnt lgkmcnt(0)\ns_barrier")
    if stamps: A("s_memtime s[92:93]")
    A(f"""
s_cmp_eq_u32 s{sW}, 0
s_cbranch_scc0 L_cb_wait
v_mov_b32 v{vT}, 64
s_mov_b32 s{sTmp}, 0
L_cb_poll:
global_load_dword v{vT+2}, v{vT}, s[{sDbg}:{sDbg+1}] sc1
s_waitcnt vmcnt(0)
v_readfirstlane_b32 s{sTmp+1}, v{vT+2}
s_add_u32 s{sTmp}, s{sTmp}, 1
s_cmp_gt_u32 s{sTmp}, 2000000
s_cbranch_scc1 L_abort
s_cmp_ge_u32 s{sTmp+1}, 32
s_cbranch_scc0 L_cb_poll
""")
    if OPT.fused and stamps: A("s_memtime s[90:91]")
    if OPT.fused:
        A(f"""
s_mov_b32 s{sTmp+2}, {cnt(C_KV)}
L_kv_poll:
buffer_load_dword v{vT+2}, off, {WSR}, s{sTmp+2} sc1
s_waitcnt vmcnt(0)
v_readfirstlane_b32 s{sTmp+1}, v{vT+2}
s_add_u32 s{sTmp}, s{sTmp}, 1
s_cmp_gt_u32 s{sTmp}, 4000000
s_cbranch_scc1 L_abort
s_sleep 1
s_cmp_ge_u32 s{sTmp+1}, 32
s_cbranch_scc0 L_kv_poll
""")
    A(f"""
L_cb_wait:
s_barrier
""")
    if OPT.fused:
        A(f"s_cmp_eq_u32 s{sW}, 3\ns_cbranch_scc0 L_nf\nv_mov_b32 v10, 32\nL_nf:")
    if OPT.prewarm:
        A(f"v_lshlrev_b32 v{vT+7}, 2, v{vL16M}\ns_lshl_b32 s{sTmp}, s{sH}, 13\ns_lshl_b32 s{sTmp+1}, s{sW}, 12\ns_and_b32 s{sTmp+1}, s{sTmp+1}, 4096\ns_add_u32 s{sTmp}, s{sTmp}, s{sTmp+1}")
        A(f"s_cmp_lt_u32 s{sW}, 2\ns_mov_b32 s{sTmp+2}, {WS_VT-L_MEMT*4}\ns_cselect_b32 s{sTmp+2}, {WS_KX-L_MEMT*4}, s{sTmp+2}\ns_add_u32 s{sTmp}, s{sTmp}, s{sTmp+2}")
        for sg in range(2):
            A(f"buffer_load_dword v0, v{vT+7}, {WSR}, s{sTmp} offen\ns_add_u32 s{sTmp}, s{sTmp}, 262144")
        A("s_waitcnt vmcnt(0)")

PAIRS=[[0,4,8,12,16],[1,5,9,13,17],[2,6,10],[3,7,11,15,14]]
PAIRS_C=[[0,3,6,9,12,15],[1,4,7,10,13,16],[],[2,5,8,11,14,17]]
PAIRS_D=[[0,4,8,10,14,17],[1,5,9,12,15],[2,6],[3,7,11,13,16]]
PAIRS_E=[[0,4,8,12,16],[1,5,9,13,17],[2,6],[3,7,10,11,14,15]]
def pairs(w): return PAIRS_C[w] if OPT.commwave==True else {0:PAIRS,1:PAIRS_D,2:PAIRS_E}[OPT.pmode][w]
def wo_addr(P, s, half):
    off=s*36864+P*2048+half*1024
    return vWo+off//49152, off%49152

class Cnt:
    def __init__(self,A,name,maxn): self.A=A; self.q=[]; self.name=name; self.maxn=maxn
    def add(self,tag,n=1):
        self.q+= [tag]*n
        assert len(self.q)<=self.maxn, (self.name,self.q)
    def wait(self,tag):
        if tag not in self.q: return
        idx=max(i for i,x in enumerate(self.q) if x==tag)
        self.A(f"s_waitcnt {self.name}({len(self.q)-idx-1})"); del self.q[:idx+1]
    def drain(self):
        self.A(f"s_waitcnt {self.name}(0)"); self.q=[]
    def clear(self): self.q=[]

class Stream:
    def __init__(self, A, w, red_round, nsteps, stamps, stamp_step, sid):
        self.A=A; self.w=w; self.rr=red_round; self.nsteps=nsteps; self.stamps=stamps; self.sid=sid
        self.nst=0; self.names=[]
        self.L=Cnt(A,"lgkmcnt",15); self.V=Cnt(A,"vmcnt",63)
        self.ool=[]
    def stamp(self,name=""):
        if self.stamps==True:
            self.A(f"{OPT.clk} s[{sT0+2*self.nst}:{sT0+2*self.nst+1}]"); self.names.append(name); self.nst+=1
            assert self.nst<=16
    def delay(self,d):
        while d>0: self.A(f"s_nop {min(d,16)-1}"); d-=16
    def trr1(self,dst,off,tag):
        self.A(f"ds_read_b64_tr_b16 {vr(dst,2)}, v{vTR} offset:{off}"); self.L.add(tag)
    def trr(self,dst,off,tag):
        self.trr1(dst,off,tag); self.trr1(dst+2,off+64,tag)
    def gat_issue(self,r,b,tag=None):
        A=self.A
        A(f"s_add_u32 s{sTmp}, s{sH2gat}, {r*2048}")
        A(f"buffer_load_dwordx4 {vr(b,4)}, v{vL16M}, {WSR}, s{sTmp} offen sc1")
        if r<4: A(f"buffer_load_dwordx4 {vr(b+4,4)}, v{vL16M}, {WSR}, s{sTmp} offen offset:1024 sc1")
        if tag: self.V.add(tag,2 if r<4 else 1)
    def gat_check_parts(self,r,b):
        A=self.A
        rt=A.uid("L_grt"); back=A.uid("L_gbk")
        t=vT+6
        g=[]
        g.append(lambda: self.V.wait(("g",r)))
        if r<4:
            g.append(lambda: A(f"v_max3_u32 v{t}, v{b}, v{b+2}, v{b+4}"))
            g.append(lambda: A(f"v_max_u32 v{t}, v{t}, v{b+6}"))
        else:
            g.append(lambda: A(f"v_max_u32 v{t}, v{b}, v{b+2}"))
        g.append(lambda: A(f"v_cmp_eq_u32 vcc, -1, v{t}"))
        def wr():
            A(f"ds_write_b128 v{vL16M}, {vr(b,4)} offset:{r*2048}"); self.L.add(("gw",r))
        def wr2():
            if r<4: A(f"ds_write_b128 v{vL16M}, {vr(b+4,4)} offset:{r*2048+1024}"); self.L.add(("gw",r))
        g.append(wr); g.append(wr2)
        g.append(lambda: A(f"s_cbranch_vccnz {rt}\n{back}:"))
        def ool():
            lp=A.uid("L_glp")
            A(f"{rt}:\n{lp}:\ns_add_u32 s{sRetry2}, s{sRetry2}, 1\ns_cmp_gt_u32 s{sRetry2}, 1000000\ns_cbranch_scc1 L_abort\ns_waitcnt lgkmcnt(0)")
            self.gat_issue(r,b)
            A("s_waitcnt vmcnt(0)")
            if r<4: A(f"v_max3_u32 v{t}, v{b}, v{b+2}, v{b+4}\nv_max_u32 v{t}, v{t}, v{b+6}")
            else: A(f"v_max_u32 v{t}, v{b}, v{b+2}")
            A(f"v_cmp_eq_u32 vcc, -1, v{t}\ns_cbranch_vccnz {lp}")
            A(f"ds_write_b128 v{vL16M}, {vr(b,4)} offset:{r*2048}")
            if r<4: A(f"ds_write_b128 v{vL16M}, {vr(b+4,4)} offset:{r*2048+1024}")
            A(f"s_waitcnt lgkmcnt(0)\ns_branch {back}")
        self.ool.append(ool)
        return g
    def gat_poll(self,r):
        A=self.A
        sets=[vK,vK+8,vV][:OPT.npoll]; NS=len(sets)
        A(f"s_add_u32 s{sTmp+4}, s{sH2gat}, {r*2048}")
        def iss(b):
            A(f"buffer_load_dwordx4 {vr(b,4)}, v{vL16M}, {WSR}, s{sTmp+4} offen sc1")
            A(f"buffer_load_dwordx4 {vr(b+4,4)}, v{vL16M}, {WSR}, s{sTmp+4} offen offset:1024 sc1")
        for i,b in enumerate(sets):
            iss(b)
            if i<NS-1: self.delay(OPT.poll_gap)
        lp=A.uid("L_g0p"); done=A.uid("L_g0d"); oks=[A.uid("L_g0k") for _ in sets]
        A(f"{lp}:")
        for i,b in enumerate(sets):
            A(f"s_waitcnt vmcnt({2*(NS-1)})")
            A(f"v_max3_u32 v{vT+6}, v{b}, v{b+2}, v{b+4}\nv_max_u32 v{vT+6}, v{vT+6}, v{b+6}")
            A(f"v_cmp_eq_u32 vcc, -1, v{vT+6}\ns_cbranch_vccz {oks[i]}")
            iss(b)
        A(f"s_add_u32 s{sRetry2}, s{sRetry2}, 1\ns_cmp_gt_u32 s{sRetry2}, 1000000\ns_cbranch_scc1 L_abort\ns_branch {lp}")
        for i,b in enumerate(sets):
            A(f"{oks[i]}:")
            A(f"ds_write_b128 v{vL16M}, {vr(b,4)} offset:{r*2048}\nds_write_b128 v{vL16M}, {vr(b+4,4)} offset:{r*2048+1024}")
            if i<NS-1: A(f"s_branch {done}")
        A(f"{done}:\ns_waitcnt lgkmcnt(0)")
        self.L.clear()
    def gat_poll01(self):
        A=self.A
        sets=[vK,vA][:OPT.npoll]; NS=len(sets)
        def iss(b):
            A(f"buffer_load_dwordx4 {vr(b,4)}, v{vL16M}, {WSR}, s{sH2gat} offen sc1")
            A(f"buffer_load_dwordx4 {vr(b+4,4)}, v{vL16M}, {WSR}, s{sH2gat} offen offset:1024 sc1")
            A(f"buffer_load_dwordx4 {vr(b+8,4)}, v{vL16M}, {WSR}, s{sH2gat} offen offset:2048 sc1")
            A(f"buffer_load_dwordx4 {vr(b+12,4)}, v{vL16M}, {WSR}, s{sH2gat} offen offset:3072 sc1")
        for i,b in enumerate(sets):
            iss(b)
            if i<NS-1: self.delay(OPT.poll_gap)
        lp=A.uid("L_g0p"); done=A.uid("L_g0d"); oks=[A.uid("L_g0k") for _ in sets]
        A(f"{lp}:")
        for i,b in enumerate(sets):
            A(f"s_waitcnt vmcnt({4*(NS-1)})")
            A(f"v_max3_u32 v{vT+6}, v{b}, v{b+2}, v{b+4}\nv_max3_u32 v{vT+7}, v{b+6}, v{b+8}, v{b+10}\nv_max3_u32 v{vT+6}, v{vT+6}, v{b+12}, v{b+14}\nv_max_u32 v{vT+6}, v{vT+6}, v{vT+7}")
            A(f"v_cmp_eq_u32 vcc, -1, v{vT+6}\ns_cbranch_vccz {oks[i]}")
            iss(b)
        A(f"s_add_u32 s{sRetry2}, s{sRetry2}, 1\ns_cmp_gt_u32 s{sRetry2}, 1000000\ns_cbranch_scc1 L_abort\ns_branch {lp}")
        for i,b in enumerate(sets):
            A(f"{oks[i]}:")
            for j in range(4): A(f"ds_write_b128 v{vL16M}, {vr(b+4*j,4)} offset:{j*1024}")
            if i<NS-1: A(f"s_branch {done}")
        A(f"{done}:\ns_waitcnt vmcnt(0) lgkmcnt(0)")
        self.L.clear()
    def red_iss(self,b,second=False):
        if second: self.A(f"s_add_u32 s{sTmp+5}, s{sH1}, {32*4096}")
        for k in range(4):
            self.A(f"buffer_load_dwordx4 {vr(b+4*k,4)}, v{vRed}, {WSR}, s{sTmp+5 if second else sH1} offen offset:{k*1024} sc1")
    def red_poll(self,pre_issued=False,younger=0,second=False):
        A=self.A
        sets=[vK,vA][:OPT.nred]; NS=len(sets)
        iss=lambda b: self.red_iss(b,second)
        for i,b in enumerate(sets):
            if not (i==0 and pre_issued): iss(b)
            if i<NS-1: self.delay(OPT.red_gap)
        lp=A.uid("L_rp"); done=A.uid("L_rd")
        oks={}
        def check(b,cnt):
            A(f"s_waitcnt vmcnt({cnt})")
            A(f"""
v_xor_b32 v{vT+6}, v{b}, v{vTag}
v_bitop3_b32 v{vT+6}, v{vT+6}, v{b+4}, v{vTag} bitop3:0xf6
v_bitop3_b32 v{vT+6}, v{vT+6}, v{b+8}, v{vTag} bitop3:0xf6
v_bitop3_b32 v{vT+6}, v{vT+6}, v{b+12}, v{vTag} bitop3:0xf6
""")
            if OPT.spec1: A(f"v_mfma_f32_16x16x32_bf16 {vr(aV,4)}, {vr(vSel,4)}, {vr(b,4)}, 0")
            A(f"""
v_and_b32 v{vT+6}, 0x10001, v{vT+6}
v_cmp_ne_u32 vcc, 0, v{vT+6}
s_cbranch_vccz {oks.setdefault(b,A.uid("L_rk"))}
""")
            iss(b)
        check(sets[0],4*(NS-1)+(younger if pre_issued else 0))
        order=sets[1:]+sets[:1]
        A(f"{lp}:")
        for b in order: check(b,4*(NS-1))
        A(f"s_add_u32 s{sRetry}, s{sRetry}, 1\ns_cmp_gt_u32 s{sRetry}, 1000000\ns_cbranch_scc1 L_abort\ns_branch {lp}")
        for n_,b in enumerate(sets):
            A(f"{oks[b]}:")
            for k in range(4):
                A(f"v_mfma_f32_16x16x32_bf16 {vr(aV,4)}, {vr(vSel,4)}, {vr(b+4*k,4)}, {'0' if k==0 else vr(aV,4)}")
            if n_<len(sets)-1: A(f"s_branch {done}")
        A(f"{done}:")
        for r in range(4):
            A(f"v_add_f32_dpp v{aV+r}, v{aV+r}, v{aV+r} row_ror:8 row_mask:0xf bank_mask:0xf")
        A(f"""
v_cvt_pk_bf16_f32 v{vT+4}, v{aV}, v{aV+1}
v_cvt_pk_bf16_f32 v{vT+5}, v{aV+2}, v{aV+3}
s_mov_b64 exec, s[{sMaskPub}:{sMaskPub+1}]
v_min_u32 v{vT+4}, -2, v{vT+4}
""")
        if second: A(f"s_add_u32 s{sTmp+5}, s{sH2pub}, 4096\ns_add_u32 s{sTmp+6}, s{sH2rst}, 4096")
        A(f"""
buffer_store_dwordx2 {vr(vT+4,2)}, v{vPub}, {WSR}, s{sTmp+5 if second else sH2pub} offen
v_mov_b32 v{vT+6}, -1
v_mov_b32 v{vT+7}, -1
buffer_store_dwordx2 {vr(vT+6,2)}, v{vPub}, {WSR}, s{sTmp+6 if second else sH2rst} offen
s_mov_b64 exec, -1
""")
    def kx_loads(self):
        A=self.A
        A(f"s_add_u32 s{sTmp+1}, s{sKXo}, 4096")
        for s in range(4):
            A(f"buffer_load_dwordx4 {vr(vK+4*s,4)}, v{vKx}, {WSR}, s{sKXo if s<2 else sTmp+1} offen offset:{(s%2)*2048} sc1")
        self.V.add(("kx",0),4)
    def kx1(self,s_):
        A=self.A
        if s_>=2: A(f"s_add_u32 s{sTmp+1}, s{sKXo}, 4096")
        A(f"buffer_load_dwordx4 {vr(vK+4*s_,4)}, v{vKx}, {WSR}, s{sKXo if s_<2 else sTmp+1} offen offset:{(s_%2)*2048} sc1")
        self.V.add(("kx",0))
    def vx1(self,t):
        self.A(f"buffer_load_dwordx4 {vr(vV+4*t,4)}, v{vVx}, {WSR}, s{sVTo} offen offset:{t*256} sc1")
        self.V.add(("vx",0))
    def vx_loads(self):
        for t in range(2):
            self.A(f"buffer_load_dwordx4 {vr(vV+4*t,4)}, v{vVx}, {WSR}, s{sVTo} offen offset:{t*256} sc1")
        self.V.add(("vx",0),2)
    def warm1(self,i):
        A=self.A
        sb=sWarmK if i<2 else sWarmV
        A(f"v_lshlrev_b32 v{vT+7}, 2, v{vL16M}")
        A(f"s_add_u32 s{sTmp+1}, s{sb}, {4096*(i%2)}\nbuffer_load_dword v0, v{vT+7}, {WSR}, s{sTmp+1} offen {OPT.warmflag}")
        self.V.add(("warm",i))
    def zero_acc(self):
        for r in range(4): self.A(f"v_mov_b32 v{aQ+r}, 0\nv_mov_b32 v{aK+r}, 0\nv_mov_b32 v{aV+r}, 0")

    def body(self):
        A=self.A; w=self.w; sid=self.sid; L=self.L; V=self.V
        A(f"L_step_{sid}:")
        self.stamp("top")
        V.q=[]
        if OPT.steplog and w==1:
            A(f"s_memrealtime s[88:89]\ns_waitcnt lgkmcnt(0)\nv_mov_b32 v{vT}, s88\nv_mov_b32 v{vT+1}, s90\nv_mov_b32 v{vT+2}, s92\nv_mov_b32 v{vT+3}, s98\ns_lshl_b32 s{sTmp}, s{sH}, 10\ns_lshl_b32 s{sTmp+1}, s{sStep}, 4\ns_add_u32 s{sTmp}, s{sTmp}, s{sTmp+1}\ns_add_u32 s{sTmp}, s{sTmp}, {WS_STAMP+0x20000}\nv_mov_b32 v{vT+6}, 0\nbuffer_store_dwordx4 {vr(vT,4)}, v{vT+6}, {WSR}, s{sTmp} offen\ns_nop 3")
            V.add(("dbg",0))
        L.q=[]
        smf=lambda acc,b,wt: A(f"v_smfmac_f32_16x16x64_bf16 {vr(acc,4)}, {vr(b,4)}, {wt}, v{vIdx}")
        abuf=lambda k: vA+4*(k%4)
        PD=OPT.pd
        for k in range(PD): self.trr(abuf(k),k*512,("a",k))
        side={k:[[],[],[]] for k in range(18)}
        def guarded(fn_list):
            return fn_list
        grounds={3:(2,vK),0:(3,vK),1:(4,vT),2:(None,None)}
        gr,gb=grounds[w]
        skip=[None]
        def begin_skip():
            lab=A.uid("L_fs"); skip[0]=lab
            A(f"s_cmp_eq_u32 s{sStep}, 0\ns_cbranch_scc1 {lab}")
        def end_skip():
            A(f"{skip[0]}:")
        if gr is not None:
            parts=self.gat_check_parts(gr,gb)
            kc=4*(gr-1)-(OPT.pd-2)
            ki={2:OPT.ki[0],3:OPT.ki[1],4:OPT.ki[2]}[gr]
            if ki>=0: side[ki][2]+= [lambda: self.gat_issue(gr,gb,("g",gr))]
            else: V.add(("g",gr),2 if gr<4 else 1)
            nv=len(parts)-4
            side[kc][0]+= parts[:2]
            side[kc][1]+= parts[2:nv+1]
            side[kc][2]+= parts[nv+1:]
        if OPT.kvmode=="spread":
            if w in (1,2):
                for i in range(4): side[i][1]+= [lambda i=i: self.kx1(i)]
                for t in range(2): side[4+t][1]+= [lambda t=t: self.vx1(t)]
            if w==3:
                for t in range(2): side[1+t][1]+= [lambda t=t: self.vx1(t)]
            if w==0:
                for t in range(2): side[t][1]+= [lambda t=t: self.vx1(t)]
        else:
            if w==1: side[0][2]+= [self.kx_loads]; side[3][2]+= [self.vx_loads]
            if w==2: side[0][2]+= [self.kx_loads]; side[2][2]+= [self.vx_loads]
            if w==3: side[3][2]+= [self.vx_loads]
            if w==0: side[0][2]+= [self.vx_loads]
        if w==3 and OPT.warm:
            if OPT.fused:
                def kvcheck():
                    rt=A.uid("L_kvr"); back=A.uid("L_kvb")
                    A(f"v_readfirstlane_b32 s{sTmp+1}, v10\ns_cmp_ge_u32 s{sTmp+1}, 32\ns_cbranch_scc0 {rt}\n{back}:")
                    def ool():
                        lp=A.uid("L_kvl")
                        A(f"{rt}:\ns_add_u32 s{sTmp+2}, s{sStep}, 2\ns_min_u32 s{sTmp+2}, s{sTmp+2}, 63\ns_lshr_b32 s{sTmp+2}, s{sTmp+2}, 2\ns_lshl_b32 s{sTmp+2}, s{sTmp+2}, 7\ns_add_u32 s{sTmp+2}, s{sTmp+2}, {cnt(C_KV)}\n{lp}:")
                        A(f"buffer_load_dword v10, off, {WSR}, s{sTmp+2} sc1\ns_waitcnt vmcnt(0)\nv_readfirstlane_b32 s{sTmp+1}, v10\ns_add_u32 s{sRetry2}, s{sRetry2}, 1\ns_cmp_gt_u32 s{sRetry2}, 4000000\ns_cbranch_scc1 L_abort\ns_sleep 1\ns_cmp_ge_u32 s{sTmp+1}, 32\ns_cbranch_scc0 {lp}\ns_branch {back}")
                    self.ool.append(ool)
                side[min(OPT.warmk)][2]+= [kvcheck]
            for i,kk in enumerate(OPT.warmk):
                if kk is not None and kk<18: side[kk][2]+= [lambda i=i: self.warm1(i)]
            if OPT.fused:
                def kvload():
                    A(f"s_add_u32 s{sTmp+2}, s{sStep}, 3\ns_min_u32 s{sTmp+2}, s{sTmp+2}, 63\ns_lshr_b32 s{sTmp+2}, s{sTmp+2}, 2\ns_lshl_b32 s{sTmp+2}, s{sTmp+2}, 7\ns_add_u32 s{sTmp+2}, s{sTmp+2}, {cnt(C_KV)}")
                    A(f"buffer_load_dword v10, off, {WSR}, s{sTmp+2} sc1"); V.add(("kvf",0))
                side[max(OPT.warmk)][2]+= [kvload]
        for k in range(18):
            L.wait(("a",k))
            b=abuf(k)
            smf(aQ,b,Wq(k))
            if k+PD<18: self.trr1(abuf(k+PD),(k+PD)*512,("a",k+PD))
            for f in side[k][0]: f()
            smf(aK,b,Wk(k))
            if k+PD<18: self.trr1(abuf(k+PD)+2,(k+PD)*512+64,("a",k+PD))
            for f in side[k][1]: f()
            if k<14: smf(aV,b,Wv(k))
            for f in side[k][2]: f()
            if (k+1+PD)%4==0 and (k+1+PD)//4>=2 and (k+1+PD)//4<=4:
                rnd=(k+1+PD)//4
                if rnd==gr: L.wait(("gw",rnd)) if (("gw",rnd) in L.q) else None
                A("s_barrier")
                if rnd==4 and w==1 and OPT.fused:
                    A(f"v_mov_b32 v{vT+5}, s{sStep}\ns_lshl_b32 s{sTmp+1}, s{sH}, 7\ns_add_u32 s{sTmp+1}, s{sTmp+1}, {cnt(C_PROG)}\ns_mov_b64 exec, 1\nbuffer_store_dword v{vT+5}, off, {WSR}, s{sTmp+1} sc1\ns_mov_b64 exec, -1")
                    V.add(("prog",0))
                if rnd in (2,4): self.stamp(f"qkB{rnd}")
        self.stamp("qkend")
        smf(aV,abuf(14),Wv(14))
        A(f"v_cvt_pk_bf16_f32 v{vT}, v{aQ}, v{aQ+1}\nv_cvt_pk_bf16_f32 v{vT+1}, v{aQ+2}, v{aQ+3}")
        A(f"ds_write_b64 v{vQw}, {vr(vT,2)}")
        smf(aV,abuf(15),Wv(15))
        A(f"v_cvt_pk_bf16_f32 v{vT+2}, v{aK}, v{aK+1}\nv_cvt_pk_bf16_f32 v{vT+3}, v{aK+2}, v{aK+3}")
        A(f"ds_write_b64 v{vQw}, {vr(vT+2,2)} offset:2048")
        smf(aV,abuf(16),Wv(16)); smf(aV,abuf(17),Wv(17))
        L.drain()
        A("s_barrier")
        last=f"L_last_{sid}"
        self.stamp("B6")
        if OPT.steplog and w==1: A("s_memrealtime s[90:91]")
        if w==3 and OPT.warm:
            for i,kk in enumerate(OPT.warmk):
                if kk==20: self.warm1(i)
        if w<3:
            if w==0:
                for s in range(3):
                    self.trr(vK+4*s,KOFF+s*512,("k",s)); self.trr(vA+4*s,QOFF+s*512,("q",s))
                A(f"s_cmp_eq_u32 s{sStep}, {self.nsteps-1}\ns_cbranch_scc1 {last}")
                L.wait(("q",0))
                self.trr(vK+12,KOFF+3*512,("k",3)); self.trr(vA+12,QOFF+3*512,("q",3))
                for s in range(4):
                    L.wait(("q",s))
                    A(f"v_mfma_f32_16x16x32_bf16 {vr(vT,4)}, {vr(vK+4*s,4)}, {vr(vA+4*s,4)}, {'0' if s==0 else vr(vT,4)}")
            else:
                for s in range(4): self.trr(vA+4*s,QOFF+s*512,("q",s))
                A(f"s_cmp_eq_u32 s{sStep}, {self.nsteps-1}\ns_cbranch_scc1 {last}")
                V.wait(("kx",0))
                for s in range(4):
                    L.wait(("q",s))
                    A(f"v_mfma_f32_16x16x32_bf16 {vr(vT,4)}, {vr(vK+4*s,4)}, {vr(vA+4*s,4)}, {'0' if s==0 else vr(vT,4)}")
            self.stamp("Smf")
            A(f"v_cvt_pk_bf16_f32 v{aV}, v{aV}, v{aV+1}\nv_cvt_pk_bf16_f32 v{aV+1}, v{aV+2}, v{aV+3}")
            A(f"buffer_store_dwordx2 {vr(aV,2)}, v{vVm}, {WSR}, s{sVMo} offen {OPT.kmflag}"); V.add(("vm",0))
        else:
            A(f"s_cmp_eq_u32 s{sStep}, {self.nsteps-1}\ns_cbranch_scc1 {last}")
            self.stamp("Smf")
            A(f"v_cvt_pk_bf16_f32 v{aV}, v{aV}, v{aV+1}\nv_cvt_pk_bf16_f32 v{aV+1}, v{aV+2}, v{aV+3}")
            A(f"buffer_store_dwordx2 {vr(aV,2)}, v{vVm}, {WSR}, s{sVMo} offen {OPT.kmflag}"); V.add(("vm",0))
        prep=f"""
s_add_u32 s{sTagT}, s{sStep}, 1
s_and_b32 s{sTmp}, s{sTagT}, 1
s_bfe_u32 s{sTmp+1}, s{sTagT}, 0x10001
s_lshl_b32 s{sTmp+1}, s{sTmp+1}, 16
s_or_b32 s{sTmp+2}, s{sTmp}, s{sTmp+1}
s_and_b32 s{sTmp}, s{sTagT}, 3
s_lshl_b32 s{sTmp}, s{sTmp}, 14
s_add_u32 s{sH2pub}, s{sTmp}, s{sH2}
s_sub_u32 s{sH2gat}, s{sH2pub}, {L_MEMT}
s_add_u32 s{sTmp}, s{sStep}, 3
s_and_b32 s{sTmp}, s{sTmp}, 3
s_lshl_b32 s{sTmp}, s{sTmp}, 14
s_add_u32 s{sH2rst}, s{sTmp}, s{sH2}
"""
        if w<3:
            A(f"ds_write_b128 v{vL16M}, {vr(vT,4)} offset:{SOFF+w*1024}"); L.add(("st",0))
            A(prep)
            if w==0:
                A(f"s_mov_b64 exec, s[{sMaskLo}:{sMaskLo+1}]")
                for s in range(4):
                    A(f"buffer_store_dwordx4 {vr(vK+4*s,4)}, v{vKm}, {WSR}, s{sKMo} offen offset:{s*64} {OPT.kmflag}")
                A("s_mov_b64 exec, -1"); V.add(("km",0),4)
            L.drain()
        else:
            A(prep)
        A("s_barrier")
        self.stamp("B7")
        if w==3 and OPT.warm:
            for i,kk in enumerate(OPT.warmk):
                if kk==21: self.warm1(i)
        S=vA
        for t in (1,2,0):
            A(f"ds_read_b128 {vr(S+4*t,4)}, v{vL16M} offset:{SOFF+t*1024}"); L.add(("s",t))
        A(f"v_mov_b32 v{vTag}, s{sTmp+2}")
        prs=pairs(w)
        seq=[(j,P,s) for j,P in enumerate(prs) for s in range(4)]
        n=len(seq)
        m,mt=vT,vT+1
        L.wait(("s",2))
        A(f"v_max3_f32 v{m}, v{S+4}, v{S+5}, v{S+6}\nv_max3_f32 v{mt}, v{S+7}, v{S+8}, v{S+9}\nv_max3_f32 v{m}, v{m}, v{S+10}, v{S+11}")
        L.wait(("s",0))
        self.stamp("Srd")
        A(f"""
v_max3_f32 v{mt}, v{mt}, v{S}, v{S+1}
v_max3_f32 v{m}, v{m}, v{S+2}, v{S+3}
v_max_f32 v{m}, v{m}, v{mt}
v_mov_b32 v{mt}, v{m}
v_permlane32_swap_b32 v{m}, v{mt}
v_max_f32 v{m}, v{m}, v{mt}
v_mov_b32 v{mt}, v{m}
v_permlane16_swap_b32 v{m}, v{mt}
v_max_f32 v{m}, v{m}, v{mt}
v_mul_f32 v{mt}, s{sC}, v{m}
""")
        P=vK
        for i in range(4,12): A(f"v_fma_f32 v{S+i}, v{S+i}, s{sC}, -v{mt}")
        for i in range(4,12):
            A(f"v_exp_f32 v{S+i}, v{S+i}")
            if i in (6,8,10): A(f"v_cvt_pk_bf16_f32 v{P+(i-6)//2}, v{S+i-2}, v{S+i-1}")
        for i in range(4): A(f"v_fma_f32 v{S+i}, v{S+i}, s{sC}, -v{mt}")
        A(f"v_cvt_pk_bf16_f32 v{P+3}, v{S+10}, v{S+11}")
        self.stamp("exp")
        V.wait(("vx",0))
        A(f"v_mfma_f32_16x16x32_bf16 {vr(aQ,4)}, {vr(vV,4)}, {vr(P,4)}, 0")
        A(f"v_mfma_f32_16x16x32_bf16 {vr(aK,4)}, {vr(vV+4,4)}, {vr(P,4)}, 0")
        for i in range(4): A(f"v_exp_f32 v{S+i}, v{S+i}")
        l,lt=vT+2,vT+3
        A(f"""
v_add_f32 v{l}, v{S+4}, v{S+5}
v_add_f32 v{lt}, v{S+6}, v{S+7}
v_cvt_pk_bf16_f32 v{P+4}, v{S}, v{S+1}
v_cvt_pk_bf16_f32 v{P+5}, v{S+2}, v{S+3}
v_cndmask_b32 v{P+6}, 0, v{P+4}, s[{sMaskG}:{sMaskG+1}]
v_cndmask_b32 v{P+7}, 0, v{P+5}, s[{sMaskG}:{sMaskG+1}]
v_cndmask_b32 v{P+8}, v{P+4}, 0, s[{sMaskG}:{sMaskG+1}]
v_cndmask_b32 v{P+9}, v{P+5}, 0, s[{sMaskG}:{sMaskG+1}]
v_mfma_f32_16x16x16_bf16 {vr(aQ,4)}, {vr(aV,2)}, {vr(P+6,2)}, {vr(aQ,4)}
v_mfma_f32_16x16x16_bf16 {vr(aK,4)}, {vr(aV,2)}, {vr(P+8,2)}, {vr(aK,4)}
v_add_f32 v{l}, v{l}, v{S+8}
v_add_f32 v{lt}, v{lt}, v{S+9}
v_add_f32 v{l}, v{l}, v{S+10}
v_add_f32 v{lt}, v{lt}, v{S+11}
v_add_f32 v{mt}, v{S}, v{S+1}
v_add_f32 v{m}, v{S+2}, v{S+3}
v_add_f32 v{l}, v{l}, v{lt}
v_add_f32 v{mt}, v{mt}, v{m}
v_fma_f32 v{l}, v{mt}, 0.5, v{l}
v_mov_b32 v{lt}, v{l}
v_permlane32_swap_b32 v{l}, v{lt}
v_add_f32 v{l}, v{l}, v{lt}
v_mov_b32 v{lt}, v{l}
v_permlane16_swap_b32 v{l}, v{lt}
v_add_f32 v{l}, v{l}, v{lt}
v_rcp_f32 v{l}, v{l}
""")
        Bst=[vA,vA+8,vK]
        def wo_rd(i,half=None):
            j,Pp,s=seq[i]
            for hf in ((0,1) if half is None else (half,)):
                b,off=wo_addr(Pp,s,hf)
                A(f"ds_read_b128 {vr(Bst[i%3]+4*hf,4)}, v{b} offset:{off}"); L.add(("w",i))
        if n>0: wo_rd(0); wo_rd(1)
        for r in range(0,4,2):
            A(f"v_pk_mul_f32 {vr(aQ+r,2)}, {vr(aQ+r,2)}, {vr(l,2)} op_sel_hi:[1,0]")
            A(f"v_pk_mul_f32 {vr(aK+r,2)}, {vr(aK+r,2)}, {vr(l,2)} op_sel_hi:[1,0]")
        oA=[vV,vV+4,vK+8,vK+12]
        A(f"""
v_cvt_pk_bf16_f32 v{vT+4}, v{aQ}, v{aQ+1}
v_cvt_pk_bf16_f32 v{vT+5}, v{aQ+2}, v{aQ+3}
v_cvt_pk_bf16_f32 v{vT+6}, v{aK}, v{aK+1}
v_cvt_pk_bf16_f32 v{vT+7}, v{aK+2}, v{aK+3}
ds_write_b128 v{vL16M}, {vr(vT+4,4)} offset:{QOFF+w*1024}
""")
        L.add(("ow",0))
        self.stamp("owr")
        for r in range(4): A(f"v_mov_b32 v{aQ+r}, 0")
        for r in range(4): A(f"v_mov_b32 v{aK+r}, 0")
        L.drain()
        A("s_barrier")
        self.stamp("B8")
        if OPT.steplog and w==1: A("s_memrealtime s[92:93]")
        if n>0:
            for s in range(4):
                A(f"ds_read_b128 {vr(oA[s],4)}, v{vL16M} offset:{QOFF+s*1024}"); L.add(("o",s))
            wo_rd(2)
        def epi_parts(j):
            acc=aQ if j%2==0 else aK
            e=vT+2*(j%2)
            def st():
                A(f"s_add_u32 s{sTmp+3}, s{sH1}, {prs[j]*16384}")
                A(f"buffer_store_dwordx2 {vr(e,2)}, v{vH1st}, {WSR}, s{sTmp+3} offen"); V.add(("h1",j))
            return [lambda: A(f"v_cvt_pk_bf16_f32 v{e}, v{acc}, v{acc+1}"),
                    lambda: A(f"v_cvt_pk_bf16_f32 v{e+1}, v{acc+2}, v{acc+3}"),
                    lambda: A(f"v_and_or_b32 v{e}, v{e}, s{sMaskF}, v{vTag}"), st]
        for i,(j,Pp,s) in enumerate(seq):
            acc=aQ if j%2==0 else aK
            if j==0: L.wait(("o",s))
            L.wait(("w",i))
            A(f"v_smfmac_f32_16x16x64_bf16 {vr(acc,4)}, {vr(oA[s],4)}, {vr(Bst[i%3],8)}, v{vIdx}")
            if i+3<n: wo_rd(i+3)
            if j>0 and s==0:
                for f in epi_parts(j-1)[:2]: f()
            if j>0 and s==1:
                for f in epi_parts(j-1)[2:]: f()
            if s>=2 and j>=1 and j+1<len(prs):
                nacc=aQ if (j+1)%2==0 else aK
                for k_ in (0,1) if s==2 else (2,3): A(f"v_mov_b32 v{nacc+k_}, 0")
        early = self.rr is not None and w>=2 and OPT.red_early and not OPT.commwave
        if early:
            self.delay(OPT.d_red[self.rr])
            self.red_iss(vK)
        if n>0:
            for f in epi_parts(len(prs)-1): f()
        self.stamp("opend")
        if OPT.steplog and w==1: A("s_memrealtime s[98:99]")
        if self.rr is not None:
            lab=A.uid("L_nt")
            if w==1: A(f"s_cmp_eq_u32 s{sHasTask}, 1\ns_cbranch_scc0 {lab}")
            if early: self.red_poll(True,1)
            else:
                self.delay(OPT.d_red[self.rr])
                self.red_poll()
            if OPT.commwave and w==2:
                self.delay(OPT.d_red[self.rr+2])
                self.red_poll(second=True)
            A("s_waitcnt vmcnt(2)")
            A(f"{lab}:")
        self.stamp("redend")
        A(f"L_pre_{sid}:")
        self.zero_acc()
        A(f"""
s_add_u32 s{sStep}, s{sStep}, 1
s_add_u32 s{sKXo}, s{sKXo}, {0 if OPT.fixkv else KVS()}
s_add_u32 s{sVTo}, s{sVTo}, {0 if OPT.fixkv else KVS()}
s_add_u32 s{sKMo}, s{sKMo}, {0 if OPT.fixkm else KMS()}
s_add_u32 s{sVMo}, s{sVMo}, {0 if OPT.fixkm else KMS()}
s_add_u32 s{sTmp}, s{sStep}, {OPT.warmdist}
s_min_u32 s{sTmp}, s{sTmp}, 63
s_lshl_b32 s{sTmp}, s{sTmp}, {13 if OPT.hs else 18}
s_lshl_b32 s{sTmp+1}, s{sH}, {19 if OPT.hs else 13}
s_add_u32 s{sTmp}, s{sTmp}, s{sTmp+1}
s_add_u32 s{sWarmK}, s{sTmp}, {WS_KX-L_MEMT*4}
s_add_u32 s{sWarmV}, s{sTmp}, {WS_VT-L_MEMT*4}
""")
        if OPT.gmode=="joint":
            if w==0:
                self.delay(OPT.d_gat)
                self.gat_poll01()
        else:
            if w==0:
                self.delay(OPT.d_gat)
                self.gat_poll(0)
            if OPT.g1wave=="mix":
                if w==1:
                    l=A.uid("L_g1s")
                    A(f"s_cmp_eq_u32 s{sHasTask}, 1\ns_cbranch_scc1 {l}")
                    self.delay(OPT.d_g1m); self.gat_poll(1)
                    A(f"{l}:")
                if w==2:
                    l=A.uid("L_g1s")
                    A(f"s_and_b32 s{sTmp}, s{sH}, 3\ns_cmp_eq_u32 s{sTmp}, 0\ns_cbranch_scc0 {l}")
                    self.delay(OPT.d_g1[self.rr%2]); self.gat_poll(1)
                    A(f"{l}:")
            elif w==OPT.g1wave:
                self.delay(OPT.d_g1[self.rr%2] if self.rr is not None else OPT.d_g1[0])
                self.gat_poll(1)
        if w==3 and OPT.ki[0]<0:
            self.delay(OPT.d_g2[(self.rr or 0)%2])
            self.gat_issue(2,vK)
        self.stamp("gat0")
        A(f"s_barrier\ns_branch L_step_{sid}\n{last}:")
        A(f"v_cvt_pk_bf16_f32 v{aV}, v{aV}, v{aV+1}\nv_cvt_pk_bf16_f32 v{aV+1}, v{aV+2}, v{aV+3}")
        A(f"buffer_store_dwordx2 {vr(aV,2)}, v{vVm}, {WSR}, s{sVMo} offen {OPT.kmflag}")
        if w==0:
            A(f"ds_read_b64_tr_b16 {vr(vK+12,2)}, v{vTR} offset:{KOFF+3*512}\nds_read_b64_tr_b16 {vr(vK+14,2)}, v{vTR} offset:{KOFF+3*512+64}")
            A("s_waitcnt lgkmcnt(0)")
            A(f"s_mov_b64 exec, s[{sMaskLo}:{sMaskLo+1}]")
            for s in range(4):
                A(f"buffer_store_dwordx4 {vr(vK+4*s,4)}, v{vKm}, {WSR}, s{sKMo} offen offset:{s*64} {OPT.kmflag}")
            A("s_mov_b64 exec, -1")
        if OPT.fused:
            A("s_waitcnt vmcnt(0)\ns_barrier")
            if w==1:
                A(f"v_mov_b32 v{vT+5}, 64\ns_lshl_b32 s{sTmp+1}, s{sH}, 7\ns_add_u32 s{sTmp+1}, s{sTmp+1}, {cnt(C_PROG)}\ns_mov_b64 exec, 1\nbuffer_store_dword v{vT+5}, off, {WSR}, s{sTmp+1} sc1\ns_mov_b64 exec, -1")
        A("s_branch L_finish")
        for f in self.ool: f()

def emit_chain(A, nsteps=64, stamps=False, standalone=True, stamp_step=20):
    emit_setup(A, stamps)
    A(f"s_mov_b32 s{sStep}, -1")
    A(f"s_mov_b32 s{sKXo}, {WS_KX-(0 if OPT.fixkv else KVS())}\ns_mov_b32 s{sVTo}, {WS_VT-(0 if OPT.fixkv else KVS())}")
    A(f"s_lshl_b32 s{sTmp}, s{sH}, {17 if OPT.hs else 11}\ns_add_u32 s{sKMo}, s{sTmp}, {WS_KM-(0 if OPT.fixkm else KMS())}\ns_add_u32 s{sVMo}, s{sTmp}, {WS_VM-(0 if OPT.fixkm else KMS())}")
    A(f"s_sub_u32 s{sH2gat}, s{sH2}, {L_MEMT}")
    A(f"s_lshl_b32 s{sTmp+1}, s{sH}, {19 if OPT.hs else 13}\ns_add_u32 s{sTmp}, s{sTmp+1}, {2*KVS()}\ns_add_u32 s{sWarmK}, s{sTmp}, {WS_KX-L_MEMT*4}\ns_add_u32 s{sWarmV}, s{sTmp}, {WS_VT-L_MEMT*4}")
    if stamps: A(f"s_memtime s[94:95]\ns_waitcnt lgkmcnt(0)")
    variants=[("w0",0,None),("w1",1,4),("w2e",2,0),("w2o",2,1),("w3e",3,2),("w3o",3,3)]
    if OPT.commwave: variants=[("w0",0,None),("w1",1,4),("w2e",2,0),("w2o",2,1),("w3e",3,None)]
    A(f"""
s_cmp_eq_u32 s{sW}, 0
s_cbranch_scc1 L_pre_w0
s_cmp_eq_u32 s{sW}, 1
s_cbranch_scc1 L_pre_w1
s_and_b32 s{sTmp}, s{sH}, 1
s_lshl_b32 s{sTmp+1}, s{sW}, 1
s_add_u32 s{sTmp}, s{sTmp}, s{sTmp+1}
s_cmp_eq_u32 s{sTmp}, 4
s_cbranch_scc1 L_pre_w2e
s_cmp_eq_u32 s{sTmp}, 5
s_cbranch_scc1 L_pre_w2o
s_cmp_eq_u32 s{sTmp}, 6
s_cbranch_scc1 L_pre_w3e
s_branch {"L_pre_w3e" if OPT.commwave else "L_pre_w3o"}
""")
    A("L_code_begin:")
    nst=0
    for sid,w,rr in variants:
        st=Stream(A,w,rr,nsteps,stamps,stamp_step,sid); st.body(); nst=st.nst
    A("L_finish:")
    if stamps:
        A(f"s_memtime s[96:97]\ns_waitcnt vmcnt(0) lgkmcnt(0)\ns_sub_u32 s96, s96, s94")
        A(f"s_lshl_b32 s{sTmp}, s{sH}, 2\ns_add_u32 s{sTmp}, s{sTmp}, s{sW}\ns_lshl_b32 s{sTmp}, s{sTmp}, 7\ns_add_u32 s{sTmp}, s{sTmp}, {WS_STAMP}")
        A(f"v_mov_b32 v{vK}, s96\nv_mov_b32 v{vK+1}, s{sRetry}\nv_mov_b32 v{vK+2}, s{sRetry2}")
        A(f"s_sub_u32 s90, s90, s88\ns_sub_u32 s92, s92, s88\ns_sub_u32 s94, s94, s88\nv_mov_b32 v{vK+3}, s90\nv_mov_b32 v{vK+4}, s92\nv_mov_b32 v{vK+5}, s94\nv_mov_b32 v{vK+6}, 0\nv_mov_b32 v{vK+7}, 0")
        for i in range(16):
            A(f"v_mov_b32 v{vK+8+i}, s{sT0+2*i}")
        A(f"v_mov_b32 v{vT}, 0\ns_mov_b64 exec, 1")
        for j in range(6):
            A(f"buffer_store_dwordx4 {vr(vK+4*j,4)}, v{vT}, {WSR}, s{sTmp} offen offset:{16*j}")
        A("s_mov_b64 exec, -1")
        global STAMP_NAMES
        STAMP_NAMES=st.names
        print("stamps:",st.names)
    A("L_abort:\ns_waitcnt vmcnt(0)")
OPT.red_lag=1
```

```python
from asmlib import *
from layout import *
import struct, math
def fbits(x): return struct.unpack("<I",struct.pack("<f",x))[0]
def vr(a,n): return f"v[{a}:{a+n-1}]" if n>1 else f"v{a}"

sRank=10; sW=11; sWS=12; sXS=16; sWSRC=20
sT=24
sXo=36; sWo=37; sRd=38; sWr=39; sIt=40; sOut=41; sTask=42; sA=43; sB=44; sC=45; sD=46
sKarg=0
ST="sc1"
sP=60

def emit_worker_setup(A):
    A(f"""
s_load_dwordx2 s[{sWS}:{sWS+1}], s[0:1], {KA_WS}
v_lshrrev_b32 v1, 6, v0
v_and_b32 v0, 63, v0
v_readfirstlane_b32 s{sW}, v1
s_mov_b32 s{sWS+2}, {WS_SIZE}
s_mov_b32 s{sWS+3}, 0x20000
s_mov_b32 s{sXS+3}, 0x20000
s_mov_b32 s{sWSRC+3}, 0x20000
s_waitcnt lgkmcnt(0)
""")

def srd_from_karg(A, s, off, nbytes):
    A(f"s_load_dwordx2 s[{s}:{s+1}], s[0:1], {off}\ns_mov_b32 s{s+2}, {nbytes}\ns_waitcnt lgkmcnt(0)")
def srd_from_ws(A, s, off, nbytes):
    A(f"s_add_u32 s{s}, s{sWS}, {off}\ns_addc_u32 s{s+1}, s{sWS+1}, 0\ns_mov_b32 s{s+2}, {nbytes}")

def wave_allsum(A, v, t):
    for r in (8,4,2,1):
        A(f"v_add_f32_dpp v{v}, v{v}, v{v} row_ror:{r} row_mask:0xf bank_mask:0xf")
    A(f"v_mov_b32 v{t}, v{v}\nv_permlane16_swap_b32 v{v}, v{t}\nv_add_f32 v{v}, v{v}, v{t}")
    A(f"v_mov_b32 v{t}, v{v}\nv_permlane32_swap_b32 v{v}, v{t}\nv_add_f32 v{v}, v{v}, v{t}")
def rne_bf16(A, v):
    A(f"v_cvt_pk_bf16_f32 v{v}, v{v}, v{v}\nv_and_b32 v{v}, 0xffff0000, v{v}")
def ln_core(A, X, tmp, vMask):
    s,t,m,d=tmp,tmp+1,tmp+2,tmp+3
    A(f"v_add_f32 v{s}, v{X}, v{X+1}")
    for i in range(2,10): A(f"v_add_f32 v{s}, v{s}, v{X+i}")
    wave_allsum(A,s,t)
    A(f"v_mul_f32 v{s}, {hex(fbits(1.0/576))}, v{s}")
    A(f"v_sub_f32 v{d}, v{X}, v{s}\nv_mul_f32 v{m}, v{d}, v{d}")
    for i in range(1,8): A(f"v_sub_f32 v{d}, v{X+i}, v{s}\nv_fmac_f32 v{m}, v{d}, v{d}")
    for i in (8,9): A(f"v_sub_f32 v{d}, v{X+i}, v{s}\nv_mul_f32 v{d}, v{d}, v{vMask}\nv_fmac_f32 v{m}, v{d}, v{d}")
    wave_allsum(A,m,t)
    A(f"v_mul_f32 v{m}, {hex(fbits(1.0/576))}, v{m}")
    rne_bf16(A,m); rne_bf16(A,s)
    A(f"v_add_f32 v{m}, {hex(fbits(1e-5))}, v{m}"); rne_bf16(A,m)
    A(f"v_sqrt_f32 v{m}, v{m}"); rne_bf16(A,m)
    A(f"v_rcp_f32 v{m}, v{m}")
    for i in range(0,10,2):
        A(f"v_sub_f32 v{X+i}, v{X+i}, v{s}\nv_sub_f32 v{X+i+1}, v{X+i+1}, v{s}")
        A(f"v_cvt_pk_bf16_f32 v{d}, v{X+i}, v{X+i+1}")
        A(f"v_lshlrev_b32 v{X+i}, 16, v{d}\nv_and_b32 v{X+i+1}, 0xffff0000, v{d}")
        A(f"v_mul_f32 v{X+i}, v{X+i}, v{m}\nv_mul_f32 v{X+i+1}, v{X+i+1}, v{m}")
        A(f"v_cvt_pk_bf16_f32 v{d}, v{X+i}, v{X+i+1}")
        A(f"v_mov_b32 v{tmp+4+i//2}, v{d}")
        A(f"v_lshlrev_b32 v{X+i}, 16, v{d}\nv_and_b32 v{X+i+1}, 0xffff0000, v{d}")
    A(f"v_mul_f32 v{X+8}, v{X+8}, v{vMask}\nv_mul_f32 v{X+9}, v{X+9}, v{vMask}")

def emit_ln(A, NW, fused=False, after_loads=None):
    nrow=(2048+NW*4-1)//(NW*4)
    srd_from_karg(A,sXS,KA_X,2048*1152)
    vO,vO2,vMask=2,3,4
    L=8
    A(f"""
v_lshlrev_b32 v{vO}, 4, v0
v_lshlrev_b32 v{vO2}, 2, v0
v_add_u32 v{vO2}, 1024, v{vO2}
v_mov_b32 v5, 0x7ff00000
v_cmp_gt_u32 vcc, 32, v0
v_cndmask_b32 v{vO2}, v5, v{vO2}, vcc
v_cndmask_b32 v{vMask}, 0, 1.0, vcc
s_lshl_b32 s{sA}, s{sRank}, 2
s_add_u32 s{sA}, s{sA}, s{sW}
""")
    for k in range(nrow):
        A(f"s_add_u32 s{sT}, s{sA}, {k*NW*4}\ns_mul_i32 s{sT}, s{sT}, 1152")
        A(f"buffer_load_dwordx4 {vr(L+8*k,4)}, v{vO}, s[{sXS}:{sXS+3}], s{sT} offen")
        A(f"buffer_load_dword v{L+8*k+4}, v{vO2}, s[{sXS}:{sXS+3}], s{sT} offen")
    if after_loads is not None: after_loads(A)
    X=40; tmp=52
    if fused:
        A(f"s_load_dwordx2 s[{sP+4}:{sP+5}], s[0:1], {KA_DBG}\ns_waitcnt lgkmcnt(0)\nv_mov_b32 v6, {DBG_INIT}")
    A(f"s_waitcnt vmcnt({3 if after_loads is not None else 0})")
    def signal_row(k):
        lab=A.uid("L_lns")
        A(f"s_add_u32 s{sT}, s{sA}, {k*NW*4}\ns_cmp_ge_u32 s{sT}, 2048\ns_cbranch_scc1 {lab}")
        A(f"s_lshr_b32 s{sT}, s{sT}, 7\ns_lshl_b32 s{sT}, s{sT}, 7\ns_add_u32 s{sT}, s{sT}, {cnt(C_LN)}")
        wave_signal(A,f"s{sT}")
        A(f"{lab}:")
    for k in range(nrow):
        lab=A.uid("L_ln")
        A(f"s_add_u32 s{sT}, s{sA}, {k*NW*4}\ns_cmp_ge_u32 s{sT}, 2048\ns_cbranch_scc1 {lab}")
        A(f"s_mul_i32 s{sT}, s{sT}, 1152")
        for i in range(5):
            A(f"v_lshlrev_b32 v{X+2*i}, 16, v{L+8*k+i}\nv_and_b32 v{X+2*i+1}, 0xffff0000, v{L+8*k+i}")
        for which,off in ((0,WS_XN),(1,WS_HH)):
            ln_core(A,X,tmp,vMask)
            A(f"s_add_u32 s{sT+1}, s{sT}, {off}")
            o=64+16*k+8*which
            for i in range(5): A(f"v_mov_b32 v{o+i}, v{tmp+4+i}")
            A(f"buffer_store_dwordx4 {vr(o,4)}, v{vO}, s[{sWS}:{sWS+3}], s{sT+1} offen {ST}")
            A(f"buffer_store_dword v{o+4}, v{vO2}, s[{sWS}:{sWS+3}], s{sT+1} offen {ST}")
        A(f"{lab}:")
        if fused and k==0:
            lp=A.uid("L_ini"); ok=A.uid("L_iok")
            A(f"s_mov_b32 s{sP+1}, 0\n{lp}:")
            A(f"global_load_dword v1, v6, s[{sP+4}:{sP+5}] sc1\ns_waitcnt vmcnt(0)\nv_readfirstlane_b32 s{sP+2}, v1")
            A(f"s_cmp_eq_u32 s{sP+2}, 1\ns_cbranch_scc1 {ok}\ns_add_u32 s{sP+1}, s{sP+1}, 1\ns_cmp_gt_u32 s{sP+1}, 4000000\ns_cbranch_scc1 L_abortw\ns_sleep 2\ns_branch {lp}\n{ok}:")
            signal_row(0)
    A("s_waitcnt vmcnt(0)")
    if fused:
        for k in range(1,nrow): signal_row(k)

class Gemm:
    pass

class _Rec:
    def __init__(s): s.lines=[]
    def __call__(s,t):
        for l in t.split("\n"):
            l=l.strip()
            if l: s.lines.append(l)
def dma_pieces(G):
    R=_Rec(); G.dma(R,"x"); G.dma(R,"w")
    pieces=[]; cur=[]
    for l in R.lines:
        cur.append(l)
        if l.startswith("buffer_load"): pieces.append(cur); cur=[]
    if cur: pieces[-1]=pieces[-1]+cur
    return pieces

def gemm_mainloop(A, G, tag):
    SB=G.XB+G.WB
    def mf_list(buf,first):
        out=[]
        for wt in range(G.nWt):
            for xt in range(G.nXt):
                acc=vr(G.acc+16*(wt*G.nXt+xt),16)
                fx=vr(G.fX+buf*4*G.nXt+4*xt,4); fw=vr(G.fW+buf*4*G.nWt+4*wt,4)
                a,b=(fw,fx) if G.orient=="WX" else (fx,fw)
                out.append(f"v_mfma_f32_32x32x16_bf16 {acc}, {a}, {b}, {'0' if first else acc}")
        return out
    def adv(s):
        A(f"s_add_u32 s{s}, s{s}, {SB}\ns_cmp_eq_u32 s{s}, {3*SB}\ns_cselect_b32 s{s}, 0, s{s}")
    A("s_barrier")
    A(f"s_mov_b32 s{sWr}, 0\ns_mov_b32 s{sRd}, 0")
    G.dma(A,"w")
    if getattr(G,"dep",None) is not None: G.dep(A)
    G.dma(A,"x"); adv(sWr)
    for i in range(2):
        G.dma(A,"x"); G.dma(A,"w"); adv(sWr)
    nextra=0
    if getattr(G,"warm",None) is not None: nextra=G.warm(A)
    A(f"s_waitcnt vmcnt({2*G.D+nextra})\ns_barrier")
    G.setaddr(A)
    G.reads(A,0,0)
    def body(first,dma,trans):
        pcs=dma_pieces(G) if dma else []
        per=(len(pcs)+3)//4
        for ks in range(4):
            A("s_waitcnt lgkmcnt(0)")
            if ks<3: G.reads(A,ks+1,(ks+1)%2)
            elif trans is not None:
                A(f"s_waitcnt vmcnt({trans})\ns_barrier")
                adv(sRd); G.setaddr(A); G.reads(A,0,0)
            m=mf_list(ks%2, first and ks==0)
            mine=pcs[ks*per:(ks+1)*per] if ks<3 else pcs[3*per:]
            for n,x in enumerate(m):
                A(x)
                if ks<3 and n<len(mine):
                    for l in mine[n]: A(l)
        if dma: adv(sWr)
    def body2(first,dma,trans):
        pcs=dma_pieces(G) if dma else []
        per=(len(pcs)+2)//3
        for ks in range(4):
            A("s_waitcnt lgkmcnt(0)")
            if ks<3: G.reads(A,ks+1,(ks+1)%2)
            elif trans is not None:
                A(f"s_waitcnt vmcnt({trans})\ns_barrier")
                adv(sRd); G.setaddr(A); G.reads(A,0,0)
            m=mf_list(ks%2, first and ks==0)
            mine=pcs[ks*per:(ks+1)*per] if ks<3 else []
            for n,x in enumerate(m):
                A(x)
                if n<len(mine):
                    for l in mine[n]: A(l)
            assert len(mine)<=len(m)
        if dma: adv(sWr)
    body2(True,False,G.D+nextra)
    A(f"s_mov_b32 s{sIt}, 1")
    lp=A.uid("L_gl")
    A(f"{lp}:")
    body2(False,True,G.D)
    A(f"s_add_u32 s{sIt}, s{sIt}, 1\ns_cmp_lt_u32 s{sIt}, {G.nst-2}\ns_cbranch_scc1 {lp}")
    body2(False,False,0)
    body2(False,False,None)
    A("s_nop 15")

def lane_consts(A, t):
    A(f"""
v_bfe_u32 v{t}, v0, 4, 1
v_bfe_u32 v{t+1}, v0, 5, 1
v_bfe_u32 v{t+2}, v0, 2, 2
v_and_b32 v{t+3}, 3, v0
""")

def w_strided_addr(A, dst, n, rowbytes, unit0_sgpr, xorshift_mode, t):
    lane_consts(A,t)
    A(f"""
v_lshl_add_u32 v{t+4}, v{t+1}, 3, v{t+2}
v_mul_u32_u24 v{t+4}, {rowbytes}, v{t+4}
v_and_b32 v{t+5}, 1, v{t+3}
v_lshl_add_u32 v{t+4}, v{t+5}, 3, v{t+4}
v_lshrrev_b32 v{t+5}, 1, v{t+3}
v_lshl_add_u32 v{t+5}, v{t}, 1, v{t+5}
v_add_u32 v{t+5}, s{unit0_sgpr}, v{t+5}
""")
    if xorshift_mode=="r2": A(f"v_lshlrev_b32 v{t+6}, 2, v{t+2}")
    else: A(f"v_lshrrev_b32 v{t+6}, 1, v{t+2}\nv_lshlrev_b32 v{t+6}, 2, v{t+6}")
    for i in range(n):
        A(f"v_add_u32 v{t+7}, {4*i}, v{t+5}\nv_xor_b32 v{t+7}, v{t+7}, v{t+6}\nv_lshl_add_u32 v{dst+i}, v{t+7}, 4, v{t+4}")

def x_contig_addr(A, dst, row0_sgpr, t):
    A(f"""
v_and_b32 v{t}, 31, v0
v_add_u32 v{t}, s{row0_sgpr}, v{t}
v_lshrrev_b32 v{t+1}, 5, v0
v_bfe_u32 v{t+2}, v{t}, 1, 3
v_lshlrev_b32 v{t}, 7, v{t}
""")
    for ks in range(4):
        A(f"v_add_u32 v{t+3}, {2*ks}, v{t+1}\nv_xor_b32 v{t+3}, v{t+3}, v{t+2}\nv_lshl_add_u32 v{dst+ks}, v{t+3}, 4, v{t}")

gDX=2
gDW=5
gAXc=8
gAWc=12
gAX=16; gAW=20
gT=24
gFX=32; gFW=64
gACC=128

def setaddr_generic(A,nX,nW,XB):
    for i in range(nX): A(f"v_add_u32 v{gAX+i}, s{sRd}, v{gAXc+i}")
    A(f"s_add_u32 s{sT+1}, s{sRd}, {XB}")
    for i in range(nW): A(f"v_add_u32 v{gAW+i}, s{sT+1}, v{gAWc+i}")

def pack_swap(A, acc, j, d):
    a=acc+8*j
    A(f"""
v_cvt_pk_bf16_f32 v{d}, v{a}, v{a+1}
v_cvt_pk_bf16_f32 v{d+1}, v{a+2}, v{a+3}
v_cvt_pk_bf16_f32 v{d+2}, v{a+4}, v{a+5}
v_cvt_pk_bf16_f32 v{d+3}, v{a+6}, v{a+7}
v_permlane32_swap_b32 v{d}, v{d+2}
v_permlane32_swap_b32 v{d+1}, v{d+3}
""")

def emit_g1(A,dep=None,warmx=False):
    G=Gemm(); G.nXt=2; G.nWt=4; G.XB=16384; G.WB=32768; G.nst=9; G.D=12; G.DX=4; G.dep=dep; G.fX=gFX; G.fW=gFW; G.acc=gACC
    t=gT
    srd_from_ws(A,sXS,WS_XN,2048*1152)
    A(f"s_lshl_b32 s{sT}, s{sA}, 3\ns_add_u32 s{sT}, s{sT}, {KA_WQ}\ns_load_dwordx2 s[{sWSRC}:{sWSRC+1}], s[0:1], s{sT}\ns_mov_b32 s{sWSRC+2}, {576*8192}")
    A(f"""
v_lshrrev_b32 v{t}, 3, v0
v_mul_u32_u24 v{t}, 1152, v{t}
v_and_b32 v{t+1}, 7, v0
v_lshrrev_b32 v{t+2}, 4, v0
v_xor_b32 v{t+3}, v{t+1}, v{t+2}
v_lshl_add_u32 v{gDX}, v{t+3}, 4, v{t}
v_xor_b32 v{t+3}, 4, v{t+3}
v_lshl_add_u32 v{gDX+1}, v{t+3}, 4, v{t}
v_lshrrev_b32 v{t}, 5, v0
v_lshlrev_b32 v{t+1}, 2, v{t}
v_lshlrev_b32 v{t}, 13, v{t}
v_and_b32 v{t+2}, 31, v0
v_xor_b32 v{t+3}, v{t+2}, v{t+1}
v_lshl_add_u32 v{gDW}, v{t+3}, 4, v{t}
v_xor_b32 v{t+3}, 8, v{t+3}
v_lshl_add_u32 v{gDW+1}, v{t+3}, 4, v{t}
""")
    A(f"""
s_lshl_b32 s{sT}, s{sB}, 7
s_lshl_b32 s{sT+1}, s{sW}, 5
s_add_u32 s{sT}, s{sT}, s{sT+1}
s_mul_i32 s{sXo}, s{sT}, 1152
s_lshl_b32 s{sWo}, s{sW}, 17
s_lshl_b32 s{sT}, s{sC}, 9
s_add_u32 s{sWo}, s{sWo}, s{sT}
""")
    A(f"s_and_b32 s{sT}, s{sW}, 1\ns_lshl_b32 s{sT}, s{sT}, 6")
    x_contig_addr(A,gAXc,sT,t)
    A(f"s_lshr_b32 s{sT}, s{sW}, 1\ns_lshl_b32 s{sT}, s{sT}, 4")
    w_strided_addr(A,gAWc,4,512,sT,"r2",t)
    def dma(A,part):
        if part=='x':
            for j in range(4):
                A(f"s_lshl_b32 s{sT+2}, s{sW}, 12\ns_add_u32 s{sT+2}, s{sT+2}, s{sWr}\ns_add_u32 m0, s{sT+2}, {j*1024}")
                A(f"s_add_u32 s{sT+3}, s{sXo}, {j*8*1152}")
                A(f"buffer_load_dwordx4 v{gDX+(j%2)}, s[{sXS}:{sXS+3}], s{sT+3} offen sc1 lds")
            A(f"s_add_u32 s{sXo}, s{sXo}, 128")
        else:
            for j in range(8):
                A(f"s_lshl_b32 s{sT+2}, s{sW}, 13\ns_add_u32 s{sT+2}, s{sT+2}, s{sWr}\ns_add_u32 m0, s{sT+2}, {16384+j*1024}")
                A(f"s_add_u32 s{sT+3}, s{sWo}, {j*2*8192}")
                A(f"buffer_load_dwordx4 v{gDW+(j%2)}, s[{sWSRC}:{sWSRC+3}], s{sT+3} offen lds")
            A(f"s_add_u32 s{sWo}, s{sWo}, {64*8192}")
    G.dma=dma
    def warm(A):
        A(f"""
s_lshl_b32 s{sT+4}, s{sW}, 6
v_add_u32 v{t+6}, s{sT+4}, v0
s_lshl_b32 s{sT+4}, s{sB}, 7
s_mul_i32 s{sT+4}, s{sT+4}, 1152
s_add_u32 s{sT+4}, s{sT+4}, 384
v_lshrrev_b32 v{t+7}, 1, v{t+6}
v_mul_u32_u24 v{t+7}, 1152, v{t+7}
v_and_b32 v{t+6}, 1, v{t+6}
v_mul_u32_u24 v{t+6}, 384, v{t+6}
v_add_u32 v{t+7}, v{t+7}, v{t+6}
""")
        for j in range(6):
            A(f"buffer_load_dword v125, v{t+7}, s[{sXS}:{sXS+3}], s{sT+4} offen offset:{j*64}")
        return 6
    G.warm=warm if warmx else None
    G.setaddr=lambda A: setaddr_generic(A,4,4,G.XB)
    def reads(A,ks,buf):
        for xt in range(2):
            A(f"ds_read_b128 {vr(G.fX+buf*8+4*xt,4)}, v{gAX+ks} offset:{xt*4096}")
        for wt in range(4):
            for h in range(2):
                A(f"ds_read_b64_tr_b16 {vr(G.fW+buf*16+4*wt+2*h,2)}, v{gAW+wt} offset:{(16*ks+4*h)*512}")
    G.reads=reads
    A("s_waitcnt lgkmcnt(0)")
    lv=A.uid("L_g1v"); le=A.uid("L_g1e")
    A(f"s_cmp_eq_u32 s{sA}, 2\ns_cbranch_scc1 {lv}")
    G.orient="WX"
    gemm_mainloop(A,G,"g1k")
    A(f"""
s_cmp_eq_u32 s{sA}, 0
s_mov_b32 s{sOut}, {WS_KX}
s_cselect_b32 s{sOut}, {WS_QX}, s{sOut}
s_and_b32 s{sT}, s{sW}, 1
s_lshl_b32 s{sT}, s{sT}, 1
s_lshl_b32 s{sT+1}, s{sB}, 2
s_add_u32 s{sT}, s{sT}, s{sT+1}
s_lshl_b32 s{sT}, s{sT}, 18
s_add_u32 s{sOut}, s{sOut}, s{sT}
s_lshl_b32 s{sT}, s{sC}, 1
s_lshr_b32 s{sT+1}, s{sW}, 1
s_add_u32 s{sT}, s{sT}, s{sT+1}
s_lshl_b32 s{sT}, s{sT}, 13
s_add_u32 s{sOut}, s{sOut}, s{sT}
v_and_b32 v{t}, 31, v0
v_lshlrev_b32 v{t}, 4, v{t}
v_lshrrev_b32 v{t+1}, 5, v0
v_lshl_add_u32 v{t}, v{t+1}, 9, v{t}
""")
    n=0
    for xt in range(2):
        for wt in range(4):
            for j in range(2):
                d=gFX+4*(n%8); n+=1
                pack_swap(A,G.acc+16*(wt*2+xt),j,d)
                A(f"s_add_u32 s{sT}, s{sOut}, {xt*262144+(4*wt+2*j)*512}")
                A(f"buffer_store_dwordx4 {vr(d,4)}, v{t}, s[{sWS}:{sWS+3}], s{sT} offen {ST}")
    A(f"s_branch {le}")
    A(f"{lv}:")
    G.orient="XW"
    gemm_mainloop(A,G,"g1v")
    A(f"""
s_and_b32 s{sT}, s{sW}, 1
s_lshl_b32 s{sT}, s{sT}, 1
s_lshl_b32 s{sT+1}, s{sB}, 2
s_add_u32 s{sT}, s{sT}, s{sT+1}
s_lshl_b32 s{sT}, s{sT}, 18
s_add_u32 s{sOut}, s{sT}, {WS_VT}
s_lshl_b32 s{sT}, s{sC}, 1
s_lshr_b32 s{sT+1}, s{sW}, 1
s_add_u32 s{sT}, s{sT}, s{sT+1}
s_lshl_b32 s{sT}, s{sT}, 13
s_add_u32 s{sOut}, s{sOut}, s{sT}
v_and_b32 v{t}, 31, v0
v_lshlrev_b32 v{t}, 4, v{t}
v_lshrrev_b32 v{t+1}, 5, v0
v_lshl_add_u32 v{t}, v{t+1}, 11, v{t}
""")
    n=0
    for xt in range(2):
        for wt in range(4):
            a=G.acc+16*(wt*2+xt)
            for j in range(2):
                d=gFX+4*(n%8); n+=1
                A(f"""
v_cvt_pk_bf16_f32 v{d}, v{a+4*j}, v{a+4*j+1}
v_cvt_pk_bf16_f32 v{d+1}, v{a+4*j+2}, v{a+4*j+3}
v_cvt_pk_bf16_f32 v{d+2}, v{a+8+4*j}, v{a+8+4*j+1}
v_cvt_pk_bf16_f32 v{d+3}, v{a+8+4*j+2}, v{a+8+4*j+3}
s_add_u32 s{sT}, s{sOut}, {xt*262144+j*4096+wt*512}
buffer_store_dwordx4 {vr(d,4)}, v{t}, s[{sWS}:{sWS+3}], s{sT} offen {ST}
""")
    A(f"{le}:")
    A("s_waitcnt vmcnt(0)")

def emit_g2(A,dep=None):
    G=Gemm(); G.nXt=3; G.nWt=2; G.XB=24576; G.WB=16384; G.nst=32; G.D=10; G.DX=6; G.dep=dep; G.fX=gFX; G.fW=gFW; G.acc=gACC; G.orient="WX"
    t=gT
    srd_from_ws(A,sXS,WS_HH,2048*1152)
    srd_from_karg(A,sWSRC,KA_W1,2048*9216)
    for v in range(3):
        A(f"""
v_add_u32 v{t}, {64*v}, v0
v_mul_u32_u24 v{t+1}, 2731, v{t}
v_lshrrev_b32 v{t+1}, 16, v{t+1}
v_mul_u32_u24 v{t+2}, 24, v{t+1}
v_sub_u32 v{t+2}, v{t}, v{t+2}
v_bfe_u32 v{t+3}, v{t+1}, 1, 1
v_lshlrev_b32 v{t+3}, 2, v{t+3}
v_xor_b32 v{t+2}, v{t+2}, v{t+3}
v_mul_u32_u24 v{t+1}, 1152, v{t+1}
v_lshl_add_u32 v{gDX+v}, v{t+2}, 4, v{t+1}
""")
    for U in range(192): assert (U*2731)>>16==U//24
    A(f"""
v_lshrrev_b32 v{t}, 4, v0
v_lshlrev_b32 v{t+1}, 2, v{t}
v_mul_u32_u24 v{t}, 9216, v{t}
v_and_b32 v{t+2}, 15, v0
v_xor_b32 v{t+2}, v{t+2}, v{t+1}
v_lshl_add_u32 v{gDW}, v{t+2}, 4, v{t}
s_mul_i32 s{sXo}, s{sW}, {16*1152}
s_mul_i32 s{sT}, s{sA}, 384
s_add_u32 s{sXo}, s{sXo}, s{sT}
s_mul_i32 s{sWo}, s{sW}, {16*9216}
s_lshl_b32 s{sT}, s{sB}, 8
s_add_u32 s{sWo}, s{sWo}, s{sT}
s_and_b32 s{sT}, s{sW}, 1
s_mul_i32 s{sT}, s{sT}, 12
""")
    w_strided_addr(A,gAXc,3,384,sT,"rhi",t)
    A(f"s_lshr_b32 s{sT}, s{sW}, 1\ns_lshl_b32 s{sT}, s{sT}, 3")
    w_strided_addr(A,gAWc,2,256,sT,"r2",t)
    def dma(A,part):
        if part=='x':
            for j in range(6):
                A(f"s_mul_i32 s{sT+2}, s{sW}, 6144\ns_add_u32 s{sT+2}, s{sT+2}, s{sWr}\ns_add_u32 m0, s{sT+2}, {j*1024}")
                A(f"s_add_u32 s{sT+3}, s{sXo}, {(j//3)*8*1152}")
                A(f"buffer_load_dwordx4 v{gDX+(j%3)}, s[{sXS}:{sXS+3}], s{sT+3} offen sc1 lds")
            A(f"s_add_u32 s{sXo}, s{sXo}, {64*1152}")
        else:
            for j in range(4):
                A(f"s_lshl_b32 s{sT+2}, s{sW}, 12\ns_add_u32 s{sT+2}, s{sT+2}, s{sWr}\ns_add_u32 m0, s{sT+2}, {24576+j*1024}")
                A(f"s_add_u32 s{sT+3}, s{sWo}, {j*4*9216}")
                A(f"buffer_load_dwordx4 v{gDW}, s[{sWSRC}:{sWSRC+3}], s{sT+3} offen lds")
            A(f"s_add_u32 s{sWo}, s{sWo}, {64*9216}")
    G.dma=dma
    G.setaddr=lambda A: setaddr_generic(A,3,2,G.XB)
    def reads(A,ks,buf):
        for xt in range(3):
            for h in range(2):
                A(f"ds_read_b64_tr_b16 {vr(G.fX+buf*12+4*xt+2*h,2)}, v{gAX+xt} offset:{(16*ks+4*h)*384}")
        for wt in range(2):
            for h in range(2):
                A(f"ds_read_b64_tr_b16 {vr(G.fW+buf*8+4*wt+2*h,2)}, v{gAW+wt} offset:{(16*ks+4*h)*256}")
    G.reads=reads
    gemm_mainloop(A,G,"g2")
    srd_from_karg(A,sXS,KA_B1,4608*2)
    A(f"""
s_lshl_b32 s{sT}, s{sB}, 7
s_lshr_b32 s{sT+1}, s{sW}, 1
s_lshl_b32 s{sT+1}, s{sT+1}, 6
s_add_u32 s{sA+3}, s{sT}, s{sT+1}
s_lshl_b32 s{sT}, s{sA+3}, 1
v_lshrrev_b32 v{t}, 5, v0
v_lshlrev_b32 v{t}, 3, v{t}
""")
    Bv=gFW
    for wt in range(2):
        for m in range(4):
            A(f"buffer_load_dwordx2 {vr(Bv+2*(4*wt+m),2)}, v{t}, s[{sXS}:{sXS+3}], s{sT} offen offset:{(32*wt+8*m)*2}")
    A("s_waitcnt vmcnt(0)")
    Bf=gFX
    for i in range(16):
        A(f"v_lshlrev_b32 v{Bf+2*i}, 16, v{Bv+i}\nv_and_b32 v{Bf+2*i+1}, 0xffff0000, v{Bv+i}")
    A(f"""
s_lshr_b32 s{sT}, s{sD}, 3
s_mul_i32 s{sOut}, s{sT}, {576*16}
s_mul_i32 s{sT}, s{sA}, {192*16}
s_add_u32 s{sOut}, s{sOut}, s{sT}
s_and_b32 s{sT}, s{sW}, 1
s_mul_i32 s{sT}, s{sT}, {96*16}
s_add_u32 s{sOut}, s{sOut}, s{sT}
s_add_u32 s{sOut}, s{sOut}, {WS_U}
v_and_b32 v{t}, 31, v0
v_lshlrev_b32 v{t}, 4, v{t}
v_lshrrev_b32 v{t+1}, 5, v0
v_mul_u32_u24 v{t+1}, {576*16}, v{t+1}
v_add_u32 v{t}, v{t}, v{t+1}
s_mov_b32 s{sT+4}, {hex(fbits(0.044715))}
s_mov_b32 s{sT+5}, {hex(fbits(-2.0*math.sqrt(2.0/math.pi)*math.log2(math.e)))}
""")
    x,y=t+2,t+3
    n=0
    for wt in range(2):
        for xt in range(3):
            a=G.acc+16*(wt*3+xt)
            for i in range(16):
                A(f"v_add_f32 v{a+i}, v{a+i}, v{Bf+16*wt+i}")
                A(f"v_mul_f32 v{x}, v{a+i}, v{a+i}")
                A(f"v_mul_f32 v{x}, s{sT+4}, v{x}")
                A(f"v_fma_f32 v{x}, v{x}, v{a+i}, v{a+i}")
                A(f"v_mul_f32 v{x}, s{sT+5}, v{x}")
                A(f"v_exp_f32 v{x}, v{x}")
                A(f"v_add_f32 v{x}, 1.0, v{x}")
                A(f"v_rcp_f32 v{x}, v{x}")
                A(f"v_mul_f32 v{a+i}, v{a+i}, v{x}")
            for j in range(2):
                d=gFW+4*(n%8); n+=1
                pack_swap(A,a,j,d)
                A(f"s_add_u32 s{sT}, s{sOut}, {((32*wt+16*j)//8)*576*16+xt*32*16}")
                A(f"buffer_store_dwordx4 {vr(d,4)}, v{t}, s[{sWS}:{sWS+3}], s{sT} offen {ST}")
    A("s_waitcnt vmcnt(0)")

def emit_g3(A,dep=None):
    G=Gemm(); G.nXt=3; G.nWt=2; G.XB=24576; G.WB=16384; G.nst=18; G.D=10; G.DX=6; G.dep=dep; G.fX=gFX; G.fW=gFW; G.acc=gACC; G.orient="XW"
    t=gT
    srd_from_ws(A,sXS,WS_U,576*576*16)
    srd_from_karg(A,sWSRC,KA_W2,4608*4096)
    A(f"""
v_lshrrev_b32 v{t}, 3, v0
v_lshlrev_b32 v{t}, 4, v{t}
v_and_b32 v{t+1}, 7, v0
v_lshrrev_b32 v{t+2}, 4, v0
v_xor_b32 v{t+3}, v{t+1}, v{t+2}
v_mul_u32_u24 v{t+4}, {576*16}, v{t+3}
v_add_u32 v{gDX}, v{t+4}, v{t}
v_xor_b32 v{t+3}, 4, v{t+3}
v_mul_u32_u24 v{t+4}, {576*16}, v{t+3}
v_add_u32 v{gDX+1}, v{t+4}, v{t}
v_lshrrev_b32 v{t}, 4, v0
v_lshlrev_b32 v{t+1}, 2, v{t}
v_lshlrev_b32 v{t}, 12, v{t}
v_and_b32 v{t+2}, 15, v0
v_xor_b32 v{t+2}, v{t+2}, v{t+1}
v_lshl_add_u32 v{gDW}, v{t+2}, 4, v{t}
s_mul_i32 s{sXo}, s{sC}, {144*576*16}
s_mul_i32 s{sT}, s{sA}, {192*16}
s_add_u32 s{sXo}, s{sXo}, s{sT}
s_mul_i32 s{sT}, s{sW}, {48*16}
s_add_u32 s{sXo}, s{sXo}, s{sT}
s_mul_i32 s{sWo}, s{sC}, {1152*4096}
s_lshl_b32 s{sT}, s{sW}, 16
s_add_u32 s{sWo}, s{sWo}, s{sT}
s_lshl_b32 s{sT}, s{sB}, 8
s_add_u32 s{sWo}, s{sWo}, s{sT}
s_and_b32 s{sT}, s{sW}, 1
s_mul_i32 s{sT}, s{sT}, 96
""")
    x_contig_addr(A,gAXc,sT,t)
    A(f"s_lshr_b32 s{sT}, s{sW}, 1\ns_lshl_b32 s{sT}, s{sT}, 3")
    w_strided_addr(A,gAWc,2,256,sT,"r2",t)
    def dma(A,part):
        if part=='x':
            for j in range(6):
                A(f"s_mul_i32 s{sT+2}, s{sW}, 6144\ns_add_u32 s{sT+2}, s{sT+2}, s{sWr}\ns_add_u32 m0, s{sT+2}, {j*1024}")
                A(f"s_add_u32 s{sT+3}, s{sXo}, {j*8*16}")
                A(f"buffer_load_dwordx4 v{gDX+(j%2)}, s[{sXS}:{sXS+3}], s{sT+3} offen sc1 lds")
            A(f"s_add_u32 s{sXo}, s{sXo}, {8*576*16}")
        else:
            for j in range(4):
                A(f"s_lshl_b32 s{sT+2}, s{sW}, 12\ns_add_u32 s{sT+2}, s{sT+2}, s{sWr}\ns_add_u32 m0, s{sT+2}, {24576+j*1024}")
                A(f"s_add_u32 s{sT+3}, s{sWo}, {j*4*4096}")
                A(f"buffer_load_dwordx4 v{gDW}, s[{sWSRC}:{sWSRC+3}], s{sT+3} offen lds")
            A(f"s_add_u32 s{sWo}, s{sWo}, {64*4096}")
    G.dma=dma
    G.setaddr=lambda A: setaddr_generic(A,4,2,G.XB)
    def reads(A,ks,buf):
        for xt in range(3):
            A(f"ds_read_b128 {vr(G.fX+buf*12+4*xt,4)}, v{gAX+ks} offset:{xt*4096}")
        for wt in range(2):
            for h in range(2):
                A(f"ds_read_b64_tr_b16 {vr(G.fW+buf*8+4*wt+2*h,2)}, v{gAW+wt} offset:{(16*ks+4*h)*256}")
    G.reads=reads
    gemm_mainloop(A,G,"g3")
    srd_from_karg(A,sXS,KA_B2,2048*2)
    A(f"""
s_lshl_b32 s{sT}, s{sB}, 7
s_lshr_b32 s{sT+1}, s{sW}, 1
s_lshl_b32 s{sT+1}, s{sT+1}, 6
s_add_u32 s{sD}, s{sT}, s{sT+1}
s_lshl_b32 s{sT}, s{sD}, 1
v_and_b32 v{t}, 31, v0
v_lshlrev_b32 v{t}, 1, v{t}
buffer_load_ushort v{t+4}, v{t}, s[{sXS}:{sXS+3}], s{sT} offen
buffer_load_ushort v{t+5}, v{t}, s[{sXS}:{sXS+3}], s{sT} offen offset:64
s_lshr_b32 s{sT}, s{sD}, 4
s_mul_i32 s{sOut}, s{sT}, {36*1024}
s_mul_i32 s{sT}, s{sA}, {12*1024}
s_add_u32 s{sOut}, s{sOut}, s{sT}
s_and_b32 s{sT}, s{sW}, 1
s_mul_i32 s{sT}, s{sT}, {6*1024}
s_add_u32 s{sOut}, s{sOut}, s{sT}
s_add_u32 s{sT}, s{sC}, 8
s_mul_i32 s{sT}, s{sT}, {P_SLAB}
s_add_u32 s{sOut}, s{sOut}, s{sT}
s_add_u32 s{sOut}, s{sOut}, {WS_P}
v_and_b32 v{t}, 15, v0
v_lshlrev_b32 v{t}, 4, v{t}
v_lshrrev_b32 v{t+1}, 5, v0
v_lshl_add_u32 v{t}, v{t+1}, 8, v{t}
v_bfe_u32 v{t+1}, v0, 4, 1
v_mul_u32_u24 v{t+1}, {36*1024}, v{t+1}
v_add_u32 v{t}, v{t}, v{t+1}
s_cmp_eq_u32 s{sC}, 0
s_cselect_b32 s{sT+6}, -1, 0
s_waitcnt vmcnt(0)
v_lshlrev_b32 v{t+4}, 16, v{t+4}
v_lshlrev_b32 v{t+5}, 16, v{t+5}
v_and_b32 v{t+4}, s{sT+6}, v{t+4}
v_and_b32 v{t+5}, s{sT+6}, v{t+5}
""")
    for wt in range(2):
        for xt in range(3):
            a=G.acc+16*(wt*3+xt)
            for i in range(16): A(f"v_add_f32 v{a+i}, v{a+i}, v{t+4+wt}")
            for m in range(4):
                A(f"s_add_u32 s{sT}, s{sOut}, {wt*2*36*1024+(2*xt+(m>>1))*1024+(m&1)*512}")
                A(f"buffer_store_dwordx4 {vr(a+4*m,4)}, v{t}, s[{sWS}:{sWS+3}], s{sT} offen {ST}")
    A("s_waitcnt vmcnt(0)")

def wg_wait_cnt(A, off_sgpr_or_const, target, label="L_abortw"):
    done=A.uid("L_wd"); lp=A.uid("L_wp")
    A(f"s_cmp_lg_u32 s{sW}, 0\ns_cbranch_scc1 {done}")
    if isinstance(off_sgpr_or_const,int): A(f"s_mov_b32 s{sP}, {off_sgpr_or_const}")
    else: A(f"s_mov_b32 s{sP}, {off_sgpr_or_const}")
    A(f"s_mov_b32 s{sP+1}, 0\n{lp}:")
    A(f"buffer_load_dword v1, off, s[{sWS}:{sWS+3}], s{sP} sc1\ns_waitcnt vmcnt(0)\nv_readfirstlane_b32 s{sP+2}, v1")
    A(f"s_cmp_ge_u32 s{sP+2}, {target}\ns_cbranch_scc1 {done}")
    A(f"s_add_u32 s{sP+1}, s{sP+1}, 1\ns_cmp_gt_u32 s{sP+1}, 4000000\ns_cbranch_scc1 {label}\ns_sleep 1\ns_branch {lp}")
    A(f"{done}:\ns_barrier")
def wg_signal(A, off_expr):
    done=A.uid("L_sg")
    A(f"s_barrier\ns_cmp_lg_u32 s{sW}, 0\ns_cbranch_scc1 {done}")
    A(f"s_mov_b32 s{sP}, {off_expr}\nv_mov_b32 v1, 1\ns_mov_b64 exec, 1\nbuffer_atomic_add v1, off, s[{sWS}:{sWS+3}], s{sP}\ns_mov_b64 exec, -1")
    A(f"{done}:")
def wave_signal(A, off_expr):
    A(f"s_mov_b32 s{sP}, {off_expr}\nv_mov_b32 v1, 1\ns_mov_b64 exec, 1\nbuffer_atomic_add v1, off, s[{sWS}:{sWS+3}], s{sP}\ns_mov_b64 exec, -1")

def wg_wait_multi(A, base_expr, n, target_expr, label="L_abortw"):
    done=A.uid("L_wd"); lp=A.uid("L_wp")
    A(f"s_cmp_lg_u32 s{sW}, 0\ns_cbranch_scc1 {done}")
    A(f"s_mov_b32 s{sP}, {base_expr}\ns_mov_b32 s{sP+3}, {target_expr}\ns_mov_b32 s{sP+1}, 0")
    A(f"v_min_u32 v1, {n-1}, v0\nv_lshlrev_b32 v1, 7, v1\n{lp}:")
    A(f"buffer_load_dword v250, v1, s[{sWS}:{sWS+3}], s{sP} offen sc1\ns_waitcnt vmcnt(0)")
    A(f"v_cmp_gt_u32 vcc, s{sP+3}, v250\ns_cbranch_vccz {done}")
    A(f"s_add_u32 s{sP+1}, s{sP+1}, 1\ns_cmp_gt_u32 s{sP+1}, 4000000\ns_cbranch_scc1 {label}\ns_sleep 1\ns_branch {lp}")
    A(f"{done}:\ns_barrier")
```

```python
import os
import sys, os; sys.path.insert(0,'gen')
from asmlib import *
from layout import *
import role, chain3 as chain, workers as Wk, p4
NAME="parallel_sum__memory_aug_recurrent_mem_tr__mixer_token_mlp__prompt"
sT=Wk.sT; sA,sB,sC,sD=Wk.sA,Wk.sB,Wk.sC,Wk.sD; sW=Wk.sW; sRank=Wk.sRank; sWS=Wk.sWS
sTask=Wk.sTask
sPrev=47; sSeg=48; sKc=49
NW=224; NG=7
def build(chopt=""):
    for kv in chopt.split(";"):
        if "=" in kv:
            k,v=kv.split("="); setattr(chain.OPT,k,eval(v))
    chain.OPT.fused=True
    if os.environ.get("PROF","0")=="1": chain.OPT.steplog=True
    A=Asm()
    prof=os.environ.get("PROF","0") in ("1","2")
    if prof: A("s_memrealtime s[94:95]")
    role.emit_entry(A)
    A(f"s_cmp_ge_u32 s5, 32\ns_cbranch_scc1 L_exit\ns_cmp_eq_u32 s4, 0\ns_cbranch_scc0 L_work\ns_mov_b32 s{chain.sH}, s5")
    chain.emit_chain(A,nsteps=64,stamps=("total" if os.environ.get("PROF","0")=="2" else False))
    A("s_endpgm\nL_work:")
    A(f"s_sub_u32 s{sRank}, s4, 1\ns_lshl_b32 s{sRank}, s{sRank}, 5\ns_add_u32 s{sRank}, s{sRank}, s5")
    Wk.emit_worker_setup(A)
    def wwarm(A):
        A(f"""
s_mul_i32 s{sT+4}, s{sRank}, 9363
s_lshr_b32 s{sT+4}, s{sT+4}, 16
s_mul_i32 s{sT+5}, s{sT+4}, 7
s_sub_u32 s{sT+5}, s{sRank}, s{sT+5}
s_lshr_b32 s{sT+6}, s{sT+4}, 4
s_lshl_b32 s{sT+6}, s{sT+6}, 3
s_add_u32 s{sT+6}, s{sT+6}, {KA_WK}
s_load_dwordx2 s[{Wk.sWSRC}:{Wk.sWSRC+1}], s[0:1], s{sT+6}
s_mov_b32 s{Wk.sWSRC+2}, {576*8192}
s_and_b32 s{sT+4}, s{sT+4}, 15
s_lshl_b32 s{sT+4}, s{sT+4}, 9
s_mul_i32 s{sT+5}, s{sT+5}, 660
s_lshl_b32 s{sT+6}, s{sW}, 6
s_add_u32 s{sT+5}, s{sT+5}, s{sT+6}
v_add_u32 v100, s{sT+5}, v0
s_waitcnt lgkmcnt(0)
""")
        for k in range(3):
            A(f"v_lshrrev_b32 v101, 3, v100\nv_lshlrev_b32 v101, 13, v101\nv_and_b32 v102, 7, v100\nv_lshl_add_u32 v101, v102, 6, v101")
            A(f"buffer_load_dword v103, v101, s[{Wk.sWSRC}:{Wk.sWSRC+3}], s{sT+4} offen\nv_add_u32 v100, 256, v100")
    Wk.emit_ln(A,NW,fused=True)
    if prof: A("s_memrealtime s[70:71]")
    A(f"s_mov_b32 s{sTask}, s{sRank}\ns_branch L_dispatch")
    A("L_next:")
    A(f"""
s_barrier
s_cmp_lg_u32 s{sW}, 0
s_cbranch_scc1 L_tk2
s_mov_b32 s60, {cnt(C_QUEUE)}
v_mov_b32 v1, 1
s_mov_b64 exec, 1
buffer_atomic_add v1, off, s[{sWS}:{sWS+3}], s60 sc0
s_waitcnt vmcnt(0)
v_mov_b32 v2, 160000
ds_write_b32 v2, v1
s_waitcnt lgkmcnt(0)
s_mov_b64 exec, -1
L_tk2:
s_barrier
v_mov_b32 v2, 160000
ds_read_b32 v1, v2
s_waitcnt lgkmcnt(0)
v_readfirstlane_b32 s{sTask}, v1
s_add_u32 s{sTask}, s{sTask}, {NW}
L_dispatch:
s_cmp_ge_u32 s{sTask}, 1068
s_cbranch_scc1 L_p4
s_cmp_lt_u32 s{sTask}, 512
s_cbranch_scc1 L_t_kv
s_cmp_lt_u32 s{sTask}, 620
s_cbranch_scc1 L_t_g2
s_cmp_lt_u32 s{sTask}, 876
s_cbranch_scc1 L_t_q
s_branch L_t_g3
L_t_q:
s_sub_u32 s{sT}, s{sTask}, 620
s_mov_b32 s{sA}, 0
s_lshr_b32 s{sB}, s{sT}, 4
s_and_b32 s{sC}, s{sT}, 15
s_branch L_t_g1
L_t_kv:
s_cmp_lt_u32 s{sTask}, 224
s_cbranch_scc0 L_t_kv2
s_mul_i32 s{sT}, s{sTask}, 9363
s_lshr_b32 s{sT}, s{sT}, 16
s_mul_i32 s{sT+1}, s{sT}, 7
s_sub_u32 s{sB}, s{sTask}, s{sT+1}
s_lshr_b32 s{sA}, s{sT}, 4
s_add_u32 s{sA}, s{sA}, 1
s_and_b32 s{sC}, s{sT}, 15
s_branch L_t_g1
L_t_kv2:
s_lshr_b32 s{sB}, s{sTask}, 5
s_bfe_u32 s{sA}, s{sTask}, 0x10004
s_add_u32 s{sA}, s{sA}, 1
s_and_b32 s{sC}, s{sTask}, 15
L_t_g1:
""")
    def dep1(A):
        A(f"s_lshl_b32 s76, s{sB}, 7\ns_add_u32 s76, s76, {cnt(C_LN)}")
        Wk.wg_wait_cnt(A,"s76",128)
        if prof:
            l=A.uid("L_pf"); A(f"s_cmp_ge_u32 s{sTask}, {NW}\ns_cbranch_scc1 {l}\ns_memrealtime s[78:79]\n{l}:")
    Wk.emit_g1(A,dep1,warmx=False)
    if prof:
        l=A.uid("L_pf"); A(f"s_cmp_ge_u32 s{sTask}, {NW}\ns_cbranch_scc1 {l}\ns_memrealtime s[80:81]\n{l}:")
    A(f"s_cmp_eq_u32 s{sA}, 0\ns_mov_b32 s{sT}, {cnt(C_KV)}\ns_cselect_b32 s{sT}, {cnt(C_Q)}, s{sT}\ns_lshl_b32 s{sT+1}, s{sB}, 7\ns_add_u32 s{sT}, s{sT}, s{sT+1}")
    Wk.wg_signal(A,f"s{sT}")
    A("s_branch L_next\nL_t_g2:")
    A(f"s_sub_u32 s{sB}, s{sTask}, 512\ns_mul_i32 s{sA}, s{sB}, 1821\ns_lshr_b32 s{sA}, s{sA}, 16\ns_mul_i32 s{sT}, s{sA}, 36\ns_sub_u32 s{sB}, s{sB}, s{sT}")
    Wk.emit_g2(A,lambda A: Wk.wg_wait_multi(A,cnt(C_LN),16,128))
    A(f"s_mul_i32 s{sT}, s{sB}, 7282\ns_lshr_b32 s{sT}, s{sT}, 16\ns_lshl_b32 s{sT+1}, s{sA}, 2\ns_add_u32 s{sT}, s{sT}, s{sT+1}\ns_lshl_b32 s{sT}, s{sT}, 7\ns_add_u32 s{sT}, s{sT}, {cnt(C_U)}")
    for x in range(36): assert (x*7282)>>16==x//9
    Wk.wg_signal(A,f"s{sT}")
    A("s_branch L_next\nL_t_g3:")
    A(f"s_sub_u32 s{sT}, s{sTask}, 876\ns_and_b32 s{sC}, s{sT}, 3\ns_bfe_u32 s{sB}, s{sT}, 0x40002\ns_lshr_b32 s{sA}, s{sT}, 6")
    def dep3(A):
        A(f"s_lshl_b32 s76, s{sA}, 2\ns_add_u32 s76, s76, s{sC}\ns_lshl_b32 s76, s76, 7\ns_add_u32 s76, s76, {cnt(C_U)}")
        Wk.wg_wait_cnt(A,"s76",9)
    Wk.emit_g3(A,dep3)
    A(f"s_lshl_b32 s{sT}, s{sB}, 7\ns_add_u32 s{sT}, s{sT}, {cnt(C_Y)}")
    Wk.wg_signal(A,f"s{sT}")
    A("s_branch L_next")
    A("L_p4:")
    if prof: A("s_memrealtime s[72:73]")
    A(f"s_and_b32 s{sA}, s{sRank}, 7\ns_bfe_u32 s{sB}, s{sRank}, 0x20003\ns_lshr_b32 s{sSeg}, s{sRank}, 5\ns_mov_b32 s{sPrev}, -1")
    p4.emit_p4_setup(A)
    Wk.srd_from_karg(A,Wk.sXS,KA_X,2048*1152); Wk.srd_from_karg(A,Wk.sWSRC,KA_OUT,2048*1152)
    Wk.wg_wait_multi(A,cnt(C_Q),16,16)
    Wk.wg_wait_multi(A,cnt(C_KV),16,32)
    Wk.wg_wait_multi(A,cnt(C_Y),16,12)
    def combine():
        skip=A.uid("L_cs")
        A(f"s_cmp_lt_i32 s{sPrev}, 0\ns_cbranch_scc1 {skip}")
        A(f"s_lshl_b32 s{sT}, s{sPrev}, 7\ns_add_u32 s{sT}, s{sT}, {cnt(C_SEG)}")
        Wk.wg_wait_cnt(A,f"s{sT}",32)
        A(f"s_lshl_b32 s{sT+8}, s{sA}, 2\ns_add_u32 s{sT+8}, s{sT+8}, s{sW}\ns_cmp_ge_u32 s{sT+8}, 18\ns_cbranch_scc1 {skip}")
        A(f"s_cmp_ge_u32 s{sT+8}, 9\ns_cselect_b32 s{sT+9}, 1, 0\ns_mul_i32 s{sT+10}, s{sT+9}, 9\ns_sub_u32 s{sT+8}, s{sT+8}, s{sT+10}")
        A(f"s_lshl_b32 s{sC}, s{sPrev}, 1\ns_add_u32 s{sC}, s{sC}, s{sT+9}\ns_mul_i32 s{sD}, s{sB}, 9\ns_add_u32 s{sD}, s{sD}, s{sT+8}")
        p4.emit_combine_tile(A)
        A(f"{skip}:")
    A("L_p4loop:")
    combine()
    A(f"s_mov_b32 s{sC}, s{sSeg}")
    def between(A):
        A(f"s_lshl_b32 s68, s{sA}, 9\ns_add_u32 s68, s68, {cnt(C_PROG)}\ns_add_u32 s69, s{sSeg}, 1")
        Wk.wg_wait_multi(A,"s68",4,"s69")
    p4.emit_p4_segment(A,0,between)
    A("s_waitcnt vmcnt(0)")
    A(f"s_lshl_b32 s{sT}, s{sSeg}, 7\ns_add_u32 s{sT}, s{sT}, {cnt(C_SEG)}")
    Wk.wg_signal(A,f"s{sT}")
    A(f"s_mov_b32 s{sPrev}, s{sSeg}\ns_add_u32 s{sSeg}, s{sSeg}, {NG}\ns_cmp_lt_u32 s{sSeg}, 64\ns_nop 7\ns_cbranch_scc1 L_p4loop")
    combine()
    A("L_abortw:\ns_waitcnt vmcnt(0)")
    if prof:
        A(f"""s_memrealtime s[74:75]
s_load_dwordx2 s[6:7], s[0:1], {KA_WS}
s_waitcnt lgkmcnt(0)
s_add_u32 s6, s6, {WS_STAMP+0x10000}
s_addc_u32 s7, s7, 0
s_lshl_b32 s8, s{sRank}, 4
v_mov_b32 v1, s8
v_mov_b32 v2, s94
v_mov_b32 v3, s70
v_mov_b32 v4, s72
v_mov_b32 v5, s74
global_store_dwordx4 v1, v[2:5], s[6:7]
v_mov_b32 v6, s78
v_mov_b32 v7, s80
global_store_dwordx2 v1, v[6:7], s[6:7] offset:4000
s_waitcnt vmcnt(0)""")
    A("L_exit:\ns_endpgm")
    lines=fix_hazards(A.lines,True)
    if os.environ.get('ALIGN','3')!='0': lines=align_runs(lines,int(os.environ.get('ALIGN','3')),0,True)
    hdr=open('cdna_kernels/'+NAME+'.s.ref').read().split("; Override")[0]
    name=NAME+"_kernel"
    t=hdr+f"; @launch kernel={name} grid=(256,1,1) block=(256,1,1) lds=163840\n"
    t+=f'.amdgcn_target "amdgcn-amd-amdhsa--gfx950"\n.text\n.globl {name}\n.p2align 8\n.type {name},@function\n{name}:\n'
    t+="\n".join(lines)+"\n"
    t+=f""".section .rodata,"a"
.p2align 6
.amdhsa_kernel {name}
  .amdhsa_next_free_vgpr 512
  .amdhsa_next_free_sgpr 102
  .amdhsa_accum_offset 256
  .amdhsa_group_segment_fixed_size 0
  .amdhsa_kernarg_size 120
  .amdhsa_user_sgpr_count 2
  .amdhsa_user_sgpr_kernarg_segment_ptr 1
  .amdhsa_system_sgpr_workgroup_id_x 1
.end_amdhsa_kernel
"""
    return t
if __name__=="__main__":
    opt=os.environ.get("CHOPT","nred=2;red_gap=40;npoll=3;poll_gap=25;d_gat=60;d_red=[0,5,0,30,30];d_g1=[10,5];red_early=False;warmk=[7,8,9,10];kvmode='spread';ki=[0,1,3];prewarm=True;codewarm=3")
    open(sys.argv[1],"w").write(build(opt))
```

```python
import os
import sys, os; sys.path.insert(0,'gen')
from asmlib import *
from layout import *
import role, chain3 as chain, workers as Wk, p4
NAME="parallel_sum__memory_aug_recurrent_mem_tr__mixer_token_mlp__prompt"
sT=Wk.sT; sA,sB,sC,sD=Wk.sA,Wk.sB,Wk.sC,Wk.sD; sW=Wk.sW; sRank=Wk.sRank; sWS=Wk.sWS
sTask=Wk.sTask
sPrev=47; sSeg=48; sKc=49
NW=224; NG=7
DESIGN = """;
"""
def build(chopt=""):
    for kv in chopt.split(";"):
        if "=" in kv:
            k,v=kv.split("="); setattr(chain.OPT,k,eval(v))
    chain.OPT.fused=True
    if os.environ.get("PROF","0")=="1": chain.OPT.steplog=True
    A=Asm()
    prof=os.environ.get("PROF","0") in ("1","2")
    if prof: A("s_memrealtime s[94:95]")
    if prof:
        def hook(A,r):
            l=A.uid("L_pf"); A(f"s_cmp_ge_u32 s{sTask}, {NW}\ns_cbranch_scc1 {l}\ns_memrealtime s[{r}:{r+1}]\n{l}:")
        Wk.PROFHOOK=hook
    role.emit_entry(A)
    A(f"s_cmp_ge_u32 s5, 32\ns_cbranch_scc1 L_exit\ns_cmp_eq_u32 s4, 0\ns_cbranch_scc0 L_work\ns_mov_b32 s{chain.sH}, s5")
    chain.emit_chain(A,nsteps=64,stamps=("total" if os.environ.get("PROF","0")=="2" else False))
    A("s_endpgm\nL_work:")
    A(f"s_sub_u32 s{sRank}, s4, 1\ns_lshl_b32 s{sRank}, s{sRank}, 5\ns_add_u32 s{sRank}, s{sRank}, s5")
    Wk.emit_worker_setup(A)
    def wwarm(A):
        A(f"""
s_mul_i32 s{sT+4}, s{sRank}, 9363
s_lshr_b32 s{sT+4}, s{sT+4}, 16
s_mul_i32 s{sT+5}, s{sT+4}, 7
s_sub_u32 s{sT+5}, s{sRank}, s{sT+5}
s_lshr_b32 s{sT+6}, s{sT+4}, 4
s_lshl_b32 s{sT+6}, s{sT+6}, 3
s_add_u32 s{sT+6}, s{sT+6}, {KA_WK}
s_load_dwordx2 s[{Wk.sWSRC}:{Wk.sWSRC+1}], s[0:1], s{sT+6}
s_mov_b32 s{Wk.sWSRC+2}, {576*8192}
s_and_b32 s{sT+4}, s{sT+4}, 15
s_lshl_b32 s{sT+4}, s{sT+4}, 9
s_mul_i32 s{sT+5}, s{sT+5}, 660
s_lshl_b32 s{sT+6}, s{sW}, 6
s_add_u32 s{sT+5}, s{sT+5}, s{sT+6}
v_add_u32 v100, s{sT+5}, v0
s_waitcnt lgkmcnt(0)
""")
        for k in range(3):
            A(f"v_lshrrev_b32 v101, 3, v100\nv_lshlrev_b32 v101, 13, v101\nv_and_b32 v102, 7, v100\nv_lshl_add_u32 v101, v102, 6, v101")
            A(f"buffer_load_dword v103, v101, s[{Wk.sWSRC}:{Wk.sWSRC+3}], s{sT+4} offen\nv_add_u32 v100, 256, v100")
    Wk.emit_ln(A,NW,fused=True)
    if prof: A("s_memrealtime s[70:71]")
    A(f"s_mov_b32 s{sTask}, s{sRank}\ns_branch L_dispatch")
    A("L_next:")
    A(f"""
s_barrier
s_cmp_lg_u32 s{sW}, 0
s_cbranch_scc1 L_tk2
s_mov_b32 s60, {cnt(C_QUEUE)}
v_mov_b32 v1, 1
s_mov_b64 exec, 1
buffer_atomic_add v1, off, s[{sWS}:{sWS+3}], s60 sc0
s_waitcnt vmcnt(0)
v_mov_b32 v2, 160000
ds_write_b32 v2, v1
s_waitcnt lgkmcnt(0)
s_mov_b64 exec, -1
L_tk2:
s_barrier
v_mov_b32 v2, 160000
ds_read_b32 v1, v2
s_waitcnt lgkmcnt(0)
v_readfirstlane_b32 s{sTask}, v1
s_add_u32 s{sTask}, s{sTask}, {NW}
L_dispatch:
s_cmp_ge_u32 s{sTask}, 1196
s_cbranch_scc1 L_p4
s_cmp_lt_u32 s{sTask}, 256
s_cbranch_scc1 L_t_h
s_cmp_lt_u32 s{sTask}, 640
s_cbranch_scc1 L_t_kv
s_cmp_lt_u32 s{sTask}, 748
s_cbranch_scc1 L_t_g2
s_cmp_lt_u32 s{sTask}, 1004
s_cbranch_scc1 L_t_q
s_branch L_t_g3
L_t_q:
s_sub_u32 s{sT}, s{sTask}, 748
s_mov_b32 s{sA}, 0
s_lshr_b32 s{sB}, s{sT}, 4
s_and_b32 s{sC}, s{sT}, 15
s_branch L_t_g1
L_t_kv:
s_sub_u32 s{sT}, s{sTask}, 256
s_lshr_b32 s{sB}, s{sT}, 5
s_add_u32 s{sB}, s{sB}, 4
s_bfe_u32 s{sA}, s{sT}, 0x10004
s_add_u32 s{sA}, s{sA}, 1
s_and_b32 s{sC}, s{sT}, 15
L_t_g1:
""")
    def dep1(A):
        A(f"s_lshl_b32 s76, s{sB}, 7\ns_add_u32 s76, s76, {cnt(C_LN)}")
        Wk.wg_wait_cnt(A,"s76",128)
        if prof:
            l=A.uid("L_pf"); A(f"s_cmp_ge_u32 s{sTask}, {NW}\ns_cbranch_scc1 {l}\ns_memrealtime s[78:79]\n{l}:")
    Wk.emit_g1(A,dep1,warmx=False)
    if prof:
        l=A.uid("L_pf"); A(f"s_cmp_ge_u32 s{sTask}, {NW}\ns_cbranch_scc1 {l}\ns_memrealtime s[80:81]\n{l}:")
    A(f"s_cmp_eq_u32 s{sA}, 0\ns_cbranch_scc1 L_sig_q")
    A(f"s_lshl_b32 s{sT}, s{sB}, 7\ns_add_u32 s{sT}, s{sT}, {cnt(C_KV)}")
    Wk.wg_signal(A,f"s{sT}",2)
    A("s_branch L_next\nL_sig_q:")
    A(f"s_lshl_b32 s{sT}, s{sB}, 7\ns_add_u32 s{sT}, s{sT}, {cnt(C_Q)}")
    Wk.wg_signal(A,f"s{sT}",1)
    A("s_branch L_next\nL_t_h:")
    A(f"""
s_cmp_lt_u32 s{sTask}, 192
s_cbranch_scc0 L_t_h2
s_mul_i32 s{sT}, s{sTask}, 21846
s_lshr_b32 s{sT}, s{sT}, 16
s_mul_i32 s{sT+1}, s{sT}, 3
s_sub_u32 s{sB}, s{sTask}, s{sT+1}
s_branch L_t_h3
L_t_h2:
s_mov_b32 s{sB}, 3
s_sub_u32 s{sT}, s{sTask}, 192
L_t_h3:
s_lshr_b32 s{sA}, s{sT}, 5
s_add_u32 s{sA}, s{sA}, 1
s_and_b32 s{sC}, s{sT}, 31
""")
    Wk.emit_g1h(A,dep1)
    A(f"s_lshl_b32 s{sT}, s{sB}, 7\ns_add_u32 s{sT}, s{sT}, {cnt(C_KV)}")
    Wk.wg_signal(A,f"s{sT}",1)
    A("s_branch L_next\nL_t_g2:")
    A(f"s_sub_u32 s{sB}, s{sTask}, 640\ns_mul_i32 s{sA}, s{sB}, 1821\ns_lshr_b32 s{sA}, s{sA}, 16\ns_mul_i32 s{sT}, s{sA}, 36\ns_sub_u32 s{sB}, s{sB}, s{sT}")
    Wk.emit_g2(A,lambda A: Wk.wg_wait_multi(A,cnt(C_LN),16,128))
    A(f"s_mul_i32 s{sT}, s{sB}, 7282\ns_lshr_b32 s{sT}, s{sT}, 16\ns_lshl_b32 s{sT+1}, s{sA}, 2\ns_add_u32 s{sT}, s{sT}, s{sT+1}\ns_lshl_b32 s{sT}, s{sT}, 7\ns_add_u32 s{sT}, s{sT}, {cnt(C_U)}")
    for x in range(36): assert (x*7282)>>16==x//9
    Wk.wg_signal(A,f"s{sT}")
    A("s_branch L_next\nL_t_g3:")
    A(f"s_sub_u32 s{sT}, s{sTask}, 1004\ns_and_b32 s{sC}, s{sT}, 3\ns_bfe_u32 s{sB}, s{sT}, 0x40002\ns_lshr_b32 s{sA}, s{sT}, 6")
    def dep3(A):
        A(f"s_lshl_b32 s76, s{sA}, 2\ns_add_u32 s76, s76, s{sC}\ns_lshl_b32 s76, s76, 7\ns_add_u32 s76, s76, {cnt(C_U)}")
        Wk.wg_wait_cnt(A,"s76",9)
    Wk.emit_g3(A,dep3)
    A(f"s_lshl_b32 s{sT}, s{sB}, 7\ns_add_u32 s{sT}, s{sT}, {cnt(C_Y)}")
    Wk.wg_signal(A,f"s{sT}")
    A("s_branch L_next")
    A("L_p4:")
    if prof: A("s_memrealtime s[72:73]")
    A(f"s_and_b32 s{sA}, s{sRank}, 7\ns_bfe_u32 s{sB}, s{sRank}, 0x20003\ns_lshr_b32 s{sSeg}, s{sRank}, 5\ns_mov_b32 s{sPrev}, -1")
    p4.emit_p4_setup(A)
    Wk.srd_from_karg(A,Wk.sXS,KA_X,2048*1152); Wk.srd_from_karg(A,Wk.sWSRC,KA_OUT,2048*1152)
    Wk.wg_wait_multi(A,cnt(C_Q),16,16)
    Wk.wg_wait_multi(A,cnt(C_KV),16,64)
    Wk.wg_wait_multi(A,cnt(C_Y),16,12)
    def combine():
        skip=A.uid("L_cs")
        A(f"s_cmp_lt_i32 s{sPrev}, 0\ns_cbranch_scc1 {skip}")
        A(f"s_lshl_b32 s{sT}, s{sPrev}, 7\ns_add_u32 s{sT}, s{sT}, {cnt(C_SEG)}")
        Wk.wg_wait_cnt(A,f"s{sT}",32)
        A(f"s_lshl_b32 s{sT+8}, s{sA}, 2\ns_add_u32 s{sT+8}, s{sT+8}, s{sW}\ns_cmp_ge_u32 s{sT+8}, 18\ns_cbranch_scc1 {skip}")
        A(f"s_cmp_ge_u32 s{sT+8}, 9\ns_cselect_b32 s{sT+9}, 1, 0\ns_mul_i32 s{sT+10}, s{sT+9}, 9\ns_sub_u32 s{sT+8}, s{sT+8}, s{sT+10}")
        A(f"s_lshl_b32 s{sC}, s{sPrev}, 1\ns_add_u32 s{sC}, s{sC}, s{sT+9}\ns_mul_i32 s{sD}, s{sB}, 9\ns_add_u32 s{sD}, s{sD}, s{sT+8}")
        p4.emit_combine_tile(A)
        A(f"{skip}:")
    A("L_p4loop:")
    combine()
    A(f"s_mov_b32 s{sC}, s{sSeg}")
    def between(A):
        A(f"s_lshl_b32 s68, s{sA}, 9\ns_add_u32 s68, s68, {cnt(C_PROG)}\ns_add_u32 s69, s{sSeg}, 1")
        Wk.wg_wait_multi(A,"s68",4,"s69")
    p4.emit_p4_segment(A,0,between)
    A("s_waitcnt vmcnt(0)")
    A(f"s_lshl_b32 s{sT}, s{sSeg}, 7\ns_add_u32 s{sT}, s{sT}, {cnt(C_SEG)}")
    Wk.wg_signal(A,f"s{sT}")
    A(f"s_mov_b32 s{sPrev}, s{sSeg}\ns_add_u32 s{sSeg}, s{sSeg}, {NG}\ns_cmp_lt_u32 s{sSeg}, 64\ns_nop 7\ns_cbranch_scc1 L_p4loop")
    combine()
    A("L_abortw:\ns_waitcnt vmcnt(0)")
    if prof:
        A(f"""s_memrealtime s[74:75]
s_load_dwordx2 s[6:7], s[0:1], {KA_WS}
s_waitcnt lgkmcnt(0)
s_add_u32 s6, s6, {WS_STAMP+0x10000}
s_addc_u32 s7, s7, 0
s_lshl_b32 s8, s{sRank}, 4
v_mov_b32 v1, s8
v_mov_b32 v2, s94
v_mov_b32 v3, s70
v_mov_b32 v4, s72
v_mov_b32 v5, s74
global_store_dwordx4 v1, v[2:5], s[6:7]
v_mov_b32 v6, s78
v_mov_b32 v7, s80
v_mov_b32 v8, s82
v_mov_b32 v9, s84
global_store_dwordx4 v1, v[6:9], s[6:7] offset:4000
s_waitcnt vmcnt(0)""")
    A("L_exit:\ns_endpgm")
    lines=fix_hazards(A.lines,True)
    if os.environ.get('ALIGN','3')!='0': lines=align_runs(lines,int(os.environ.get('ALIGN','3')),0,True)
    hdr=open('cdna_kernels/'+NAME+'.s.ref').read().split("; Override")[0]
    name=NAME+"_kernel"
    t=hdr+f"; @launch kernel={name} grid=(256,1,1) block=(256,1,1) lds=163840\n"
    t+=DESIGN
    t+=f'.amdgcn_target "amdgcn-amd-amdhsa--gfx950"\n.text\n.globl {name}\n.p2align 8\n.type {name},@function\n{name}:\n'
    t+="\n".join(lines)+"\n"
    t+=f""".section .rodata,"a"
.p2align 6
.amdhsa_kernel {name}
  .amdhsa_next_free_vgpr 512
  .amdhsa_next_free_sgpr 102
  .amdhsa_accum_offset 256
  .amdhsa_group_segment_fixed_size 0
  .amdhsa_kernarg_size 120
  .amdhsa_user_sgpr_count 2
  .amdhsa_user_sgpr_kernarg_segment_ptr 1
  .amdhsa_system_sgpr_workgroup_id_x 1
.end_amdhsa_kernel
"""
    return t
if __name__=="__main__":
    opt=os.environ.get("CHOPT","nred=2;red_gap=40;npoll=3;poll_gap=25;d_gat=60;d_red=[0,5,0,30,30];d_g1=[10,5];red_early=False;warmk=[7,8,9,10];kvmode='spread';ki=[0,1,3];prewarm=True;codewarm=3;nb=4")
    open(sys.argv[1],"w").write(build(opt))
```

```python
from asmlib import *
from layout import *
import struct, math
def fbits(x): return struct.unpack("<I",struct.pack("<f",x))[0]

vLane=0; vL16M=1; vTR=2; vIdx=3; vWo=4
vH1st=7; vRed=8; vPub=9; vKx=10; vVx=11; vKm=12; vVm=13; vQw=14; vTag=15
vSel=16
vK=20
vV=36
aQ=44; aK=48; aV=52
vA=56
vT=72
def Wq(s): return f"a[{8*s}:{8*s+7}]"
def Wk(s):
    if s<14: return f"a[{144+8*s}:{144+8*s+7}]"
    return f"v[{80+8*(s-14)}:{80+8*(s-14)+7}]"
def Wv(s): return f"v[{112+8*s}:{112+8*s+7}]"
def Wreg(mat,s,q):
    if mat==0: return f"a[{8*s+2*q}:{8*s+2*q+1}]"
    if mat==1:
        if s<14: return f"a[{144+8*s+2*q}:{144+8*s+2*q+1}]"
        return f"v[{80+8*(s-14)+2*q}:{80+8*(s-14)+2*q+1}]"
    return f"v[{112+8*s+2*q}:{112+8*s+2*q+1}]"
def vr(a,n): return f"v[{a}:{a+n-1}]"

sH=10; sW=11; sWS=12; sWT=16
sStep=20
sKXo=21; sVTo=22; sKMo=23; sVMo=24; sH2pub=25; sH2gat=26; sH2rst=27; sH1=28; sH2=29
sTask=30; sHasTask=31; sTagT=32
sTmp=33
sDbg=40; sKarg=42
sRetry=44; sRetry2=45
sMaskF=46
sC=47
sMaskLo=48; sMaskPub=50; sMaskG=52
sWarmK=54; sWarmV=55
sT0=56
WSR=f"s[{sWS}:{sWS+3}]"
QOFF=L_QT-L_MEMT; KOFF=L_KT-L_MEMT; SOFF=L_ST-L_MEMT

class Opt:
    d_red=[0,0,0,0,0]
    d_gat=0
    warm=True
    latenorm=False
    nb=3
    pmode=0
    d_g1m=120
    prewarm=False
    codewarm=0
    commwave=False
    d_g2=[70,10]
    pd=2
    fused=False
    gmode='split'
    g1wave=2
    kvmode='burst'
    spec1=False
    hs=False
    warmk=[7,7,7,7]
    kvx=3
    warmflag=''
    warmdist=2
    fixkv=False
    fixkm=False
    kmflag='sc1'
    steplog=False
    nred=2
    red_gap=24
    ki=[0,2,6]
    d_g1=[80,40]
    npoll=3
    poll_gap=16
    red_early=True
    clk='s_memtime'
OPT=Opt()
def KVS(): return 8192 if OPT.hs else 262144
def KMS(): return 2048 if OPT.hs else 65536

def emit_setup(A, stamps):
    A(f"""
s_mov_b32 s{sKarg}, s0
s_mov_b32 s{sKarg+1}, s1
s_load_dwordx2 s[{sDbg}:{sDbg+1}], s[0:1], {KA_DBG}
s_load_dwordx2 s[{sWS}:{sWS+1}], s[0:1], {KA_WS}
v_lshrrev_b32 v{vT}, 6, v0
v_and_b32 v{vLane}, 63, v0
v_readfirstlane_b32 s{sW}, v{vT}
s_mov_b32 s{sWS+2}, {WS_SIZE}
s_mov_b32 s{sWS+3}, 0x20000
s_mov_b32 s{sWT+3}, 0x20000
s_mov_b32 s{sH1}, {WS_H1}
s_mov_b32 s{sH2}, {WS_H2}
s_mov_b32 s{sMaskLo}, 0x00ff00ff
s_mov_b32 s{sMaskLo+1}, 0x00ff00ff
s_mov_b32 s{sMaskPub}, 0x00ff00ff
s_mov_b32 s{sMaskPub+1}, 0
s_mov_b32 s{sMaskG}, -1
s_mov_b32 s{sMaskG+1}, 0
s_mov_b32 s{sRetry}, 0
s_mov_b32 s{sRetry2}, 0
s_mov_b32 s{sMaskF}, 0xfffefffe
s_mov_b32 s{sC}, {hex(fbits(128**-0.5*math.log2(math.e)))}
""")
    t0,t1,t2,t3=vT,vT+1,vT+2,vT+3
    if stamps: A("s_memtime s[88:89]")
    if OPT.fused:
        A(f"""
s_cmp_eq_u32 s{sH}, 0
s_cbranch_scc0 L_noclr
s_waitcnt lgkmcnt(0)
v_lshlrev_b32 v{vA}, 4, v{vLane}
v_mov_b32 v{vA+4}, 0
v_mov_b32 v{vA+5}, 0
v_mov_b32 v{vA+6}, 0
v_mov_b32 v{vA+7}, 0
s_mul_i32 s{sTmp}, s{sW}, 6144
s_add_u32 s{sTmp}, s{sTmp}, {WS_CNT}
""")
        for j in range(6):
            A(f"buffer_store_dwordx4 {vr(vA+4,4)}, v{vA}, {WSR}, s{sTmp} offen sc1\ns_add_u32 s{sTmp}, s{sTmp}, 1024")
        A(f"""
s_waitcnt vmcnt(0)
s_barrier
s_cmp_eq_u32 s{sW}, 0
s_cbranch_scc0 L_noclr
v_mov_b32 v{vA}, {DBG_INIT}
v_mov_b32 v{vA+1}, 1
s_mov_b64 exec, 1
global_store_dword v{vA}, v{vA+1}, s[{sDbg}:{sDbg+1}] sc1
s_mov_b64 exec, -1
L_noclr:
""")
    A(f"""
v_lshlrev_b32 v{vL16M}, 4, v{vLane}
v_add_u32 v{vL16M}, {L_MEMT}, v{vL16M}
v_lshrrev_b32 v{t0}, 4, v{vLane}
v_lshlrev_b32 v{t0}, 7, v{t0}
v_bfe_u32 v{t1}, v{vLane}, 2, 2
v_lshl_add_u32 v{t0}, v{t1}, 4, v{t0}
v_and_b32 v{t1}, 1, v{vLane}
v_lshl_add_u32 v{t0}, v{t1}, 3, v{t0}
v_add_u32 v{vTR}, {L_MEMT}, v{t0}
v_and_b32 v{t0}, 8, v{vLane}
v_cmp_ne_u32 vcc, 0, v{t0}
v_mov_b32 v{t0}, 0x4444
v_mov_b32 v{t1}, 0xeeee
v_cndmask_b32 v{vIdx}, v{t0}, v{t1}, vcc
""")
    A(f"""
v_lshlrev_b32 v{vWo}, 4, v{vLane}
v_add_u32 v{vWo+1}, 49152, v{vWo}
v_add_u32 v{vWo+2}, 98304, v{vWo}
""")
    A(f"""
v_bfe_u32 v{t0}, v{vLane}, 5, 1
v_lshlrev_b32 v{t0}, 1, v{t0}
v_bfe_u32 v{t1}, v{vLane}, 3, 1
v_add_u32 v{t0}, v{t0}, v{t1}
v_lshlrev_b32 v{t0}, 12, v{t0}
v_and_b32 v{t1}, 7, v{vLane}
v_lshl_add_u32 v{t0}, v{t1}, 4, v{t0}
v_bfe_u32 v{t1}, v{vLane}, 4, 1
v_lshl_add_u32 v{t0}, v{t1}, 3, v{t0}
s_lshl_b32 s{sTmp+1}, s{sH}, 7
v_add_u32 v{vH1st}, s{sTmp+1}, v{t0}
""")
    A(f"""
s_and_b32 s{sTmp}, s{sH}, 1
s_sub_u32 s{sTmp+1}, s{sW}, 2
s_lshl_b32 s{sTmp+1}, s{sTmp+1}, 1
s_add_u32 s{sTmp}, s{sTmp}, s{sTmp+1}
s_lshl_b32 s{sTmp}, s{sTmp}, 4
s_lshr_b32 s{sTmp+1}, s{sH}, 1
s_add_u32 s{sTask}, s{sTmp}, s{sTmp+1}
s_mov_b32 s{sHasTask}, 1
s_cmp_ge_u32 s{sW}, 2
s_cbranch_scc1 L_task_done
s_lshr_b32 s{sTask}, s{sH}, 2
s_add_u32 s{sTask}, s{sTask}, 64
s_and_b32 s{sTmp}, s{sH}, 3
s_cmp_eq_u32 s{sTmp}, 0
s_cselect_b32 s{sHasTask}, 1, 0
s_cmp_eq_u32 s{sW}, 1
s_cselect_b32 s{sHasTask}, s{sHasTask}, 0
s_cmp_eq_u32 s{sHasTask}, 1
s_cselect_b32 s{sTask}, s{sTask}, 0
L_task_done:
s_lshl_b32 s{sTmp}, s{sTask}, 12
v_lshlrev_b32 v{t0}, 4, v{vLane}
v_add_u32 v{vRed}, s{sTmp}, v{t0}
s_lshl_b32 s{sTmp}, s{sTask}, 7
v_and_b32 v{t0}, 7, v{vLane}
v_lshlrev_b32 v{t0}, 4, v{t0}
v_lshrrev_b32 v{t1}, 4, v{vLane}
v_lshl_add_u32 v{t0}, v{t1}, 3, v{t0}
v_add_u32 v{vPub}, s{sTmp}, v{t0}
v_and_b32 v{t0}, 15, v{vLane}
s_add_u32 s{sTmp}, s{sW}, 3
s_and_b32 s{sTmp}, s{sTmp}, 1
s_lshl_b32 s{sTmp}, s{sTmp}, 4
v_add_u32 v{t0}, s{sTmp}, v{t0}
v_lshlrev_b32 v{t0}, 4, v{t0}
v_lshrrev_b32 v{t1}, 4, v{vLane}
v_lshl_add_u32 v{t0}, v{t1}, 9, v{t0}
s_lshl_b32 s{sTmp}, s{sH}, {19 if OPT.hs else 13}
v_add_u32 v{vKx}, s{sTmp}, v{t0}
v_and_b32 v{t0}, 15, v{vLane}
v_lshlrev_b32 v{t0}, 4, v{t0}
v_lshl_add_u32 v{t0}, v{t1}, 11, v{t0}
s_lshl_b32 s{sTmp}, s{sH}, {19 if OPT.hs else 13}
s_lshl_b32 s{sTmp+1}, s{sW}, 9
s_add_u32 s{sTmp}, s{sTmp}, s{sTmp+1}
v_add_u32 v{vVx}, s{sTmp}, v{t0}
v_and_b32 v{t0}, 7, v{vLane}
v_lshlrev_b32 v{t0}, 8, v{t0}
v_lshl_add_u32 v{vKm}, v{t1}, 4, v{t0}
v_and_b32 v{t0}, 15, v{vLane}
v_bfe_u32 v{t1}, v{vLane}, 5, 1
v_lshl_add_u32 v{t0}, v{t1}, 4, v{t0}
s_lshl_b32 s{sTmp}, s{sW}, 5
v_add_u32 v{t0}, s{sTmp}, v{t0}
v_lshlrev_b32 v{t0}, 4, v{t0}
v_bfe_u32 v{t1}, v{vLane}, 4, 1
v_lshl_add_u32 v{vVm}, v{t1}, 3, v{t0}
v_add_u32 v{vQw}, {L_QT}, v{vVm}
""")
    A(f"v_and_b32 v{t0}, 7, v{vLane}")
    for j in range(4):
        A(f"""
v_mov_b32 v{vSel+j}, 0
v_cmp_eq_u32 vcc, {2*j}, v{t0}
v_mov_b32 v{t1}, 0x3f80
v_cndmask_b32 v{vSel+j}, v{vSel+j}, v{t1}, vcc
v_cmp_eq_u32 vcc, {2*j+1}, v{t0}
v_mov_b32 v{t1}, 0x3f800000
v_cndmask_b32 v{vSel+j}, v{vSel+j}, v{t1}, vcc
""")
    A("s_waitcnt lgkmcnt(0)")
    vW0,vW1,vWoD=vA+4,vA+5,vA+6
    A(f"""
v_lshrrev_b32 v{t0}, 4, v{vLane}
v_and_b32 v{t1}, 1, v{t0}
v_lshlrev_b32 v{t1}, 2, v{t1}
v_and_b32 v{t2}, 15, v{vLane}
v_xor_b32 v{t2}, v{t2}, v{t1}
v_lshlrev_b32 v{t0}, 13, v{t0}
s_lshl_b32 s{sTmp}, s{sH}, 8
s_lshl_b32 s{sTmp+1}, s{sW}, 17
s_add_u32 s{sTmp}, s{sTmp}, s{sTmp+1}
v_add_u32 v{t0}, s{sTmp}, v{t0}
v_lshl_add_u32 v{vW0}, v{t2}, 4, v{t0}
v_xor_b32 v{t2}, 8, v{t2}
v_lshl_add_u32 v{vW1}, v{t2}, 4, v{t0}
""")
    def dma_chunk(c):
        slot=c%9
        if c<27:
            r0=64*(c%9)
            for j in range(4):
                A(f"s_lshl_b32 s{sTmp}, s{sW}, 12\ns_add_u32 m0, s{sTmp}, {slot*16384+j*1024}")
                A(f"s_mov_b32 s{sTmp+1}, {(r0+4*j)*8192}")
                A(f"buffer_load_dwordx4 v{vW0 if j%2==0 else vW1}, s[{sWT}:{sWT+3}], s{sTmp+1} offen lds")
        else:
            cc=c-27
            for j in range(4):
                A(f"s_lshl_b32 s{sTmp}, s{sW}, 2\ns_add_u32 s{sTmp}, s{sTmp}, {16*cc+j}\ns_lshl_b32 s{sTmp}, s{sTmp}, 6")
                A(f"v_add_u32 v{t0}, s{sTmp}, v{vLane}")
                A(f"v_mul_u32_u24 v{t1}, 58255, v{t0}\nv_lshrrev_b32 v{t1}, 26, v{t1}\nv_and_b32 v{t1}, 1, v{t1}\nv_lshlrev_b32 v{t1}, 2, v{t1}\nv_xor_b32 v{t0}, v{t0}, v{t1}\nv_lshlrev_b32 v{vWoD}, 4, v{t0}")
                A(f"s_lshl_b32 s{sTmp}, s{sW}, 12\ns_add_u32 m0, s{sTmp}, {slot*16384+j*1024}")
                A(f"buffer_load_dwordx4 v{vWoD}, s[{sWT}:{sWT+3}], 0 offen lds")
    def set_wsrd(c):
        if c in (0,9,18):
            A(f"s_load_dwordx2 s[{sWT}:{sWT+1}], s[{sKarg}:{sKarg+1}], {[KA_WQ,KA_WK,KA_WV][c//9]}\ns_mov_b32 s{sWT+2}, {576*8192}\ns_waitcnt lgkmcnt(0)")
        if c==27:
            A(f"s_load_dwordx2 s[{sWT}:{sWT+1}], s[{sKarg}:{sKarg+1}], {KA_WO}\ns_waitcnt lgkmcnt(0)")
            A(f"s_mul_i32 s{sTmp}, s{sH}, 147456\ns_add_u32 s{sWT}, s{sWT}, s{sTmp}\ns_addc_u32 s{sWT+1}, s{sWT+1}, 0\ns_mov_b32 s{sWT+2}, 147456")
    vWr=vA+7
    A(f"""
v_lshrrev_b32 v{t0}, 4, v{vLane}
v_bfe_u32 v{t1}, v{vLane}, 2, 1
v_lshl_add_u32 v{t2}, v{t0}, 2, v{t1}
v_lshlrev_b32 v{t2}, 8, v{t2}
v_and_b32 v{t0}, 1, v{t0}
v_lshl_add_u32 v{t0}, v{t0}, 1, v{t1}
v_lshlrev_b32 v{t0}, 2, v{t0}
v_bfe_u32 v{t1}, v{vLane}, 3, 1
v_lshlrev_b32 v{t1}, 1, v{t1}
v_bfe_u32 v{t3}, v{vLane}, 1, 1
v_add_u32 v{t1}, v{t1}, v{t3}
s_lshl_b32 s{sTmp}, s{sW}, 2
v_add_u32 v{t1}, s{sTmp}, v{t1}
v_xor_b32 v{t1}, v{t1}, v{t0}
v_lshl_add_u32 v{t2}, v{t1}, 4, v{t2}
v_and_b32 v{t3}, 1, v{vLane}
v_lshl_add_u32 v{vWr}, v{t3}, 3, v{t2}
v_add_u32 v{vWr+1}, 65536, v{vWr}
v_add_u32 v{vWr+2}, 131072, v{vWr}
""")
    A(f"""
s_load_dwordx2 s[60:61], s[{sKarg}:{sKarg+1}], {KA_MEM0}
s_mov_b32 s62, 9216
s_mov_b32 s63, 0x20000
v_lshrrev_b32 v{vA}, 4, v{vLane}
v_and_b32 v{vA}, 1, v{vA}
v_mul_u32_u24 v{vA}, {4*1152}, v{vA}
v_and_b32 v{vA+1}, 7, v{vLane}
v_lshl_add_u32 v{vA}, v{vA+1}, 1, v{vA}
s_lshl_b32 s{sTmp}, s{sTask}, 4
s_waitcnt lgkmcnt(0)
""")
    for r in range(4):
        A(f"buffer_load_ushort v{vK+r}, v{vA}, s[60:63], s{sTmp} offen offset:{r*1152}")
    A(f"v_mov_b32 v{vT+4}, 0\nv_mov_b32 v{vT+5}, 0\nv_mov_b32 v{vT+6}, -1\nv_mov_b32 v{vT+7}, -1")
    A(f"s_lshl_b32 s{sTmp+2}, s{sW}, 14\ns_add_u32 s{sTmp+2}, s{sTmp+2}, s{sH1}")
    for r in range(4):
        A(f"s_add_u32 s{sTmp}, s{sTmp+2}, {r*65536}")
        A(f"buffer_store_dwordx2 {vr(vT+4,2)}, v{vH1st}, {WSR}, s{sTmp} offen")
    A(f"s_cmp_lt_u32 s{sW}, 2\ns_cbranch_scc0 L_clr1_skip")
    A(f"s_add_u32 s{sTmp}, s{sTmp+2}, {4*65536}")
    A(f"buffer_store_dwordx2 {vr(vT+4,2)}, v{vH1st}, {WSR}, s{sTmp} offen")
    A("L_clr1_skip:")
    A(f"s_cmp_eq_u32 s{sHasTask}, 1\ns_cbranch_scc0 L_clr2_skip")
    A(f"s_mov_b64 exec, s[{sMaskPub}:{sMaskPub+1}]")
    for sl in range(1,4):
        A(f"s_add_u32 s{sTmp}, s{sH2}, {sl*16384}")
        A(f"buffer_store_dwordx2 {vr(vT+6,2)}, v{vPub}, {WSR}, s{sTmp} offen")
    A("s_waitcnt vmcnt(0)")
    A(f"v_lshl_or_b32 v{vK}, v{vK+1}, 16, v{vK}\nv_lshl_or_b32 v{vK+1}, v{vK+3}, 16, v{vK+2}\nv_min_u32 v{vK}, -2, v{vK}")
    A(f"buffer_store_dwordx2 {vr(vK,2)}, v{vPub}, {WSR}, s{sH2} offen")
    A("s_mov_b64 exec, -1\nL_clr2_skip:")
    if OPT.codewarm:
        A(f"""
s_getpc_b64 s[64:65]
L_pcref:
s_add_u32 s64, s64, L_code_begin-L_pcref
s_addc_u32 s65, s65, 0
v_lshlrev_b32 v{vT+7}, 6, v{vLane}
s_lshl_b32 s{sTmp}, s{sW}, 12
v_add_u32 v{vT+7}, s{sTmp}, v{vT+7}
""")
        for j in range(OPT.codewarm):
            A(f"global_load_dword v{vA+1}, v{vT+7}, s[64:65]\nv_add_u32 v{vT+7}, 16384, v{vT+7}")
    DEPTH=8
    set_wsrd(0)
    for c in range(DEPTH): dma_chunk(c)
    A(f"s_waitcnt vmcnt({DEPTH*4})")
    A(f"""
s_waitcnt lgkmcnt(0)
s_barrier
s_cmp_eq_u32 s{sW}, 0
s_cbranch_scc0 L_cb_skip
v_mov_b32 v{vT}, 64
v_mov_b32 v{vT+1}, 1
s_mov_b64 exec, 1
global_atomic_add v{vT}, v{vT+1}, s[{sDbg}:{sDbg+1}]
s_mov_b64 exec, -1
L_cb_skip:
""")
    if stamps: A("s_memtime s[90:91]")
    for c in range(27):
        nxt=c+DEPTH
        A(f"s_waitcnt vmcnt({(DEPTH-1)*4 - (1 if c<8 else 0)})" if False else f"s_waitcnt vmcnt({(DEPTH-1)*4})")
        A("s_barrier")
        if nxt<36:
            set_wsrd(nxt); dma_chunk(nxt)
        mat=c//9; slot=c%9
        for ks in range(2):
            s=2*(c%9)+ks
            for q in range(4):
                off=slot*16384+ks*8192+(2*(q&1)+16*(q>>1))*256
                base=vWr+off//65536; off%=65536
                A(f"ds_read_b64_tr_b16 {Wreg(mat,s,q)}, v{base} offset:{off}")
        A("s_waitcnt lgkmcnt(0)")
        A("s_barrier")
    dma_chunk(35)
    A("s_waitcnt vmcnt(0)\ns_barrier")
    vC=vA+10
    A(f"""
v_bfe_u32 v{t0}, v{vLane}, 4, 1
v_bfe_u32 v{t1}, v{vLane}, 5, 1
v_lshlrev_b32 v{t2}, 4, v{t0}
v_lshl_add_u32 v{t2}, v{t1}, 2, v{t2}
v_bfe_u32 v{t3}, v{vLane}, 2, 1
v_add_u32 v{t2}, v{t2}, v{t3}
v_mul_u32_u24 v{t2}, 1152, v{t2}
v_xor_b32 v{t0}, s{sW}, v{t0}
v_lshl_add_u32 v{t2}, v{t0}, 6, v{t2}
v_bfe_u32 v{t3}, v{vLane}, 3, 1
v_lshl_add_u32 v{t2}, v{t3}, 5, v{t2}
v_and_b32 v{t3}, 3, v{vLane}
v_lshl_add_u32 v{vC}, v{t3}, 3, v{t2}
v_add_u32 v{vC+1}, 73728, v{vC}
s_lshl_b32 s{sTmp}, s{sW}, 11
v_add_u32 v{vC+2}, s{sTmp}, v{vWo}
v_add_u32 v{vC+3}, s{sTmp}, v{vWo+1}
v_add_u32 v{vC+4}, s{sTmp}, v{vWo+2}
""")
    for s in range(4):
        base=vC if s<2 else vC+1
        lab=A.uid("L_cv"); lab2=A.uid("L_cw")
        for r in range(5):
            if r==4: A(f"s_cmp_lt_u32 s{sW}, 2\ns_cbranch_scc0 {lab}")
            for q in range(4):
                off=(s%2)*36864+(2*(q&1)+8*(q>>1))*1152+r*256
                A(f"ds_read_b64_tr_b16 {vr(vK-0+8*r+2*q,2)}, v{base} offset:{off}")
            if r%2==1: A("s_waitcnt lgkmcnt(0)")
        A(f"{lab}:\ns_waitcnt lgkmcnt(0)\ns_barrier")
        for r in range(5):
            if r==4: A(f"s_cmp_lt_u32 s{sW}, 2\ns_cbranch_scc0 {lab2}")
            for half in range(2):
                off=s*36864+r*8192+half*1024
                A(f"ds_write_b128 v{vC+2+off//49152}, {vr(vK+8*r+4*half,4)} offset:{off%49152}")
        A(f"{lab2}:\ns_waitcnt lgkmcnt(0)\ns_barrier")
    if stamps: A("s_memtime s[92:93]")
    A(f"""
s_cmp_eq_u32 s{sW}, 0
s_cbranch_scc0 L_cb_wait
v_mov_b32 v{vT}, 64
s_mov_b32 s{sTmp}, 0
L_cb_poll:
global_load_dword v{vT+2}, v{vT}, s[{sDbg}:{sDbg+1}] sc1
s_waitcnt vmcnt(0)
v_readfirstlane_b32 s{sTmp+1}, v{vT+2}
s_add_u32 s{sTmp}, s{sTmp}, 1
s_cmp_gt_u32 s{sTmp}, 2000000
s_cbranch_scc1 L_abort
s_cmp_ge_u32 s{sTmp+1}, 32
s_cbranch_scc0 L_cb_poll
""")
    if OPT.fused and stamps: A("s_memtime s[90:91]")
    if OPT.fused:
        A(f"""
s_mov_b32 s{sTmp+2}, {cnt(C_KV)}
L_kv_poll:
buffer_load_dword v{vT+2}, off, {WSR}, s{sTmp+2} sc1
s_waitcnt vmcnt(0)
v_readfirstlane_b32 s{sTmp+1}, v{vT+2}
s_add_u32 s{sTmp}, s{sTmp}, 1
s_cmp_gt_u32 s{sTmp}, 4000000
s_cbranch_scc1 L_abort
s_sleep 1
s_cmp_ge_u32 s{sTmp+1}, 64
s_cbranch_scc0 L_kv_poll
""")
    A(f"""
L_cb_wait:
s_barrier
""")
    if OPT.fused:
        A(f"s_cmp_eq_u32 s{sW}, 3\ns_cbranch_scc0 L_nf\nv_mov_b32 v10, 64\nL_nf:")
    if OPT.prewarm:
        A(f"v_lshlrev_b32 v{vT+7}, 2, v{vL16M}\ns_lshl_b32 s{sTmp}, s{sH}, 13\ns_lshl_b32 s{sTmp+1}, s{sW}, 12\ns_and_b32 s{sTmp+1}, s{sTmp+1}, 4096\ns_add_u32 s{sTmp}, s{sTmp}, s{sTmp+1}")
        A(f"s_cmp_lt_u32 s{sW}, 2\ns_mov_b32 s{sTmp+2}, {WS_VT-L_MEMT*4}\ns_cselect_b32 s{sTmp+2}, {WS_KX-L_MEMT*4}, s{sTmp+2}\ns_add_u32 s{sTmp}, s{sTmp}, s{sTmp+2}")
        for sg in range(2):
            A(f"buffer_load_dword v0, v{vT+7}, {WSR}, s{sTmp} offen\ns_add_u32 s{sTmp}, s{sTmp}, 262144")
        A("s_waitcnt vmcnt(0)")

PAIRS=[[0,4,8,12,16],[1,5,9,13,17],[2,6,10],[3,7,11,15,14]]
PAIRS_C=[[0,3,6,9,12,15],[1,4,7,10,13,16],[],[2,5,8,11,14,17]]
PAIRS_D=[[0,4,8,10,14,17],[1,5,9,12,15],[2,6],[3,7,11,13,16]]
PAIRS_E=[[0,4,8,12,16],[1,5,9,13,17],[2,6],[3,7,10,11,14,15]]
def pairs(w): return PAIRS_C[w] if OPT.commwave==True else {0:PAIRS,1:PAIRS_D,2:PAIRS_E}[OPT.pmode][w]
def wo_addr(P, s, half):
    off=s*36864+P*2048+half*1024
    return vWo+off//49152, off%49152

class Cnt:
    def __init__(self,A,name,maxn): self.A=A; self.q=[]; self.name=name; self.maxn=maxn
    def add(self,tag,n=1):
        self.q+= [tag]*n
        assert len(self.q)<=self.maxn, (self.name,self.q)
    def wait(self,tag):
        if tag not in self.q: return
        idx=max(i for i,x in enumerate(self.q) if x==tag)
        self.A(f"s_waitcnt {self.name}({len(self.q)-idx-1})"); del self.q[:idx+1]
    def drain(self):
        self.A(f"s_waitcnt {self.name}(0)"); self.q=[]
    def clear(self): self.q=[]

class Stream:
    def __init__(self, A, w, red_round, nsteps, stamps, stamp_step, sid):
        self.A=A; self.w=w; self.rr=red_round; self.nsteps=nsteps; self.stamps=stamps; self.sid=sid
        self.nst=0; self.names=[]
        self.L=Cnt(A,"lgkmcnt",15); self.V=Cnt(A,"vmcnt",63)
        self.ool=[]
    def stamp(self,name=""):
        if self.stamps==True:
            self.A(f"{OPT.clk} s[{sT0+2*self.nst}:{sT0+2*self.nst+1}]"); self.names.append(name); self.nst+=1
            assert self.nst<=16
    def delay(self,d):
        while d>0: self.A(f"s_nop {min(d,16)-1}"); d-=16
    def trr1(self,dst,off,tag):
        self.A(f"ds_read_b64_tr_b16 {vr(dst,2)}, v{vTR} offset:{off}"); self.L.add(tag)
    def trr(self,dst,off,tag):
        self.trr1(dst,off,tag); self.trr1(dst+2,off+64,tag)
    def gat_issue(self,r,b,tag=None):
        A=self.A
        A(f"s_add_u32 s{sTmp}, s{sH2gat}, {r*2048}")
        A(f"buffer_load_dwordx4 {vr(b,4)}, v{vL16M}, {WSR}, s{sTmp} offen sc1")
        if r<4: A(f"buffer_load_dwordx4 {vr(b+4,4)}, v{vL16M}, {WSR}, s{sTmp} offen offset:1024 sc1")
        if tag: self.V.add(tag,2 if r<4 else 1)
    def gat_check_parts(self,r,b):
        A=self.A
        rt=A.uid("L_grt"); back=A.uid("L_gbk")
        t=vT+6
        g=[]
        g.append(lambda: self.V.wait(("g",r)))
        if r<4:
            g.append(lambda: A(f"v_max3_u32 v{t}, v{b}, v{b+2}, v{b+4}"))
            g.append(lambda: A(f"v_max_u32 v{t}, v{t}, v{b+6}"))
        else:
            g.append(lambda: A(f"v_max_u32 v{t}, v{b}, v{b+2}"))
        g.append(lambda: A(f"v_cmp_eq_u32 vcc, -1, v{t}"))
        def wr():
            A(f"ds_write_b128 v{vL16M}, {vr(b,4)} offset:{r*2048}"); self.L.add(("gw",r))
        def wr2():
            if r<4: A(f"ds_write_b128 v{vL16M}, {vr(b+4,4)} offset:{r*2048+1024}"); self.L.add(("gw",r))
        g.append(wr); g.append(wr2)
        g.append(lambda: A(f"s_cbranch_vccnz {rt}\n{back}:"))
        def ool():
            lp=A.uid("L_glp")
            A(f"{rt}:\n{lp}:\ns_add_u32 s{sRetry2}, s{sRetry2}, 1\ns_cmp_gt_u32 s{sRetry2}, 1000000\ns_cbranch_scc1 L_abort\ns_waitcnt lgkmcnt(0)")
            self.gat_issue(r,b)
            A("s_waitcnt vmcnt(0)")
            if r<4: A(f"v_max3_u32 v{t}, v{b}, v{b+2}, v{b+4}\nv_max_u32 v{t}, v{t}, v{b+6}")
            else: A(f"v_max_u32 v{t}, v{b}, v{b+2}")
            A(f"v_cmp_eq_u32 vcc, -1, v{t}\ns_cbranch_vccnz {lp}")
            A(f"ds_write_b128 v{vL16M}, {vr(b,4)} offset:{r*2048}")
            if r<4: A(f"ds_write_b128 v{vL16M}, {vr(b+4,4)} offset:{r*2048+1024}")
            A(f"s_waitcnt lgkmcnt(0)\ns_branch {back}")
        self.ool.append(ool)
        return g
    def gat_poll(self,r):
        A=self.A
        sets=[vK,vK+8,vV][:OPT.npoll]; NS=len(sets)
        A(f"s_add_u32 s{sTmp+4}, s{sH2gat}, {r*2048}")
        def iss(b):
            A(f"buffer_load_dwordx4 {vr(b,4)}, v{vL16M}, {WSR}, s{sTmp+4} offen sc1")
            A(f"buffer_load_dwordx4 {vr(b+4,4)}, v{vL16M}, {WSR}, s{sTmp+4} offen offset:1024 sc1")
        for i,b in enumerate(sets):
            iss(b)
            if i<NS-1: self.delay(OPT.poll_gap)
        lp=A.uid("L_g0p"); done=A.uid("L_g0d"); oks=[A.uid("L_g0k") for _ in sets]
        A(f"{lp}:")
        for i,b in enumerate(sets):
            A(f"s_waitcnt vmcnt({2*(NS-1)})")
            A(f"v_max3_u32 v{vT+6}, v{b}, v{b+2}, v{b+4}\nv_max_u32 v{vT+6}, v{vT+6}, v{b+6}")
            A(f"v_cmp_eq_u32 vcc, -1, v{vT+6}\ns_cbranch_vccz {oks[i]}")
            iss(b)
        A(f"s_add_u32 s{sRetry2}, s{sRetry2}, 1\ns_cmp_gt_u32 s{sRetry2}, 1000000\ns_cbranch_scc1 L_abort\ns_branch {lp}")
        for i,b in enumerate(sets):
            A(f"{oks[i]}:")
            A(f"ds_write_b128 v{vL16M}, {vr(b,4)} offset:{r*2048}\nds_write_b128 v{vL16M}, {vr(b+4,4)} offset:{r*2048+1024}")
            if i<NS-1: A(f"s_branch {done}")
        A(f"{done}:\ns_waitcnt lgkmcnt(0)")
        self.L.clear()
    def gat_poll01(self):
        A=self.A
        sets=[vK,vA][:OPT.npoll]; NS=len(sets)
        def iss(b):
            A(f"buffer_load_dwordx4 {vr(b,4)}, v{vL16M}, {WSR}, s{sH2gat} offen sc1")
            A(f"buffer_load_dwordx4 {vr(b+4,4)}, v{vL16M}, {WSR}, s{sH2gat} offen offset:1024 sc1")
            A(f"buffer_load_dwordx4 {vr(b+8,4)}, v{vL16M}, {WSR}, s{sH2gat} offen offset:2048 sc1")
            A(f"buffer_load_dwordx4 {vr(b+12,4)}, v{vL16M}, {WSR}, s{sH2gat} offen offset:3072 sc1")
        for i,b in enumerate(sets):
            iss(b)
            if i<NS-1: self.delay(OPT.poll_gap)
        lp=A.uid("L_g0p"); done=A.uid("L_g0d"); oks=[A.uid("L_g0k") for _ in sets]
        A(f"{lp}:")
        for i,b in enumerate(sets):
            A(f"s_waitcnt vmcnt({4*(NS-1)})")
            A(f"v_max3_u32 v{vT+6}, v{b}, v{b+2}, v{b+4}\nv_max3_u32 v{vT+7}, v{b+6}, v{b+8}, v{b+10}\nv_max3_u32 v{vT+6}, v{vT+6}, v{b+12}, v{b+14}\nv_max_u32 v{vT+6}, v{vT+6}, v{vT+7}")
            A(f"v_cmp_eq_u32 vcc, -1, v{vT+6}\ns_cbranch_vccz {oks[i]}")
            iss(b)
        A(f"s_add_u32 s{sRetry2}, s{sRetry2}, 1\ns_cmp_gt_u32 s{sRetry2}, 1000000\ns_cbranch_scc1 L_abort\ns_branch {lp}")
        for i,b in enumerate(sets):
            A(f"{oks[i]}:")
            for j in range(4): A(f"ds_write_b128 v{vL16M}, {vr(b+4*j,4)} offset:{j*1024}")
            if i<NS-1: A(f"s_branch {done}")
        A(f"{done}:\ns_waitcnt vmcnt(0) lgkmcnt(0)")
        self.L.clear()
    def red_iss(self,b,second=False):
        if second: self.A(f"s_add_u32 s{sTmp+5}, s{sH1}, {32*4096}")
        for k in range(4):
            self.A(f"buffer_load_dwordx4 {vr(b+4*k,4)}, v{vRed}, {WSR}, s{sTmp+5 if second else sH1} offen offset:{k*1024} sc1")
    def red_poll(self,pre_issued=False,younger=0,second=False):
        A=self.A
        sets=[vK,vA][:OPT.nred]; NS=len(sets)
        iss=lambda b: self.red_iss(b,second)
        for i,b in enumerate(sets):
            if not (i==0 and pre_issued): iss(b)
            if i<NS-1: self.delay(OPT.red_gap)
        lp=A.uid("L_rp"); done=A.uid("L_rd")
        oks={}
        def check(b,cnt):
            A(f"s_waitcnt vmcnt({cnt})")
            A(f"""
v_xor_b32 v{vT+6}, v{b}, v{vTag}
v_bitop3_b32 v{vT+6}, v{vT+6}, v{b+4}, v{vTag} bitop3:0xf6
v_bitop3_b32 v{vT+6}, v{vT+6}, v{b+8}, v{vTag} bitop3:0xf6
v_bitop3_b32 v{vT+6}, v{vT+6}, v{b+12}, v{vTag} bitop3:0xf6
""")
            if OPT.spec1: A(f"v_mfma_f32_16x16x32_bf16 {vr(aV,4)}, {vr(vSel,4)}, {vr(b,4)}, 0")
            A(f"""
v_and_b32 v{vT+6}, 0x10001, v{vT+6}
v_cmp_ne_u32 vcc, 0, v{vT+6}
s_cbranch_vccz {oks.setdefault(b,A.uid("L_rk"))}
""")
            iss(b)
        check(sets[0],4*(NS-1)+(younger if pre_issued else 0))
        order=sets[1:]+sets[:1]
        A(f"{lp}:")
        for b in order: check(b,4*(NS-1))
        A(f"s_add_u32 s{sRetry}, s{sRetry}, 1\ns_cmp_gt_u32 s{sRetry}, 1000000\ns_cbranch_scc1 L_abort\ns_branch {lp}")
        for n_,b in enumerate(sets):
            A(f"{oks[b]}:")
            for k in range(4):
                A(f"v_mfma_f32_16x16x32_bf16 {vr(aV,4)}, {vr(vSel,4)}, {vr(b+4*k,4)}, {'0' if k==0 else vr(aV,4)}")
            if n_<len(sets)-1: A(f"s_branch {done}")
        A(f"{done}:")
        for r in range(4):
            A(f"v_add_f32_dpp v{aV+r}, v{aV+r}, v{aV+r} row_ror:8 row_mask:0xf bank_mask:0xf")
        A(f"""
v_cvt_pk_bf16_f32 v{vT+4}, v{aV}, v{aV+1}
v_cvt_pk_bf16_f32 v{vT+5}, v{aV+2}, v{aV+3}
s_mov_b64 exec, s[{sMaskPub}:{sMaskPub+1}]
v_min_u32 v{vT+4}, -2, v{vT+4}
""")
        if second: A(f"s_add_u32 s{sTmp+5}, s{sH2pub}, 4096\ns_add_u32 s{sTmp+6}, s{sH2rst}, 4096")
        A(f"""
buffer_store_dwordx2 {vr(vT+4,2)}, v{vPub}, {WSR}, s{sTmp+5 if second else sH2pub} offen
v_mov_b32 v{vT+6}, -1
v_mov_b32 v{vT+7}, -1
buffer_store_dwordx2 {vr(vT+6,2)}, v{vPub}, {WSR}, s{sTmp+6 if second else sH2rst} offen
s_mov_b64 exec, -1
""")
    def kx_loads(self):
        A=self.A
        A(f"s_add_u32 s{sTmp+1}, s{sKXo}, 4096")
        for s in range(4):
            A(f"buffer_load_dwordx4 {vr(vK+4*s,4)}, v{vKx}, {WSR}, s{sKXo if s<2 else sTmp+1} offen offset:{(s%2)*2048} sc1")
        self.V.add(("kx",0),4)
    def kx1(self,s_):
        A=self.A
        if s_>=2: A(f"s_add_u32 s{sTmp+1}, s{sKXo}, 4096")
        A(f"buffer_load_dwordx4 {vr(vK+4*s_,4)}, v{vKx}, {WSR}, s{sKXo if s_<2 else sTmp+1} offen offset:{(s_%2)*2048} sc1")
        self.V.add(("kx",0))
    def vx1(self,t):
        self.A(f"buffer_load_dwordx4 {vr(vV+4*t,4)}, v{vVx}, {WSR}, s{sVTo} offen offset:{t*256} sc1")
        self.V.add(("vx",0))
    def vx_loads(self):
        for t in range(2):
            self.A(f"buffer_load_dwordx4 {vr(vV+4*t,4)}, v{vVx}, {WSR}, s{sVTo} offen offset:{t*256} sc1")
        self.V.add(("vx",0),2)
    def warm1(self,i):
        A=self.A
        sb=sWarmK if i<2 else sWarmV
        A(f"v_lshlrev_b32 v{vT+7}, 2, v{vL16M}")
        A(f"s_add_u32 s{sTmp+1}, s{sb}, {4096*(i%2)}\nbuffer_load_dword v0, v{vT+7}, {WSR}, s{sTmp+1} offen {OPT.warmflag}")
        self.V.add(("warm",i))
    def zero_acc(self):
        for r in range(4): self.A(f"v_mov_b32 v{aQ+r}, 0\nv_mov_b32 v{aK+r}, 0\nv_mov_b32 v{aV+r}, 0")

    def body(self):
        A=self.A; w=self.w; sid=self.sid; L=self.L; V=self.V
        A(f"L_step_{sid}:")
        self.stamp("top")
        V.q=[]
        if OPT.steplog and w==1:
            A(f"s_memrealtime s[88:89]\ns_waitcnt lgkmcnt(0)\nv_mov_b32 v{vT}, s88\nv_mov_b32 v{vT+1}, s90\nv_mov_b32 v{vT+2}, s92\nv_mov_b32 v{vT+3}, s98\ns_lshl_b32 s{sTmp}, s{sH}, 10\ns_lshl_b32 s{sTmp+1}, s{sStep}, 4\ns_add_u32 s{sTmp}, s{sTmp}, s{sTmp+1}\ns_add_u32 s{sTmp}, s{sTmp}, {WS_STAMP+0x20000}\nv_mov_b32 v{vT+6}, 0\nbuffer_store_dwordx4 {vr(vT,4)}, v{vT+6}, {WSR}, s{sTmp} offen\ns_nop 3")
            V.add(("dbg",0))
        L.q=[]
        smf=lambda acc,b,wt: A(f"v_smfmac_f32_16x16x64_bf16 {vr(acc,4)}, {vr(b,4)}, {wt}, v{vIdx}")
        abuf=lambda k: vA+4*(k%4)
        PD=OPT.pd
        for k in range(PD): self.trr(abuf(k),k*512,("a",k))
        side={k:[[],[],[]] for k in range(18)}
        def guarded(fn_list):
            return fn_list
        grounds={3:(2,vK),0:(3,vK),1:(4,vT),2:(None,None)}
        gr,gb=grounds[w]
        skip=[None]
        def begin_skip():
            lab=A.uid("L_fs"); skip[0]=lab
            A(f"s_cmp_eq_u32 s{sStep}, 0\ns_cbranch_scc1 {lab}")
        def end_skip():
            A(f"{skip[0]}:")
        if gr is not None:
            parts=self.gat_check_parts(gr,gb)
            kc=4*(gr-1)-(OPT.pd-2)
            ki={2:OPT.ki[0],3:OPT.ki[1],4:OPT.ki[2]}[gr]
            if ki>=0: side[ki][2]+= [lambda: self.gat_issue(gr,gb,("g",gr))]
            else: V.add(("g",gr),2 if gr<4 else 1)
            nv=len(parts)-4
            side[kc][0]+= parts[:2]
            side[kc][1]+= parts[2:nv+1]
            side[kc][2]+= parts[nv+1:]
        if OPT.kvmode=="spread":
            if w in (1,2):
                for i in range(4): side[i][1]+= [lambda i=i: self.kx1(i)]
                for t in range(2): side[4+t][1]+= [lambda t=t: self.vx1(t)]
            if w==3:
                for t in range(2): side[1+t][1]+= [lambda t=t: self.vx1(t)]
            if w==0:
                for t in range(2): side[t][1]+= [lambda t=t: self.vx1(t)]
        else:
            if w==1: side[0][2]+= [self.kx_loads]; side[3][2]+= [self.vx_loads]
            if w==2: side[0][2]+= [self.kx_loads]; side[2][2]+= [self.vx_loads]
            if w==3: side[3][2]+= [self.vx_loads]
            if w==0: side[0][2]+= [self.vx_loads]
        if w==3 and OPT.warm:
            if OPT.fused:
                def kvcheck():
                    rt=A.uid("L_kvr"); back=A.uid("L_kvb")
                    A(f"v_readfirstlane_b32 s{sTmp+1}, v10\ns_cmp_ge_u32 s{sTmp+1}, 64\ns_cbranch_scc0 {rt}\n{back}:")
                    def ool():
                        lp=A.uid("L_kvl")
                        A(f"{rt}:\ns_add_u32 s{sTmp+2}, s{sStep}, 2\ns_min_u32 s{sTmp+2}, s{sTmp+2}, 63\ns_lshr_b32 s{sTmp+2}, s{sTmp+2}, 2\ns_lshl_b32 s{sTmp+2}, s{sTmp+2}, 7\ns_add_u32 s{sTmp+2}, s{sTmp+2}, {cnt(C_KV)}\n{lp}:")
                        A(f"buffer_load_dword v10, off, {WSR}, s{sTmp+2} sc1\ns_waitcnt vmcnt(0)\nv_readfirstlane_b32 s{sTmp+1}, v10\ns_add_u32 s{sRetry2}, s{sRetry2}, 1\ns_cmp_gt_u32 s{sRetry2}, 4000000\ns_cbranch_scc1 L_abort\ns_sleep 1\ns_cmp_ge_u32 s{sTmp+1}, 64\ns_cbranch_scc0 {lp}\ns_branch {back}")
                    self.ool.append(ool)
                side[min(OPT.warmk)][2]+= [kvcheck]
            for i,kk in enumerate(OPT.warmk):
                if kk is not None and kk<18: side[kk][2]+= [lambda i=i: self.warm1(i)]
            if OPT.fused:
                def kvload():
                    A(f"s_add_u32 s{sTmp+2}, s{sStep}, 3\ns_min_u32 s{sTmp+2}, s{sTmp+2}, 63\ns_lshr_b32 s{sTmp+2}, s{sTmp+2}, 2\ns_lshl_b32 s{sTmp+2}, s{sTmp+2}, 7\ns_add_u32 s{sTmp+2}, s{sTmp+2}, {cnt(C_KV)}")
                    A(f"buffer_load_dword v10, off, {WSR}, s{sTmp+2} sc1"); V.add(("kvf",0))
                side[max(OPT.warmk)][2]+= [kvload]
        for k in range(18):
            L.wait(("a",k))
            b=abuf(k)
            smf(aQ,b,Wq(k))
            if k+PD<18: self.trr1(abuf(k+PD),(k+PD)*512,("a",k+PD))
            for f in side[k][0]: f()
            smf(aK,b,Wk(k))
            if k+PD<18: self.trr1(abuf(k+PD)+2,(k+PD)*512+64,("a",k+PD))
            for f in side[k][1]: f()
            if k<14: smf(aV,b,Wv(k))
            for f in side[k][2]: f()
            if (k+1+PD)%4==0 and (k+1+PD)//4>=2 and (k+1+PD)//4<=4:
                rnd=(k+1+PD)//4
                if rnd==gr: L.wait(("gw",rnd)) if (("gw",rnd) in L.q) else None
                A("s_barrier")
                if rnd==4 and w==1 and OPT.fused:
                    A(f"v_mov_b32 v{vT+5}, s{sStep}\ns_lshl_b32 s{sTmp+1}, s{sH}, 7\ns_add_u32 s{sTmp+1}, s{sTmp+1}, {cnt(C_PROG)}\ns_mov_b64 exec, 1\nbuffer_store_dword v{vT+5}, off, {WSR}, s{sTmp+1} sc1\ns_mov_b64 exec, -1")
                    V.add(("prog",0))
                if rnd in (2,4): self.stamp(f"qkB{rnd}")
        self.stamp("qkend")
        smf(aV,abuf(14),Wv(14))
        A(f"v_cvt_pk_bf16_f32 v{vT}, v{aQ}, v{aQ+1}\nv_cvt_pk_bf16_f32 v{vT+1}, v{aQ+2}, v{aQ+3}")
        A(f"ds_write_b64 v{vQw}, {vr(vT,2)}")
        smf(aV,abuf(15),Wv(15))
        A(f"v_cvt_pk_bf16_f32 v{vT+2}, v{aK}, v{aK+1}\nv_cvt_pk_bf16_f32 v{vT+3}, v{aK+2}, v{aK+3}")
        A(f"ds_write_b64 v{vQw}, {vr(vT+2,2)} offset:2048")
        smf(aV,abuf(16),Wv(16)); smf(aV,abuf(17),Wv(17))
        L.drain()
        A("s_barrier")
        last=f"L_last_{sid}"
        self.stamp("B6")
        if OPT.steplog and w==1: A("s_memrealtime s[90:91]")
        if w==3 and OPT.warm:
            for i,kk in enumerate(OPT.warmk):
                if kk==20: self.warm1(i)
        if w<3:
            if w==0:
                for s in range(3):
                    self.trr(vK+4*s,KOFF+s*512,("k",s)); self.trr(vA+4*s,QOFF+s*512,("q",s))
                A(f"s_cmp_eq_u32 s{sStep}, {self.nsteps-1}\ns_cbranch_scc1 {last}")
                L.wait(("q",0))
                self.trr(vK+12,KOFF+3*512,("k",3)); self.trr(vA+12,QOFF+3*512,("q",3))
                for s in range(4):
                    L.wait(("q",s))
                    A(f"v_mfma_f32_16x16x32_bf16 {vr(vT,4)}, {vr(vK+4*s,4)}, {vr(vA+4*s,4)}, {'0' if s==0 else vr(vT,4)}")
            else:
                for s in range(4): self.trr(vA+4*s,QOFF+s*512,("q",s))
                A(f"s_cmp_eq_u32 s{sStep}, {self.nsteps-1}\ns_cbranch_scc1 {last}")
                V.wait(("kx",0))
                for s in range(4):
                    L.wait(("q",s))
                    A(f"v_mfma_f32_16x16x32_bf16 {vr(vT,4)}, {vr(vK+4*s,4)}, {vr(vA+4*s,4)}, {'0' if s==0 else vr(vT,4)}")
            self.stamp("Smf")
            A(f"v_cvt_pk_bf16_f32 v{aV}, v{aV}, v{aV+1}\nv_cvt_pk_bf16_f32 v{aV+1}, v{aV+2}, v{aV+3}")
            A(f"buffer_store_dwordx2 {vr(aV,2)}, v{vVm}, {WSR}, s{sVMo} offen {OPT.kmflag}"); V.add(("vm",0))
        else:
            A(f"s_cmp_eq_u32 s{sStep}, {self.nsteps-1}\ns_cbranch_scc1 {last}")
            self.stamp("Smf")
            A(f"v_cvt_pk_bf16_f32 v{aV}, v{aV}, v{aV+1}\nv_cvt_pk_bf16_f32 v{aV+1}, v{aV+2}, v{aV+3}")
            A(f"buffer_store_dwordx2 {vr(aV,2)}, v{vVm}, {WSR}, s{sVMo} offen {OPT.kmflag}"); V.add(("vm",0))
        prep=f"""
s_add_u32 s{sTagT}, s{sStep}, 1
s_and_b32 s{sTmp}, s{sTagT}, 1
s_bfe_u32 s{sTmp+1}, s{sTagT}, 0x10001
s_lshl_b32 s{sTmp+1}, s{sTmp+1}, 16
s_or_b32 s{sTmp+2}, s{sTmp}, s{sTmp+1}
s_and_b32 s{sTmp}, s{sTagT}, 3
s_lshl_b32 s{sTmp}, s{sTmp}, 14
s_add_u32 s{sH2pub}, s{sTmp}, s{sH2}
s_sub_u32 s{sH2gat}, s{sH2pub}, {L_MEMT}
s_add_u32 s{sTmp}, s{sStep}, 3
s_and_b32 s{sTmp}, s{sTmp}, 3
s_lshl_b32 s{sTmp}, s{sTmp}, 14
s_add_u32 s{sH2rst}, s{sTmp}, s{sH2}
"""
        if w<3:
            A(f"ds_write_b128 v{vL16M}, {vr(vT,4)} offset:{SOFF+w*1024}"); L.add(("st",0))
            A(prep)
            if w==0:
                A(f"s_mov_b64 exec, s[{sMaskLo}:{sMaskLo+1}]")
                for s in range(4):
                    A(f"buffer_store_dwordx4 {vr(vK+4*s,4)}, v{vKm}, {WSR}, s{sKMo} offen offset:{s*64} {OPT.kmflag}")
                A("s_mov_b64 exec, -1"); V.add(("km",0),4)
            L.drain()
        else:
            A(prep)
        A("s_barrier")
        self.stamp("B7")
        if w==3 and OPT.warm:
            for i,kk in enumerate(OPT.warmk):
                if kk==21: self.warm1(i)
        S=vA
        for t in (1,2,0):
            A(f"ds_read_b128 {vr(S+4*t,4)}, v{vL16M} offset:{SOFF+t*1024}"); L.add(("s",t))
        A(f"v_mov_b32 v{vTag}, s{sTmp+2}")
        prs=pairs(w)
        seq=[(j,P,s) for j,P in enumerate(prs) for s in range(4)]
        n=len(seq)
        m,mt=vT,vT+1
        L.wait(("s",2))
        A(f"v_max3_f32 v{m}, v{S+4}, v{S+5}, v{S+6}\nv_max3_f32 v{mt}, v{S+7}, v{S+8}, v{S+9}\nv_max3_f32 v{m}, v{m}, v{S+10}, v{S+11}")
        L.wait(("s",0))
        self.stamp("Srd")
        A(f"""
v_max3_f32 v{mt}, v{mt}, v{S}, v{S+1}
v_max3_f32 v{m}, v{m}, v{S+2}, v{S+3}
v_max_f32 v{m}, v{m}, v{mt}
v_mov_b32 v{mt}, v{m}
v_permlane32_swap_b32 v{m}, v{mt}
v_max_f32 v{m}, v{m}, v{mt}
v_mov_b32 v{mt}, v{m}
v_permlane16_swap_b32 v{m}, v{mt}
v_max_f32 v{m}, v{m}, v{mt}
v_mul_f32 v{mt}, s{sC}, v{m}
""")
        P=vK
        for i in range(4,12): A(f"v_fma_f32 v{S+i}, v{S+i}, s{sC}, -v{mt}")
        for i in range(4,12):
            A(f"v_exp_f32 v{S+i}, v{S+i}")
            if i in (6,8,10): A(f"v_cvt_pk_bf16_f32 v{P+(i-6)//2}, v{S+i-2}, v{S+i-1}")
        for i in range(4): A(f"v_fma_f32 v{S+i}, v{S+i}, s{sC}, -v{mt}")
        A(f"v_cvt_pk_bf16_f32 v{P+3}, v{S+10}, v{S+11}")
        self.stamp("exp")
        V.wait(("vx",0))
        A(f"v_mfma_f32_16x16x32_bf16 {vr(aQ,4)}, {vr(vV,4)}, {vr(P,4)}, 0")
        A(f"v_mfma_f32_16x16x32_bf16 {vr(aK,4)}, {vr(vV+4,4)}, {vr(P,4)}, 0")
        for i in range(4): A(f"v_exp_f32 v{S+i}, v{S+i}")
        NB=OPT.nb
        Bst=[vA,vA+8,vK,vK+8][:NB]
        def wo_rd(i,half=None):
            j,Pp,s=seq[i]
            for hf in ((0,1) if half is None else (half,)):
                b,off=wo_addr(Pp,s,hf)
                A(f"ds_read_b128 {vr(Bst[i%NB]+4*hf,4)}, v{b} offset:{off}"); L.add(("w",i))
        l,lt=vT+2,vT+3
        A(f"""
v_add_f32 v{l}, v{S+4}, v{S+5}
v_add_f32 v{lt}, v{S+6}, v{S+7}
v_cvt_pk_bf16_f32 v{P+4}, v{S}, v{S+1}
v_cvt_pk_bf16_f32 v{P+5}, v{S+2}, v{S+3}
v_cndmask_b32 v{P+6}, 0, v{P+4}, s[{sMaskG}:{sMaskG+1}]
v_cndmask_b32 v{P+7}, 0, v{P+5}, s[{sMaskG}:{sMaskG+1}]
v_cndmask_b32 v{P+8}, v{P+4}, 0, s[{sMaskG}:{sMaskG+1}]
v_cndmask_b32 v{P+9}, v{P+5}, 0, s[{sMaskG}:{sMaskG+1}]
v_mfma_f32_16x16x16_bf16 {vr(aQ,4)}, {vr(aV,2)}, {vr(P+6,2)}, {vr(aQ,4)}
v_mfma_f32_16x16x16_bf16 {vr(aK,4)}, {vr(aV,2)}, {vr(P+8,2)}, {vr(aK,4)}
""")
        if OPT.latenorm:
            assert NB==3
            A(f"""
v_add_f32 v{l}, v{l}, v{S+8}
v_add_f32 v{lt}, v{lt}, v{S+9}
v_add_f32 v{l}, v{l}, v{S+10}
v_add_f32 v{lt}, v{lt}, v{S+11}
v_add_f32 v{mt}, v{S}, v{S+1}
v_add_f32 v{m}, v{S+2}, v{S+3}
v_add_f32 v{l}, v{l}, v{lt}
v_add_f32 v{mt}, v{mt}, v{m}
v_fma_f32 v{l}, v{mt}, 0.5, v{l}
v_cvt_pk_bf16_f32 v{vT+4}, v{aQ}, v{aQ+1}
v_cvt_pk_bf16_f32 v{vT+5}, v{aQ+2}, v{aQ+3}
v_cvt_pk_bf16_f32 v{vT+6}, v{aK}, v{aK+1}
v_cvt_pk_bf16_f32 v{vT+7}, v{aK+2}, v{aK+3}
ds_write_b128 v{vL16M}, {vr(vT+4,4)} offset:{QOFF+w*1024}
""")
            L.add(("ow",0))
            oA=[vV,vV+4,vK+8,vK+12]
            if n>0: wo_rd(0); wo_rd(1)
            self.stamp("owr")
            A(f"v_mov_b32 v{lt}, v{l}")
            for r in range(4): A(f"v_mov_b32 v{aQ+r}, 0")
            A(f"v_permlane32_swap_b32 v{l}, v{lt}")
            for r in range(4): A(f"v_mov_b32 v{aK+r}, 0")
            A(f"v_add_f32 v{l}, v{l}, v{lt}")
            L.wait(("ow",0))
            A("s_barrier")
            self.stamp("B8")
            if OPT.steplog and w==1: A("s_memrealtime s[92:93]")
            self.late_tail=True
        else:
            if n>0 and NB==4: wo_rd(2); wo_rd(3)
            A(f"""
    v_add_f32 v{l}, v{l}, v{S+8}
    v_add_f32 v{lt}, v{lt}, v{S+9}
    v_add_f32 v{l}, v{l}, v{S+10}
    v_add_f32 v{lt}, v{lt}, v{S+11}
    v_add_f32 v{mt}, v{S}, v{S+1}
    v_add_f32 v{m}, v{S+2}, v{S+3}
    v_add_f32 v{l}, v{l}, v{lt}
    v_add_f32 v{mt}, v{mt}, v{m}
    v_fma_f32 v{l}, v{mt}, 0.5, v{l}
    v_mov_b32 v{lt}, v{l}
    v_permlane32_swap_b32 v{l}, v{lt}
    v_add_f32 v{l}, v{l}, v{lt}
    v_mov_b32 v{lt}, v{l}
    v_permlane16_swap_b32 v{l}, v{lt}
    v_add_f32 v{l}, v{l}, v{lt}
    v_rcp_f32 v{l}, v{l}
    """)
            if n>0:
                wo_rd(0); wo_rd(1)
            for r in range(0,4,2):
                A(f"v_pk_mul_f32 {vr(aQ+r,2)}, {vr(aQ+r,2)}, {vr(l,2)} op_sel_hi:[1,0]")
                A(f"v_pk_mul_f32 {vr(aK+r,2)}, {vr(aK+r,2)}, {vr(l,2)} op_sel_hi:[1,0]")
            oA=[vV,vV+4,vK+8,vK+12] if NB==3 else [vV,vV+4,aV,vT+4]
            A(f"""
    v_cvt_pk_bf16_f32 v{vT+4}, v{aQ}, v{aQ+1}
    v_cvt_pk_bf16_f32 v{vT+5}, v{aQ+2}, v{aQ+3}
    v_cvt_pk_bf16_f32 v{vT+6}, v{aK}, v{aK+1}
    v_cvt_pk_bf16_f32 v{vT+7}, v{aK+2}, v{aK+3}
    ds_write_b128 v{vL16M}, {vr(vT+4,4)} offset:{QOFF+w*1024}
    """)
            L.add(("ow",0))
            self.stamp("owr")
            for r in range(4): A(f"v_mov_b32 v{aQ+r}, 0")
            for r in range(4): A(f"v_mov_b32 v{aK+r}, 0")
            L.drain()
            A("s_barrier")
            self.stamp("B8")
            if OPT.steplog and w==1: A("s_memrealtime s[92:93]")
        if n>0:
            for s in range(4):
                A(f"ds_read_b128 {vr(oA[s],4)}, v{vL16M} offset:{QOFF+s*1024}"); L.add(("o",s))
            if NB==3: wo_rd(2)
        if OPT.latenorm:
            A(f"""
v_mov_b32 v{lt}, v{l}
v_lshrrev_b32 v{m}, 6, v{vKm}
v_permlane16_swap_b32 v{l}, v{lt}
v_add_u32 v{m}, {L_ST+w*64}, v{m}
v_add_f32 v{l}, v{l}, v{lt}
v_and_b32 v{mt}, 8, v{vVm}
v_rcp_f32 v{l}, v{l}
v_lshlrev_b32 v{mt}, 1, v{mt}
v_add_u32 v{mt}, {L_ST+w*64}, v{mt}
ds_write_b32 v{m}, v{l}
""")
            L.add(("rw",0))
            A(f"ds_read_b128 {vr(aV,4)}, v{mt}"); L.add(("rr",0))
        def epi_parts(j):
            acc=aQ if j%2==0 else aK
            e=vT+2*(j%2)
            def st():
                A(f"s_add_u32 s{sTmp+3}, s{sH1}, {prs[j]*16384}")
                A(f"buffer_store_dwordx2 {vr(e,2)}, v{vH1st}, {WSR}, s{sTmp+3} offen"); V.add(("h1",j))
            def c0():
                if OPT.latenorm:
                    L.wait(("rr",0))
                    A(f"v_pk_mul_f32 {vr(acc,2)}, {vr(acc,2)}, {vr(aV,2)}\nv_pk_mul_f32 {vr(acc+2,2)}, {vr(acc+2,2)}, {vr(aV+2,2)}")
                A(f"v_cvt_pk_bf16_f32 v{e}, v{acc}, v{acc+1}")
            return [c0,
                    lambda: A(f"v_cvt_pk_bf16_f32 v{e+1}, v{acc+2}, v{acc+3}"),
                    lambda: A(f"v_and_or_b32 v{e}, v{e}, s{sMaskF}, v{vTag}"), st]
        for i,(j,Pp,s) in enumerate(seq):
            acc=aQ if j%2==0 else aK
            if j==0: L.wait(("o",s))
            L.wait(("w",i))
            A(f"v_smfmac_f32_16x16x64_bf16 {vr(acc,4)}, {vr(oA[s],4)}, {vr(Bst[i%NB],8)}, v{vIdx}")
            if i+NB<n: wo_rd(i+NB)
            if j>0 and s==0:
                for f in epi_parts(j-1)[:2]: f()
            if j>0 and s==1:
                for f in epi_parts(j-1)[2:]: f()
            if s>=2 and j>=1 and j+1<len(prs):
                nacc=aQ if (j+1)%2==0 else aK
                for k_ in (0,1) if s==2 else (2,3): A(f"v_mov_b32 v{nacc+k_}, 0")
        early = self.rr is not None and w>=2 and OPT.red_early and not OPT.commwave
        if early:
            self.delay(OPT.d_red[self.rr])
            self.red_iss(vK)
        if n>0:
            for f in epi_parts(len(prs)-1): f()
        self.stamp("opend")
        if OPT.steplog and w==1: A("s_memrealtime s[98:99]")
        if self.rr is not None:
            lab=A.uid("L_nt")
            if w==1: A(f"s_cmp_eq_u32 s{sHasTask}, 1\ns_cbranch_scc0 {lab}")
            if early: self.red_poll(True,1)
            else:
                self.delay(OPT.d_red[self.rr])
                self.red_poll()
            if OPT.commwave and w==2:
                self.delay(OPT.d_red[self.rr+2])
                self.red_poll(second=True)
            A("s_waitcnt vmcnt(2)")
            A(f"{lab}:")
        self.stamp("redend")
        A(f"L_pre_{sid}:")
        self.zero_acc()
        A(f"""
s_add_u32 s{sStep}, s{sStep}, 1
s_add_u32 s{sKXo}, s{sKXo}, {0 if OPT.fixkv else KVS()}
s_add_u32 s{sVTo}, s{sVTo}, {0 if OPT.fixkv else KVS()}
s_add_u32 s{sKMo}, s{sKMo}, {0 if OPT.fixkm else KMS()}
s_add_u32 s{sVMo}, s{sVMo}, {0 if OPT.fixkm else KMS()}
s_add_u32 s{sTmp}, s{sStep}, {OPT.warmdist}
s_min_u32 s{sTmp}, s{sTmp}, 63
s_lshl_b32 s{sTmp}, s{sTmp}, {13 if OPT.hs else 18}
s_lshl_b32 s{sTmp+1}, s{sH}, {19 if OPT.hs else 13}
s_add_u32 s{sTmp}, s{sTmp}, s{sTmp+1}
s_add_u32 s{sWarmK}, s{sTmp}, {WS_KX-L_MEMT*4}
s_add_u32 s{sWarmV}, s{sTmp}, {WS_VT-L_MEMT*4}
""")
        if OPT.gmode=="joint":
            if w==0:
                self.delay(OPT.d_gat)
                self.gat_poll01()
        else:
            if w==0:
                self.delay(OPT.d_gat)
                self.gat_poll(0)
            if OPT.g1wave=="mix":
                if w==1:
                    l=A.uid("L_g1s")
                    A(f"s_cmp_eq_u32 s{sHasTask}, 1\ns_cbranch_scc1 {l}")
                    self.delay(OPT.d_g1m); self.gat_poll(1)
                    A(f"{l}:")
                if w==2:
                    l=A.uid("L_g1s")
                    A(f"s_and_b32 s{sTmp}, s{sH}, 3\ns_cmp_eq_u32 s{sTmp}, 0\ns_cbranch_scc0 {l}")
                    self.delay(OPT.d_g1[self.rr%2]); self.gat_poll(1)
                    A(f"{l}:")
            elif w==OPT.g1wave:
                self.delay(OPT.d_g1[self.rr%2] if self.rr is not None else OPT.d_g1[0])
                self.gat_poll(1)
        if w==3 and OPT.ki[0]<0:
            self.delay(OPT.d_g2[(self.rr or 0)%2])
            self.gat_issue(2,vK)
        self.stamp("gat0")
        A(f"s_barrier\ns_branch L_step_{sid}\n{last}:")
        A(f"v_cvt_pk_bf16_f32 v{aV}, v{aV}, v{aV+1}\nv_cvt_pk_bf16_f32 v{aV+1}, v{aV+2}, v{aV+3}")
        A(f"buffer_store_dwordx2 {vr(aV,2)}, v{vVm}, {WSR}, s{sVMo} offen {OPT.kmflag}")
        if w==0:
            A(f"ds_read_b64_tr_b16 {vr(vK+12,2)}, v{vTR} offset:{KOFF+3*512}\nds_read_b64_tr_b16 {vr(vK+14,2)}, v{vTR} offset:{KOFF+3*512+64}")
            A("s_waitcnt lgkmcnt(0)")
            A(f"s_mov_b64 exec, s[{sMaskLo}:{sMaskLo+1}]")
            for s in range(4):
                A(f"buffer_store_dwordx4 {vr(vK+4*s,4)}, v{vKm}, {WSR}, s{sKMo} offen offset:{s*64} {OPT.kmflag}")
            A("s_mov_b64 exec, -1")
        if OPT.fused:
            A("s_waitcnt vmcnt(0)\ns_barrier")
            if w==1:
                A(f"v_mov_b32 v{vT+5}, 64\ns_lshl_b32 s{sTmp+1}, s{sH}, 7\ns_add_u32 s{sTmp+1}, s{sTmp+1}, {cnt(C_PROG)}\ns_mov_b64 exec, 1\nbuffer_store_dword v{vT+5}, off, {WSR}, s{sTmp+1} sc1\ns_mov_b64 exec, -1")
        A("s_branch L_finish")
        for f in self.ool: f()

def emit_chain(A, nsteps=64, stamps=False, standalone=True, stamp_step=20):
    emit_setup(A, stamps)
    A(f"s_mov_b32 s{sStep}, -1")
    A(f"s_mov_b32 s{sKXo}, {WS_KX-(0 if OPT.fixkv else KVS())}\ns_mov_b32 s{sVTo}, {WS_VT-(0 if OPT.fixkv else KVS())}")
    A(f"s_lshl_b32 s{sTmp}, s{sH}, {17 if OPT.hs else 11}\ns_add_u32 s{sKMo}, s{sTmp}, {WS_KM-(0 if OPT.fixkm else KMS())}\ns_add_u32 s{sVMo}, s{sTmp}, {WS_VM-(0 if OPT.fixkm else KMS())}")
    A(f"s_sub_u32 s{sH2gat}, s{sH2}, {L_MEMT}")
    A(f"s_lshl_b32 s{sTmp+1}, s{sH}, {19 if OPT.hs else 13}\ns_add_u32 s{sTmp}, s{sTmp+1}, {2*KVS()}\ns_add_u32 s{sWarmK}, s{sTmp}, {WS_KX-L_MEMT*4}\ns_add_u32 s{sWarmV}, s{sTmp}, {WS_VT-L_MEMT*4}")
    if stamps: A(f"s_memtime s[94:95]\ns_waitcnt lgkmcnt(0)")
    variants=[("w0",0,None),("w1",1,4),("w2e",2,0),("w2o",2,1),("w3e",3,2),("w3o",3,3)]
    if OPT.commwave: variants=[("w0",0,None),("w1",1,4),("w2e",2,0),("w2o",2,1),("w3e",3,None)]
    A(f"""
s_cmp_eq_u32 s{sW}, 0
s_cbranch_scc1 L_pre_w0
s_cmp_eq_u32 s{sW}, 1
s_cbranch_scc1 L_pre_w1
s_and_b32 s{sTmp}, s{sH}, 1
s_lshl_b32 s{sTmp+1}, s{sW}, 1
s_add_u32 s{sTmp}, s{sTmp}, s{sTmp+1}
s_cmp_eq_u32 s{sTmp}, 4
s_cbranch_scc1 L_pre_w2e
s_cmp_eq_u32 s{sTmp}, 5
s_cbranch_scc1 L_pre_w2o
s_cmp_eq_u32 s{sTmp}, 6
s_cbranch_scc1 L_pre_w3e
s_branch {"L_pre_w3e" if OPT.commwave else "L_pre_w3o"}
""")
    A("L_code_begin:")
    nst=0
    for sid,w,rr in variants:
        st=Stream(A,w,rr,nsteps,stamps,stamp_step,sid); st.body(); nst=st.nst
    A("L_finish:")
    if stamps:
        A(f"s_memtime s[96:97]\ns_waitcnt vmcnt(0) lgkmcnt(0)\ns_sub_u32 s96, s96, s94")
        A(f"s_lshl_b32 s{sTmp}, s{sH}, 2\ns_add_u32 s{sTmp}, s{sTmp}, s{sW}\ns_lshl_b32 s{sTmp}, s{sTmp}, 7\ns_add_u32 s{sTmp}, s{sTmp}, {WS_STAMP}")
        A(f"v_mov_b32 v{vK}, s96\nv_mov_b32 v{vK+1}, s{sRetry}\nv_mov_b32 v{vK+2}, s{sRetry2}")
        A(f"s_sub_u32 s90, s90, s88\ns_sub_u32 s92, s92, s88\ns_sub_u32 s94, s94, s88\nv_mov_b32 v{vK+3}, s90\nv_mov_b32 v{vK+4}, s92\nv_mov_b32 v{vK+5}, s94\nv_mov_b32 v{vK+6}, 0\nv_mov_b32 v{vK+7}, 0")
        for i in range(16):
            A(f"v_mov_b32 v{vK+8+i}, s{sT0+2*i}")
        A(f"v_mov_b32 v{vT}, 0\ns_mov_b64 exec, 1")
        for j in range(6):
            A(f"buffer_store_dwordx4 {vr(vK+4*j,4)}, v{vT}, {WSR}, s{sTmp} offen offset:{16*j}")
        A("s_mov_b64 exec, -1")
        global STAMP_NAMES
        STAMP_NAMES=st.names
        print("stamps:",st.names)
    A("L_abort:\ns_waitcnt vmcnt(0)")
OPT.red_lag=1
```

```python
from asmlib import *
from layout import *
import struct, math
def fbits(x): return struct.unpack("<I",struct.pack("<f",x))[0]

vLane=0; vL16M=1; vTR=2; vIdx=3; vWo=4
vH1st=7; vRed=8; vPub=9; vKx=10; vVx=11; vKm=12; vVm=13; vQw=14; vTag=15
vSel=16
vK=20
vV=36
aQ=44; aK=48; aV=52
vA=56
vT=72
def Wq(s): return f"a[{8*s}:{8*s+7}]"
def Wk(s):
    if s<14: return f"a[{144+8*s}:{144+8*s+7}]"
    return f"v[{80+8*(s-14)}:{80+8*(s-14)+7}]"
def Wv(s): return f"v[{112+8*s}:{112+8*s+7}]"
def Wreg(mat,s,q):
    if mat==0: return f"a[{8*s+2*q}:{8*s+2*q+1}]"
    if mat==1:
        if s<14: return f"a[{144+8*s+2*q}:{144+8*s+2*q+1}]"
        return f"v[{80+8*(s-14)+2*q}:{80+8*(s-14)+2*q+1}]"
    return f"v[{112+8*s+2*q}:{112+8*s+2*q+1}]"
def vr(a,n): return f"v[{a}:{a+n-1}]"

sH=10; sW=11; sWS=12; sWT=16
sStep=20
sKXo=21; sVTo=22; sKMo=23; sVMo=24; sH2pub=25; sH2gat=26; sH2rst=27; sH1=28; sH2=29
sTask=30; sHasTask=31; sTagT=32
sTmp=33
sDbg=40; sKarg=42
sRetry=44; sRetry2=45
sMaskF=46
sC=47
sMaskLo=48; sMaskPub=50; sMaskG=52
sWarmK=54; sWarmV=55
sT0=56
WSR=f"s[{sWS}:{sWS+3}]"
QOFF=L_QT-L_MEMT; KOFF=L_KT-L_MEMT; SOFF=L_ST-L_MEMT

class Opt:
    d_red=[0,0,0,0,0]
    d_gat=0
    warm=True
    prowarm=False
    latenorm=False
    nb=3
    pmode=0
    d_g1m=120
    prewarm=False
    codewarm=0
    commwave=False
    d_g2=[70,10]
    pd=2
    fused=False
    gmode='split'
    g1wave=2
    kvmode='burst'
    spec1=False
    hs=False
    warmk=[7,7,7,7]
    kvx=3
    warmflag=''
    warmdist=2
    fixkv=False
    fixkm=False
    kmflag='sc1'
    steplog=False
    nred=2
    red_gap=24
    ki=[0,2,6]
    d_g1=[80,40]
    npoll=3
    poll_gap=16
    red_early=True
    clk='s_memtime'
OPT=Opt()
def KVS(): return 8192 if OPT.hs else 262144
def KMS(): return 2048 if OPT.hs else 65536

def emit_setup(A, stamps):
    A(f"""
s_mov_b32 s{sKarg}, s0
s_mov_b32 s{sKarg+1}, s1
s_load_dwordx2 s[{sDbg}:{sDbg+1}], s[0:1], {KA_DBG}
s_load_dwordx2 s[{sWS}:{sWS+1}], s[0:1], {KA_WS}
v_lshrrev_b32 v{vT}, 6, v0
v_and_b32 v{vLane}, 63, v0
v_readfirstlane_b32 s{sW}, v{vT}
s_mov_b32 s{sWS+2}, {WS_SIZE}
s_mov_b32 s{sWS+3}, 0x20000
s_mov_b32 s{sWT+3}, 0x20000
s_mov_b32 s{sH1}, {WS_H1}
s_mov_b32 s{sH2}, {WS_H2}
s_mov_b32 s{sMaskLo}, 0x00ff00ff
s_mov_b32 s{sMaskLo+1}, 0x00ff00ff
s_mov_b32 s{sMaskPub}, 0x00ff00ff
s_mov_b32 s{sMaskPub+1}, 0
s_mov_b32 s{sMaskG}, -1
s_mov_b32 s{sMaskG+1}, 0
s_mov_b32 s{sRetry}, 0
s_mov_b32 s{sRetry2}, 0
s_mov_b32 s{sMaskF}, 0xfffefffe
s_mov_b32 s{sC}, {hex(fbits(128**-0.5*math.log2(math.e)))}
""")
    t0,t1,t2,t3=vT,vT+1,vT+2,vT+3
    if OPT.prowarm:
        A(f"""
s_getpc_b64 s[66:67]
v_lshlrev_b32 v{vA+2}, 6, v{vLane}
s_lshl_b32 s{sTmp}, s{sW}, 12
v_add_u32 v{vA+2}, s{sTmp}, v{vA+2}
global_load_dword v{vA+3}, v{vA+2}, s[66:67]
""")
    if stamps: A("s_memtime s[88:89]")
    if OPT.fused:
        A(f"""
s_cmp_eq_u32 s{sH}, 0
s_cbranch_scc0 L_noclr
s_waitcnt lgkmcnt(0)
v_lshlrev_b32 v{vA}, 4, v{vLane}
v_mov_b32 v{vA+4}, 0
v_mov_b32 v{vA+5}, 0
v_mov_b32 v{vA+6}, 0
v_mov_b32 v{vA+7}, 0
s_mul_i32 s{sTmp}, s{sW}, 6144
s_add_u32 s{sTmp}, s{sTmp}, {WS_CNT}
""")
        for j in range(6):
            A(f"buffer_store_dwordx4 {vr(vA+4,4)}, v{vA}, {WSR}, s{sTmp} offen sc1\ns_add_u32 s{sTmp}, s{sTmp}, 1024")
        A(f"""
s_waitcnt vmcnt(0)
s_barrier
s_cmp_eq_u32 s{sW}, 0
s_cbranch_scc0 L_noclr
v_mov_b32 v{vA}, {DBG_INIT}
v_mov_b32 v{vA+1}, 1
s_mov_b64 exec, 1
global_store_dword v{vA}, v{vA+1}, s[{sDbg}:{sDbg+1}] sc1
s_mov_b64 exec, -1
L_noclr:
""")
    A(f"""
v_lshlrev_b32 v{vL16M}, 4, v{vLane}
v_add_u32 v{vL16M}, {L_MEMT}, v{vL16M}
v_lshrrev_b32 v{t0}, 4, v{vLane}
v_lshlrev_b32 v{t0}, 7, v{t0}
v_bfe_u32 v{t1}, v{vLane}, 2, 2
v_lshl_add_u32 v{t0}, v{t1}, 4, v{t0}
v_and_b32 v{t1}, 1, v{vLane}
v_lshl_add_u32 v{t0}, v{t1}, 3, v{t0}
v_add_u32 v{vTR}, {L_MEMT}, v{t0}
v_and_b32 v{t0}, 8, v{vLane}
v_cmp_ne_u32 vcc, 0, v{t0}
v_mov_b32 v{t0}, 0x4444
v_mov_b32 v{t1}, 0xeeee
v_cndmask_b32 v{vIdx}, v{t0}, v{t1}, vcc
""")
    A(f"""
v_lshlrev_b32 v{vWo}, 4, v{vLane}
v_add_u32 v{vWo+1}, 49152, v{vWo}
v_add_u32 v{vWo+2}, 98304, v{vWo}
""")
    A(f"""
v_bfe_u32 v{t0}, v{vLane}, 5, 1
v_lshlrev_b32 v{t0}, 1, v{t0}
v_bfe_u32 v{t1}, v{vLane}, 3, 1
v_add_u32 v{t0}, v{t0}, v{t1}
v_lshlrev_b32 v{t0}, 12, v{t0}
v_and_b32 v{t1}, 7, v{vLane}
v_lshl_add_u32 v{t0}, v{t1}, 4, v{t0}
v_bfe_u32 v{t1}, v{vLane}, 4, 1
v_lshl_add_u32 v{t0}, v{t1}, 3, v{t0}
s_lshl_b32 s{sTmp+1}, s{sH}, 7
v_add_u32 v{vH1st}, s{sTmp+1}, v{t0}
""")
    A(f"""
s_and_b32 s{sTmp}, s{sH}, 1
s_sub_u32 s{sTmp+1}, s{sW}, 2
s_lshl_b32 s{sTmp+1}, s{sTmp+1}, 1
s_add_u32 s{sTmp}, s{sTmp}, s{sTmp+1}
s_lshl_b32 s{sTmp}, s{sTmp}, 4
s_lshr_b32 s{sTmp+1}, s{sH}, 1
s_add_u32 s{sTask}, s{sTmp}, s{sTmp+1}
s_mov_b32 s{sHasTask}, 1
s_cmp_ge_u32 s{sW}, 2
s_cbranch_scc1 L_task_done
s_lshr_b32 s{sTask}, s{sH}, 2
s_add_u32 s{sTask}, s{sTask}, 64
s_and_b32 s{sTmp}, s{sH}, 3
s_cmp_eq_u32 s{sTmp}, 0
s_cselect_b32 s{sHasTask}, 1, 0
s_cmp_eq_u32 s{sW}, 1
s_cselect_b32 s{sHasTask}, s{sHasTask}, 0
s_cmp_eq_u32 s{sHasTask}, 1
s_cselect_b32 s{sTask}, s{sTask}, 0
L_task_done:
s_lshl_b32 s{sTmp}, s{sTask}, 12
v_lshlrev_b32 v{t0}, 4, v{vLane}
v_add_u32 v{vRed}, s{sTmp}, v{t0}
s_lshl_b32 s{sTmp}, s{sTask}, 7
v_and_b32 v{t0}, 7, v{vLane}
v_lshlrev_b32 v{t0}, 4, v{t0}
v_lshrrev_b32 v{t1}, 4, v{vLane}
v_lshl_add_u32 v{t0}, v{t1}, 3, v{t0}
v_add_u32 v{vPub}, s{sTmp}, v{t0}
v_and_b32 v{t0}, 15, v{vLane}
s_add_u32 s{sTmp}, s{sW}, 3
s_and_b32 s{sTmp}, s{sTmp}, 1
s_lshl_b32 s{sTmp}, s{sTmp}, 4
v_add_u32 v{t0}, s{sTmp}, v{t0}
v_lshlrev_b32 v{t0}, 4, v{t0}
v_lshrrev_b32 v{t1}, 4, v{vLane}
v_lshl_add_u32 v{t0}, v{t1}, 9, v{t0}
s_lshl_b32 s{sTmp}, s{sH}, {19 if OPT.hs else 13}
v_add_u32 v{vKx}, s{sTmp}, v{t0}
v_and_b32 v{t0}, 15, v{vLane}
v_lshlrev_b32 v{t0}, 4, v{t0}
v_lshl_add_u32 v{t0}, v{t1}, 11, v{t0}
s_lshl_b32 s{sTmp}, s{sH}, {19 if OPT.hs else 13}
s_lshl_b32 s{sTmp+1}, s{sW}, 9
s_add_u32 s{sTmp}, s{sTmp}, s{sTmp+1}
v_add_u32 v{vVx}, s{sTmp}, v{t0}
v_and_b32 v{t0}, 7, v{vLane}
v_lshlrev_b32 v{t0}, 8, v{t0}
v_lshl_add_u32 v{vKm}, v{t1}, 4, v{t0}
v_and_b32 v{t0}, 15, v{vLane}
v_bfe_u32 v{t1}, v{vLane}, 5, 1
v_lshl_add_u32 v{t0}, v{t1}, 4, v{t0}
s_lshl_b32 s{sTmp}, s{sW}, 5
v_add_u32 v{t0}, s{sTmp}, v{t0}
v_lshlrev_b32 v{t0}, 4, v{t0}
v_bfe_u32 v{t1}, v{vLane}, 4, 1
v_lshl_add_u32 v{vVm}, v{t1}, 3, v{t0}
v_add_u32 v{vQw}, {L_QT}, v{vVm}
""")
    A(f"v_and_b32 v{t0}, 7, v{vLane}")
    for j in range(4):
        A(f"""
v_mov_b32 v{vSel+j}, 0
v_cmp_eq_u32 vcc, {2*j}, v{t0}
v_mov_b32 v{t1}, 0x3f80
v_cndmask_b32 v{vSel+j}, v{vSel+j}, v{t1}, vcc
v_cmp_eq_u32 vcc, {2*j+1}, v{t0}
v_mov_b32 v{t1}, 0x3f800000
v_cndmask_b32 v{vSel+j}, v{vSel+j}, v{t1}, vcc
""")
    A("s_waitcnt lgkmcnt(0)")
    vW0,vW1,vWoD=vA+4,vA+5,vA+6
    A(f"""
v_lshrrev_b32 v{t0}, 4, v{vLane}
v_and_b32 v{t1}, 1, v{t0}
v_lshlrev_b32 v{t1}, 2, v{t1}
v_and_b32 v{t2}, 15, v{vLane}
v_xor_b32 v{t2}, v{t2}, v{t1}
v_lshlrev_b32 v{t0}, 13, v{t0}
s_lshl_b32 s{sTmp}, s{sH}, 8
s_lshl_b32 s{sTmp+1}, s{sW}, 17
s_add_u32 s{sTmp}, s{sTmp}, s{sTmp+1}
v_add_u32 v{t0}, s{sTmp}, v{t0}
v_lshl_add_u32 v{vW0}, v{t2}, 4, v{t0}
v_xor_b32 v{t2}, 8, v{t2}
v_lshl_add_u32 v{vW1}, v{t2}, 4, v{t0}
""")
    def dma_chunk(c):
        slot=c%9
        if c<27:
            r0=64*(c%9)
            for j in range(4):
                A(f"s_lshl_b32 s{sTmp}, s{sW}, 12\ns_add_u32 m0, s{sTmp}, {slot*16384+j*1024}")
                A(f"s_mov_b32 s{sTmp+1}, {(r0+4*j)*8192}")
                A(f"buffer_load_dwordx4 v{vW0 if j%2==0 else vW1}, s[{sWT}:{sWT+3}], s{sTmp+1} offen lds")
        else:
            cc=c-27
            for j in range(4):
                A(f"s_lshl_b32 s{sTmp}, s{sW}, 2\ns_add_u32 s{sTmp}, s{sTmp}, {16*cc+j}\ns_lshl_b32 s{sTmp}, s{sTmp}, 6")
                A(f"v_add_u32 v{t0}, s{sTmp}, v{vLane}")
                A(f"v_mul_u32_u24 v{t1}, 58255, v{t0}\nv_lshrrev_b32 v{t1}, 26, v{t1}\nv_and_b32 v{t1}, 1, v{t1}\nv_lshlrev_b32 v{t1}, 2, v{t1}\nv_xor_b32 v{t0}, v{t0}, v{t1}\nv_lshlrev_b32 v{vWoD}, 4, v{t0}")
                A(f"s_lshl_b32 s{sTmp}, s{sW}, 12\ns_add_u32 m0, s{sTmp}, {slot*16384+j*1024}")
                A(f"buffer_load_dwordx4 v{vWoD}, s[{sWT}:{sWT+3}], 0 offen lds")
    def set_wsrd(c):
        if c in (0,9,18):
            A(f"s_load_dwordx2 s[{sWT}:{sWT+1}], s[{sKarg}:{sKarg+1}], {[KA_WQ,KA_WK,KA_WV][c//9]}\ns_mov_b32 s{sWT+2}, {576*8192}\ns_waitcnt lgkmcnt(0)")
        if c==27:
            A(f"s_load_dwordx2 s[{sWT}:{sWT+1}], s[{sKarg}:{sKarg+1}], {KA_WO}\ns_waitcnt lgkmcnt(0)")
            A(f"s_mul_i32 s{sTmp}, s{sH}, 147456\ns_add_u32 s{sWT}, s{sWT}, s{sTmp}\ns_addc_u32 s{sWT+1}, s{sWT+1}, 0\ns_mov_b32 s{sWT+2}, 147456")
    vWr=vA+7
    A(f"""
v_lshrrev_b32 v{t0}, 4, v{vLane}
v_bfe_u32 v{t1}, v{vLane}, 2, 1
v_lshl_add_u32 v{t2}, v{t0}, 2, v{t1}
v_lshlrev_b32 v{t2}, 8, v{t2}
v_and_b32 v{t0}, 1, v{t0}
v_lshl_add_u32 v{t0}, v{t0}, 1, v{t1}
v_lshlrev_b32 v{t0}, 2, v{t0}
v_bfe_u32 v{t1}, v{vLane}, 3, 1
v_lshlrev_b32 v{t1}, 1, v{t1}
v_bfe_u32 v{t3}, v{vLane}, 1, 1
v_add_u32 v{t1}, v{t1}, v{t3}
s_lshl_b32 s{sTmp}, s{sW}, 2
v_add_u32 v{t1}, s{sTmp}, v{t1}
v_xor_b32 v{t1}, v{t1}, v{t0}
v_lshl_add_u32 v{t2}, v{t1}, 4, v{t2}
v_and_b32 v{t3}, 1, v{vLane}
v_lshl_add_u32 v{vWr}, v{t3}, 3, v{t2}
v_add_u32 v{vWr+1}, 65536, v{vWr}
v_add_u32 v{vWr+2}, 131072, v{vWr}
""")
    A(f"""
s_load_dwordx2 s[60:61], s[{sKarg}:{sKarg+1}], {KA_MEM0}
s_mov_b32 s62, 9216
s_mov_b32 s63, 0x20000
v_lshrrev_b32 v{vA}, 4, v{vLane}
v_and_b32 v{vA}, 1, v{vA}
v_mul_u32_u24 v{vA}, {4*1152}, v{vA}
v_and_b32 v{vA+1}, 7, v{vLane}
v_lshl_add_u32 v{vA}, v{vA+1}, 1, v{vA}
s_lshl_b32 s{sTmp}, s{sTask}, 4
s_waitcnt lgkmcnt(0)
""")
    for r in range(4):
        A(f"buffer_load_ushort v{vK+r}, v{vA}, s[60:63], s{sTmp} offen offset:{r*1152}")
    A(f"v_mov_b32 v{vT+4}, 0\nv_mov_b32 v{vT+5}, 0\nv_mov_b32 v{vT+6}, -1\nv_mov_b32 v{vT+7}, -1")
    A(f"s_lshl_b32 s{sTmp+2}, s{sW}, 14\ns_add_u32 s{sTmp+2}, s{sTmp+2}, s{sH1}")
    for r in range(4):
        A(f"s_add_u32 s{sTmp}, s{sTmp+2}, {r*65536}")
        A(f"buffer_store_dwordx2 {vr(vT+4,2)}, v{vH1st}, {WSR}, s{sTmp} offen")
    A(f"s_cmp_lt_u32 s{sW}, 2\ns_cbranch_scc0 L_clr1_skip")
    A(f"s_add_u32 s{sTmp}, s{sTmp+2}, {4*65536}")
    A(f"buffer_store_dwordx2 {vr(vT+4,2)}, v{vH1st}, {WSR}, s{sTmp} offen")
    A("L_clr1_skip:")
    A(f"s_cmp_eq_u32 s{sHasTask}, 1\ns_cbranch_scc0 L_clr2_skip")
    A(f"s_mov_b64 exec, s[{sMaskPub}:{sMaskPub+1}]")
    for sl in range(1,4):
        A(f"s_add_u32 s{sTmp}, s{sH2}, {sl*16384}")
        A(f"buffer_store_dwordx2 {vr(vT+6,2)}, v{vPub}, {WSR}, s{sTmp} offen")
    A("s_waitcnt vmcnt(0)")
    A(f"v_lshl_or_b32 v{vK}, v{vK+1}, 16, v{vK}\nv_lshl_or_b32 v{vK+1}, v{vK+3}, 16, v{vK+2}\nv_min_u32 v{vK}, -2, v{vK}")
    A(f"buffer_store_dwordx2 {vr(vK,2)}, v{vPub}, {WSR}, s{sH2} offen")
    A("s_mov_b64 exec, -1\nL_clr2_skip:")
    if OPT.codewarm:
        A(f"""
s_getpc_b64 s[64:65]
L_pcref:
s_add_u32 s64, s64, L_code_begin-L_pcref
s_addc_u32 s65, s65, 0
v_lshlrev_b32 v{vT+7}, 6, v{vLane}
s_lshl_b32 s{sTmp}, s{sW}, 12
v_add_u32 v{vT+7}, s{sTmp}, v{vT+7}
""")
        for j in range(OPT.codewarm):
            A(f"global_load_dword v{vA+1}, v{vT+7}, s[64:65]\nv_add_u32 v{vT+7}, 16384, v{vT+7}")
    DEPTH=8
    set_wsrd(0)
    for c in range(DEPTH): dma_chunk(c)
    A(f"s_waitcnt vmcnt({DEPTH*4})")
    A(f"""
s_waitcnt lgkmcnt(0)
s_barrier
s_cmp_eq_u32 s{sW}, 0
s_cbranch_scc0 L_cb_skip
v_mov_b32 v{vT}, 64
v_mov_b32 v{vT+1}, 1
s_mov_b64 exec, 1
global_atomic_add v{vT}, v{vT+1}, s[{sDbg}:{sDbg+1}]
s_mov_b64 exec, -1
L_cb_skip:
""")
    if stamps: A("s_memtime s[90:91]")
    for c in range(27):
        nxt=c+DEPTH
        A(f"s_waitcnt vmcnt({(DEPTH-1)*4 - (1 if c<8 else 0)})" if False else f"s_waitcnt vmcnt({(DEPTH-1)*4})")
        A("s_barrier")
        if nxt<36:
            set_wsrd(nxt); dma_chunk(nxt)
        mat=c//9; slot=c%9
        for ks in range(2):
            s=2*(c%9)+ks
            for q in range(4):
                off=slot*16384+ks*8192+(2*(q&1)+16*(q>>1))*256
                base=vWr+off//65536; off%=65536
                A(f"ds_read_b64_tr_b16 {Wreg(mat,s,q)}, v{base} offset:{off}")
        A("s_waitcnt lgkmcnt(0)")
        A("s_barrier")
    dma_chunk(35)
    A("s_waitcnt vmcnt(0)\ns_barrier")
    vC=vA+10
    A(f"""
v_bfe_u32 v{t0}, v{vLane}, 4, 1
v_bfe_u32 v{t1}, v{vLane}, 5, 1
v_lshlrev_b32 v{t2}, 4, v{t0}
v_lshl_add_u32 v{t2}, v{t1}, 2, v{t2}
v_bfe_u32 v{t3}, v{vLane}, 2, 1
v_add_u32 v{t2}, v{t2}, v{t3}
v_mul_u32_u24 v{t2}, 1152, v{t2}
v_xor_b32 v{t0}, s{sW}, v{t0}
v_lshl_add_u32 v{t2}, v{t0}, 6, v{t2}
v_bfe_u32 v{t3}, v{vLane}, 3, 1
v_lshl_add_u32 v{t2}, v{t3}, 5, v{t2}
v_and_b32 v{t3}, 3, v{vLane}
v_lshl_add_u32 v{vC}, v{t3}, 3, v{t2}
v_add_u32 v{vC+1}, 73728, v{vC}
s_lshl_b32 s{sTmp}, s{sW}, 11
v_add_u32 v{vC+2}, s{sTmp}, v{vWo}
v_add_u32 v{vC+3}, s{sTmp}, v{vWo+1}
v_add_u32 v{vC+4}, s{sTmp}, v{vWo+2}
""")
    for s in range(4):
        base=vC if s<2 else vC+1
        lab=A.uid("L_cv"); lab2=A.uid("L_cw")
        for r in range(5):
            if r==4: A(f"s_cmp_lt_u32 s{sW}, 2\ns_cbranch_scc0 {lab}")
            for q in range(4):
                off=(s%2)*36864+(2*(q&1)+8*(q>>1))*1152+r*256
                A(f"ds_read_b64_tr_b16 {vr(vK-0+8*r+2*q,2)}, v{base} offset:{off}")
            if r%2==1: A("s_waitcnt lgkmcnt(0)")
        A(f"{lab}:\ns_waitcnt lgkmcnt(0)\ns_barrier")
        for r in range(5):
            if r==4: A(f"s_cmp_lt_u32 s{sW}, 2\ns_cbranch_scc0 {lab2}")
            for half in range(2):
                off=s*36864+r*8192+half*1024
                A(f"ds_write_b128 v{vC+2+off//49152}, {vr(vK+8*r+4*half,4)} offset:{off%49152}")
        A(f"{lab2}:\ns_waitcnt lgkmcnt(0)\ns_barrier")
    if stamps: A("s_memtime s[92:93]")
    A(f"""
s_cmp_eq_u32 s{sW}, 0
s_cbranch_scc0 L_cb_wait
v_mov_b32 v{vT}, 64
s_mov_b32 s{sTmp}, 0
L_cb_poll:
global_load_dword v{vT+2}, v{vT}, s[{sDbg}:{sDbg+1}] sc1
s_waitcnt vmcnt(0)
v_readfirstlane_b32 s{sTmp+1}, v{vT+2}
s_add_u32 s{sTmp}, s{sTmp}, 1
s_cmp_gt_u32 s{sTmp}, 2000000
s_cbranch_scc1 L_abort
s_cmp_ge_u32 s{sTmp+1}, 32
s_cbranch_scc0 L_cb_poll
""")
    if OPT.fused and stamps: A("s_memtime s[90:91]")
    if OPT.fused:
        A(f"""
s_mov_b32 s{sTmp+2}, {cnt(C_KV)}
L_kv_poll:
buffer_load_dword v{vT+2}, off, {WSR}, s{sTmp+2} sc1
s_waitcnt vmcnt(0)
v_readfirstlane_b32 s{sTmp+1}, v{vT+2}
s_add_u32 s{sTmp}, s{sTmp}, 1
s_cmp_gt_u32 s{sTmp}, 4000000
s_cbranch_scc1 L_abort
s_sleep 1
s_cmp_ge_u32 s{sTmp+1}, 64
s_cbranch_scc0 L_kv_poll
""")
    A(f"""
L_cb_wait:
s_barrier
""")
    if OPT.fused:
        A(f"s_cmp_eq_u32 s{sW}, 3\ns_cbranch_scc0 L_nf\nv_mov_b32 v10, 64\nL_nf:")
    if OPT.prewarm:
        A(f"v_lshlrev_b32 v{vT+7}, 2, v{vL16M}\ns_lshl_b32 s{sTmp}, s{sH}, 13\ns_lshl_b32 s{sTmp+1}, s{sW}, 12\ns_and_b32 s{sTmp+1}, s{sTmp+1}, 4096\ns_add_u32 s{sTmp}, s{sTmp}, s{sTmp+1}")
        A(f"s_cmp_lt_u32 s{sW}, 2\ns_mov_b32 s{sTmp+2}, {WS_VT-L_MEMT*4}\ns_cselect_b32 s{sTmp+2}, {WS_KX-L_MEMT*4}, s{sTmp+2}\ns_add_u32 s{sTmp}, s{sTmp}, s{sTmp+2}")
        for sg in range(2):
            A(f"buffer_load_dword v0, v{vT+7}, {WSR}, s{sTmp} offen\ns_add_u32 s{sTmp}, s{sTmp}, 262144")
        A("s_waitcnt vmcnt(0)")

PAIRS=[[0,4,8,12,16],[1,5,9,13,17],[2,6,10],[3,7,11,15,14]]
PAIRS_C=[[0,3,6,9,12,15],[1,4,7,10,13,16],[],[2,5,8,11,14,17]]
PAIRS_D=[[0,4,8,10,14,17],[1,5,9,12,15],[2,6],[3,7,11,13,16]]
PAIRS_E=[[0,4,8,12,16],[1,5,9,13,17],[2,6],[3,7,10,11,14,15]]
def pairs(w): return PAIRS_C[w] if OPT.commwave==True else {0:PAIRS,1:PAIRS_D,2:PAIRS_E}[OPT.pmode][w]
def wo_addr(P, s, half):
    off=s*36864+P*2048+half*1024
    return vWo+off//49152, off%49152

class Cnt:
    def __init__(self,A,name,maxn): self.A=A; self.q=[]; self.name=name; self.maxn=maxn
    def add(self,tag,n=1):
        self.q+= [tag]*n
        assert len(self.q)<=self.maxn, (self.name,self.q)
    def wait(self,tag):
        if tag not in self.q: return
        idx=max(i for i,x in enumerate(self.q) if x==tag)
        self.A(f"s_waitcnt {self.name}({len(self.q)-idx-1})"); del self.q[:idx+1]
    def drain(self):
        self.A(f"s_waitcnt {self.name}(0)"); self.q=[]
    def clear(self): self.q=[]

class Stream:
    def __init__(self, A, w, red_round, nsteps, stamps, stamp_step, sid):
        self.A=A; self.w=w; self.rr=red_round; self.nsteps=nsteps; self.stamps=stamps; self.sid=sid
        self.nst=0; self.names=[]
        self.L=Cnt(A,"lgkmcnt",15); self.V=Cnt(A,"vmcnt",63)
        self.ool=[]
    def stamp(self,name=""):
        if self.stamps==True:
            self.A(f"{OPT.clk} s[{sT0+2*self.nst}:{sT0+2*self.nst+1}]"); self.names.append(name); self.nst+=1
            assert self.nst<=16
    def delay(self,d):
        while d>0: self.A(f"s_nop {min(d,16)-1}"); d-=16
    def trr1(self,dst,off,tag):
        self.A(f"ds_read_b64_tr_b16 {vr(dst,2)}, v{vTR} offset:{off}"); self.L.add(tag)
    def trr(self,dst,off,tag):
        self.trr1(dst,off,tag); self.trr1(dst+2,off+64,tag)
    def gat_issue(self,r,b,tag=None):
        A=self.A
        A(f"s_add_u32 s{sTmp}, s{sH2gat}, {r*2048}")
        A(f"buffer_load_dwordx4 {vr(b,4)}, v{vL16M}, {WSR}, s{sTmp} offen sc1")
        if r<4: A(f"buffer_load_dwordx4 {vr(b+4,4)}, v{vL16M}, {WSR}, s{sTmp} offen offset:1024 sc1")
        if tag: self.V.add(tag,2 if r<4 else 1)
    def gat_check_parts(self,r,b):
        A=self.A
        rt=A.uid("L_grt"); back=A.uid("L_gbk")
        t=vT+6
        g=[]
        g.append(lambda: self.V.wait(("g",r)))
        if r<4:
            g.append(lambda: A(f"v_max3_u32 v{t}, v{b}, v{b+2}, v{b+4}"))
            g.append(lambda: A(f"v_max_u32 v{t}, v{t}, v{b+6}"))
        else:
            g.append(lambda: A(f"v_max_u32 v{t}, v{b}, v{b+2}"))
        g.append(lambda: A(f"v_cmp_eq_u32 vcc, -1, v{t}"))
        def wr():
            A(f"ds_write_b128 v{vL16M}, {vr(b,4)} offset:{r*2048}"); self.L.add(("gw",r))
        def wr2():
            if r<4: A(f"ds_write_b128 v{vL16M}, {vr(b+4,4)} offset:{r*2048+1024}"); self.L.add(("gw",r))
        g.append(wr); g.append(wr2)
        g.append(lambda: A(f"s_cbranch_vccnz {rt}\n{back}:"))
        def ool():
            lp=A.uid("L_glp")
            A(f"{rt}:\n{lp}:\ns_add_u32 s{sRetry2}, s{sRetry2}, 1\ns_cmp_gt_u32 s{sRetry2}, 1000000\ns_cbranch_scc1 L_abort\ns_waitcnt lgkmcnt(0)")
            self.gat_issue(r,b)
            A("s_waitcnt vmcnt(0)")
            if r<4: A(f"v_max3_u32 v{t}, v{b}, v{b+2}, v{b+4}\nv_max_u32 v{t}, v{t}, v{b+6}")
            else: A(f"v_max_u32 v{t}, v{b}, v{b+2}")
            A(f"v_cmp_eq_u32 vcc, -1, v{t}\ns_cbranch_vccnz {lp}")
            A(f"ds_write_b128 v{vL16M}, {vr(b,4)} offset:{r*2048}")
            if r<4: A(f"ds_write_b128 v{vL16M}, {vr(b+4,4)} offset:{r*2048+1024}")
            A(f"s_waitcnt lgkmcnt(0)\ns_branch {back}")
        self.ool.append(ool)
        return g
    def gat_poll(self,r):
        A=self.A
        sets=[vK,vK+8,vV][:OPT.npoll]; NS=len(sets)
        A(f"s_add_u32 s{sTmp+4}, s{sH2gat}, {r*2048}")
        def iss(b):
            A(f"buffer_load_dwordx4 {vr(b,4)}, v{vL16M}, {WSR}, s{sTmp+4} offen sc1")
            A(f"buffer_load_dwordx4 {vr(b+4,4)}, v{vL16M}, {WSR}, s{sTmp+4} offen offset:1024 sc1")
        for i,b in enumerate(sets):
            iss(b)
            if i<NS-1: self.delay(OPT.poll_gap)
        lp=A.uid("L_g0p"); done=A.uid("L_g0d"); oks=[A.uid("L_g0k") for _ in sets]
        A(f"{lp}:")
        for i,b in enumerate(sets):
            A(f"s_waitcnt vmcnt({2*(NS-1)})")
            A(f"v_max3_u32 v{vT+6}, v{b}, v{b+2}, v{b+4}\nv_max_u32 v{vT+6}, v{vT+6}, v{b+6}")
            A(f"v_cmp_eq_u32 vcc, -1, v{vT+6}\ns_cbranch_vccz {oks[i]}")
            iss(b)
        A(f"s_add_u32 s{sRetry2}, s{sRetry2}, 1\ns_cmp_gt_u32 s{sRetry2}, 1000000\ns_cbranch_scc1 L_abort\ns_branch {lp}")
        for i,b in enumerate(sets):
            A(f"{oks[i]}:")
            A(f"ds_write_b128 v{vL16M}, {vr(b,4)} offset:{r*2048}\nds_write_b128 v{vL16M}, {vr(b+4,4)} offset:{r*2048+1024}")
            if i<NS-1: A(f"s_branch {done}")
        A(f"{done}:\ns_waitcnt lgkmcnt(0)")
        self.L.clear()
    def gat_poll01(self):
        A=self.A
        sets=[vK,vA][:OPT.npoll]; NS=len(sets)
        def iss(b):
            A(f"buffer_load_dwordx4 {vr(b,4)}, v{vL16M}, {WSR}, s{sH2gat} offen sc1")
            A(f"buffer_load_dwordx4 {vr(b+4,4)}, v{vL16M}, {WSR}, s{sH2gat} offen offset:1024 sc1")
            A(f"buffer_load_dwordx4 {vr(b+8,4)}, v{vL16M}, {WSR}, s{sH2gat} offen offset:2048 sc1")
            A(f"buffer_load_dwordx4 {vr(b+12,4)}, v{vL16M}, {WSR}, s{sH2gat} offen offset:3072 sc1")
        for i,b in enumerate(sets):
            iss(b)
            if i<NS-1: self.delay(OPT.poll_gap)
        lp=A.uid("L_g0p"); done=A.uid("L_g0d"); oks=[A.uid("L_g0k") for _ in sets]
        A(f"{lp}:")
        for i,b in enumerate(sets):
            A(f"s_waitcnt vmcnt({4*(NS-1)})")
            A(f"v_max3_u32 v{vT+6}, v{b}, v{b+2}, v{b+4}\nv_max3_u32 v{vT+7}, v{b+6}, v{b+8}, v{b+10}\nv_max3_u32 v{vT+6}, v{vT+6}, v{b+12}, v{b+14}\nv_max_u32 v{vT+6}, v{vT+6}, v{vT+7}")
            A(f"v_cmp_eq_u32 vcc, -1, v{vT+6}\ns_cbranch_vccz {oks[i]}")
            iss(b)
        A(f"s_add_u32 s{sRetry2}, s{sRetry2}, 1\ns_cmp_gt_u32 s{sRetry2}, 1000000\ns_cbranch_scc1 L_abort\ns_branch {lp}")
        for i,b in enumerate(sets):
            A(f"{oks[i]}:")
            for j in range(4): A(f"ds_write_b128 v{vL16M}, {vr(b+4*j,4)} offset:{j*1024}")
            if i<NS-1: A(f"s_branch {done}")
        A(f"{done}:\ns_waitcnt vmcnt(0) lgkmcnt(0)")
        self.L.clear()
    def red_iss(self,b,second=False):
        if second: self.A(f"s_add_u32 s{sTmp+5}, s{sH1}, {32*4096}")
        for k in range(4):
            self.A(f"buffer_load_dwordx4 {vr(b+4*k,4)}, v{vRed}, {WSR}, s{sTmp+5 if second else sH1} offen offset:{k*1024} sc1")
    def red_poll(self,pre_issued=False,younger=0,second=False):
        A=self.A
        sets=[vK,vA][:OPT.nred]; NS=len(sets)
        iss=lambda b: self.red_iss(b,second)
        for i,b in enumerate(sets):
            if not (i==0 and pre_issued): iss(b)
            if i<NS-1: self.delay(OPT.red_gap)
        lp=A.uid("L_rp"); done=A.uid("L_rd")
        oks={}
        def check(b,cnt):
            A(f"s_waitcnt vmcnt({cnt})")
            A(f"""
v_xor_b32 v{vT+6}, v{b}, v{vTag}
v_bitop3_b32 v{vT+6}, v{vT+6}, v{b+4}, v{vTag} bitop3:0xf6
v_bitop3_b32 v{vT+6}, v{vT+6}, v{b+8}, v{vTag} bitop3:0xf6
v_bitop3_b32 v{vT+6}, v{vT+6}, v{b+12}, v{vTag} bitop3:0xf6
""")
            if OPT.spec1: A(f"v_mfma_f32_16x16x32_bf16 {vr(aV,4)}, {vr(vSel,4)}, {vr(b,4)}, 0")
            A(f"""
v_and_b32 v{vT+6}, 0x10001, v{vT+6}
v_cmp_ne_u32 vcc, 0, v{vT+6}
s_cbranch_vccz {oks.setdefault(b,A.uid("L_rk"))}
""")
            iss(b)
        check(sets[0],4*(NS-1)+(younger if pre_issued else 0))
        order=sets[1:]+sets[:1]
        A(f"{lp}:")
        for b in order: check(b,4*(NS-1))
        A(f"s_add_u32 s{sRetry}, s{sRetry}, 1\ns_cmp_gt_u32 s{sRetry}, 1000000\ns_cbranch_scc1 L_abort\ns_branch {lp}")
        for n_,b in enumerate(sets):
            A(f"{oks[b]}:")
            for k in range(4):
                A(f"v_mfma_f32_16x16x32_bf16 {vr(aV,4)}, {vr(vSel,4)}, {vr(b+4*k,4)}, {'0' if k==0 else vr(aV,4)}")
            if n_<len(sets)-1: A(f"s_branch {done}")
        A(f"{done}:")
        for r in range(4):
            A(f"v_add_f32_dpp v{aV+r}, v{aV+r}, v{aV+r} row_ror:8 row_mask:0xf bank_mask:0xf")
        A(f"""
v_cvt_pk_bf16_f32 v{vT+4}, v{aV}, v{aV+1}
v_cvt_pk_bf16_f32 v{vT+5}, v{aV+2}, v{aV+3}
s_mov_b64 exec, s[{sMaskPub}:{sMaskPub+1}]
v_min_u32 v{vT+4}, -2, v{vT+4}
""")
        if second: A(f"s_add_u32 s{sTmp+5}, s{sH2pub}, 4096\ns_add_u32 s{sTmp+6}, s{sH2rst}, 4096")
        A(f"""
buffer_store_dwordx2 {vr(vT+4,2)}, v{vPub}, {WSR}, s{sTmp+5 if second else sH2pub} offen
v_mov_b32 v{vT+6}, -1
v_mov_b32 v{vT+7}, -1
buffer_store_dwordx2 {vr(vT+6,2)}, v{vPub}, {WSR}, s{sTmp+6 if second else sH2rst} offen
s_mov_b64 exec, -1
""")
    def kx_loads(self):
        A=self.A
        A(f"s_add_u32 s{sTmp+1}, s{sKXo}, 4096")
        for s in range(4):
            A(f"buffer_load_dwordx4 {vr(vK+4*s,4)}, v{vKx}, {WSR}, s{sKXo if s<2 else sTmp+1} offen offset:{(s%2)*2048} sc1")
        self.V.add(("kx",0),4)
    def kx1(self,s_):
        A=self.A
        if s_>=2: A(f"s_add_u32 s{sTmp+1}, s{sKXo}, 4096")
        A(f"buffer_load_dwordx4 {vr(vK+4*s_,4)}, v{vKx}, {WSR}, s{sKXo if s_<2 else sTmp+1} offen offset:{(s_%2)*2048} sc1")
        self.V.add(("kx",0))
    def vx1(self,t):
        self.A(f"buffer_load_dwordx4 {vr(vV+4*t,4)}, v{vVx}, {WSR}, s{sVTo} offen offset:{t*256} sc1")
        self.V.add(("vx",0))
    def vx_loads(self):
        for t in range(2):
            self.A(f"buffer_load_dwordx4 {vr(vV+4*t,4)}, v{vVx}, {WSR}, s{sVTo} offen offset:{t*256} sc1")
        self.V.add(("vx",0),2)
    def warm1(self,i):
        A=self.A
        sb=sWarmK if i<2 else sWarmV
        A(f"v_lshlrev_b32 v{vT+7}, 2, v{vL16M}")
        A(f"s_add_u32 s{sTmp+1}, s{sb}, {4096*(i%2)}\nbuffer_load_dword v0, v{vT+7}, {WSR}, s{sTmp+1} offen {OPT.warmflag}")
        self.V.add(("warm",i))
    def zero_acc(self):
        for r in range(4): self.A(f"v_mov_b32 v{aQ+r}, 0\nv_mov_b32 v{aK+r}, 0\nv_mov_b32 v{aV+r}, 0")

    def body(self):
        A=self.A; w=self.w; sid=self.sid; L=self.L; V=self.V
        A(f"L_step_{sid}:")
        self.stamp("top")
        V.q=[]
        if OPT.steplog and w==1:
            A(f"s_memrealtime s[88:89]\ns_waitcnt lgkmcnt(0)\nv_mov_b32 v{vT}, s88\nv_mov_b32 v{vT+1}, s90\nv_mov_b32 v{vT+2}, s92\nv_mov_b32 v{vT+3}, s98\ns_lshl_b32 s{sTmp}, s{sH}, 10\ns_lshl_b32 s{sTmp+1}, s{sStep}, 4\ns_add_u32 s{sTmp}, s{sTmp}, s{sTmp+1}\ns_add_u32 s{sTmp}, s{sTmp}, {WS_STAMP+0x20000}\nv_mov_b32 v{vT+6}, 0\nbuffer_store_dwordx4 {vr(vT,4)}, v{vT+6}, {WSR}, s{sTmp} offen\ns_nop 3")
            V.add(("dbg",0))
        L.q=[]
        smf=lambda acc,b,wt: A(f"v_smfmac_f32_16x16x64_bf16 {vr(acc,4)}, {vr(b,4)}, {wt}, v{vIdx}")
        abuf=lambda k: vA+4*(k%4)
        PD=OPT.pd
        for k in range(PD): self.trr(abuf(k),k*512,("a",k))
        side={k:[[],[],[]] for k in range(18)}
        def guarded(fn_list):
            return fn_list
        grounds={3:(2,vK),0:(3,vK),1:(4,vT),2:(None,None)}
        gr,gb=grounds[w]
        skip=[None]
        def begin_skip():
            lab=A.uid("L_fs"); skip[0]=lab
            A(f"s_cmp_eq_u32 s{sStep}, 0\ns_cbranch_scc1 {lab}")
        def end_skip():
            A(f"{skip[0]}:")
        if gr is not None:
            parts=self.gat_check_parts(gr,gb)
            kc=4*(gr-1)-(OPT.pd-2)
            ki={2:OPT.ki[0],3:OPT.ki[1],4:OPT.ki[2]}[gr]
            if ki>=0: side[ki][2]+= [lambda: self.gat_issue(gr,gb,("g",gr))]
            else: V.add(("g",gr),2 if gr<4 else 1)
            nv=len(parts)-4
            side[kc][0]+= parts[:2]
            side[kc][1]+= parts[2:nv+1]
            side[kc][2]+= parts[nv+1:]
        if OPT.kvmode=="spread":
            if w in (1,2):
                for i in range(4): side[i][1]+= [lambda i=i: self.kx1(i)]
                for t in range(2): side[4+t][1]+= [lambda t=t: self.vx1(t)]
            if w==3:
                for t in range(2): side[1+t][1]+= [lambda t=t: self.vx1(t)]
            if w==0:
                for t in range(2): side[t][1]+= [lambda t=t: self.vx1(t)]
        else:
            if w==1: side[0][2]+= [self.kx_loads]; side[3][2]+= [self.vx_loads]
            if w==2: side[0][2]+= [self.kx_loads]; side[2][2]+= [self.vx_loads]
            if w==3: side[3][2]+= [self.vx_loads]
            if w==0: side[0][2]+= [self.vx_loads]
        if w==3 and OPT.warm:
            if OPT.fused:
                def kvcheck():
                    rt=A.uid("L_kvr"); back=A.uid("L_kvb")
                    A(f"v_readfirstlane_b32 s{sTmp+1}, v10\ns_cmp_ge_u32 s{sTmp+1}, 64\ns_cbranch_scc0 {rt}\n{back}:")
                    def ool():
                        lp=A.uid("L_kvl")
                        A(f"{rt}:\ns_add_u32 s{sTmp+2}, s{sStep}, 2\ns_min_u32 s{sTmp+2}, s{sTmp+2}, 63\ns_lshr_b32 s{sTmp+2}, s{sTmp+2}, 2\ns_lshl_b32 s{sTmp+2}, s{sTmp+2}, 7\ns_add_u32 s{sTmp+2}, s{sTmp+2}, {cnt(C_KV)}\n{lp}:")
                        A(f"buffer_load_dword v10, off, {WSR}, s{sTmp+2} sc1\ns_waitcnt vmcnt(0)\nv_readfirstlane_b32 s{sTmp+1}, v10\ns_add_u32 s{sRetry2}, s{sRetry2}, 1\ns_cmp_gt_u32 s{sRetry2}, 4000000\ns_cbranch_scc1 L_abort\ns_sleep 1\ns_cmp_ge_u32 s{sTmp+1}, 64\ns_cbranch_scc0 {lp}\ns_branch {back}")
                    self.ool.append(ool)
                side[min(OPT.warmk)][2]+= [kvcheck]
            for i,kk in enumerate(OPT.warmk):
                if kk is not None and kk<18: side[kk][2]+= [lambda i=i: self.warm1(i)]
            if OPT.fused:
                def kvload():
                    A(f"s_add_u32 s{sTmp+2}, s{sStep}, 3\ns_min_u32 s{sTmp+2}, s{sTmp+2}, 63\ns_lshr_b32 s{sTmp+2}, s{sTmp+2}, 2\ns_lshl_b32 s{sTmp+2}, s{sTmp+2}, 7\ns_add_u32 s{sTmp+2}, s{sTmp+2}, {cnt(C_KV)}")
                    A(f"buffer_load_dword v10, off, {WSR}, s{sTmp+2} sc1"); V.add(("kvf",0))
                side[max(OPT.warmk)][2]+= [kvload]
        for k in range(18):
            L.wait(("a",k))
            b=abuf(k)
            smf(aQ,b,Wq(k))
            if k+PD<18: self.trr1(abuf(k+PD),(k+PD)*512,("a",k+PD))
            for f in side[k][0]: f()
            smf(aK,b,Wk(k))
            if k+PD<18: self.trr1(abuf(k+PD)+2,(k+PD)*512+64,("a",k+PD))
            for f in side[k][1]: f()
            if k<14: smf(aV,b,Wv(k))
            for f in side[k][2]: f()
            if (k+1+PD)%4==0 and (k+1+PD)//4>=2 and (k+1+PD)//4<=4:
                rnd=(k+1+PD)//4
                if rnd==gr: L.wait(("gw",rnd)) if (("gw",rnd) in L.q) else None
                A("s_barrier")
                if rnd==4 and w==1 and OPT.fused:
                    A(f"v_mov_b32 v{vT+5}, s{sStep}\ns_lshl_b32 s{sTmp+1}, s{sH}, 7\ns_add_u32 s{sTmp+1}, s{sTmp+1}, {cnt(C_PROG)}\ns_mov_b64 exec, 1\nbuffer_store_dword v{vT+5}, off, {WSR}, s{sTmp+1} sc1\ns_mov_b64 exec, -1")
                    V.add(("prog",0))
                if rnd in (2,4): self.stamp(f"qkB{rnd}")
        self.stamp("qkend")
        smf(aV,abuf(14),Wv(14))
        A(f"v_cvt_pk_bf16_f32 v{vT}, v{aQ}, v{aQ+1}\nv_cvt_pk_bf16_f32 v{vT+1}, v{aQ+2}, v{aQ+3}")
        A(f"ds_write_b64 v{vQw}, {vr(vT,2)}")
        smf(aV,abuf(15),Wv(15))
        A(f"v_cvt_pk_bf16_f32 v{vT+2}, v{aK}, v{aK+1}\nv_cvt_pk_bf16_f32 v{vT+3}, v{aK+2}, v{aK+3}")
        A(f"ds_write_b64 v{vQw}, {vr(vT+2,2)} offset:2048")
        smf(aV,abuf(16),Wv(16)); smf(aV,abuf(17),Wv(17))
        L.drain()
        A("s_barrier")
        last=f"L_last_{sid}"
        self.stamp("B6")
        if OPT.steplog and w==1: A("s_memrealtime s[90:91]")
        if w==3 and OPT.warm:
            for i,kk in enumerate(OPT.warmk):
                if kk==20: self.warm1(i)
        if w<3:
            if w==0:
                for s in range(3):
                    self.trr(vK+4*s,KOFF+s*512,("k",s)); self.trr(vA+4*s,QOFF+s*512,("q",s))
                A(f"s_cmp_eq_u32 s{sStep}, {self.nsteps-1}\ns_cbranch_scc1 {last}")
                L.wait(("q",0))
                self.trr(vK+12,KOFF+3*512,("k",3)); self.trr(vA+12,QOFF+3*512,("q",3))
                for s in range(4):
                    L.wait(("q",s))
                    A(f"v_mfma_f32_16x16x32_bf16 {vr(vT,4)}, {vr(vK+4*s,4)}, {vr(vA+4*s,4)}, {'0' if s==0 else vr(vT,4)}")
            else:
                for s in range(4): self.trr(vA+4*s,QOFF+s*512,("q",s))
                A(f"s_cmp_eq_u32 s{sStep}, {self.nsteps-1}\ns_cbranch_scc1 {last}")
                V.wait(("kx",0))
                for s in range(4):
                    L.wait(("q",s))
                    A(f"v_mfma_f32_16x16x32_bf16 {vr(vT,4)}, {vr(vK+4*s,4)}, {vr(vA+4*s,4)}, {'0' if s==0 else vr(vT,4)}")
            self.stamp("Smf")
            A(f"v_cvt_pk_bf16_f32 v{aV}, v{aV}, v{aV+1}\nv_cvt_pk_bf16_f32 v{aV+1}, v{aV+2}, v{aV+3}")
            A(f"buffer_store_dwordx2 {vr(aV,2)}, v{vVm}, {WSR}, s{sVMo} offen {OPT.kmflag}"); V.add(("vm",0))
        else:
            A(f"s_cmp_eq_u32 s{sStep}, {self.nsteps-1}\ns_cbranch_scc1 {last}")
            self.stamp("Smf")
            A(f"v_cvt_pk_bf16_f32 v{aV}, v{aV}, v{aV+1}\nv_cvt_pk_bf16_f32 v{aV+1}, v{aV+2}, v{aV+3}")
            A(f"buffer_store_dwordx2 {vr(aV,2)}, v{vVm}, {WSR}, s{sVMo} offen {OPT.kmflag}"); V.add(("vm",0))
        prep=f"""
s_add_u32 s{sTagT}, s{sStep}, 1
s_and_b32 s{sTmp}, s{sTagT}, 1
s_bfe_u32 s{sTmp+1}, s{sTagT}, 0x10001
s_lshl_b32 s{sTmp+1}, s{sTmp+1}, 16
s_or_b32 s{sTmp+2}, s{sTmp}, s{sTmp+1}
s_and_b32 s{sTmp}, s{sTagT}, 3
s_lshl_b32 s{sTmp}, s{sTmp}, 14
s_add_u32 s{sH2pub}, s{sTmp}, s{sH2}
s_sub_u32 s{sH2gat}, s{sH2pub}, {L_MEMT}
s_add_u32 s{sTmp}, s{sStep}, 3
s_and_b32 s{sTmp}, s{sTmp}, 3
s_lshl_b32 s{sTmp}, s{sTmp}, 14
s_add_u32 s{sH2rst}, s{sTmp}, s{sH2}
"""
        if w<3:
            A(f"ds_write_b128 v{vL16M}, {vr(vT,4)} offset:{SOFF+w*1024}"); L.add(("st",0))
            A(prep)
            if w==0:
                A(f"s_mov_b64 exec, s[{sMaskLo}:{sMaskLo+1}]")
                for s in range(4):
                    A(f"buffer_store_dwordx4 {vr(vK+4*s,4)}, v{vKm}, {WSR}, s{sKMo} offen offset:{s*64} {OPT.kmflag}")
                A("s_mov_b64 exec, -1"); V.add(("km",0),4)
            L.drain()
        else:
            A(prep)
        A("s_barrier")
        self.stamp("B7")
        if w==3 and OPT.warm:
            for i,kk in enumerate(OPT.warmk):
                if kk==21: self.warm1(i)
        S=vA
        for t in (1,2,0):
            A(f"ds_read_b128 {vr(S+4*t,4)}, v{vL16M} offset:{SOFF+t*1024}"); L.add(("s",t))
        A(f"v_mov_b32 v{vTag}, s{sTmp+2}")
        prs=pairs(w)
        seq=[(j,P,s) for j,P in enumerate(prs) for s in range(4)]
        n=len(seq)
        m,mt=vT,vT+1
        L.wait(("s",2))
        A(f"v_max3_f32 v{m}, v{S+4}, v{S+5}, v{S+6}\nv_max3_f32 v{mt}, v{S+7}, v{S+8}, v{S+9}\nv_max3_f32 v{m}, v{m}, v{S+10}, v{S+11}")
        L.wait(("s",0))
        self.stamp("Srd")
        A(f"""
v_max3_f32 v{mt}, v{mt}, v{S}, v{S+1}
v_max3_f32 v{m}, v{m}, v{S+2}, v{S+3}
v_max_f32 v{m}, v{m}, v{mt}
v_mov_b32 v{mt}, v{m}
v_permlane32_swap_b32 v{m}, v{mt}
v_max_f32 v{m}, v{m}, v{mt}
v_mov_b32 v{mt}, v{m}
v_permlane16_swap_b32 v{m}, v{mt}
v_max_f32 v{m}, v{m}, v{mt}
v_mul_f32 v{mt}, s{sC}, v{m}
""")
        P=vK
        for i in range(4,12): A(f"v_fma_f32 v{S+i}, v{S+i}, s{sC}, -v{mt}")
        for i in range(4,12):
            A(f"v_exp_f32 v{S+i}, v{S+i}")
            if i in (6,8,10): A(f"v_cvt_pk_bf16_f32 v{P+(i-6)//2}, v{S+i-2}, v{S+i-1}")
        for i in range(4): A(f"v_fma_f32 v{S+i}, v{S+i}, s{sC}, -v{mt}")
        A(f"v_cvt_pk_bf16_f32 v{P+3}, v{S+10}, v{S+11}")
        self.stamp("exp")
        V.wait(("vx",0))
        A(f"v_mfma_f32_16x16x32_bf16 {vr(aQ,4)}, {vr(vV,4)}, {vr(P,4)}, 0")
        A(f"v_mfma_f32_16x16x32_bf16 {vr(aK,4)}, {vr(vV+4,4)}, {vr(P,4)}, 0")
        for i in range(4): A(f"v_exp_f32 v{S+i}, v{S+i}")
        NB=OPT.nb
        Bst=[vA,vA+8,vK,vK+8][:NB]
        def wo_rd(i,half=None):
            j,Pp,s=seq[i]
            for hf in ((0,1) if half is None else (half,)):
                b,off=wo_addr(Pp,s,hf)
                A(f"ds_read_b128 {vr(Bst[i%NB]+4*hf,4)}, v{b} offset:{off}"); L.add(("w",i))
        l,lt=vT+2,vT+3
        A(f"""
v_add_f32 v{l}, v{S+4}, v{S+5}
v_add_f32 v{lt}, v{S+6}, v{S+7}
v_cvt_pk_bf16_f32 v{P+4}, v{S}, v{S+1}
v_cvt_pk_bf16_f32 v{P+5}, v{S+2}, v{S+3}
v_cndmask_b32 v{P+6}, 0, v{P+4}, s[{sMaskG}:{sMaskG+1}]
v_cndmask_b32 v{P+7}, 0, v{P+5}, s[{sMaskG}:{sMaskG+1}]
v_cndmask_b32 v{P+8}, v{P+4}, 0, s[{sMaskG}:{sMaskG+1}]
v_cndmask_b32 v{P+9}, v{P+5}, 0, s[{sMaskG}:{sMaskG+1}]
v_mfma_f32_16x16x16_bf16 {vr(aQ,4)}, {vr(aV,2)}, {vr(P+6,2)}, {vr(aQ,4)}
v_mfma_f32_16x16x16_bf16 {vr(aK,4)}, {vr(aV,2)}, {vr(P+8,2)}, {vr(aK,4)}
""")
        if OPT.latenorm:
            assert NB==3
            A(f"""
v_add_f32 v{l}, v{l}, v{S+8}
v_add_f32 v{lt}, v{lt}, v{S+9}
v_add_f32 v{l}, v{l}, v{S+10}
v_add_f32 v{lt}, v{lt}, v{S+11}
v_add_f32 v{mt}, v{S}, v{S+1}
v_add_f32 v{m}, v{S+2}, v{S+3}
v_add_f32 v{l}, v{l}, v{lt}
v_add_f32 v{mt}, v{mt}, v{m}
v_fma_f32 v{l}, v{mt}, 0.5, v{l}
v_cvt_pk_bf16_f32 v{vT+4}, v{aQ}, v{aQ+1}
v_cvt_pk_bf16_f32 v{vT+5}, v{aQ+2}, v{aQ+3}
v_cvt_pk_bf16_f32 v{vT+6}, v{aK}, v{aK+1}
v_cvt_pk_bf16_f32 v{vT+7}, v{aK+2}, v{aK+3}
ds_write_b128 v{vL16M}, {vr(vT+4,4)} offset:{QOFF+w*1024}
""")
            L.add(("ow",0))
            oA=[vV,vV+4,vK+8,vK+12]
            if n>0: wo_rd(0); wo_rd(1)
            self.stamp("owr")
            A(f"v_mov_b32 v{lt}, v{l}")
            for r in range(4): A(f"v_mov_b32 v{aQ+r}, 0")
            A(f"v_permlane32_swap_b32 v{l}, v{lt}")
            for r in range(4): A(f"v_mov_b32 v{aK+r}, 0")
            A(f"v_add_f32 v{l}, v{l}, v{lt}")
            L.wait(("ow",0))
            A("s_barrier")
            self.stamp("B8")
            if OPT.steplog and w==1: A("s_memrealtime s[92:93]")
            self.late_tail=True
        else:
            if n>0 and NB==4: wo_rd(2); wo_rd(3)
            A(f"""
    v_add_f32 v{l}, v{l}, v{S+8}
    v_add_f32 v{lt}, v{lt}, v{S+9}
    v_add_f32 v{l}, v{l}, v{S+10}
    v_add_f32 v{lt}, v{lt}, v{S+11}
    v_add_f32 v{mt}, v{S}, v{S+1}
    v_add_f32 v{m}, v{S+2}, v{S+3}
    v_add_f32 v{l}, v{l}, v{lt}
    v_add_f32 v{mt}, v{mt}, v{m}
    v_fma_f32 v{l}, v{mt}, 0.5, v{l}
    v_mov_b32 v{lt}, v{l}
    v_permlane32_swap_b32 v{l}, v{lt}
    v_add_f32 v{l}, v{l}, v{lt}
    v_mov_b32 v{lt}, v{l}
    v_permlane16_swap_b32 v{l}, v{lt}
    v_add_f32 v{l}, v{l}, v{lt}
    v_rcp_f32 v{l}, v{l}
    """)
            if n>0:
                wo_rd(0); wo_rd(1)
            for r in range(0,4,2):
                A(f"v_pk_mul_f32 {vr(aQ+r,2)}, {vr(aQ+r,2)}, {vr(l,2)} op_sel_hi:[1,0]")
                A(f"v_pk_mul_f32 {vr(aK+r,2)}, {vr(aK+r,2)}, {vr(l,2)} op_sel_hi:[1,0]")
            oA=[vV,vV+4,vK+8,vK+12] if NB==3 else [vV,vV+4,aV,vT+4]
            A(f"""
    v_cvt_pk_bf16_f32 v{vT+4}, v{aQ}, v{aQ+1}
    v_cvt_pk_bf16_f32 v{vT+5}, v{aQ+2}, v{aQ+3}
    v_cvt_pk_bf16_f32 v{vT+6}, v{aK}, v{aK+1}
    v_cvt_pk_bf16_f32 v{vT+7}, v{aK+2}, v{aK+3}
    ds_write_b128 v{vL16M}, {vr(vT+4,4)} offset:{QOFF+w*1024}
    """)
            L.add(("ow",0))
            self.stamp("owr")
            for r in range(4): A(f"v_mov_b32 v{aQ+r}, 0")
            for r in range(4): A(f"v_mov_b32 v{aK+r}, 0")
            L.drain()
            A("s_barrier")
            self.stamp("B8")
            if OPT.steplog and w==1: A("s_memrealtime s[92:93]")
        if n>0:
            for s in range(4):
                A(f"ds_read_b128 {vr(oA[s],4)}, v{vL16M} offset:{QOFF+s*1024}"); L.add(("o",s))
            if NB==3: wo_rd(2)
        if OPT.latenorm:
            A(f"""
v_mov_b32 v{lt}, v{l}
v_lshrrev_b32 v{m}, 6, v{vKm}
v_permlane16_swap_b32 v{l}, v{lt}
v_add_u32 v{m}, {L_ST+w*64}, v{m}
v_add_f32 v{l}, v{l}, v{lt}
v_and_b32 v{mt}, 8, v{vVm}
v_rcp_f32 v{l}, v{l}
v_lshlrev_b32 v{mt}, 1, v{mt}
v_add_u32 v{mt}, {L_ST+w*64}, v{mt}
ds_write_b32 v{m}, v{l}
""")
            L.add(("rw",0))
            A(f"ds_read_b128 {vr(aV,4)}, v{mt}"); L.add(("rr",0))
        def epi_parts(j):
            acc=aQ if j%2==0 else aK
            e=vT+2*(j%2)
            def st():
                A(f"s_add_u32 s{sTmp+3}, s{sH1}, {prs[j]*16384}")
                A(f"buffer_store_dwordx2 {vr(e,2)}, v{vH1st}, {WSR}, s{sTmp+3} offen"); V.add(("h1",j))
            def c0():
                if OPT.latenorm:
                    L.wait(("rr",0))
                    A(f"v_pk_mul_f32 {vr(acc,2)}, {vr(acc,2)}, {vr(aV,2)}\nv_pk_mul_f32 {vr(acc+2,2)}, {vr(acc+2,2)}, {vr(aV+2,2)}")
                A(f"v_cvt_pk_bf16_f32 v{e}, v{acc}, v{acc+1}")
            return [c0,
                    lambda: A(f"v_cvt_pk_bf16_f32 v{e+1}, v{acc+2}, v{acc+3}"),
                    lambda: A(f"v_and_or_b32 v{e}, v{e}, s{sMaskF}, v{vTag}"), st]
        for i,(j,Pp,s) in enumerate(seq):
            acc=aQ if j%2==0 else aK
            if j==0: L.wait(("o",s))
            L.wait(("w",i))
            A(f"v_smfmac_f32_16x16x64_bf16 {vr(acc,4)}, {vr(oA[s],4)}, {vr(Bst[i%NB],8)}, v{vIdx}")
            if i+NB<n: wo_rd(i+NB)
            if j>0 and s==0:
                for f in epi_parts(j-1)[:2]: f()
            if j>0 and s==1:
                for f in epi_parts(j-1)[2:]: f()
            if s>=2 and j>=1 and j+1<len(prs):
                nacc=aQ if (j+1)%2==0 else aK
                for k_ in (0,1) if s==2 else (2,3): A(f"v_mov_b32 v{nacc+k_}, 0")
        early = self.rr is not None and w>=2 and OPT.red_early and not OPT.commwave
        if early:
            self.delay(OPT.d_red[self.rr])
            self.red_iss(vK)
        if n>0:
            for f in epi_parts(len(prs)-1): f()
        self.stamp("opend")
        if OPT.steplog and w==1: A("s_memrealtime s[98:99]")
        if self.rr is not None:
            lab=A.uid("L_nt")
            if w==1: A(f"s_cmp_eq_u32 s{sHasTask}, 1\ns_cbranch_scc0 {lab}")
            if early: self.red_poll(True,1)
            else:
                self.delay(OPT.d_red[self.rr])
                self.red_poll()
            if OPT.commwave and w==2:
                self.delay(OPT.d_red[self.rr+2])
                self.red_poll(second=True)
            A("s_waitcnt vmcnt(2)")
            A(f"{lab}:")
        self.stamp("redend")
        A(f"L_pre_{sid}:")
        self.zero_acc()
        A(f"""
s_add_u32 s{sStep}, s{sStep}, 1
s_add_u32 s{sKXo}, s{sKXo}, {0 if OPT.fixkv else KVS()}
s_add_u32 s{sVTo}, s{sVTo}, {0 if OPT.fixkv else KVS()}
s_add_u32 s{sKMo}, s{sKMo}, {0 if OPT.fixkm else KMS()}
s_add_u32 s{sVMo}, s{sVMo}, {0 if OPT.fixkm else KMS()}
s_add_u32 s{sTmp}, s{sStep}, {OPT.warmdist}
s_min_u32 s{sTmp}, s{sTmp}, 63
s_lshl_b32 s{sTmp}, s{sTmp}, {13 if OPT.hs else 18}
s_lshl_b32 s{sTmp+1}, s{sH}, {19 if OPT.hs else 13}
s_add_u32 s{sTmp}, s{sTmp}, s{sTmp+1}
s_add_u32 s{sWarmK}, s{sTmp}, {WS_KX-L_MEMT*4}
s_add_u32 s{sWarmV}, s{sTmp}, {WS_VT-L_MEMT*4}
""")
        if OPT.gmode=="joint":
            if w==0:
                self.delay(OPT.d_gat)
                self.gat_poll01()
        else:
            if w==0:
                self.delay(OPT.d_gat)
                self.gat_poll(0)
            if OPT.g1wave=="mix":
                if w==1:
                    l=A.uid("L_g1s")
                    A(f"s_cmp_eq_u32 s{sHasTask}, 1\ns_cbranch_scc1 {l}")
                    self.delay(OPT.d_g1m); self.gat_poll(1)
                    A(f"{l}:")
                if w==2:
                    l=A.uid("L_g1s")
                    A(f"s_and_b32 s{sTmp}, s{sH}, 3\ns_cmp_eq_u32 s{sTmp}, 0\ns_cbranch_scc0 {l}")
                    self.delay(OPT.d_g1[self.rr%2]); self.gat_poll(1)
                    A(f"{l}:")
            elif w==OPT.g1wave:
                self.delay(OPT.d_g1[self.rr%2] if self.rr is not None else OPT.d_g1[0])
                self.gat_poll(1)
        if w==3 and OPT.ki[0]<0:
            self.delay(OPT.d_g2[(self.rr or 0)%2])
            self.gat_issue(2,vK)
        self.stamp("gat0")
        A(f"s_barrier\ns_branch L_step_{sid}\n{last}:")
        A(f"v_cvt_pk_bf16_f32 v{aV}, v{aV}, v{aV+1}\nv_cvt_pk_bf16_f32 v{aV+1}, v{aV+2}, v{aV+3}")
        A(f"buffer_store_dwordx2 {vr(aV,2)}, v{vVm}, {WSR}, s{sVMo} offen {OPT.kmflag}")
        if w==0:
            A(f"ds_read_b64_tr_b16 {vr(vK+12,2)}, v{vTR} offset:{KOFF+3*512}\nds_read_b64_tr_b16 {vr(vK+14,2)}, v{vTR} offset:{KOFF+3*512+64}")
            A("s_waitcnt lgkmcnt(0)")
            A(f"s_mov_b64 exec, s[{sMaskLo}:{sMaskLo+1}]")
            for s in range(4):
                A(f"buffer_store_dwordx4 {vr(vK+4*s,4)}, v{vKm}, {WSR}, s{sKMo} offen offset:{s*64} {OPT.kmflag}")
            A("s_mov_b64 exec, -1")
        if OPT.fused:
            A("s_waitcnt vmcnt(0)\ns_barrier")
            if w==1:
                A(f"v_mov_b32 v{vT+5}, 64\ns_lshl_b32 s{sTmp+1}, s{sH}, 7\ns_add_u32 s{sTmp+1}, s{sTmp+1}, {cnt(C_PROG)}\ns_mov_b64 exec, 1\nbuffer_store_dword v{vT+5}, off, {WSR}, s{sTmp+1} sc1\ns_mov_b64 exec, -1")
        A("s_branch L_finish")
        for f in self.ool: f()

def emit_chain(A, nsteps=64, stamps=False, standalone=True, stamp_step=20):
    emit_setup(A, stamps)
    A(f"s_mov_b32 s{sStep}, -1")
    A(f"s_mov_b32 s{sKXo}, {WS_KX-(0 if OPT.fixkv else KVS())}\ns_mov_b32 s{sVTo}, {WS_VT-(0 if OPT.fixkv else KVS())}")
    A(f"s_lshl_b32 s{sTmp}, s{sH}, {17 if OPT.hs else 11}\ns_add_u32 s{sKMo}, s{sTmp}, {WS_KM-(0 if OPT.fixkm else KMS())}\ns_add_u32 s{sVMo}, s{sTmp}, {WS_VM-(0 if OPT.fixkm else KMS())}")
    A(f"s_sub_u32 s{sH2gat}, s{sH2}, {L_MEMT}")
    A(f"s_lshl_b32 s{sTmp+1}, s{sH}, {19 if OPT.hs else 13}\ns_add_u32 s{sTmp}, s{sTmp+1}, {2*KVS()}\ns_add_u32 s{sWarmK}, s{sTmp}, {WS_KX-L_MEMT*4}\ns_add_u32 s{sWarmV}, s{sTmp}, {WS_VT-L_MEMT*4}")
    if stamps: A(f"s_memtime s[94:95]\ns_waitcnt lgkmcnt(0)")
    variants=[("w0",0,None),("w1",1,4),("w2e",2,0),("w2o",2,1),("w3e",3,2),("w3o",3,3)]
    if OPT.commwave: variants=[("w0",0,None),("w1",1,4),("w2e",2,0),("w2o",2,1),("w3e",3,None)]
    A(f"""
s_cmp_eq_u32 s{sW}, 0
s_cbranch_scc1 L_pre_w0
s_cmp_eq_u32 s{sW}, 1
s_cbranch_scc1 L_pre_w1
s_and_b32 s{sTmp}, s{sH}, 1
s_lshl_b32 s{sTmp+1}, s{sW}, 1
s_add_u32 s{sTmp}, s{sTmp}, s{sTmp+1}
s_cmp_eq_u32 s{sTmp}, 4
s_cbranch_scc1 L_pre_w2e
s_cmp_eq_u32 s{sTmp}, 5
s_cbranch_scc1 L_pre_w2o
s_cmp_eq_u32 s{sTmp}, 6
s_cbranch_scc1 L_pre_w3e
s_branch {"L_pre_w3e" if OPT.commwave else "L_pre_w3o"}
""")
    A("L_code_begin:")
    nst=0
    for sid,w,rr in variants:
        st=Stream(A,w,rr,nsteps,stamps,stamp_step,sid); st.body(); nst=st.nst
    A("L_finish:")
    if stamps:
        A(f"s_memtime s[96:97]\ns_waitcnt vmcnt(0) lgkmcnt(0)\ns_sub_u32 s96, s96, s94")
        A(f"s_lshl_b32 s{sTmp}, s{sH}, 2\ns_add_u32 s{sTmp}, s{sTmp}, s{sW}\ns_lshl_b32 s{sTmp}, s{sTmp}, 7\ns_add_u32 s{sTmp}, s{sTmp}, {WS_STAMP}")
        A(f"v_mov_b32 v{vK}, s96\nv_mov_b32 v{vK+1}, s{sRetry}\nv_mov_b32 v{vK+2}, s{sRetry2}")
        A(f"s_sub_u32 s90, s90, s88\ns_sub_u32 s92, s92, s88\ns_sub_u32 s94, s94, s88\nv_mov_b32 v{vK+3}, s90\nv_mov_b32 v{vK+4}, s92\nv_mov_b32 v{vK+5}, s94\nv_mov_b32 v{vK+6}, 0\nv_mov_b32 v{vK+7}, 0")
        for i in range(16):
            A(f"v_mov_b32 v{vK+8+i}, s{sT0+2*i}")
        A(f"v_mov_b32 v{vT}, 0\ns_mov_b64 exec, 1")
        for j in range(6):
            A(f"buffer_store_dwordx4 {vr(vK+4*j,4)}, v{vT}, {WSR}, s{sTmp} offen offset:{16*j}")
        A("s_mov_b64 exec, -1")
        global STAMP_NAMES
        STAMP_NAMES=st.names
        print("stamps:",st.names)
    A("L_abort:\ns_waitcnt vmcnt(0)")
OPT.red_lag=1
```

```python
import os
import sys, os; sys.path.insert(0,'gen')
from asmlib import *
from layout import *
import role, chain3 as chain, workers as Wk, p4
NAME="parallel_sum__memory_aug_recurrent_mem_tr__mixer_token_mlp__prompt"
sT=Wk.sT; sA,sB,sC,sD=Wk.sA,Wk.sB,Wk.sC,Wk.sD; sW=Wk.sW; sRank=Wk.sRank; sWS=Wk.sWS
sTask=Wk.sTask
sPrev=47; sSeg=48; sKc=49
NW=224; NG=7
DESIGN = """;
"""
def build(chopt=""):
    for kv in chopt.split(";"):
        if "=" in kv:
            k,v=kv.split("="); setattr(chain.OPT,k,eval(v))
    chain.OPT.fused=True
    if os.environ.get("PROF","0")=="1": chain.OPT.steplog=True
    A=Asm()
    prof=os.environ.get("PROF","0") in ("1","2")
    if prof: A("s_memrealtime s[94:95]")
    if prof:
        def hook(A,r):
            l=A.uid("L_pf"); A(f"s_cmp_ge_u32 s{sTask}, {NW}\ns_cbranch_scc1 {l}\ns_memrealtime s[{r}:{r+1}]\n{l}:")
        Wk.PROFHOOK=hook
    role.emit_entry(A)
    A(f"s_cmp_ge_u32 s5, 32\ns_cbranch_scc1 L_exit\ns_cmp_eq_u32 s4, 0\ns_cbranch_scc0 L_work\ns_mov_b32 s{chain.sH}, s5")
    chain.emit_chain(A,nsteps=64,stamps=("total" if os.environ.get("PROF","0")=="2" else False))
    A("s_endpgm\nL_work:")
    A(f"s_sub_u32 s{sRank}, s4, 1\ns_lshl_b32 s{sRank}, s{sRank}, 5\ns_add_u32 s{sRank}, s{sRank}, s5")
    Wk.emit_worker_setup(A)
    if os.environ.get("WWARM","0")=="1":
        A(f"s_getpc_b64 s[66:67]\nv_lshlrev_b32 v120, 6, v0\ns_lshl_b32 s{sT}, s{sW}, 12\nv_add_u32 v120, s{sT}, v120")
        for j in range(3):
            A(f"global_load_dword v121, v120, s[66:67]\nv_add_u32 v120, 16384, v120")
    def wwarm(A):
        A(f"""
s_mul_i32 s{sT+4}, s{sRank}, 9363
s_lshr_b32 s{sT+4}, s{sT+4}, 16
s_mul_i32 s{sT+5}, s{sT+4}, 7
s_sub_u32 s{sT+5}, s{sRank}, s{sT+5}
s_lshr_b32 s{sT+6}, s{sT+4}, 4
s_lshl_b32 s{sT+6}, s{sT+6}, 3
s_add_u32 s{sT+6}, s{sT+6}, {KA_WK}
s_load_dwordx2 s[{Wk.sWSRC}:{Wk.sWSRC+1}], s[0:1], s{sT+6}
s_mov_b32 s{Wk.sWSRC+2}, {576*8192}
s_and_b32 s{sT+4}, s{sT+4}, 15
s_lshl_b32 s{sT+4}, s{sT+4}, 9
s_mul_i32 s{sT+5}, s{sT+5}, 660
s_lshl_b32 s{sT+6}, s{sW}, 6
s_add_u32 s{sT+5}, s{sT+5}, s{sT+6}
v_add_u32 v100, s{sT+5}, v0
s_waitcnt lgkmcnt(0)
""")
        for k in range(3):
            A(f"v_lshrrev_b32 v101, 3, v100\nv_lshlrev_b32 v101, 13, v101\nv_and_b32 v102, 7, v100\nv_lshl_add_u32 v101, v102, 6, v101")
            A(f"buffer_load_dword v103, v101, s[{Wk.sWSRC}:{Wk.sWSRC+3}], s{sT+4} offen\nv_add_u32 v100, 256, v100")
    Wk.emit_ln(A,NW,fused=True)
    if prof: A("s_memrealtime s[70:71]")
    A(f"s_mov_b32 s{sTask}, s{sRank}\ns_branch L_dispatch")
    A("L_next:")
    A(f"""
s_barrier
s_cmp_lg_u32 s{sW}, 0
s_cbranch_scc1 L_tk2
s_mov_b32 s60, {cnt(C_QUEUE)}
v_mov_b32 v1, 1
s_mov_b64 exec, 1
buffer_atomic_add v1, off, s[{sWS}:{sWS+3}], s60 sc0
s_waitcnt vmcnt(0)
v_mov_b32 v2, 160000
ds_write_b32 v2, v1
s_waitcnt lgkmcnt(0)
s_mov_b64 exec, -1
L_tk2:
s_barrier
v_mov_b32 v2, 160000
ds_read_b32 v1, v2
s_waitcnt lgkmcnt(0)
v_readfirstlane_b32 s{sTask}, v1
s_add_u32 s{sTask}, s{sTask}, {NW}
L_dispatch:
s_cmp_ge_u32 s{sTask}, 1196
s_cbranch_scc1 L_p4
s_cmp_lt_u32 s{sTask}, 256
s_cbranch_scc1 L_t_h
s_cmp_lt_u32 s{sTask}, 640
s_cbranch_scc1 L_t_kv
s_cmp_lt_u32 s{sTask}, 748
s_cbranch_scc1 L_t_g2
s_cmp_lt_u32 s{sTask}, 1004
s_cbranch_scc1 L_t_q
s_branch L_t_g3
L_t_q:
s_sub_u32 s{sT}, s{sTask}, 748
s_mov_b32 s{sA}, 0
s_lshr_b32 s{sB}, s{sT}, 4
s_and_b32 s{sC}, s{sT}, 15
s_branch L_t_g1
L_t_kv:
s_sub_u32 s{sT}, s{sTask}, 256
s_lshr_b32 s{sB}, s{sT}, 5
s_add_u32 s{sB}, s{sB}, 4
s_bfe_u32 s{sA}, s{sT}, 0x10004
s_add_u32 s{sA}, s{sA}, 1
s_and_b32 s{sC}, s{sT}, 15
L_t_g1:
""")
    def dep1(A):
        A(f"s_lshl_b32 s76, s{sB}, 7\ns_add_u32 s76, s76, {cnt(C_LN)}")
        Wk.wg_wait_cnt(A,"s76",128)
        if prof:
            l=A.uid("L_pf"); A(f"s_cmp_ge_u32 s{sTask}, {NW}\ns_cbranch_scc1 {l}\ns_memrealtime s[78:79]\n{l}:")
    Wk.emit_g1(A,dep1,warmx=False)
    if prof:
        l=A.uid("L_pf"); A(f"s_cmp_ge_u32 s{sTask}, {NW}\ns_cbranch_scc1 {l}\ns_memrealtime s[80:81]\n{l}:")
    A(f"s_cmp_eq_u32 s{sA}, 0\ns_cbranch_scc1 L_sig_q")
    A(f"s_lshl_b32 s{sT}, s{sB}, 7\ns_add_u32 s{sT}, s{sT}, {cnt(C_KV)}")
    Wk.wg_signal(A,f"s{sT}",2)
    A("s_branch L_next\nL_sig_q:")
    A(f"s_lshl_b32 s{sT}, s{sB}, 7\ns_add_u32 s{sT}, s{sT}, {cnt(C_Q)}")
    Wk.wg_signal(A,f"s{sT}",1)
    A("s_branch L_next\nL_t_h:")
    A(f"""
s_cmp_lt_u32 s{sTask}, 192
s_cbranch_scc0 L_t_h2
s_mul_i32 s{sT}, s{sTask}, 21846
s_lshr_b32 s{sT}, s{sT}, 16
s_mul_i32 s{sT+1}, s{sT}, 3
s_sub_u32 s{sB}, s{sTask}, s{sT+1}
s_branch L_t_h3
L_t_h2:
s_mov_b32 s{sB}, 3
s_sub_u32 s{sT}, s{sTask}, 192
L_t_h3:
s_lshr_b32 s{sA}, s{sT}, 5
s_add_u32 s{sA}, s{sA}, 1
s_and_b32 s{sC}, s{sT}, 31
""")
    Wk.emit_g1h(A,dep1)
    A(f"s_lshl_b32 s{sT}, s{sB}, 7\ns_add_u32 s{sT}, s{sT}, {cnt(C_KV)}")
    Wk.wg_signal(A,f"s{sT}",1)
    A("s_branch L_next\nL_t_g2:")
    A(f"s_sub_u32 s{sB}, s{sTask}, 640\ns_mul_i32 s{sA}, s{sB}, 1821\ns_lshr_b32 s{sA}, s{sA}, 16\ns_mul_i32 s{sT}, s{sA}, 36\ns_sub_u32 s{sB}, s{sB}, s{sT}")
    Wk.emit_g2(A,lambda A: Wk.wg_wait_multi(A,cnt(C_LN),16,128))
    A(f"s_mul_i32 s{sT}, s{sB}, 7282\ns_lshr_b32 s{sT}, s{sT}, 16\ns_lshl_b32 s{sT+1}, s{sA}, 2\ns_add_u32 s{sT}, s{sT}, s{sT+1}\ns_lshl_b32 s{sT}, s{sT}, 7\ns_add_u32 s{sT}, s{sT}, {cnt(C_U)}")
    for x in range(36): assert (x*7282)>>16==x//9
    Wk.wg_signal(A,f"s{sT}")
    A("s_branch L_next\nL_t_g3:")
    A(f"s_sub_u32 s{sT}, s{sTask}, 1004\ns_and_b32 s{sC}, s{sT}, 3\ns_bfe_u32 s{sB}, s{sT}, 0x40002\ns_lshr_b32 s{sA}, s{sT}, 6")
    def dep3(A):
        A(f"s_lshl_b32 s76, s{sA}, 2\ns_add_u32 s76, s76, s{sC}\ns_lshl_b32 s76, s76, 7\ns_add_u32 s76, s76, {cnt(C_U)}")
        Wk.wg_wait_cnt(A,"s76",9)
    Wk.emit_g3(A,dep3)
    A(f"s_lshl_b32 s{sT}, s{sB}, 7\ns_add_u32 s{sT}, s{sT}, {cnt(C_Y)}")
    Wk.wg_signal(A,f"s{sT}")
    A("s_branch L_next")
    A("L_p4:")
    if prof: A("s_memrealtime s[72:73]")
    A(f"s_and_b32 s{sA}, s{sRank}, 7\ns_bfe_u32 s{sB}, s{sRank}, 0x20003\ns_lshr_b32 s{sSeg}, s{sRank}, 5\ns_mov_b32 s{sPrev}, -1")
    p4.emit_p4_setup(A)
    Wk.srd_from_karg(A,Wk.sXS,KA_X,2048*1152); Wk.srd_from_karg(A,Wk.sWSRC,KA_OUT,2048*1152)
    Wk.wg_wait_multi(A,cnt(C_Q),16,16)
    Wk.wg_wait_multi(A,cnt(C_KV),16,64)
    Wk.wg_wait_multi(A,cnt(C_Y),16,12)
    def combine():
        skip=A.uid("L_cs")
        A(f"s_cmp_lt_i32 s{sPrev}, 0\ns_cbranch_scc1 {skip}")
        A(f"s_lshl_b32 s{sT}, s{sPrev}, 7\ns_add_u32 s{sT}, s{sT}, {cnt(C_SEG)}")
        Wk.wg_wait_cnt(A,f"s{sT}",32)
        A(f"s_lshl_b32 s{sT+8}, s{sA}, 2\ns_add_u32 s{sT+8}, s{sT+8}, s{sW}\ns_cmp_ge_u32 s{sT+8}, 18\ns_cbranch_scc1 {skip}")
        A(f"s_cmp_ge_u32 s{sT+8}, 9\ns_cselect_b32 s{sT+9}, 1, 0\ns_mul_i32 s{sT+10}, s{sT+9}, 9\ns_sub_u32 s{sT+8}, s{sT+8}, s{sT+10}")
        A(f"s_lshl_b32 s{sC}, s{sPrev}, 1\ns_add_u32 s{sC}, s{sC}, s{sT+9}\ns_mul_i32 s{sD}, s{sB}, 9\ns_add_u32 s{sD}, s{sD}, s{sT+8}")
        p4.emit_combine_tile(A)
        A(f"{skip}:")
    A("L_p4loop:")
    combine()
    A(f"s_mov_b32 s{sC}, s{sSeg}")
    def between(A):
        A(f"s_lshl_b32 s68, s{sA}, 9\ns_add_u32 s68, s68, {cnt(C_PROG)}\ns_add_u32 s69, s{sSeg}, 1")
        Wk.wg_wait_multi(A,"s68",4,"s69")
    p4.emit_p4_segment(A,0,between)
    A("s_waitcnt vmcnt(0)")
    A(f"s_lshl_b32 s{sT}, s{sSeg}, 7\ns_add_u32 s{sT}, s{sT}, {cnt(C_SEG)}")
    Wk.wg_signal(A,f"s{sT}")
    A(f"s_mov_b32 s{sPrev}, s{sSeg}\ns_add_u32 s{sSeg}, s{sSeg}, {NG}\ns_cmp_lt_u32 s{sSeg}, 64\ns_nop 7\ns_cbranch_scc1 L_p4loop")
    combine()
    A("L_abortw:\ns_waitcnt vmcnt(0)")
    if prof:
        A(f"""s_memrealtime s[74:75]
s_load_dwordx2 s[6:7], s[0:1], {KA_WS}
s_waitcnt lgkmcnt(0)
s_add_u32 s6, s6, {WS_STAMP+0x10000}
s_addc_u32 s7, s7, 0
s_lshl_b32 s8, s{sRank}, 4
v_mov_b32 v1, s8
v_mov_b32 v2, s94
v_mov_b32 v3, s70
v_mov_b32 v4, s72
v_mov_b32 v5, s74
global_store_dwordx4 v1, v[2:5], s[6:7]
v_mov_b32 v6, s78
v_mov_b32 v7, s80
v_mov_b32 v8, s82
v_mov_b32 v9, s84
global_store_dwordx4 v1, v[6:9], s[6:7] offset:4000
s_waitcnt vmcnt(0)""")
    A("L_exit:\ns_endpgm")
    lines=fix_hazards(A.lines,True)
    if os.environ.get('ALIGN','0')!='0': lines=align_runs(lines,int(os.environ.get('ALIGN','3')),0,True)
    hdr=open('cdna_kernels/'+NAME+'.s.ref').read().split("; Override")[0]
    name=NAME+"_kernel"
    t=hdr+f"; @launch kernel={name} grid=(256,1,1) block=(256,1,1) lds=163840\n"
    t+=DESIGN
    t+=f'.amdgcn_target "amdgcn-amd-amdhsa--gfx950"\n.text\n.globl {name}\n.p2align 8\n.type {name},@function\n{name}:\n'
    t+="\n".join(lines)+"\n"
    t+=f""".section .rodata,"a"
.p2align 6
.amdhsa_kernel {name}
  .amdhsa_next_free_vgpr 512
  .amdhsa_next_free_sgpr 102
  .amdhsa_accum_offset 256
  .amdhsa_group_segment_fixed_size 0
  .amdhsa_kernarg_size 120
  .amdhsa_user_sgpr_count 2
  .amdhsa_user_sgpr_kernarg_segment_ptr 1
  .amdhsa_system_sgpr_workgroup_id_x 1
.end_amdhsa_kernel
"""
    return t
if __name__=="__main__":
    opt=os.environ.get("CHOPT","nred=2;red_gap=40;npoll=3;poll_gap=25;d_gat=60;d_red=[0,5,0,30,30];d_g1=[10,5];red_early=False;warmk=[7,8,9,10];kvmode='spread';ki=[0,1,3];prewarm=True;codewarm=0;nb=4")
    open(sys.argv[1],"w").write(build(opt))
```
